```python
import torch

def _softmax(x, axis=-1):
    return torch.softmax(x, dim=axis)
def _gelu(x):
    return torch.nn.functional.gelu(x, approximate="tanh")
def _silu(x):
    return torch.nn.functional.silu(x)
def _sigmoid(x):
    return torch.sigmoid(x)
def _layernorm(x, axis=-1, eps=1e-5):
    m = x.mean(dim=axis, keepdim=True)
    v = x.var(dim=axis, keepdim=True, unbiased=False)
    return (x - m) / torch.sqrt(v + eps)
def _scatter_add(tgt, idx, src, axis=0):
    return tgt.clone().index_add_(axis, idx, src)
def _segment_sum(src, seg, n):
    out = torch.zeros((n,) + src.shape[1:], dtype=src.dtype)
    return out.index_add_(0, seg, src)
def _pad(x, pw):
    flat = tuple(v for pair in reversed(pw) for v in pair)
    return torch.nn.functional.pad(x, flat)

kernel_name = 'interleave_layers__spectral_fnet__spectral_fnet__prompt'

def setup_inputs():

    _w = (lambda a: (lambda t: t.to(torch.bfloat16) if t.is_floating_point() else t)(torch.as_tensor(a)))
    def _A_setup():
        B, S, D = 1, 2048, 640
        ns = torch.arange(S)[:, None] * torch.arange(S)[None, :]
        nd = torch.arange(D)[:, None] * torch.arange(D)[None, :]
        Ws_re = torch.cos(-2.0 * torch.pi * ns / S).to(float)
        Ws_im = torch.sin(-2.0 * torch.pi * ns / S).to(float)
        Wd_re = torch.cos(-2.0 * torch.pi * nd / D).to(float)
        Wd_im = torch.sin(-2.0 * torch.pi * nd / D).to(float)
        return {
            "x": _w((lambda *s: torch.randn(*s, dtype=torch.bfloat16) * 0.05)(B, S, D)),
            "dft_seq_re": _w(Ws_re),
            "dft_seq_im": _w(Ws_im),
            "dft_hid_re": _w(Wd_re),
            "dft_hid_im": _w(Wd_im),
        }
    _A_in = _A_setup()

    def _B_setup():
        B, S, D = 1, 2048, 640
        ns = torch.arange(S)[:, None] * torch.arange(S)[None, :]
        nd = torch.arange(D)[:, None] * torch.arange(D)[None, :]
        Ws_re = torch.cos(-2.0 * torch.pi * ns / S).to(float)
        Ws_im = torch.sin(-2.0 * torch.pi * ns / S).to(float)
        Wd_re = torch.cos(-2.0 * torch.pi * nd / D).to(float)
        Wd_im = torch.sin(-2.0 * torch.pi * nd / D).to(float)
        return {
            "x": _w((lambda *s: torch.randn(*s, dtype=torch.bfloat16) * 0.05)(B, S, D)),
            "dft_seq_re": _w(Ws_re),
            "dft_seq_im": _w(Ws_im),
            "dft_hid_re": _w(Wd_re),
            "dft_hid_im": _w(Wd_im),
        }
    _B_in = _B_setup()

    return {
        "A_x": _A_in["x"],
        "A_dft_seq_re": _A_in["dft_seq_re"],
        "A_dft_seq_im": _A_in["dft_seq_im"],
        "A_dft_hid_re": _A_in["dft_hid_re"],
        "A_dft_hid_im": _A_in["dft_hid_im"],
        "B_x": _B_in["x"],
        "B_dft_seq_re": _B_in["dft_seq_re"],
        "B_dft_seq_im": _B_in["dft_seq_im"],
        "B_dft_hid_re": _B_in["dft_hid_re"],
        "B_dft_hid_im": _B_in["dft_hid_im"],
    }

def reference(A_x, A_dft_seq_re, A_dft_seq_im, A_dft_hid_re, A_dft_hid_im, B_x, B_dft_seq_re, B_dft_seq_im, B_dft_hid_re, B_dft_hid_im):
    def _A_ref(x, dft_seq_re, dft_seq_im, dft_hid_re, dft_hid_im):
        a = torch.einsum("bsd,ed->bse", x, dft_hid_re)
        b = torch.einsum("bsd,ed->bse", x, dft_hid_im)
        y = torch.einsum("ts,bse->bte", dft_seq_re, a) - torch.einsum("ts,bse->bte", dft_seq_im, b)
        return y

    def _B_ref(x, dft_seq_re, dft_seq_im, dft_hid_re, dft_hid_im):
        a = torch.einsum("bsd,ed->bse", x, dft_hid_re)
        b = torch.einsum("bsd,ed->bse", x, dft_hid_im)
        y = torch.einsum("ts,bse->bte", dft_seq_re, a) - torch.einsum("ts,bse->bte", dft_seq_im, b)
        return y

    x = A_x
    x = x + _A_ref(_layernorm(x, axis=-1), A_dft_seq_re, A_dft_seq_im, A_dft_hid_re, A_dft_hid_im)
    x = x + _B_ref(_layernorm(x, axis=-1), B_dft_seq_re, B_dft_seq_im, B_dft_hid_re, B_dft_hid_im)
    x = x + _A_ref(_layernorm(x, axis=-1), A_dft_seq_re, A_dft_seq_im, A_dft_hid_re, A_dft_hid_im)
    x = x + _B_ref(_layernorm(x, axis=-1), B_dft_seq_re, B_dft_seq_im, B_dft_hid_re, B_dft_hid_im)
    return x
```

```python
import sys
delta = float(sys.argv[1]) if len(sys.argv)>1 else 0.0
nempty = int(sys.argv[2]) if len(sys.argv)>2 else 0
out = sys.argv[3] if len(sys.argv)>3 else 'naive.s'
import struct
def f2u(f): return struct.unpack('<I', struct.pack('<f', f))[0]
L=[]
hdr = ["; naive exact-DFT probe"]
def launch(k,g,b): hdr.append(f"; @launch kernel={k} grid=({g},1,1) block=({b},1,1) lds=0")
launch('init_kernel',2048,640)
for l in range(4):
    launch('ln_kernel',2048,64); launch('d_kernel',2048,640); launch('s_kernel',2048,640)
for i in range(nempty): launch('empty_kernel',256,64)
launch('fin_kernel',2048,640)
A = L.append
A('.amdgcn_target "amdgcn-amd-amdhsa--gfx950"')
A('.text')
XB=0; XN=0x800000; AA=0x1000000; BB=0x1800000
def start(name):
    A(f'.globl {name}\n.p2align 8\n.type {name},@function\n{name}:')
    A('  s_cmp_ge_u32 s2, 2048\n  s_cbranch_scc1 L_end_%s'%name)
    A('  s_load_dwordx2 s[4:5], s[0:1], 0\n  s_load_dwordx2 s[6:7], s[0:1], 80\n  s_load_dwordx2 s[8:9], s[0:1], 96\n  s_waitcnt lgkmcnt(0)')
    A('  s_mov_b32 s12, s8\n  s_mov_b32 s13, s9\n  s_mov_b32 s14, 0x2000000\n  s_mov_b32 s15, 0x20000')
    A('  s_mul_i32 s3, s2, 2560')
def end(name):
    A(f'L_end_{name}:\n  s_endpgm')
start('init_kernel')
A('''  s_mov_b32 s16, s4
  s_mov_b32 s17, s5
  s_mov_b32 s18, 2621440
  s_mov_b32 s19, 0x20000
  s_mul_i32 s20, s2, 1280
  v_lshlrev_b32 v1, 1, v0
  buffer_load_ushort v2, v1, s[16:19], s20 offen
  v_lshlrev_b32 v3, 2, v0
  s_waitcnt vmcnt(0)
  v_lshlrev_b32 v2, 16, v2
  buffer_store_dword v2, v3, s[12:15], s3 offen''')
end('init_kernel')
start('fin_kernel')
A(f'''  s_mov_b32 s16, s6
  s_mov_b32 s17, s7
  s_mov_b32 s18, 2621440
  s_mov_b32 s19, 0x20000
  s_mul_i32 s20, s2, 1280
  v_lshlrev_b32 v1, 1, v0
  v_lshlrev_b32 v3, 2, v0
  buffer_load_dword v2, v3, s[12:15], s3 offen
  s_waitcnt vmcnt(0)
  v_mul_f32 v2, 0x{f2u(1.0+delta):08x}, v2
  v_cvt_pk_bf16_f32 v2, v2, v2
  buffer_store_short v2, v1, s[16:19], s20 offen''')
end('fin_kernel')
start('ln_kernel')
A('  v_lshlrev_b32 v1, 2, v0')
for j in range(10): A(f'  buffer_load_dword v{10+j}, v1, s[12:15], s3 offen offset:{j*256}')
A('  s_waitcnt vmcnt(0)\n  v_mov_b32 v2, 0')
for j in range(10): A(f'  v_add_f32 v2, v2, v{10+j}')
def wsum(r):
    for off in (0x041F,0x081F,0x101F,0x201F,0x401F):
        A(f'  ds_swizzle_b32 v5, {r} offset:{off:#x}\n  s_waitcnt lgkmcnt(0)\n  v_add_f32 {r}, {r}, v5')
    A(f'  s_nop 1\n  v_readlane_b32 s22, {r}, 32\n  v_readlane_b32 s23, {r}, 0\n  s_nop 3\n  v_mov_b32 {r}, s22\n  v_add_f32 {r}, s23, {r}')
wsum('v2')
A(f'  v_mul_f32 v2, 0x{f2u(1/640):08x}, v2\n  v_mov_b32 v3, 0')
for j in range(10): A(f'  v_sub_f32 v{10+j}, v{10+j}, v2\n  v_fmac_f32 v3, v{10+j}, v{10+j}')
wsum('v3')
A(f'  v_mul_f32 v3, 0x{f2u(1/640):08x}, v3\n  v_add_f32 v3, 0x{f2u(1e-5):08x}, v3\n  v_rsq_f32 v3, v3\n  s_nop 1')
A(f'  s_add_u32 s21, s3, {XN}')
for j in range(10): A(f'  v_mul_f32 v{10+j}, v{10+j}, v3\n  buffer_store_dword v{10+j}, v1, s[12:15], s21 offen offset:{j*256}')
end('ln_kernel')
start('d_kernel')
A(f'''  s_add_u32 s24, s8, {XN}
  s_addc_u32 s25, s9, 0
  s_add_u32 s24, s24, s3
  s_addc_u32 s25, s25, 0
  v_mov_b32 v2, 0
  v_mov_b32 v3, 0
  v_mov_b32 v4, 0
  s_mov_b32 s26, 0
  s_movk_i32 s27, 640
L_d:
  s_load_dwordx8 s[32:39], s[24:25], s26
  s_waitcnt lgkmcnt(0)''')
for j in range(8):
    A(f'''  v_cvt_f32_u32 v5, v4
  v_mul_f32 v5, 0x{f2u(1/640):08x}, v5
  v_cos_f32 v6, v5
  v_sin_f32 v7, v5
  v_add_u32 v4, v4, v0
  v_fmac_f32 v2, s{32+j}, v6
  v_fmac_f32 v3, s{32+j}, v7
  v_subrev_u32 v8, s27, v4
  v_min_u32 v4, v4, v8''')
A(f'''  s_add_u32 s26, s26, 32
  s_cmp_lt_u32 s26, 2560
  s_cbranch_scc1 L_d
  v_lshlrev_b32 v1, 2, v0
  s_add_u32 s21, s3, {AA}
  buffer_store_dword v2, v1, s[12:15], s21 offen
  s_add_u32 s21, s3, {BB}
  buffer_store_dword v3, v1, s[12:15], s21 offen''')
end('d_kernel')
start('s_kernel')
A(f'''  v_lshlrev_b32 v1, 2, v0
  v_mov_b32 v2, 0
  s_mov_b32 s26, {AA}
  s_mov_b32 s27, {BB}
  s_mov_b32 s28, 0
  s_mov_b32 s29, 0
L_s:''')
for j in range(8):
    A(f'''  buffer_load_dword v{10+j}, v1, s[12:15], s26 offen
  buffer_load_dword v{20+j}, v1, s[12:15], s27 offen
  s_add_u32 s26, s26, 2560
  s_add_u32 s27, s27, 2560''')
for j in range(8):
    A(f'''  v_cvt_f32_u32 v5, s28
  v_mul_f32 v5, 0x{f2u(1/2048):08x}, v5
  v_cos_f32 v{30+j}, v5
  v_sin_f32 v{40+j}, v5
  s_add_u32 s28, s28, s2
  s_and_b32 s28, s28, 2047''')
A('  s_waitcnt vmcnt(0)')
for j in range(8):
    A(f'  v_fmac_f32 v2, v{30+j}, v{10+j}\n  v_fma_f32 v2, -v{40+j}, v{20+j}, v2')
A(f'''  s_add_u32 s29, s29, 8
  s_cmp_lt_u32 s29, 2048
  s_cbranch_scc1 L_s
  buffer_load_dword v3, v1, s[12:15], s3 offen
  s_waitcnt vmcnt(0)
  v_add_f32 v3, v3, v2
  buffer_store_dword v3, v1, s[12:15], s3 offen''')
end('s_kernel')
A('.globl empty_kernel\n.p2align 8\n.type empty_kernel,@function\nempty_kernel:\n  s_endpgm')
A('.section .rodata,"a"')
for k in ['init_kernel','fin_kernel','ln_kernel','d_kernel','s_kernel','empty_kernel']:
    A(f'''.p2align 6
.amdhsa_kernel {k}
  .amdhsa_next_free_vgpr 64
  .amdhsa_next_free_sgpr 64
  .amdhsa_accum_offset 64
  .amdhsa_group_segment_fixed_size 0
  .amdhsa_kernarg_size 104
  .amdhsa_user_sgpr_count 2
  .amdhsa_user_sgpr_kernarg_segment_ptr 1
  .amdhsa_system_sgpr_workgroup_id_x 1
.end_amdhsa_kernel''')
open(out,'w').write('\n'.join(hdr)+'\n'+'\n'.join(L)+'\n')
```

```python
import re
REG = re.compile(r'^(-|\|)?([vsa])(\d+)$')
RNG = re.compile(r'^(-)?([vsa])\[(\d+):(\d+)\]$')
TRANS = ('v_exp_f32','v_log_f32','v_rcp_f32','v_rsq_f32','v_sqrt_f32','v_sin_f32','v_cos_f32')
def regs_of(tok):
    tok = tok.strip()
    m = REG.match(tok)
    if m: return {(m.group(2), int(m.group(3)))}
    m = RNG.match(tok)
    if m: return {(m.group(2), i) for i in range(int(m.group(3)), int(m.group(4))+1)}
    if tok == 'vcc': return {('s', 106), ('s', 107)}
    if tok == 'exec': return {('s', 126), ('s', 127)}
    if tok == 'exec_lo': return {('s', 126)}
    if tok == 'exec_hi': return {('s', 127)}
    if tok == 'm0': return {('s', 124)}
    return set()
class Ins:
    def __init__(self, text):
        self.text = text
        t = text.split(';')[0].strip()
        self.label = t.endswith(':')
        self.op = t.split()[0] if t and not self.label else ''
        rest = t[len(self.op):].strip()
        toks = [x.strip() for x in re.split(r',(?![^\[]*\])', rest)] if rest else []
        if toks:
            last = toks[-1].split()
            toks[-1] = last[0] if last else ''
            self.mods = ' '.join(last[1:])
        else: self.mods = ''
        self.toks = toks
        op = self.op
        self.w = set(); self.r = set(); self.srcc = set(); self.ab = set()
        self.mfma = op.startswith('v_mfma')
        self.valu = op.startswith('v_') and not self.mfma
        self.trans = op.replace('_e32','').replace('_e64','') in TRANS
        self.perm = op.startswith('v_permlane')
        self.dpp = op.endswith('_dpp') or 'row_' in self.mods or 'quad_perm' in self.mods
        self.rdlane = op.startswith('v_readlane') or op.startswith('v_readfirstlane')
        self.vmem = op.startswith('buffer_') or op.startswith('global_')
        self.ds = op.startswith('ds_')
        self.salu = op.startswith('s_')
        self.widestore = self.vmem and 'store' in op and ('x3' in op or 'x4' in op)
        R = [regs_of(x) for x in toks]
        if self.mfma:
            self.w = R[0]; self.ab = R[1] | R[2]; self.srcc = R[3]; self.r = self.ab | self.srcc
        elif self.valu:
            if op.startswith('v_swap') or self.perm:
                self.w = R[0] | R[1]; self.r = R[0] | R[1]
            else:
                self.w = set(R[0]);
                for x in R[1:]: self.r |= x
                if op.startswith('v_fmac') or op.startswith('v_writelane') or op.startswith('v_pk_fmac'): self.r |= R[0]
                if op.startswith('v_cndmask') and len(toks) == 3: self.r |= regs_of('vcc')
        elif self.ds:
            if 'read' in op:
                self.w = R[0]; self.r = R[1] | (R[0] if 'd16' in op else set())
            else:
                for x in R: self.r |= x
        elif self.vmem:
            if 'load' in op:
                self.w = R[0]
                for x in R[1:]: self.r |= x
            else:
                for x in R: self.r |= x
            self.sdata = R[0] if op.startswith('buffer_') else (R[1] if len(R) > 1 else set())
        elif self.salu:
            if op in ('s_nop','s_waitcnt','s_barrier','s_endpgm','s_sleep','s_setprio') or op.startswith('s_cbranch') or op == 's_branch':
                pass
            elif op.startswith('s_cmp') or op.startswith('s_bitcmp'):
                for x in R: self.r |= x
            else:
                self.w = set(R[0])
                for x in R[1:]: self.r |= x
    def states(self):
        if self.label or not self.op: return 0
        if self.op == 's_nop': return int(self.toks[0], 0) + 1
        return 1
def vg(s): return {x for x in s if x[0] in 'va'}
def sg(s): return {x for x in s if x[0] == 's'}
def need(p, c):
    n = 0
    cv_r, cv_w = vg(c.r), vg(c.w)
    if p.valu:
        pw = vg(p.w); ps = sg(p.w)
        if c.mfma and pw & cv_r: n = max(n, 2)
        if c.perm and pw & cv_r: n = max(n, 2)
        if c.dpp and pw & cv_r: n = max(n, 2)
        if c.rdlane and pw & cv_r: n = max(n, 1)
        if p.trans and c.valu and not c.trans and pw & cv_r: n = max(n, 1)
        if p.trans and c.mfma and pw & cv_r: n = max(n, 2)
        if ps:
            if c.vmem and ps & sg(c.r): n = max(n, 5)
            if c.valu and ps & sg(c.r): n = max(n, 4 if (c.op.startswith('v_writelane') or c.op.startswith('v_readlane')) else 2)
            if c.salu and ps & sg(c.r): n = max(n, 1)
            if c.op.startswith('s_cbranch_vcc') and ps & regs_of('vcc'): n = max(n, 1)
    if p.mfma:
        if c.mfma:
            if p.w & c.ab: n = max(n, 8)
            if p.w & c.srcc and p.w != c.srcc: n = max(n, 6)
            if p.w & c.w and not (p.w == c.srcc and c.w == p.w): n = max(n, 6)
        else:
            if (c.valu or c.vmem or c.ds) and (p.w & (cv_r | cv_w)): n = max(n, 8)
            if c.valu and (p.srcc & cv_w): n = max(n, 3)
    if p.widestore and (c.valu or c.mfma) and (p.sdata & cv_w): n = max(n, 2)
    if p.widestore and (c.vmem or c.ds) and (p.sdata & cv_w): n = max(n, 1)
    if p.ds and 'write' in p.op and ('b128' in p.op or 'b96' in p.op) and c.valu and (vg(p.r) & cv_w): n = max(n, 0)
    return n
class Asm:
    def __init__(self):
        self.ins = []
        self.nops = 0
    def __call__(self, text):
        for line in text.split('\n'):
            line = line.strip()
            if not line or line.startswith(';'): continue
            c = Ins(line)
            if not c.label and c.op:
                req = 0; dist = 0
                for p in reversed(self.ins):
                    if dist >= 12: break
                    if p.op and not p.label:
                        k = need(p, c)
                        if k - dist > req: req = k - dist
                    dist += p.states()
                if req > 0:
                    self.ins.append(Ins(f's_nop {req-1}')); self.nops += 1
            self.ins.append(c)
    def text(self):
        return '\n'.join(('' if i.label else '  ') + i.text for i in self.ins) + '\n'
```

```python
import numpy as np
S, D = 2048, 640
HSCALE = 8.0

def s0_of(sig):
    return [0, 1, 2, 13, 4, 5, 6, 9][sig]

def unit_g(sig, m):
    if sig == 0:
        return 16*m if m < 16 else 8 + 16*(m-16)
    return s0_of(sig) + 16*m

def is_special(sig, m): return sig == 0 and m == 0

def rows_of(sig, m):
    g = unit_g(sig, m)
    a = [g + 512*j for j in range(4)]
    if is_special(sig, m):
        b = [256 + 512*j for j in range(4)]
    else:
        b = [((-g) % 512) + 512*j for j in range(4)]
    return [a, b]

def slot_cr(kappa):
    if kappa < 256:
        l, j = divmod(kappa, 4)
        c, mq = l % 16, l // 16
        r = 2*mq + j if j < 2 else 8 + 2*mq + (j-2)
    else:
        l, j = divmod(kappa-256, 2)
        c, mq = l % 16, l // 16
        r = 16 + 2*mq + j
    return c, r

def seg_e(q, kappa):
    c, r = slot_cr(kappa)
    if q == 3: return c + 16*(r+20)
    if q < 2 and kappa == 0: return 320
    return c + 16*r

def seg_t2(q): return [0, 2, 1, 1][q]

def src_of(sig, m):
    g = unit_g(sig, m); tp = g % 128; t2 = tp % 4
    if t2 == 1:
        return [(2, tp//4), (3, tp//4)]
    q = 0 if t2 == 0 else 1
    return [(q, tp//4), (q, ((-g) % 128)//4)]

def acol(sig, m, h, kappa):
    g = unit_g(sig, m)
    (q, _t1) = src_of(sig, m)[h]
    e = seg_e(q, kappa)
    if g % 4 == 1: return e
    if h == 0: return e
    if kappa == 0: return 0
    return (-e) % D

def t0_of(sig, m, h, st, j):
    g = unit_g(sig, m); rows = rows_of(sig, m)
    row = rows[st][j]
    direct = (g % 4 == 1) or h == 0
    if st == 1: direct = not direct
    t = row if direct else (-row) % S
    (q, t1) = src_of(sig, m)[h]
    assert t % 128 == seg_t2(q) + 4*t1, (sig, m, h, st, j, t)
    return t // 128

def A3(sig, m):
    A = np.zeros((16, 32))
    for mq in range(4):
        h, st = divmod(mq, 2)
        for j in range(4):
            t0 = t0_of(sig, m, h, st, j)
            for sg in range(8):
                k = 16*h + 2*sg
                if sg == 0:
                    A[4*mq+j, k] = 1.0; A[4*mq+j, k+1] = (-1.0)**t0
                else:
                    th = 2*np.pi*((t0*s0_of(sg)) % 16)/16
                    A[4*mq+j, k] = np.cos(th); A[4*mq+j, k+1] = np.sin(th)
    return A

def s1_coef(special):
    co = np.zeros((2, 6, 2, 2, 4)); de = np.zeros((2, 6, 2, 2, 4))
    if not special:
        base = np.array([[1,0,-1,0],[0,-1,0,1],[1,1,1,1],[0,0,0,0],[1,-1,1,-1],[0,0,0,0]], float)
        for h in range(2):
            for st in range(2):
                co[h, :, h, st, :] = base if st == 0 else base[:, ::-1]
        return co, de
    for oi, t2 in enumerate([1, 0, 2]):
        for st in range(2):
            for j in range(4):
                jp = 2*j + st
                cA = 0.5*(np.exp(-2j*np.pi*t2*jp/8) + 1j*np.exp(-2j*np.pi*(t2+4)*jp/8))
                cB = 0.5*(np.exp(2j*np.pi*t2*jp/8) + 1j*np.exp(2j*np.pi*(t2+4)*jp/8))
                for h in range(2):
                    h_same = h if st == 0 else h ^ 1
                    h_mirr = h_same ^ 1
                    co[h, 2*oi, h_same, st, j] += cA.real; co[h, 2*oi+1, h_same, st, j] += cA.imag
                    co[h, 2*oi, h_mirr, st, j] += cB.real; co[h, 2*oi+1, h_mirr, st, j] += cB.imag
                    want = np.zeros((2, 2)); have = np.zeros((2, 2))
                    want[h] = [(cA+cB).real, (cA+cB).imag]
                    have[h_same] += [cA.real, cA.imag]; have[h_mirr] += [cB.real, cB.imag]
                    for hi in range(2):
                        de[h, 2*oi, hi, st, j] = want[hi, 0]-have[hi, 0]
                        de[h, 2*oi+1, hi, st, j] = want[hi, 1]-have[hi, 1]
    return co, de

def S1_mats(special):
    co, de = s1_coef(special)
    def build(cf):
        AB = np.zeros((16, 32)); C = [np.zeros((16, 32)), np.zeros((16, 32))]
        for ho in range(2):
            for sub in range(2):
                for hi in range(2):
                    for st in range(2):
                        for j in range(4):
                            k = 8*(2*hi+st) + 4*sub + j
                            for o in range(4):
                                AB[4*(2*ho+sub)+o, k] = cf[ho, o, hi, st, j]
                            for bop in range(2):
                                for ri in range(2):
                                    C[bop][4*(2*bop+ho) + 2*sub + ri, k] = cf[ho, 4+ri, hi, st, j]
        return AB, C[0], C[1]
    AB, C0, C1 = build(co)
    dAB, dC0, _ = build(de)
    for ho in range(2):
        dAB[4*(2*ho+1):4*(2*ho+1)+4, :] = 0
        dC0[4*ho+2:4*ho+4, :] = 0
    return AB, C0, C1, dAB, dC0

def B1_mats():
    Bre = np.zeros((32, 16)); Bim = np.zeros((32, 16))
    for b in range(16):
        for c in range(16):
            th = 2*np.pi*((b*c) % 16)/16
            Bre[2*b, c] = np.cos(th); Bre[2*b+1, c] = np.sin(th)
            Bim[2*b, c] = -np.sin(th); Bim[2*b+1, c] = np.cos(th)
    return Bre, Bim

def twiddles():
    co = np.zeros((3, 64, 4)); si = np.zeros((3, 64, 4))
    for blk in range(3):
        for l in range(64):
            c, mq = l % 16, l//16
            for i in range(4):
                a = 16*blk + 4*mq + i
                if a < 40:
                    th = 2*np.pi*((a*c) % 640)/640
                    co[blk, l, i] = np.cos(th); si[blk, l, i] = np.sin(th)
    return co, si

def A2_mats(r0):
    out = np.zeros((3, 3, 16, 32))
    for blk in range(3):
        for ch in range(3):
            for mm in range(16):
                mq, rr, rio = mm//4, (mm % 4)//2, mm % 2
                r = r0 + 8*blk + 2*mq + rr
                for kq in range(4):
                    for i in range(4):
                        a = 16*ch + 4*kq + i
                        if a >= 40: continue
                        th = 2*np.pi*((r*a) % 40)/40
                        k = 8*kq + 2*i
                        if rio == 0:
                            out[blk, ch, mm, k] = np.cos(th); out[blk, ch, mm, k+1] = np.sin(th)
                        else:
                            out[blk, ch, mm, k] = -np.sin(th); out[blk, ch, mm, k+1] = np.cos(th)
    return out

def C_mats(sig, q):
    t2 = seg_t2(q)
    out = np.zeros((2, 2, 2, 32, 16))
    for hi in range(2):
        for n in range(16):
            t1 = 16*hi + n; tp = t2 + 4*t1
            for p in range(32):
                ch, k = p//16, 2*(p % 16)
                g = unit_g(sig, p)
                th = 2*np.pi*((tp*g) % S)/S
                c_, s_ = np.cos(th), np.sin(th)
                if sig != 0:
                    out[hi, 0, ch, k, n] = c_; out[hi, 0, ch, k+1, n] = s_
                    out[hi, 1, ch, k, n] = -s_; out[hi, 1, ch, k+1, n] = c_
                elif p == 0:
                    out[hi, 0, ch, k + (t1 & 1), n] = 1.0
                else:
                    rio = 0 if p < 16 else 1
                    out[hi, rio, ch, k, n] = c_; out[hi, rio, ch, k+1, n] = s_
    return out / HSCALE
```

```python
import sys, struct
import numpy as np
from design import *
from asmlib import Asm

KNAME = "interleave_layers__spectral_fnet__spectral_fnet__prompt_kernel"
opts = dict(a.split('=') for a in sys.argv[2:] if '=' in a)
STAMPS = int(opts.get('stamps', 0))
FORCE_SLOW = int(opts.get('slow', 0))
NLAYER = int(opts.get('layers', 4))
SPIN = int(opts.get('spin', 200000))

def f2u(f): return struct.unpack('<I', struct.pack('<f', f))[0]
BUF = 1310720
H1STR = 0x200000; H2BASE = 0x400000; WS_BYTES = H2BASE + 5*BUF
STAMP_OFF = WS_BYTES
if STAMPS: WS_BYTES += 256*128
L_V = 0; L_ST = 9600; L_MODE = 9920; L_RT = 9984; L_XT = 15360; LDS_BYTES = 25600
def vaddr(col): return (col % 40)*80 + (col//40)*4
def opA(M):
    h = M.astype(np.float16).view(np.uint16).astype(np.uint32)
    out = np.zeros((64, 4), np.uint32)
    for l in range(64):
        r = h[l % 16, 8*(l//16):8*(l//16)+8]
        out[l] = r[0::2] | (r[1::2] << 16)
    return out
def opB(N): return opA(N.T)
blocks = []
def add(b): blocks.append(np.asarray(b, np.uint32).reshape(64, 4)); return len(blocks)-1
n_ = S1_mats(False); s_ = S1_mats(True)
T_S1N = add(opA(n_[0])); add(opA(n_[1])); add(opA(n_[2]))
T_S1S = add(opA(s_[0])); add(opA(s_[1])); add(opA(s_[2])); T_DEL = add(opA(s_[3])); add(opA(s_[4]))
Bre, Bim = B1_mats(); T_B1 = add(opB(Bre)); add(opB(Bim))
tc, ts = twiddles()
T_TW = len(blocks)
for arr in (tc, ts):
    for blk in range(3): add(arr[blk].astype(np.float32).view(np.uint32))
T_A2 = len(blocks)
for r0 in (0, 20):
    M = A2_mats(r0)/HSCALE
    for blk in range(3):
        for ch in range(3): add(opA(M[blk, ch]))
def a3_idx(sig, m):
    g = unit_g(sig, m)
    if g == 0: return 9
    if g == 128: return 8
    return (g >> 7) + (0 if g % 4 == 1 else 4)
a3 = {}
for sig in range(8):
    for m in range(32):
        M = A3(sig, m)*HSCALE; i = a3_idx(sig, m)
        if i in a3: assert np.allclose(a3[i], M), (sig, m)
        a3[i] = M
T_A3 = len(blocks)
for i in range(10): add(opA(a3[i]))
T_ADDR = len(blocks)
for (sig, m) in ((2, 1), (1, 0)):
    t = np.zeros((320, 8), np.uint32)
    for tid in range(320):
        w, l = divmod(tid, 64); n, mq = l % 16, l//16
        h, st = divmod(mq, 2)
        for kl in range(4):
            col = acol(sig, m, h, 64*w+4*n+kl)
            if st: col = (-col) % D
            t[tid, kl] = L_XT + st*5120 + col*2
        for bop in range(2):
            t[tid, 4+bop] = L_V + vaddr(acol(sig, m, mq//2, 64*w+4*n+2*bop+(mq % 2)))
        for sub in range(2):
            t[tid, 6+sub] = L_V + 6400 + vaddr(acol(sig, m, mq % 2, 64*w+4*n+2*(mq//2)+sub))
    p = (t[:, 0::2] | (t[:, 1::2] << 16)).reshape(5, 64, 4)
    for w in range(5): add(p[w])
for sig in range(8):
    for m in range(32):
        ref = (1, 0) if unit_g(sig, m) % 4 == 1 else (2, 1)
        assert all(acol(sig, m, h, k) == acol(ref[0], ref[1], h, k) for h in range(2) for k in range(0, 320, 7))
for tid in range(320):
    assert (tid*205) >> 14 == tid//80 and (tid*205) >> 11 == tid//10

vL16, vH1s2, vH2ld, vC1ld, vRtW, vRtR, vH2st, vStR, vStW = 1, 2, 3, 4, 5, 6, 7, 8, 9
vVAB, vVC, vVrd, vVrd2 = 10, 12, 14, 15
X = 16; A3r = 32; S1r = 36; B1r = 48; TWc = 56; TWs = 68; A2r = 80; CM = 116; DEL = 148
vXT = 156; vMask0 = 160; vGa = 161; vGb = 162; vH1c = 163; vZ = 164
T = 168
def vr(b, n=4): return f'v[{b}:{b+n-1}]'
sW, sSig, sM, sG, sType, sSpec, sLayer, sMode = 's3', 's4', 's5', 's26', 's27', 's28', 's29', 's30'
sH1st, sH1ld0, sH1ld1, sH2st, sH2ld, sTag, sFlip, sSpin = 's31', 's32', 's33', 's34', 's35', 's36', 's37', 's38'
sExp = 's39'
sInv, sEps = 's[40:41]', 's[42:43]'
SX, SO, SWS, SD, STB = 's[8:11]', 's[12:15]', 's[16:19]', 's[20:23]', 's[24:25]'
a = Asm()
nst = [0]
def stamp():
    if STAMPS:
        i = nst[0]; nst[0] += 1
        a(f's_memtime s[{60+2*i}:{61+2*i}]')
def tload(dst, blk, voff=None):
    off = blk*1024
    base = (off + 4096)//8192
    rel = off - base*8192
    a(f'global_load_dwordx4 {vr(dst)}, v{voff or vL16}, s[{TB[base]}:{TB[base]+1}] offset:{rel}')
TB = [24, 44, 46, 48, 50, 52, 54]

stamp()
a(f'''
s_load_dwordx2 s[8:9], s[0:1], 0
s_load_dwordx4 s[56:59], s[0:1], 80
s_load_dwordx2 s[16:17], s[0:1], 96
s_cmp_ge_u32 s2, 256
s_cbranch_scc1 L_end
s_getpc_b64 s[24:25]
s_add_u32 s24, s24, tbl@rel32@lo+4
s_addc_u32 s25, s25, tbl@rel32@hi+12
v_and_b32 v{T}, 63, v0
v_lshrrev_b32 v{T+1}, 6, v0
v_lshlrev_b32 v{vL16}, 4, v{T}
v_readfirstlane_b32 {sW}, v{T+1}
''')
for i in range(1, 7):
    a(f's_add_u32 s{TB[i]}, s24, {8192*i}\ns_addc_u32 s{TB[i]+1}, s25, 0')
a(f'''
s_and_b32 {sSig}, s2, 7
s_lshr_b32 {sM}, s2, 3
s_lshl_b32 s6, {sSig}, 2
s_lshr_b32 s6, 0x9654d210, s6
s_and_b32 s6, s6, 15
s_lshl_b32 {sG}, {sM}, 4
s_add_u32 {sG}, {sG}, s6
s_cmp_eq_u32 {sSig}, 0
s_cselect_b32 s7, 248, 0
s_cmp_ge_u32 {sM}, 16
s_cselect_b32 s7, s7, 0
s_sub_u32 {sG}, {sG}, s7
s_and_b32 {sType}, {sG}, 1
s_cmp_eq_u32 {sG}, 0
s_cselect_b32 {sSpec}, 1, 0
''')
a(f'''
s_mul_i32 s7, {sType}, 5120
v_lshlrev_b32 v{vRtR}, 4, v0
v_add_u32 v{T+2}, s7, v{vRtR}
''')
tload(T+4, T_ADDR, T+2)
a(f'''
s_lshr_b32 s7, {sG}, 7
s_lshl_b32 s92, {sType}, 2
s_sub_u32 s7, s7, s92
s_add_u32 s7, s7, 4
s_cmp_eq_u32 {sG}, 128
s_cselect_b32 s7, 8, s7
s_cmp_eq_u32 {sG}, 0
s_cselect_b32 s7, 9, s7
s_lshl_b32 s7, s7, 10
v_add_u32 v{T+3}, s7, v{vL16}
s_mul_i32 s7, {sSpec}, 3072
v_add_u32 v{T+8}, s7, v{vL16}
s_cmp_eq_u32 {sW}, 3
s_cselect_b32 s7, 9216, 0
v_add_u32 v{T+9}, s7, v{vL16}
''')
for i in range(3): tload(S1r+4*i, T_S1N+i, T+8)
tload(B1r, T_B1); tload(B1r+4, T_B1+1)
for i in range(6): tload(TWc+4*i, T_TW+i)
for i in range(9): tload(A2r+4*i, T_A2+i, T+9)
tload(DEL, T_DEL); tload(DEL+4, T_DEL+1)
tload(A3r, T_A3, T+3)
NTAB_AFTER_ADDR = 3+2+6+9+2+1
n_v, kq_v, j_v = T+10, T+11, T+12
a(f'''
v_and_b32 v{n_v}, 15, v0
v_bfe_u32 v{kq_v}, v0, 4, 2
v_mul_u32_u24 v{j_v}, 205, v0
v_lshrrev_b32 v{T+13}, 11, v{j_v}
v_lshrrev_b32 v{j_v}, 14, v{j_v}
v_mul_u32_u24 v{T+14}, 80, v{j_v}
v_sub_u32 v{T+14}, v0, v{T+14}
v_lshlrev_b32 v{T+14}, 4, v{T+14}
v_lshlrev_b32 v{T+15}, 9, v{j_v}
v_add_u32 v{T+15}, {sG}, v{T+15}
v_sub_u32 v{T+16}, 0, v{T+15}
v_and_b32 v{T+16}, 0x7ff, v{T+16}
v_add_u32 v{T+17}, 256, v{T+15}
s_cmp_eq_u32 {sSpec}, 1
s_cselect_b64 vcc, -1, 0
v_cndmask_b32 v{T+16}, v{T+16}, v{T+17}, vcc
s_movk_i32 s7, 1280
v_mad_u32_u24 v{vGa}, v{T+15}, s7, v{T+14}
v_mad_u32_u24 v{vGb}, v{T+16}, s7, v{T+14}
s_mov_b32 s7, 40960
v_mad_u32_u24 v{vH1c}, v{j_v}, s7, v{T+14}
v_mul_u32_u24 v{T+14}, 10, v{T+13}
v_sub_u32 v{T+14}, v0, v{T+14}
v_lshlrev_b32 v{T+14}, 4, v{T+14}
s_movk_i32 s7, 10240
v_mad_u32_u24 v{vH2st}, v{T+13}, s7, v{T+14}
v_mov_b32 v{vZ}, 0
v_mov_b32 v{vZ+1}, 0
v_mov_b32 v{vZ+2}, 0
v_mov_b32 v{vZ+3}, 0
''')
a(f'''
s_lshr_b32 s92, {sM}, 3
s_and_b32 s93, {sM}, 7
s_mul_i32 s93, s93, 160
s_lshl_b32 s94, {sSig}, 7
s_add_u32 s95, s94, {sM}
s_mul_i32 s95, s95, 1280
s_mul_i32 {sH1st}, {sW}, 40960
s_add_u32 {sH1st}, {sH1st}, s95
s_lshl_b32 s96, s92, 5
s_add_u32 s96, s96, s94
s_mul_i32 {sH1ld0}, s96, 1280
s_add_u32 {sH1ld0}, {sH1ld0}, s93
s_lshl_b32 s96, {sW}, 5
s_add_u32 {sH1ld0}, {sH1ld0}, s96
s_add_u32 {sH1ld1}, {sH1ld0}, 20480
s_lshl_b32 s96, s92, 8
s_add_u32 s96, s96, {sSig}
s_mul_i32 {sH2st}, s96, 1280
s_add_u32 {sH2st}, {sH2st}, s93
s_add_u32 {sH2st}, {sH2st}, {H2BASE}
s_mov_b32 {sH2ld}, {H2BASE}
s_waitcnt lgkmcnt(0)
s_mov_b32 s10, 2621440
s_mov_b32 s11, 0x20000
s_mov_b32 s18, {WS_BYTES}
s_mov_b32 s19, 0x20000
buffer_load_dwordx4 {vr(T+20)}, v{vGa}, {SX}, 0 offen
buffer_load_dwordx4 {vr(T+24)}, v{vGb}, {SX}, 0 offen
buffer_store_dwordx4 {vr(vZ)}, v{vH1c}, {SWS}, s95 offen sc1
buffer_store_dwordx4 {vr(vZ)}, v{vH2st}, {SWS}, {sH2st} offen sc1
s_add_u32 s95, s95, {H1STR}
buffer_store_dwordx4 {vr(vZ)}, v{vH1c}, {SWS}, s95 offen sc1
s_mov_b32 s12, s56
s_mov_b32 s13, s57
s_mov_b32 s14, 2621440
s_mov_b32 s15, 0x20000
s_mov_b32 s20, s58
s_mov_b32 s21, s59
s_movk_i32 s22, 256
s_mov_b32 s23, 0x20000
''')
stamp()
a(f'''
v_lshrrev_b32 v{vH1s2}, 1, v{vL16}
v_add_u32 v{vH1s2}, 1024, v{vH1s2}
v_cmp_le_u32 vcc, 512, v{vL16}
v_mov_b32 v{T+13}, 0x40000000
v_cndmask_b32 v{vH1s2}, v{vH1s2}, v{T+13}, vcc
s_movk_i32 s7, 5120
v_lshlrev_b32 v{T+13}, 2, v{n_v}
v_mad_u32_u24 v{vC1ld}, v{kq_v}, s7, v{T+13}
s_lshl_b32 s7, {sW}, 5
s_add_u32 s7, s7, {L_RT}
v_mul_u32_u24 v{vRtW}, 160, v{n_v}
v_lshlrev_b32 v{vStR}, 4, v{kq_v}
v_add3_u32 v{vRtW}, v{vRtW}, v{vStR}, s7
v_add_u32 v{vRtR}, {L_RT}, v{vRtR}
s_cmp_lt_u32 {sW}, 2
s_cselect_b32 s7, 3200, 0
s_lshl_b32 s7, s7, {sW}
v_mul_u32_u24 v{vVrd}, 80, v{n_v}
v_add3_u32 v{vVrd}, v{vVrd}, v{vStR}, s7
v_and_b32 v{vVrd2}, 7, v0
v_mul_u32_u24 v{vVrd2}, 80, v{vVrd2}
s_add_u32 s7, s7, 2560
v_add3_u32 v{vVrd2}, v{vVrd2}, v{vStR}, s7
v_add_u32 v{vStR}, {L_ST}, v{vStR}
s_lshl_b32 s7, {sW}, 6
v_add_u32 v{vStW}, s7, v{vStR}
''')
a(f'''
s_and_b32 s7, {sG}, 127
s_lshr_b32 s7, s7, 2
s_sub_u32 s94, 0, {sG}
s_and_b32 s94, s94, 127
s_lshr_b32 s94, s94, 2
s_bfe_u32 s95, {sG}, 0x10001
s_cmp_eq_u32 {sType}, 1
s_cselect_b32 s94, s7, s94
s_cselect_b32 s96, 2, s95
s_cselect_b32 s95, 3, s95
s_lshl_b32 s96, s96, 5
s_lshl_b32 s95, s95, 5
s_add_u32 s7, s7, s96
s_add_u32 s94, s94, s95
s_mul_i32 s7, s7, 10240
s_mul_i32 s94, s94, 10240
s_lshl_b32 s95, {sW}, 8
s_add_u32 s7, s7, s95
s_add_u32 s94, s94, s95
v_mov_b32 v{vH2ld}, s7
v_mov_b32 v{T+13}, s94
v_cmp_le_u32 vcc, 2, v{kq_v}
v_and_b32 v{T+14}, 1, v{kq_v}
v_cndmask_b32 v{vH2ld}, v{vH2ld}, v{T+13}, vcc
v_mul_u32_u24 v{T+14}, 0x1400, v{T+14}
v_lshlrev_b32 v{T+13}, 4, v{n_v}
v_add3_u32 v{vH2ld}, v{vH2ld}, v{T+13}, v{T+14}
''')
a(f'''
s_lshl_b32 s7, s92, 2
s_lshr_b32 s7, 0x1120, s7
s_and_b32 s7, s7, 3
s_add_u32 s93, s6, 256
s_cmp_eq_u32 {sSig}, 0
s_cselect_b32 s93, 8, s93
v_lshl_add_u32 v{T+13}, v{n_v}, 2, s7
v_lshlrev_b32 v{T+14}, 6, v{kq_v}
s_mov_b32 s94, {f2u(1/2048):#x}
''')
for hi in range(2):
    if hi: a(f'v_add_u32 v{T+13}, 64, v{T+13}')
    a(f'v_lshlrev_b32 v{T+15}, 4, v{T+13}')
    for ch in range(2):
        a(f'v_add_u32 v{T+16}, {"s6" if ch == 0 else "s93"}, v{T+14}\nv_mul_u32_u24 v{T+16}, v{T+16}, v{T+13}')
        for u in range(4):
            if u: a(f'v_add_u32 v{T+16}, v{T+16}, v{T+15}')
            re = CM + ((hi*2+0)*2+ch)*4 + u; im = CM + ((hi*2+1)*2+ch)*4 + u
            a(f'''v_and_b32 v{T+17}, 0x7ff, v{T+16}
v_cvt_f32_u32 v{T+17}, v{T+17}
v_mul_f32 v{T+17}, s94, v{T+17}
v_cos_f32 v{T+18}, v{T+17}
v_sin_f32 v{T+19}, v{T+17}
v_cvt_pk_f16_f32 v{re}, v{T+18}, v{T+19}
v_cvt_pk_f16_f32 v{im}, -v{T+19}, v{T+18}''')
a(f's_cmp_lg_u32 {sSig}, 0\ns_cbranch_scc1 L_cm_done')
for hi in range(2):
    for u in range(4):
        re0 = CM + ((hi*2)*2+0)*4+u; re1 = re0+4; im0 = re0+8; im1 = re0+12
        a(f'v_mov_b32 v{im1}, v{re1}\nv_mov_b32 v{re1}, 0\nv_mov_b32 v{im0}, 0')
a(f'''
v_and_b32 v{T+17}, 1, v0
v_lshlrev_b32 v{T+17}, 4, v{T+17}
v_lshlrev_b32 v{T+17}, v{T+17}, 0x3c00
'''.replace(f'v_lshlrev_b32 v{T+17}, v{T+17}, 0x3c00', f'v_mov_b32 v{T+18}, 0x3c00\nv_lshlrev_b32 v{T+17}, v{T+17}, v{T+18}'))
a(f'''
v_cmp_eq_u32 vcc, 0, v{kq_v}
v_cndmask_b32 v{CM}, v{CM}, v{T+17}, vcc
v_cndmask_b32 v{CM+16}, v{CM+16}, v{T+17}, vcc
L_cm_done:
''')
a(f'''
s_mov_b32 s40, {f2u(1/640):#x}
s_mov_b32 s41, s40
s_mov_b32 s42, {f2u(1e-5):#x}
s_mov_b32 s43, s42
s_mov_b32 {sLayer}, 0
s_mov_b32 {sTag}, 1
s_mov_b32 {sFlip}, 0
s_getreg_b32 s7, hwreg(HW_REG_XCC_ID, 0, 4)
s_mul_i32 s92, s7, s7
s_lshl_b32 s92, s92, 16
s_lshl_b32 s7, s7, 8
s_add_u32 s7, s7, s92
s_add_u32 s7, s7, 1
s_lshl_b32 {sExp}, s7, 5
v_mov_b32 v{T+13}, s7
s_lshl_b32 s7, {sSig}, 5
v_mov_b32 v{T+14}, s7
''')
for i in range(16): a(f'v_mov_b32 v{X+i}, 0')
a(f's_waitcnt vmcnt({NTAB_AFTER_ADDR+5})')
for i in range(2):
    a(f'v_and_b32 v{vXT+2*i}, 0xffff, v{T+4+i}\nv_lshrrev_b32 v{vXT+2*i+1}, 16, v{T+4+i}')
a(f'v_and_b32 v{vVAB}, 0xffff, v{T+6}\nv_lshrrev_b32 v{vVAB+1}, 16, v{T+6}')
a(f'v_and_b32 v{vVC}, 0xffff, v{T+7}\nv_lshrrev_b32 v{vVC+1}, 16, v{T+7}')
a(f'''
v_and_b32 v{T+15}, 1, v{kq_v}
v_mul_u32_u24 v{T+15}, 0x1400, v{T+15}
v_add_u32 v{T+15}, {L_XT}, v{T+15}
v_cmp_ne_u32 vcc, v{T+15}, v{vXT}
v_cndmask_b32 v{vMask0}, 0, -1, vcc
v_add_u32 v{T+16}, {L_XT-L_RT}, v{vRtR}
s_waitcnt vmcnt(3)
''')
stamp()
a(f'''
ds_write_b128 v{T+16}, {vr(T+20)}
ds_write_b128 v{T+16}, {vr(T+24)} offset:5120
s_waitcnt vmcnt(1) lgkmcnt(0)
s_barrier
s_cmp_lg_u32 {sW}, 0
s_cbranch_scc1 L_noatom
s_mov_b64 exec, 1
buffer_atomic_add v{T+13}, v{T+14}, {SD}, 0 offen
s_mov_b64 exec, -1
L_noatom:
''')
for kl in range(4):
    for j in range(4): a(f'ds_read_u16_d16_hi v{X+4*kl+j}, v{vXT+kl} offset:{1280*j}')
a('s_waitcnt lgkmcnt(0)')
stamp()
Sx, Qx = T, T+4
a(f'''
L_loop:
s_add_u32 s7, {sH2st}, {BUF}
buffer_store_dwordx4 {vr(vZ)}, v{vH2st}, {SWS}, s7 offen sc1
''')
for p in range(2):
    a(f'v_pk_add_f32 v[{Sx+2*p}:{Sx+2*p+1}], v[{X+2*p}:{X+2*p+1}], v[{X+4+2*p}:{X+5+2*p}]')
    a(f'v_pk_mul_f32 v[{Qx+2*p}:{Qx+2*p+1}], v[{X+2*p}:{X+2*p+1}], v[{X+2*p}:{X+2*p+1}]')
for kl in range(1, 4):
    for p in range(2):
        b = X+4*kl+2*p
        a(f'v_pk_fma_f32 v[{Qx+2*p}:{Qx+2*p+1}], v[{b}:{b+1}], v[{b}:{b+1}], v[{Qx+2*p}:{Qx+2*p+1}]')
        if kl > 1: a(f'v_pk_add_f32 v[{Sx+2*p}:{Sx+2*p+1}], v[{Sx+2*p}:{Sx+2*p+1}], v[{b}:{b+1}]')
for j in range(4): a(f'v_permlane32_swap_b32 v{Sx+j}, v{Qx+j}')
for p in range(2): a(f'v_pk_add_f32 v[{Sx+2*p}:{Sx+2*p+1}], v[{Sx+2*p}:{Sx+2*p+1}], v[{Qx+2*p}:{Qx+2*p+1}]')
for sh in (8, 4, 2, 1):
    for j in range(4): a(f'v_add_f32_dpp v{Sx+j}, v{Sx+j}, v{Sx+j} row_ror:{sh} row_mask:0xf bank_mask:0xf')
a(f'''
s_mov_b32 exec_lo, 0x00010001
s_mov_b32 exec_hi, 0x00010001
ds_write_b128 v{vStW}, {vr(Sx)}
s_mov_b64 exec, -1
s_waitcnt lgkmcnt(0)
s_barrier
''')
P = T+8
for w in range(5): a(f'ds_read_b128 {vr(P+4*w)}, v{vStR} offset:{64*w}')
for w, cnt in ((1, 3), (2, 2), (3, 1), (4, 0)):
    a(f's_waitcnt lgkmcnt({cnt})')
    for p in range(2): a(f'v_pk_add_f32 v[{P+2*p}:{P+2*p+1}], v[{P+2*p}:{P+2*p+1}], v[{P+4*w+2*p}:{P+4*w+2*p+1}]')
Q2 = P+4
for j in range(4): a(f'v_mov_b32 v{Q2+j}, v{P+j}')
for j in range(4): a(f'v_permlane32_swap_b32 v{P+j}, v{Q2+j}')
for p in range(2):
    a(f'v_pk_mul_f32 v[{P+2*p}:{P+2*p+1}], v[{P+2*p}:{P+2*p+1}], {sInv}')
    a(f'v_pk_mul_f32 v[{Q2+2*p}:{Q2+2*p+1}], v[{Q2+2*p}:{Q2+2*p+1}], {sInv}')
for p in range(2):
    a(f'v_pk_fma_f32 v[{Q2+2*p}:{Q2+2*p+1}], v[{P+2*p}:{P+2*p+1}], v[{P+2*p}:{P+2*p+1}], v[{Q2+2*p}:{Q2+2*p+1}] neg_lo:[1,0,0] neg_hi:[1,0,0]')
for j in range(4): a(f'v_max_f32 v{Q2+j}, 0, v{Q2+j}')
for p in range(2): a(f'v_pk_add_f32 v[{Q2+2*p}:{Q2+2*p+1}], v[{Q2+2*p}:{Q2+2*p+1}], {sEps}')
for j in range(4): a(f'v_rsq_f32 v{Q2+j}, v{Q2+j}')
for p in range(2):
    a(f'v_pk_mul_f32 v[{P+2*p}:{P+2*p+1}], v[{P+2*p}:{P+2*p+1}], v[{Q2+2*p}:{Q2+2*p+1}] neg_lo:[1,0] neg_hi:[1,0]')
N_ = T+16; Bo = T+32
for kl in range(4):
    for p in range(2):
        a(f'v_pk_fma_f32 v[{N_+4*kl+2*p}:{N_+4*kl+2*p+1}], v[{X+4*kl+2*p}:{X+4*kl+2*p+1}], v[{Q2+2*p}:{Q2+2*p+1}], v[{P+2*p}:{P+2*p+1}]')
for kl in range(4):
    for p in range(2): a(f'v_cvt_pk_f16_f32 v{Bo+2*kl+p}, v{N_+4*kl+2*p}, v{N_+4*kl+2*p+1}')
D0, D1, DC = T, T+4, T+8
a(f'''
v_mfma_f32_16x16x32_f16 {vr(D0)}, {vr(S1r)}, {vr(Bo)}, 0
v_mfma_f32_16x16x32_f16 {vr(DC)}, {vr(S1r+4)}, {vr(Bo)}, 0
v_mfma_f32_16x16x32_f16 {vr(D1)}, {vr(S1r)}, {vr(Bo+4)}, 0
v_mfma_f32_16x16x32_f16 {vr(DC)}, {vr(S1r+8)}, {vr(Bo+4)}, {vr(DC)}
s_cmp_lg_u32 s2, 0
s_cbranch_scc1 L_nofix
s_cmp_lg_u32 {sW}, 0
s_cbranch_scc1 L_nofix
v_mfma_f32_16x16x32_f16 {vr(T+16)}, {vr(DEL)}, {vr(Bo)}, 0
v_mfma_f32_16x16x32_f16 {vr(T+20)}, {vr(DEL+4)}, {vr(Bo)}, 0
s_mov_b32 exec_lo, 0x00010001
s_mov_b32 exec_hi, 0x00010001
''')
for p in range(2):
    a(f'v_pk_add_f32 v[{D0+2*p}:{D0+2*p+1}], v[{D0+2*p}:{D0+2*p+1}], v[{T+16+2*p}:{T+17+2*p}]')
for p in range(2):
    a(f'v_pk_add_f32 v[{DC+2*p}:{DC+2*p+1}], v[{DC+2*p}:{DC+2*p+1}], v[{T+20+2*p}:{T+21+2*p}]')
a('s_mov_b64 exec, -1\nL_nofix:\ns_nop 4')
W_ = T+24
a(f'''
v_cvt_pk_f16_f32 v{W_}, v{D0}, v{D0+1}
v_cvt_pk_f16_f32 v{W_+1}, v{D0+2}, v{D0+3}
v_cvt_pk_f16_f32 v{W_+2}, v{D1}, v{D1+1}
v_cvt_pk_f16_f32 v{W_+3}, v{D1+2}, v{D1+3}
ds_write_b32 v{vVAB}, v{W_}
ds_write_b32 v{vVAB}, v{W_+1} offset:3200
v_cvt_pk_f16_f32 v{W_+4}, v{DC}, v{DC+1}
v_cvt_pk_f16_f32 v{W_+5}, v{DC+2}, v{DC+3}
ds_write_b32 v{vVAB+1}, v{W_+2}
ds_write_b32 v{vVAB+1}, v{W_+3} offset:3200
ds_write_b32 v{vVC}, v{W_+4}
ds_write_b32 v{vVC+1}, v{W_+5}
''')
a(f'''
s_cmp_lg_u32 {sLayer}, 0
s_cbranch_scc1 L_nohs
s_cmp_lg_u32 {sW}, 4
s_cbranch_scc1 L_nohs
s_mov_b32 {sSpin}, {SPIN}
v_lshlrev_b32 v{T+1}, 1, v{vL16}
s_mov_b64 exec, 0xff
L_hs:
buffer_load_dword v{T}, v{T+1}, {SD}, 0 offen sc1
s_sub_u32 {sSpin}, {sSpin}, 1
s_cbranch_scc1 L_hs_done
s_waitcnt vmcnt(0)
v_and_b32 v{T+2}, 0xff, v{T}
v_cmp_ne_u32 vcc, 32, v{T+2}
s_cbranch_vccnz L_hs
L_hs_done:
s_waitcnt vmcnt(0)
v_readlane_b32 s7, v{T}, {sSig}
s_mov_b64 exec, -1
s_cmp_lg_u32 s7, {sExp}
s_cselect_b32 s7, 1, {FORCE_SLOW}
v_mov_b32 v{T}, s7
v_mov_b32 v{T+1}, {L_MODE}
ds_write_b32 v{T+1}, v{T}
L_nohs:
s_waitcnt vmcnt(0) lgkmcnt(0)
s_barrier
s_cmp_eq_u32 {sW}, 4
s_cbranch_scc1 L_cphase
''')
Ad = T; Tr = T+12; Ti = T+24; B2 = T+36; O = T+48
a(f'''
ds_read_b128 {vr(Ad)}, v{vVrd}
ds_read_b128 {vr(Ad+4)}, v{vVrd} offset:1280
ds_read_b128 {vr(Ad+8)}, v{vVrd2}
s_cmp_lg_u32 {sLayer}, 0
s_cbranch_scc1 L_nomode
v_mov_b32 v{O}, {L_MODE}
ds_read_b32 v{O}, v{O}
s_waitcnt lgkmcnt(0)
v_readfirstlane_b32 {sMode}, v{O}
L_nomode:
''')
for blk in range(3):
    a(f's_waitcnt lgkmcnt({2-blk})')
    a(f'v_mfma_f32_16x16x32_f16 {vr(Tr+4*blk)}, {vr(Ad+4*blk)}, {vr(B1r)}, 0')
    a(f'v_mfma_f32_16x16x32_f16 {vr(Ti+4*blk)}, {vr(Ad+4*blk)}, {vr(B1r+4)}, 0')
Pt, Qt = T+60, T+64
for ch in range(3):
    Pt = T+60; Qt = T+64
    for p in range(2):
        r_, i_ = Tr+4*ch+2*p, Ti+4*ch+2*p; c_, s_2 = TWc+4*ch+2*p, TWs+4*ch+2*p
        a(f'v_pk_mul_f32 v[{Pt+2*p}:{Pt+2*p+1}], v[{r_}:{r_+1}], v[{c_}:{c_+1}]')
        a(f'v_pk_mul_f32 v[{Qt+2*p}:{Qt+2*p+1}], v[{i_}:{i_+1}], v[{c_}:{c_+1}]')
    for p in range(2):
        r_, i_ = Tr+4*ch+2*p, Ti+4*ch+2*p; c_, s_2 = TWc+4*ch+2*p, TWs+4*ch+2*p
        a(f'v_pk_fma_f32 v[{Pt+2*p}:{Pt+2*p+1}], v[{i_}:{i_+1}], v[{s_2}:{s_2+1}], v[{Pt+2*p}:{Pt+2*p+1}]')
        a(f'v_pk_fma_f32 v[{Qt+2*p}:{Qt+2*p+1}], v[{r_}:{r_+1}], v[{s_2}:{s_2+1}], v[{Qt+2*p}:{Qt+2*p+1}] neg_lo:[1,0,0] neg_hi:[1,0,0]')
    for i in range(4): a(f'v_cvt_pk_f16_f32 v{B2+4*ch+i}, v{Pt+i}, v{Qt+i}')
    for blk in range(3):
        c_in = '0' if ch == 0 else vr(O+4*blk)
        a(f'v_mfma_f32_16x16x32_f16 {vr(O+4*blk)}, {vr(A2r+(blk*3+ch)*4)}, {vr(B2+4*ch)}, {c_in}')
Wo = T
for i in range(6): a(f'v_cvt_pk_f16_f32 v{Wo+i}, v{O+2*i}, v{O+2*i+1}')
a(f'''
s_cmp_ge_u32 {sW}, 2
s_cbranch_scc1 L_noslot
v_readlane_b32 s7, v{Wo+4}, 32
v_writelane_b32 v{Wo}, s7, 0
L_noslot:
''')
for i in range(6): a(f'v_and_or_b32 v{Wo+i}, v{Wo+i}, -2, {sTag}')
a(f'''
s_cmp_lg_u32 {sMode}, 0
s_cbranch_scc1 L_st_slow
buffer_store_dwordx4 {vr(Wo)}, v{vL16}, {SWS}, {sH1st} offen
buffer_store_dwordx2 v[{Wo+4}:{Wo+5}], v{vH1s2}, {SWS}, {sH1st} offen
s_branch L_cphase
L_st_slow:
buffer_store_dwordx4 {vr(Wo)}, v{vL16}, {SWS}, {sH1st} offen sc1
buffer_store_dwordx2 v[{Wo+4}:{Wo+5}], v{vH1s2}, {SWS}, {sH1st} offen sc1
L_cphase:
''')
stamp_in_loop = False
Ca = T+8; Dm = T+16; K_ = T+32
a(f'''
s_mov_b32 {sSpin}, {SPIN}
s_mov_b32 exec_lo, 0x00ff00ff
s_mov_b32 exec_hi, 0x00ff00ff
L_poll1:
''')
for ch in range(2):
    for u in range(4):
        a(f'buffer_load_dword v{Ca+4*ch+u}, v{vC1ld}, {SWS}, {sH1ld0 if ch == 0 else sH1ld1} offen offset:{1280*u} sc1')
a(f'''
s_sub_u32 {sSpin}, {sSpin}, 1
s_cbranch_scc1 L_poll1_done
s_waitcnt vmcnt(0)
''')
tt = sum((((i >> 2 & 1) ^ (i & 1)) & ((i >> 1 & 1) ^ (i & 1))) << i for i in range(8))
for i in range(4): a(f'v_bitop3_b32 v{K_+i}, v{Ca+2*i}, v{Ca+2*i+1}, {sFlip} bitop3:{tt:#x}')
a(f'''
v_bitop3_b32 v{K_}, v{K_}, v{K_+1}, v{K_+2} bitop3:0x80
v_bitop3_b32 v{K_}, v{K_}, v{K_+3}, 1 bitop3:0x80
v_cmp_eq_u32 vcc, 0, v{K_}
s_cbranch_vccnz L_poll1
L_poll1_done:
s_waitcnt vmcnt(0)
s_mov_b64 exec, -1
''')
for hi in range(2):
    for ch in range(2):
        for rio in range(2):
            d = Dm + (hi*2+rio)*4
            a(f'v_mfma_f32_16x16x32_f16 {vr(d)}, {vr(Ca+4*ch)}, {vr(CM+((hi*2+rio)*2+ch)*4)}, {"0" if ch == 0 else vr(d)}')
a('s_mov_b32 exec_hi, 0')
for hi in range(2):
    for i in range(4): a(f'v_cvt_pk_f16_f32 v{K_+4*hi+i}, v{Dm+8*hi+i}, v{Dm+8*hi+4+i}')
    for i in range(4): a(f'v_or_b32 v{K_+4*hi+i}, 1, v{K_+4*hi+i}')
    a(f'ds_write_b128 v{vRtW}, {vr(K_+4*hi)} offset:{2560*hi}')
a(f'''
s_mov_b64 exec, -1
s_waitcnt lgkmcnt(0)
s_barrier
ds_read_b128 {vr(T)}, v{vRtR}
s_waitcnt lgkmcnt(0)
buffer_store_dwordx4 {vr(T)}, v{vH2st}, {SWS}, {sH2st} offen sc1
s_mov_b32 {sSpin}, {SPIN}
s_waitcnt vmcnt(0)
L_poll2:
''')
Lh = T+4; K2 = T+20
for u in range(4): a(f'buffer_load_dwordx4 {vr(Lh+4*u)}, v{vH2ld}, {SWS}, {sH2ld} offen offset:{1280*u} sc1')
a(f'''
s_sub_u32 {sSpin}, {sSpin}, 1
s_cbranch_scc1 L_poll2_done
s_waitcnt vmcnt(0)
''')
for i in range(5): a(f'v_bitop3_b32 v{K2+i}, v{Lh+3*i}, v{Lh+3*i+1}, v{Lh+3*i+2} bitop3:0x80')
a(f'''
v_bitop3_b32 v{K2}, v{K2}, v{K2+1}, v{K2+2} bitop3:0x80
v_bitop3_b32 v{K2+3}, v{K2+3}, v{K2+4}, v{Lh+15} bitop3:0x80
v_bitop3_b32 v{K2}, v{K2}, v{K2+3}, 1 bitop3:0x80
v_cmp_eq_u32 vcc, 0, v{K2}
s_cbranch_vccnz L_poll2
L_poll2_done:
s_waitcnt vmcnt(0)
''')
for kl in range(1, 4): a(f'v_swap_b32 v{Lh+kl}, v{Lh+4*kl}')
for u in range(4): a(f'v_and_b32 v{Lh+u}, v{vMask0}, v{Lh+u}')
for (u, kl) in ((1, 2), (1, 3), (2, 3)): a(f'v_swap_b32 v{Lh+4*u+kl}, v{Lh+4*kl+u}')
for kl in range(4): a(f'v_mfma_f32_16x16x32_f16 {vr(X+4*kl)}, {vr(A3r)}, {vr(Lh+4*kl)}, {vr(X+4*kl)}')
a(f'''
s_add_u32 {sLayer}, {sLayer}, 1
s_add_u32 {sH2st}, {sH2st}, {BUF}
s_add_u32 {sH2ld}, {sH2ld}, {BUF}
s_xor_b32 {sH1st}, {sH1st}, {H1STR}
s_xor_b32 {sH1ld0}, {sH1ld0}, {H1STR}
s_xor_b32 {sH1ld1}, {sH1ld1}, {H1STR}
s_cmp_ge_u32 {sLayer}, 2
s_cselect_b32 {sTag}, 0, 1
s_cselect_b32 {sFlip}, -1, 0
''')
if STAMPS:
    a(f's_memtime s[90:91]\ns_waitcnt lgkmcnt(0)\ns_lshl_b32 m0, {sLayer}, 1\ns_nop 0\ns_movreld_b32 s68, s90')
a(f'''
s_cmp_lt_u32 {sLayer}, {NLAYER}
s_cbranch_scc1 L_loop
''')
F = T
for kl in range(4):
    for p in range(2): a(f'v_cvt_pk_bf16_f32 v{F+2*kl+p}, v{X+4*kl+2*p}, v{X+4*kl+2*p+1}')
for kl in range(4):
    for p in range(2):
        a(f'ds_write_b16 v{vXT+kl}, v{F+2*kl+p} offset:{2560*p}')
        a(f'ds_write_b16_d16_hi v{vXT+kl}, v{F+2*kl+p} offset:{2560*p+1280}')
a(f'''
s_waitcnt lgkmcnt(0)
s_barrier
ds_read_b128 {vr(T+8)}, v{vRtR} offset:{L_XT-L_RT}
ds_read_b128 {vr(T+12)}, v{vRtR} offset:{L_XT-L_RT+5120}
s_waitcnt lgkmcnt(1)
buffer_store_dwordx4 {vr(T+8)}, v{vGa}, {SO}, 0 offen
s_waitcnt lgkmcnt(0)
buffer_store_dwordx4 {vr(T+12)}, v{vGb}, {SO}, 0 offen
''')
if STAMPS:
    a(f's_waitcnt vmcnt(0)\ns_memtime s[78:79]\ns_waitcnt lgkmcnt(0)\ns_cmp_lg_u32 {sW}, 0\ns_cbranch_scc1 L_end')
    a(f's_lshl_b32 s7, s2, 7\ns_add_u32 s7, s7, {STAMP_OFF}\nv_mov_b32 v1, 0\ns_mov_b64 exec, 1')
    for i in range(10): a(f'v_mov_b32 v2, s{60+2*i}\nbuffer_store_dword v2, v1, {SWS}, s7 offen offset:{4*i}')
    a(f'v_mov_b32 v2, {sMode}\nbuffer_store_dword v2, v1, {SWS}, s7 offen offset:40')
a('L_end:\ns_endpgm')

hdr = open('interleave_layers__spectral_fnet__spectral_fnet__prompt.s.ref').read().split('; Override')[0]
out = hdr + f'; @launch grid=(256,1,1) block=(320,1,1) lds={LDS_BYTES}\n'
out += f'.amdgcn_target "amdgcn-amd-amdhsa--gfx950"\n.text\n.globl {KNAME}\n.p2align 8\n.type {KNAME},@function\n{KNAME}:\n'
out += a.text()
out += f'''.section .rodata,"a"
.p2align 6
.amdhsa_kernel {KNAME}
  .amdhsa_next_free_vgpr 240
  .amdhsa_next_free_sgpr 102
  .amdhsa_accum_offset 240
  .amdhsa_group_segment_fixed_size 0
  .amdhsa_kernarg_size 104
  .amdhsa_user_sgpr_count 2
  .amdhsa_user_sgpr_kernarg_segment_ptr 1
  .amdhsa_system_sgpr_workgroup_id_x 1
.end_amdhsa_kernel
.p2align 10
tbl:
'''
for b in blocks:
    f = b.reshape(-1)
    for i in range(0, 256, 8): out += '.long ' + ','.join(f'{int(x):#x}' for x in f[i:i+8]) + '\n'
open(sys.argv[1], 'w').write(out)
print('instrs', len(a.ins), 'nops inserted', a.nops, 'table blocks', len(blocks), 'bytes', len(out))
```

```python
import sys, struct
import numpy as np
from design import *
from asmlib import Asm

KNAME = "interleave_layers__spectral_fnet__spectral_fnet__prompt_kernel"
opts = dict(a.split('=') for a in sys.argv[2:] if '=' in a)
STAMPS = int(opts.get('stamps', 0))
FORCE_SLOW = int(opts.get('slow', 0))
NLAYER = int(opts.get('layers', 4))
SPIN = int(opts.get('spin', 200000))

def f2u(f): return struct.unpack('<I', struct.pack('<f', f))[0]
BUF = 1310720
H1STR = 0x200000; H2BASE = 0x400000; WS_BYTES = H2BASE + 5*BUF
STAMP_OFF = WS_BYTES
if STAMPS: WS_BYTES += 256*128
L_V = 0; L_ST = 9600; L_MODE = 9920; L_RT = 9984; L_XT = 15360; LDS_BYTES = 25600
def vaddr(col): return (col % 40)*80 + (col//40)*4
def opA(M):
    h = M.astype(np.float16).view(np.uint16).astype(np.uint32)
    out = np.zeros((64, 4), np.uint32)
    for l in range(64):
        r = h[l % 16, 8*(l//16):8*(l//16)+8]
        out[l] = r[0::2] | (r[1::2] << 16)
    return out
def opB(N): return opA(N.T)
blocks = []
def add(b): blocks.append(np.asarray(b, np.uint32).reshape(64, 4)); return len(blocks)-1
n_ = S1_mats(False); s_ = S1_mats(True)
T_S1N = add(opA(n_[0])); add(opA(n_[1])); add(opA(n_[2]))
T_S1S = add(opA(s_[0])); add(opA(s_[1])); add(opA(s_[2])); T_DEL = add(opA(s_[3])); add(opA(s_[4]))
Bre, Bim = B1_mats(); T_B1 = add(opB(Bre)); add(opB(Bim))
tc, ts = twiddles()
T_TW = len(blocks)
for arr in (tc, ts):
    for blk in range(3): add(arr[blk].astype(np.float32).view(np.uint32))
T_A2 = len(blocks)
for r0 in (0, 20):
    M = A2_mats(r0)/HSCALE
    for blk in range(3):
        for ch in range(3): add(opA(M[blk, ch]))
def a3_idx(sig, m):
    g = unit_g(sig, m)
    if g == 0: return 9
    if g == 128: return 8
    return (g >> 7) + (0 if g % 4 == 1 else 4)
a3 = {}
for sig in range(8):
    for m in range(32):
        M = A3(sig, m)*HSCALE; i = a3_idx(sig, m)
        if i in a3: assert np.allclose(a3[i], M), (sig, m)
        a3[i] = M
T_A3 = len(blocks)
for i in range(10): add(opA(a3[i]))
T_ADDR = len(blocks)
for (sig, m) in ((2, 1), (1, 0)):
    t = np.zeros((320, 8), np.uint32)
    for tid in range(320):
        w, l = divmod(tid, 64); n, mq = l % 16, l//16
        h, st = divmod(mq, 2)
        for kl in range(4):
            col = acol(sig, m, h, 64*w+4*n+kl)
            if st: col = (-col) % D
            t[tid, kl] = L_XT + st*5120 + col*2
        for bop in range(2):
            t[tid, 4+bop] = L_V + vaddr(acol(sig, m, mq//2, 64*w+4*n+2*bop+(mq % 2)))
        for sub in range(2):
            t[tid, 6+sub] = L_V + 6400 + vaddr(acol(sig, m, mq % 2, 64*w+4*n+2*(mq//2)+sub))
    p = (t[:, 0::2] | (t[:, 1::2] << 16)).reshape(5, 64, 4)
    for w in range(5): add(p[w])
for sig in range(8):
    for m in range(32):
        ref = (1, 0) if unit_g(sig, m) % 4 == 1 else (2, 1)
        assert all(acol(sig, m, h, k) == acol(ref[0], ref[1], h, k) for h in range(2) for k in range(0, 320, 7))
for tid in range(320):
    assert (tid*205) >> 14 == tid//80 and (tid*205) >> 11 == tid//10

vL16, vH1s2, vH2ld, vC1ld, vRtW, vRtR, vH2st, vStR, vStW = 1, 2, 3, 4, 5, 6, 7, 8, 9
vVAB, vVC, vVrd, vVrd2 = 10, 12, 14, 15
X = 16; A3r = 32; S1r = 36; B1r = 48; TWc = 56; TWs = 68; A2r = 80; CM = 116; DEL = 148
vXT = 156; vMask0 = 160; vGa = 161; vGb = 162; vH1c = 163; vZ = 164
T = 168
def vr(b, n=4): return f'v[{b}:{b+n-1}]'
sW, sSig, sM, sG, sType, sSpec, sLayer, sMode = 's3', 's4', 's5', 's26', 's27', 's28', 's29', 's30'
sH1st, sH1ld0, sH1ld1, sH2st, sH2ld, sTag, sFlip, sSpin = 's31', 's32', 's33', 's34', 's35', 's36', 's37', 's38'
sExp = 's39'
sInv, sEps = 's[40:41]', 's[42:43]'
SX, SO, SWS, SD, STB = 's[8:11]', 's[12:15]', 's[16:19]', 's[20:23]', 's[24:25]'
a = Asm()
nst = []
SLAYER = int(opts.get('slayer', 0))
def stamp(name, inloop=False, real=False):
    if STAMPS:
        i = len(nst); nst.append(name)
        assert i < 16
        ins = f's_{"memrealtime" if real else "memtime"} s[{60+2*i}:{61+2*i}]'
        if inloop:
            a(f's_cmp_lg_u32 {sLayer}, {SLAYER}\ns_cbranch_scc1 L_stk{i}\n{ins}\nL_stk{i}:')
        else: a(ins)
def tload(dst, blk, voff=None):
    off = blk*1024
    base = (off + 4096)//8192
    rel = off - base*8192
    a(f'global_load_dwordx4 {vr(dst)}, v{voff or vL16}, s[{TB[base]}:{TB[base]+1}] offset:{rel}')
TB = [24, 44, 46, 48, 50, 52, 54]

stamp('start')
if int(opts.get('dbgspan', 0)): a('s_memrealtime s[60:61]\ns_memtime s[64:65]')
stamp('rstart', real=True)
a(f'''
s_load_dwordx2 s[8:9], s[0:1], 0
s_load_dwordx4 s[56:59], s[0:1], 80
s_load_dwordx2 s[16:17], s[0:1], 96
s_cmp_ge_u32 s2, 256
s_cbranch_scc1 L_end
s_getpc_b64 s[24:25]
s_add_u32 s24, s24, tbl@rel32@lo+4
s_addc_u32 s25, s25, tbl@rel32@hi+12
v_and_b32 v{T}, 63, v0
v_lshrrev_b32 v{T+1}, 6, v0
v_lshlrev_b32 v{vL16}, 4, v{T}
v_readfirstlane_b32 {sW}, v{T+1}
''')
for i in range(1, 7):
    a(f's_add_u32 s{TB[i]}, s24, {8192*i}\ns_addc_u32 s{TB[i]+1}, s25, 0')
a(f'''
s_and_b32 {sSig}, s2, 7
s_lshr_b32 {sM}, s2, 3
s_lshl_b32 s6, {sSig}, 2
s_lshr_b32 s6, 0x9654d210, s6
s_and_b32 s6, s6, 15
s_lshl_b32 {sG}, {sM}, 4
s_add_u32 {sG}, {sG}, s6
s_cmp_eq_u32 {sSig}, 0
s_cselect_b32 s7, 248, 0
s_cmp_ge_u32 {sM}, 16
s_cselect_b32 s7, s7, 0
s_sub_u32 {sG}, {sG}, s7
s_and_b32 {sType}, {sG}, 1
s_cmp_eq_u32 {sG}, 0
s_cselect_b32 {sSpec}, 1, 0
''')
a(f'''
s_mul_i32 s7, {sType}, 5120
v_lshlrev_b32 v{vRtR}, 4, v0
v_add_u32 v{T+2}, s7, v{vRtR}
''')
tload(T+4, T_ADDR, T+2)
a(f'''
s_lshr_b32 s7, {sG}, 7
s_lshl_b32 s92, {sType}, 2
s_sub_u32 s7, s7, s92
s_add_u32 s7, s7, 4
s_cmp_eq_u32 {sG}, 128
s_cselect_b32 s7, 8, s7
s_cmp_eq_u32 {sG}, 0
s_cselect_b32 s7, 9, s7
s_lshl_b32 s7, s7, 10
v_add_u32 v{T+3}, s7, v{vL16}
s_mul_i32 s7, {sSpec}, 3072
v_add_u32 v{T+8}, s7, v{vL16}
s_cmp_eq_u32 {sW}, 3
s_cselect_b32 s7, 9216, 0
v_add_u32 v{T+9}, s7, v{vL16}
''')
for i in range(3): tload(S1r+4*i, T_S1N+i, T+8)
tload(B1r, T_B1); tload(B1r+4, T_B1+1)
for i in range(6): tload(TWc+4*i, T_TW+i)
for i in range(9): tload(A2r+4*i, T_A2+i, T+9)
tload(DEL, T_DEL); tload(DEL+4, T_DEL+1)
tload(A3r, T_A3, T+3)
NTAB_AFTER_ADDR = 3+2+6+9+2+1
n_v, kq_v, j_v = T+10, T+11, T+12
a(f'''
v_and_b32 v{n_v}, 15, v0
v_bfe_u32 v{kq_v}, v0, 4, 2
v_mul_u32_u24 v{j_v}, 205, v0
v_lshrrev_b32 v{T+13}, 11, v{j_v}
v_lshrrev_b32 v{j_v}, 14, v{j_v}
v_mul_u32_u24 v{T+14}, 80, v{j_v}
v_sub_u32 v{T+14}, v0, v{T+14}
v_lshlrev_b32 v{T+14}, 4, v{T+14}
v_lshlrev_b32 v{T+15}, 9, v{j_v}
v_add_u32 v{T+15}, {sG}, v{T+15}
v_sub_u32 v{T+16}, 0, v{T+15}
v_and_b32 v{T+16}, 0x7ff, v{T+16}
v_add_u32 v{T+17}, 256, v{T+15}
s_cmp_eq_u32 {sSpec}, 1
s_cselect_b64 vcc, -1, 0
v_cndmask_b32 v{T+16}, v{T+16}, v{T+17}, vcc
s_movk_i32 s7, 1280
v_mad_u32_u24 v{vGa}, v{T+15}, s7, v{T+14}
v_mad_u32_u24 v{vGb}, v{T+16}, s7, v{T+14}
s_mov_b32 s7, 40960
v_mad_u32_u24 v{vH1c}, v{j_v}, s7, v{T+14}
v_mul_u32_u24 v{T+14}, 10, v{T+13}
v_sub_u32 v{T+14}, v0, v{T+14}
v_lshlrev_b32 v{T+14}, 4, v{T+14}
s_movk_i32 s7, 10240
v_mad_u32_u24 v{vH2st}, v{T+13}, s7, v{T+14}
v_mov_b32 v{vZ}, 0
v_mov_b32 v{vZ+1}, 0
v_mov_b32 v{vZ+2}, 0
v_mov_b32 v{vZ+3}, 0
''')
a(f'''
s_lshr_b32 s92, {sM}, 3
s_and_b32 s93, {sM}, 7
s_mul_i32 s93, s93, 160
s_lshl_b32 s94, {sSig}, 7
s_add_u32 s95, s94, {sM}
s_mul_i32 s95, s95, 1280
s_mul_i32 {sH1st}, {sW}, 40960
s_add_u32 {sH1st}, {sH1st}, s95
s_lshl_b32 s96, s92, 5
s_add_u32 s96, s96, s94
s_mul_i32 {sH1ld0}, s96, 1280
s_add_u32 {sH1ld0}, {sH1ld0}, s93
s_lshl_b32 s96, {sW}, 5
s_add_u32 {sH1ld0}, {sH1ld0}, s96
s_add_u32 {sH1ld1}, {sH1ld0}, 20480
s_lshl_b32 s96, s92, 8
s_add_u32 s96, s96, {sSig}
s_mul_i32 {sH2st}, s96, 1280
s_add_u32 {sH2st}, {sH2st}, s93
s_add_u32 {sH2st}, {sH2st}, {H2BASE}
s_mov_b32 {sH2ld}, {H2BASE}
s_waitcnt lgkmcnt(0)
s_mov_b32 s10, 2621440
s_mov_b32 s11, 0x20000
s_mov_b32 s18, {WS_BYTES}
s_mov_b32 s19, 0x20000
buffer_load_dwordx4 {vr(T+20)}, v{vGa}, {SX}, 0 offen
buffer_load_dwordx4 {vr(T+24)}, v{vGb}, {SX}, 0 offen
buffer_store_dwordx4 {vr(vZ)}, v{vH1c}, {SWS}, s95 offen sc1
buffer_store_dwordx4 {vr(vZ)}, v{vH2st}, {SWS}, {sH2st} offen sc1
s_add_u32 s95, s95, {H1STR}
buffer_store_dwordx4 {vr(vZ)}, v{vH1c}, {SWS}, s95 offen sc1
s_mov_b32 s12, s56
s_mov_b32 s13, s57
s_mov_b32 s14, 2621440
s_mov_b32 s15, 0x20000
s_mov_b32 s20, s58
s_mov_b32 s21, s59
s_movk_i32 s22, 256
s_mov_b32 s23, 0x20000
''')
stamp('kernarg')
a(f'''
v_lshrrev_b32 v{vH1s2}, 1, v{vL16}
v_add_u32 v{vH1s2}, 1024, v{vH1s2}
v_cmp_le_u32 vcc, 512, v{vL16}
v_mov_b32 v{T+13}, 0x40000000
v_cndmask_b32 v{vH1s2}, v{vH1s2}, v{T+13}, vcc
s_movk_i32 s7, 5120
v_lshlrev_b32 v{T+13}, 2, v{n_v}
v_mad_u32_u24 v{vC1ld}, v{kq_v}, s7, v{T+13}
s_lshl_b32 s7, {sW}, 5
s_add_u32 s7, s7, {L_RT}
v_mul_u32_u24 v{vRtW}, 160, v{n_v}
v_lshlrev_b32 v{vStR}, 4, v{kq_v}
v_add3_u32 v{vRtW}, v{vRtW}, v{vStR}, s7
v_add_u32 v{vRtR}, {L_RT}, v{vRtR}
s_cmp_lt_u32 {sW}, 2
s_cselect_b32 s7, 3200, 0
s_lshl_b32 s7, s7, {sW}
v_mul_u32_u24 v{vVrd}, 80, v{n_v}
v_add3_u32 v{vVrd}, v{vVrd}, v{vStR}, s7
v_and_b32 v{vVrd2}, 7, v0
v_mul_u32_u24 v{vVrd2}, 80, v{vVrd2}
s_add_u32 s7, s7, 2560
v_add3_u32 v{vVrd2}, v{vVrd2}, v{vStR}, s7
v_add_u32 v{vStR}, {L_ST}, v{vStR}
s_lshl_b32 s7, {sW}, 6
v_add_u32 v{vStW}, s7, v{vStR}
''')
a(f'''
s_and_b32 s7, {sG}, 127
s_lshr_b32 s7, s7, 2
s_sub_u32 s94, 0, {sG}
s_and_b32 s94, s94, 127
s_lshr_b32 s94, s94, 2
s_bfe_u32 s95, {sG}, 0x10001
s_cmp_eq_u32 {sType}, 1
s_cselect_b32 s94, s7, s94
s_cselect_b32 s96, 2, s95
s_cselect_b32 s95, 3, s95
s_lshl_b32 s96, s96, 5
s_lshl_b32 s95, s95, 5
s_add_u32 s7, s7, s96
s_add_u32 s94, s94, s95
s_mul_i32 s7, s7, 10240
s_mul_i32 s94, s94, 10240
s_lshl_b32 s95, {sW}, 8
s_add_u32 s7, s7, s95
s_add_u32 s94, s94, s95
v_mov_b32 v{vH2ld}, s7
v_mov_b32 v{T+13}, s94
v_cmp_le_u32 vcc, 2, v{kq_v}
v_and_b32 v{T+14}, 1, v{kq_v}
v_cndmask_b32 v{vH2ld}, v{vH2ld}, v{T+13}, vcc
v_mul_u32_u24 v{T+14}, 0x1400, v{T+14}
v_lshlrev_b32 v{T+13}, 4, v{n_v}
v_add3_u32 v{vH2ld}, v{vH2ld}, v{T+13}, v{T+14}
''')
a(f'''
s_lshl_b32 s7, s92, 2
s_lshr_b32 s7, 0x1120, s7
s_and_b32 s7, s7, 3
s_add_u32 s93, s6, 256
s_cmp_eq_u32 {sSig}, 0
s_cselect_b32 s93, 8, s93
v_lshl_add_u32 v{T+13}, v{n_v}, 2, s7
v_lshlrev_b32 v{T+14}, 6, v{kq_v}
s_mov_b32 s94, {f2u(1/2048):#x}
''')
for hi in range(2):
    if hi: a(f'v_add_u32 v{T+13}, 64, v{T+13}')
    a(f'v_lshlrev_b32 v{T+15}, 4, v{T+13}')
    for ch in range(2):
        a(f'v_add_u32 v{T+16}, {"s6" if ch == 0 else "s93"}, v{T+14}\nv_mul_u32_u24 v{T+16}, v{T+16}, v{T+13}')
        for u in range(4):
            if u: a(f'v_add_u32 v{T+16}, v{T+16}, v{T+15}')
            re = CM + ((hi*2+0)*2+ch)*4 + u; im = CM + ((hi*2+1)*2+ch)*4 + u
            a(f'''v_and_b32 v{T+17}, 0x7ff, v{T+16}
v_cvt_f32_u32 v{T+17}, v{T+17}
v_mul_f32 v{T+17}, s94, v{T+17}
v_cos_f32 v{T+18}, v{T+17}
v_sin_f32 v{T+19}, v{T+17}
v_cvt_pk_f16_f32 v{re}, v{T+18}, v{T+19}
v_cvt_pk_f16_f32 v{im}, -v{T+19}, v{T+18}''')
a(f's_cmp_lg_u32 {sSig}, 0\ns_cbranch_scc1 L_cm_done')
for hi in range(2):
    for u in range(4):
        re0 = CM + ((hi*2)*2+0)*4+u; re1 = re0+4; im0 = re0+8; im1 = re0+12
        a(f'v_mov_b32 v{im1}, v{re1}\nv_mov_b32 v{re1}, 0\nv_mov_b32 v{im0}, 0')
a(f'''
v_and_b32 v{T+17}, 1, v0
v_lshlrev_b32 v{T+17}, 4, v{T+17}
v_lshlrev_b32 v{T+17}, v{T+17}, 0x3c00
'''.replace(f'v_lshlrev_b32 v{T+17}, v{T+17}, 0x3c00', f'v_mov_b32 v{T+18}, 0x3c00\nv_lshlrev_b32 v{T+17}, v{T+17}, v{T+18}'))
a(f'''
v_cmp_eq_u32 vcc, 0, v{kq_v}
v_cndmask_b32 v{CM}, v{CM}, v{T+17}, vcc
v_cndmask_b32 v{CM+16}, v{CM+16}, v{T+17}, vcc
L_cm_done:
''')
a(f'''
s_mov_b32 s40, {f2u(1/640):#x}
s_mov_b32 s41, s40
s_mov_b32 s42, {f2u(1e-5):#x}
s_mov_b32 s43, s42
s_mov_b32 {sLayer}, 0
s_mov_b32 {sTag}, 1
s_mov_b32 {sFlip}, 0
s_getreg_b32 s7, hwreg(HW_REG_XCC_ID, 0, 4)
s_mul_i32 s92, s7, s7
s_lshl_b32 s92, s92, 16
s_lshl_b32 s7, s7, 8
s_add_u32 s7, s7, s92
s_add_u32 s7, s7, 1
s_lshl_b32 {sExp}, s7, 5
v_mov_b32 v{T+13}, s7
s_lshl_b32 s7, {sSig}, 5
v_mov_b32 v{T+14}, s7
''')
for i in range(16): a(f'v_mov_b32 v{X+i}, 0')
a(f's_waitcnt vmcnt({NTAB_AFTER_ADDR+5})')
for i in range(2):
    a(f'v_and_b32 v{vXT+2*i}, 0xffff, v{T+4+i}\nv_lshrrev_b32 v{vXT+2*i+1}, 16, v{T+4+i}')
a(f'v_and_b32 v{vVAB}, 0xffff, v{T+6}\nv_lshrrev_b32 v{vVAB+1}, 16, v{T+6}')
a(f'v_and_b32 v{vVC}, 0xffff, v{T+7}\nv_lshrrev_b32 v{vVC+1}, 16, v{T+7}')
a(f'''
v_and_b32 v{T+15}, 1, v{kq_v}
v_mul_u32_u24 v{T+15}, 0x1400, v{T+15}
v_add_u32 v{T+15}, {L_XT}, v{T+15}
v_cmp_ne_u32 vcc, v{T+15}, v{vXT}
v_cndmask_b32 v{vMask0}, 0, -1, vcc
v_add_u32 v{T+16}, {L_XT-L_RT}, v{vRtR}
s_waitcnt vmcnt(3)
''')
stamp('xarr')
a(f'''
ds_write_b128 v{T+16}, {vr(T+20)}
ds_write_b128 v{T+16}, {vr(T+24)} offset:5120
s_waitcnt vmcnt(1) lgkmcnt(0)
s_barrier
s_cmp_lg_u32 {sW}, 0
s_cbranch_scc1 L_noatom
s_mov_b64 exec, 1
buffer_atomic_add v{T+13}, v{T+14}, {SD}, 0 offen
s_mov_b64 exec, -1
L_noatom:
''')
for kl in range(4):
    for j in range(4): a(f'ds_read_u16_d16_hi v{X+4*kl+j}, v{vXT+kl} offset:{1280*j}')
a('s_waitcnt lgkmcnt(0)')
stamp('gather')
Sx, Qx = T, T+4
a('L_loop:')
stamp('top', True)
a(f'''
s_add_u32 s7, {sH2st}, {BUF}
buffer_store_dwordx4 {vr(vZ)}, v{vH2st}, {SWS}, s7 offen sc1
''')
for p in range(2):
    a(f'v_pk_add_f32 v[{Sx+2*p}:{Sx+2*p+1}], v[{X+2*p}:{X+2*p+1}], v[{X+4+2*p}:{X+5+2*p}]')
    a(f'v_pk_mul_f32 v[{Qx+2*p}:{Qx+2*p+1}], v[{X+2*p}:{X+2*p+1}], v[{X+2*p}:{X+2*p+1}]')
for kl in range(1, 4):
    for p in range(2):
        b = X+4*kl+2*p
        a(f'v_pk_fma_f32 v[{Qx+2*p}:{Qx+2*p+1}], v[{b}:{b+1}], v[{b}:{b+1}], v[{Qx+2*p}:{Qx+2*p+1}]')
        if kl > 1: a(f'v_pk_add_f32 v[{Sx+2*p}:{Sx+2*p+1}], v[{Sx+2*p}:{Sx+2*p+1}], v[{b}:{b+1}]')
for j in range(4): a(f'v_permlane32_swap_b32 v{Sx+j}, v{Qx+j}')
for p in range(2): a(f'v_pk_add_f32 v[{Sx+2*p}:{Sx+2*p+1}], v[{Sx+2*p}:{Sx+2*p+1}], v[{Qx+2*p}:{Qx+2*p+1}]')
for sh in (8, 4, 2, 1):
    for j in range(4): a(f'v_add_f32_dpp v{Sx+j}, v{Sx+j}, v{Sx+j} row_ror:{sh} row_mask:0xf bank_mask:0xf')
a(f'''
s_mov_b32 exec_lo, 0x00010001
s_mov_b32 exec_hi, 0x00010001
ds_write_b128 v{vStW}, {vr(Sx)}
s_mov_b64 exec, -1
s_waitcnt lgkmcnt(0)
s_barrier
''')
stamp('bar1', True)
P = T+8
for w in range(5): a(f'ds_read_b128 {vr(P+4*w)}, v{vStR} offset:{64*w}')
for w, cnt in ((1, 3), (2, 2), (3, 1), (4, 0)):
    a(f's_waitcnt lgkmcnt({cnt})')
    for p in range(2): a(f'v_pk_add_f32 v[{P+2*p}:{P+2*p+1}], v[{P+2*p}:{P+2*p+1}], v[{P+4*w+2*p}:{P+4*w+2*p+1}]')
Q2 = P+4
for j in range(4): a(f'v_mov_b32 v{Q2+j}, v{P+j}')
for j in range(4): a(f'v_permlane32_swap_b32 v{P+j}, v{Q2+j}')
for p in range(2):
    a(f'v_pk_mul_f32 v[{P+2*p}:{P+2*p+1}], v[{P+2*p}:{P+2*p+1}], {sInv}')
    a(f'v_pk_mul_f32 v[{Q2+2*p}:{Q2+2*p+1}], v[{Q2+2*p}:{Q2+2*p+1}], {sInv}')
for p in range(2):
    a(f'v_pk_fma_f32 v[{Q2+2*p}:{Q2+2*p+1}], v[{P+2*p}:{P+2*p+1}], v[{P+2*p}:{P+2*p+1}], v[{Q2+2*p}:{Q2+2*p+1}] neg_lo:[1,0,0] neg_hi:[1,0,0]')
for j in range(4): a(f'v_max_f32 v{Q2+j}, 0, v{Q2+j}')
for p in range(2): a(f'v_pk_add_f32 v[{Q2+2*p}:{Q2+2*p+1}], v[{Q2+2*p}:{Q2+2*p+1}], {sEps}')
for j in range(4): a(f'v_rsq_f32 v{Q2+j}, v{Q2+j}')
for p in range(2):
    a(f'v_pk_mul_f32 v[{P+2*p}:{P+2*p+1}], v[{P+2*p}:{P+2*p+1}], v[{Q2+2*p}:{Q2+2*p+1}] neg_lo:[1,0] neg_hi:[1,0]')
N_ = T+16; Bo = T+32
for kl in range(4):
    for p in range(2):
        a(f'v_pk_fma_f32 v[{N_+4*kl+2*p}:{N_+4*kl+2*p+1}], v[{X+4*kl+2*p}:{X+4*kl+2*p+1}], v[{Q2+2*p}:{Q2+2*p+1}], v[{P+2*p}:{P+2*p+1}]')
for kl in range(4):
    for p in range(2): a(f'v_cvt_pk_f16_f32 v{Bo+2*kl+p}, v{N_+4*kl+2*p}, v{N_+4*kl+2*p+1}')
D0, D1, DC = T, T+4, T+8
a(f'''
v_mfma_f32_16x16x32_f16 {vr(D0)}, {vr(S1r)}, {vr(Bo)}, 0
v_mfma_f32_16x16x32_f16 {vr(DC)}, {vr(S1r+4)}, {vr(Bo)}, 0
v_mfma_f32_16x16x32_f16 {vr(D1)}, {vr(S1r)}, {vr(Bo+4)}, 0
v_mfma_f32_16x16x32_f16 {vr(DC)}, {vr(S1r+8)}, {vr(Bo+4)}, {vr(DC)}
s_cmp_lg_u32 s2, 0
s_cbranch_scc1 L_nofix
s_cmp_lg_u32 {sW}, 0
s_cbranch_scc1 L_nofix
v_mfma_f32_16x16x32_f16 {vr(T+16)}, {vr(DEL)}, {vr(Bo)}, 0
v_mfma_f32_16x16x32_f16 {vr(T+20)}, {vr(DEL+4)}, {vr(Bo)}, 0
s_mov_b32 exec_lo, 0x00010001
s_mov_b32 exec_hi, 0x00010001
''')
for p in range(2):
    a(f'v_pk_add_f32 v[{D0+2*p}:{D0+2*p+1}], v[{D0+2*p}:{D0+2*p+1}], v[{T+16+2*p}:{T+17+2*p}]')
for p in range(2):
    a(f'v_pk_add_f32 v[{DC+2*p}:{DC+2*p+1}], v[{DC+2*p}:{DC+2*p+1}], v[{T+20+2*p}:{T+21+2*p}]')
a('s_mov_b64 exec, -1\nL_nofix:\ns_nop 4')
W_ = T+24
a(f'''
v_cvt_pk_f16_f32 v{W_}, v{D0}, v{D0+1}
v_cvt_pk_f16_f32 v{W_+1}, v{D0+2}, v{D0+3}
v_cvt_pk_f16_f32 v{W_+2}, v{D1}, v{D1+1}
v_cvt_pk_f16_f32 v{W_+3}, v{D1+2}, v{D1+3}
ds_write_b32 v{vVAB}, v{W_}
ds_write_b32 v{vVAB}, v{W_+1} offset:3200
v_cvt_pk_f16_f32 v{W_+4}, v{DC}, v{DC+1}
v_cvt_pk_f16_f32 v{W_+5}, v{DC+2}, v{DC+3}
ds_write_b32 v{vVAB+1}, v{W_+2}
ds_write_b32 v{vVAB+1}, v{W_+3} offset:3200
ds_write_b32 v{vVC}, v{W_+4}
ds_write_b32 v{vVC+1}, v{W_+5}
''')
stamp('s1w', True)
a(f'''
s_cmp_lg_u32 {sLayer}, 0
s_cbranch_scc1 L_nohs
s_cmp_lg_u32 {sW}, 4
s_cbranch_scc1 L_nohs
s_mov_b32 {sSpin}, {SPIN}
v_lshlrev_b32 v{T+1}, 1, v{vL16}
s_mov_b64 exec, 0xff
L_hs:
buffer_load_dword v{T}, v{T+1}, {SD}, 0 offen sc1
s_sub_u32 {sSpin}, {sSpin}, 1
s_cbranch_scc1 L_hs_done
s_waitcnt vmcnt(0)
v_and_b32 v{T+2}, 0xff, v{T}
v_cmp_ne_u32 vcc, 32, v{T+2}
s_cbranch_vccnz L_hs
L_hs_done:
s_waitcnt vmcnt(0)
v_readlane_b32 s7, v{T}, {sSig}
s_mov_b64 exec, -1
s_cmp_lg_u32 s7, {sExp}
s_cselect_b32 s7, 1, {FORCE_SLOW}
v_mov_b32 v{T}, s7
v_mov_b32 v{T+1}, {L_MODE}
ds_write_b32 v{T+1}, v{T}
L_nohs:
s_waitcnt vmcnt(0) lgkmcnt(0)
s_barrier
''')
stamp('bar2', True)
a(f's_cmp_eq_u32 {sW}, 4\ns_cbranch_scc1 L_cphase')
Ad = T; Tr = T+12; Ti = T+24; B2 = T+36; O = T+48
a(f'''
ds_read_b128 {vr(Ad)}, v{vVrd}
ds_read_b128 {vr(Ad+4)}, v{vVrd} offset:1280
ds_read_b128 {vr(Ad+8)}, v{vVrd2}
s_cmp_lg_u32 {sLayer}, 0
s_cbranch_scc1 L_nomode
v_mov_b32 v{O}, {L_MODE}
ds_read_b32 v{O}, v{O}
s_waitcnt lgkmcnt(0)
v_readfirstlane_b32 {sMode}, v{O}
L_nomode:
''')
for blk in range(3):
    a(f's_waitcnt lgkmcnt({2-blk})')
    a(f'v_mfma_f32_16x16x32_f16 {vr(Tr+4*blk)}, {vr(Ad+4*blk)}, {vr(B1r)}, 0')
    a(f'v_mfma_f32_16x16x32_f16 {vr(Ti+4*blk)}, {vr(Ad+4*blk)}, {vr(B1r+4)}, 0')
Pt, Qt = T+60, T+64
for ch in range(3):
    Pt = T+60; Qt = T+64
    for p in range(2):
        r_, i_ = Tr+4*ch+2*p, Ti+4*ch+2*p; c_, s_2 = TWc+4*ch+2*p, TWs+4*ch+2*p
        a(f'v_pk_mul_f32 v[{Pt+2*p}:{Pt+2*p+1}], v[{r_}:{r_+1}], v[{c_}:{c_+1}]')
        a(f'v_pk_mul_f32 v[{Qt+2*p}:{Qt+2*p+1}], v[{i_}:{i_+1}], v[{c_}:{c_+1}]')
    for p in range(2):
        r_, i_ = Tr+4*ch+2*p, Ti+4*ch+2*p; c_, s_2 = TWc+4*ch+2*p, TWs+4*ch+2*p
        a(f'v_pk_fma_f32 v[{Pt+2*p}:{Pt+2*p+1}], v[{i_}:{i_+1}], v[{s_2}:{s_2+1}], v[{Pt+2*p}:{Pt+2*p+1}]')
        a(f'v_pk_fma_f32 v[{Qt+2*p}:{Qt+2*p+1}], v[{r_}:{r_+1}], v[{s_2}:{s_2+1}], v[{Qt+2*p}:{Qt+2*p+1}] neg_lo:[1,0,0] neg_hi:[1,0,0]')
    for i in range(4): a(f'v_cvt_pk_f16_f32 v{B2+4*ch+i}, v{Pt+i}, v{Qt+i}')
    for blk in range(3):
        c_in = '0' if ch == 0 else vr(O+4*blk)
        a(f'v_mfma_f32_16x16x32_f16 {vr(O+4*blk)}, {vr(A2r+(blk*3+ch)*4)}, {vr(B2+4*ch)}, {c_in}')
Wo = T
for i in range(6): a(f'v_cvt_pk_f16_f32 v{Wo+i}, v{O+2*i}, v{O+2*i+1}')
a(f'''
s_cmp_ge_u32 {sW}, 2
s_cbranch_scc1 L_noslot
v_readlane_b32 s7, v{Wo+4}, 32
v_writelane_b32 v{Wo}, s7, 0
L_noslot:
''')
for i in range(6): a(f'v_and_or_b32 v{Wo+i}, v{Wo+i}, -2, {sTag}')
a(f'''
s_cmp_lg_u32 {sMode}, 0
s_cbranch_scc1 L_st_slow
buffer_store_dwordx4 {vr(Wo)}, v{vL16}, {SWS}, {sH1st} offen
buffer_store_dwordx2 v[{Wo+4}:{Wo+5}], v{vH1s2}, {SWS}, {sH1st} offen
s_branch L_cphase
L_st_slow:
buffer_store_dwordx4 {vr(Wo)}, v{vL16}, {SWS}, {sH1st} offen sc1
buffer_store_dwordx2 v[{Wo+4}:{Wo+5}], v{vH1s2}, {SWS}, {sH1st} offen sc1
L_cphase:
''')
stamp('h1st', True)
Ca = T+8; Dm = T+16; K_ = T+32
a(f'''
s_mov_b32 {sSpin}, {SPIN}
s_mov_b32 exec_lo, 0x00ff00ff
s_mov_b32 exec_hi, 0x00ff00ff
L_poll1:
''')
for ch in range(2):
    for u in range(4):
        a(f'buffer_load_dword v{Ca+4*ch+u}, v{vC1ld}, {SWS}, {sH1ld0 if ch == 0 else sH1ld1} offen offset:{1280*u} sc1')
a(f'''
s_sub_u32 {sSpin}, {sSpin}, 1
s_cbranch_scc1 L_poll1_done
s_waitcnt vmcnt(0)
''')
tt = sum((((i >> 2 & 1) ^ (i & 1)) & ((i >> 1 & 1) ^ (i & 1))) << i for i in range(8))
for i in range(4): a(f'v_bitop3_b32 v{K_+i}, v{Ca+2*i}, v{Ca+2*i+1}, {sFlip} bitop3:{tt:#x}')
a(f'''
v_bitop3_b32 v{K_}, v{K_}, v{K_+1}, v{K_+2} bitop3:0x80
v_bitop3_b32 v{K_}, v{K_}, v{K_+3}, 1 bitop3:0x80
v_cmp_eq_u32 vcc, 0, v{K_}
s_cbranch_vccnz L_poll1
L_poll1_done:
s_waitcnt vmcnt(0)
s_mov_b64 exec, -1
''')
stamp('h1ok', True)
for hi in range(2):
    for ch in range(2):
        for rio in range(2):
            d = Dm + (hi*2+rio)*4
            a(f'v_mfma_f32_16x16x32_f16 {vr(d)}, {vr(Ca+4*ch)}, {vr(CM+((hi*2+rio)*2+ch)*4)}, {"0" if ch == 0 else vr(d)}')
a('s_mov_b32 exec_hi, 0')
for hi in range(2):
    for i in range(4): a(f'v_cvt_pk_f16_f32 v{K_+4*hi+i}, v{Dm+8*hi+i}, v{Dm+8*hi+4+i}')
    for i in range(4): a(f'v_or_b32 v{K_+4*hi+i}, 1, v{K_+4*hi+i}')
    a(f'ds_write_b128 v{vRtW}, {vr(K_+4*hi)} offset:{2560*hi}')
a(f'''
s_mov_b64 exec, -1
s_waitcnt lgkmcnt(0)
s_barrier
ds_read_b128 {vr(T)}, v{vRtR}
s_waitcnt lgkmcnt(0)
buffer_store_dwordx4 {vr(T)}, v{vH2st}, {SWS}, {sH2st} offen sc1
s_mov_b32 {sSpin}, {SPIN}
''')
stamp('h2st', True)
a('s_waitcnt vmcnt(0)')
stamp('h2ack', True)
a('L_poll2:')
Lh = T+4; K2 = T+20
for u in range(4): a(f'buffer_load_dwordx4 {vr(Lh+4*u)}, v{vH2ld}, {SWS}, {sH2ld} offen offset:{1280*u} sc1')
a(f'''
s_sub_u32 {sSpin}, {sSpin}, 1
s_cbranch_scc1 L_poll2_done
s_waitcnt vmcnt(0)
''')
for i in range(5): a(f'v_bitop3_b32 v{K2+i}, v{Lh+3*i}, v{Lh+3*i+1}, v{Lh+3*i+2} bitop3:0x80')
a(f'''
v_bitop3_b32 v{K2}, v{K2}, v{K2+1}, v{K2+2} bitop3:0x80
v_bitop3_b32 v{K2+3}, v{K2+3}, v{K2+4}, v{Lh+15} bitop3:0x80
v_bitop3_b32 v{K2}, v{K2}, v{K2+3}, 1 bitop3:0x80
v_cmp_eq_u32 vcc, 0, v{K2}
s_cbranch_vccnz L_poll2
L_poll2_done:
s_waitcnt vmcnt(0)
''')
stamp('h2ok', True)
for kl in range(1, 4): a(f'v_swap_b32 v{Lh+kl}, v{Lh+4*kl}')
for u in range(4): a(f'v_and_b32 v{Lh+u}, v{vMask0}, v{Lh+u}')
for (u, kl) in ((1, 2), (1, 3), (2, 3)): a(f'v_swap_b32 v{Lh+4*u+kl}, v{Lh+4*kl+u}')
for kl in range(4): a(f'v_mfma_f32_16x16x32_f16 {vr(X+4*kl)}, {vr(A3r)}, {vr(Lh+4*kl)}, {vr(X+4*kl)}')
a(f'''
s_add_u32 {sLayer}, {sLayer}, 1
s_add_u32 {sH2st}, {sH2st}, {BUF}
s_add_u32 {sH2ld}, {sH2ld}, {BUF}
s_xor_b32 {sH1st}, {sH1st}, {H1STR}
s_xor_b32 {sH1ld0}, {sH1ld0}, {H1STR}
s_xor_b32 {sH1ld1}, {sH1ld1}, {H1STR}
s_cmp_ge_u32 {sLayer}, 2
s_cselect_b32 {sTag}, 0, 1
s_cselect_b32 {sFlip}, -1, 0
''')
a(f'''
s_cmp_lt_u32 {sLayer}, {NLAYER}
s_cbranch_scc1 L_loop
''')
F = T
for kl in range(4):
    for p in range(2): a(f'v_cvt_pk_bf16_f32 v{F+2*kl+p}, v{X+4*kl+2*p}, v{X+4*kl+2*p+1}')
for kl in range(4):
    for p in range(2):
        a(f'ds_write_b16 v{vXT+kl}, v{F+2*kl+p} offset:{2560*p}')
        a(f'ds_write_b16_d16_hi v{vXT+kl}, v{F+2*kl+p} offset:{2560*p+1280}')
a(f'''
s_waitcnt lgkmcnt(0)
s_barrier
ds_read_b128 {vr(T+8)}, v{vRtR} offset:{L_XT-L_RT}
ds_read_b128 {vr(T+12)}, v{vRtR} offset:{L_XT-L_RT+5120}
s_waitcnt lgkmcnt(1)
buffer_store_dwordx4 {vr(T+8)}, v{vGa}, {SO}, 0 offen
s_waitcnt lgkmcnt(0)
buffer_store_dwordx4 {vr(T+12)}, v{vGb}, {SO}, 0 offen
''')
if STAMPS:
    a('s_waitcnt vmcnt(0)'); stamp('end'); stamp('rend', real=True)
    a(f's_waitcnt lgkmcnt(0)\ns_cmp_lg_u32 {sW}, {int(opts.get("swave", 0))}\ns_cbranch_scc1 L_end')
    a(f's_lshl_b32 s7, s2, 7\ns_add_u32 s7, s7, {STAMP_OFF}\nv_mov_b32 v1, 0\ns_mov_b64 exec, 1')
    for i in range(len(nst)): a(f'v_mov_b32 v2, s{60+2*i}\nbuffer_store_dword v2, v1, {SWS}, s7 offen offset:{4*i}')
if int(opts.get('dbgspan', 0)):
    a(f'''s_waitcnt vmcnt(0)
s_memrealtime s[62:63]
s_memtime s[66:67]
s_waitcnt lgkmcnt(0)
s_cmp_lg_u32 {sW}, 0
s_cbranch_scc1 L_end
s_not_b32 s60, s60
s_sub_u32 s66, s66, s64
s_mov_b64 exec, 1
v_mov_b32 v1, 4
v_mov_b32 v2, s62
v_mov_b32 v3, s60
v_mov_b32 v4, s66
buffer_atomic_umax v2, v1, {SD}, 0 offen
buffer_atomic_umax v3, v1, {SD}, 0 offen offset:4
buffer_atomic_umax v4, v1, {SD}, 0 offen offset:8
''')
a('L_end:\ns_endpgm')

hdr = open('interleave_layers__spectral_fnet__spectral_fnet__prompt.s.ref').read().split('; Override')[0]
out = hdr + f'; STAMPS ' + ' '.join(nst) + '\n' + f'; @launch grid=(256,1,1) block=(320,1,1) lds={LDS_BYTES}\n'
out += f'.amdgcn_target "amdgcn-amd-amdhsa--gfx950"\n.text\n.globl {KNAME}\n.p2align 8\n.type {KNAME},@function\n{KNAME}:\n'
out += a.text()
out += f'''.section .rodata,"a"
.p2align 6
.amdhsa_kernel {KNAME}
  .amdhsa_next_free_vgpr 240
  .amdhsa_next_free_sgpr 102
  .amdhsa_accum_offset 240
  .amdhsa_group_segment_fixed_size 0
  .amdhsa_kernarg_size 104
  .amdhsa_user_sgpr_count 2
  .amdhsa_user_sgpr_kernarg_segment_ptr 1
  .amdhsa_system_sgpr_workgroup_id_x 1
.end_amdhsa_kernel
.p2align 10
tbl:
'''
for b in blocks:
    f = b.reshape(-1)
    for i in range(0, 256, 8): out += '.long ' + ','.join(f'{int(x):#x}' for x in f[i:i+8]) + '\n'
open(sys.argv[1], 'w').write(out)
print('instrs', len(a.ins), 'nops inserted', a.nops, 'table blocks', len(blocks), 'bytes', len(out))
```

```python
import re
REG = re.compile(r'^(-|\|)?([vsa])(\d+)$')
RNG = re.compile(r'^(-)?([vsa])\[(\d+):(\d+)\]$')
TRANS = ('v_exp_f32','v_log_f32','v_rcp_f32','v_rsq_f32','v_sqrt_f32','v_sin_f32','v_cos_f32')
def regs_of(tok):
    tok = tok.strip()
    m = REG.match(tok)
    if m: return {(m.group(2), int(m.group(3)))}
    m = RNG.match(tok)
    if m: return {(m.group(2), i) for i in range(int(m.group(3)), int(m.group(4))+1)}
    if tok == 'vcc': return {('s', 106), ('s', 107)}
    if tok == 'vcc_lo': return {('s', 106)}
    if tok == 'vcc_hi': return {('s', 107)}
    if tok == 'exec': return {('s', 126), ('s', 127)}
    if tok == 'exec_lo': return {('s', 126)}
    if tok == 'exec_hi': return {('s', 127)}
    if tok == 'm0': return {('s', 124)}
    return set()
class Ins:
    def __init__(self, text):
        self.text = text
        t = text.split(';')[0].strip()
        self.label = t.endswith(':')
        self.op = t.split()[0] if t and not self.label else ''
        rest = t[len(self.op):].strip()
        toks = [x.strip() for x in re.split(r',(?![^\[]*\])', rest)] if rest else []
        if toks:
            last = toks[-1].split()
            toks[-1] = last[0] if last else ''
            self.mods = ' '.join(last[1:])
        else: self.mods = ''
        self.toks = toks
        op = self.op
        self.w = set(); self.r = set(); self.srcc = set(); self.ab = set()
        self.mfma = op.startswith('v_mfma')
        self.valu = op.startswith('v_') and not self.mfma
        self.trans = op.replace('_e32','').replace('_e64','') in TRANS
        self.perm = op.startswith('v_permlane')
        self.dpp = op.endswith('_dpp') or 'row_' in self.mods or 'quad_perm' in self.mods
        self.rdlane = op.startswith('v_readlane') or op.startswith('v_readfirstlane')
        self.vmem = op.startswith('buffer_') or op.startswith('global_')
        self.ds = op.startswith('ds_')
        self.salu = op.startswith('s_')
        self.widestore = self.vmem and 'store' in op and ('x3' in op or 'x4' in op)
        R = [regs_of(x) for x in toks]
        if self.mfma:
            self.w = R[0]; self.ab = R[1] | R[2]; self.srcc = R[3]; self.r = self.ab | self.srcc
        elif self.valu:
            if op.startswith('v_swap') or self.perm:
                self.w = R[0] | R[1]; self.r = R[0] | R[1]
            else:
                self.w = set(R[0]);
                for x in R[1:]: self.r |= x
                if op.startswith('v_fmac') or op.startswith('v_writelane') or op.startswith('v_pk_fmac'): self.r |= R[0]
                if op.startswith('v_cndmask') and len(toks) == 3: self.r |= regs_of('vcc')
        elif self.ds:
            if 'read' in op:
                self.w = R[0]; self.r = R[1] | (R[0] if 'd16' in op else set())
            else:
                for x in R: self.r |= x
        elif self.vmem:
            if '_lds_' in op or self.mods.endswith('lds') or ' lds' in (' '+self.mods):
                for x in R: self.r |= x
                self.r |= regs_of('m0')
            elif 'load' in op:
                self.w = R[0]
                for x in R[1:]: self.r |= x
            else:
                for x in R: self.r |= x
            self.sdata = R[0] if op.startswith('buffer_') else (R[1] if len(R) > 1 else set())
        elif self.salu:
            if op in ('s_nop','s_waitcnt','s_barrier','s_endpgm','s_sleep','s_setprio') or op.startswith('s_cbranch') or op == 's_branch':
                pass
            elif op.startswith('s_cmp') or op.startswith('s_bitcmp'):
                for x in R: self.r |= x
            else:
                self.w = set(R[0])
                for x in R[1:]: self.r |= x
    def states(self):
        if self.label or not self.op: return 0
        if self.op == 's_nop': return int(self.toks[0], 0) + 1
        return 1
def vg(s): return {x for x in s if x[0] in 'va'}
def sg(s): return {x for x in s if x[0] == 's'}
def need(p, c):
    n = 0
    cv_r, cv_w = vg(c.r), vg(c.w)
    if p.valu:
        pw = vg(p.w); ps = sg(p.w)
        if c.mfma and pw & cv_r: n = max(n, 2)
        if c.perm and pw & cv_r: n = max(n, 2)
        if c.dpp and pw & cv_r: n = max(n, 2)
        if c.rdlane and pw & cv_r: n = max(n, 1)
        if p.trans and c.valu and not c.trans and pw & cv_r: n = max(n, 1)
        if p.trans and c.mfma and pw & cv_r: n = max(n, 2)
        if ps:
            if c.vmem and ps & sg(c.r): n = max(n, 5)
            if c.valu and ps & sg(c.r): n = max(n, 4 if (c.op.startswith('v_writelane') or c.op.startswith('v_readlane')) else 2)
            if c.salu and ps & sg(c.r): n = max(n, 1)
            if c.op.startswith('s_cbranch_vcc') and ps & regs_of('vcc'): n = max(n, 1)
    if p.mfma:
        if c.mfma:
            if p.w & c.ab: n = max(n, 8)
            if p.w & c.srcc and p.w != c.srcc: n = max(n, 6)
            if p.w & c.w and not (p.w == c.srcc and c.w == p.w): n = max(n, 6)
        else:
            if (c.valu or c.vmem or c.ds) and (p.w & (cv_r | cv_w)): n = max(n, 8)
            if c.valu and (p.srcc & cv_w): n = max(n, 3)
    if p.salu and c.vmem and ('_lds_' in c.op or ' lds' in (' '+c.mods)) and (p.w & regs_of('m0')): n = max(n, 1)
    if p.widestore and (c.valu or c.mfma) and (p.sdata & cv_w): n = max(n, 2)
    if p.widestore and (c.vmem or c.ds) and (p.sdata & cv_w): n = max(n, 1)
    if p.ds and 'write' in p.op and ('b128' in p.op or 'b96' in p.op) and c.valu and (vg(p.r) & cv_w): n = max(n, 0)
    return n
class Asm:
    def __init__(self):
        self.ins = []
        self.nops = 0
    def __call__(self, text):
        for line in text.split('\n'):
            line = line.strip()
            if not line or line.startswith(';'): continue
            c = Ins(line)
            if not c.label and c.op:
                req = 0; dist = 0
                for p in reversed(self.ins):
                    if dist >= 12: break
                    if p.op and not p.label:
                        k = need(p, c)
                        if k - dist > req: req = k - dist
                    dist += p.states()
                if req > 0:
                    self.ins.append(Ins(f's_nop {req-1}')); self.nops += 1
            self.ins.append(c)
    def text(self):
        return '\n'.join(('' if i.label else '  ') + i.text for i in self.ins) + '\n'
```

```python
import sys, struct
import numpy as np
from design import *
from asmlib import Asm

KNAME = "interleave_layers__spectral_fnet__spectral_fnet__prompt_kernel"
opts = dict(a.split('=') for a in sys.argv[2:] if '=' in a)
def opt(k, d=0): return int(opts.get(k, d))
STAMPS = opt('stamps'); FORCE_SLOW = opt('slow'); NLAYER = opt('layers', 4); SPIN = opt('spin', 200000); SLAYER = opt('slayer')

def f2u(f): return struct.unpack('<I', struct.pack('<f', f))[0]
BUF = 1310720
FLAGS = 4096; H1BASE = 0x10000; H1STR = 0x200000; H2BASE = 0x400000; WS_BYTES = H2BASE + 4*BUF
STAMP_OFF = WS_BYTES
if STAMPS: WS_BYTES += 256*128
L_V = 0; L_ST = 9600; L_MODE = 9920; L_RT = 9984; L_XT = 15360; L_TB = 25600; L_CM = L_TB + 30*1024; LDS_BYTES = L_CM + 8192
def vaddr(col): return (col % 40)*80 + (col//40)*4
def opA(M):
    h = M.astype(np.float16).view(np.uint16).astype(np.uint32)
    out = np.zeros((64, 4), np.uint32)
    for l in range(64):
        r = h[l % 16, 8*(l//16):8*(l//16)+8]
        out[l] = r[0::2] | (r[1::2] << 16)
    return out
def opB(N): return opA(N.T)
blocks = []
def add(b): blocks.append(np.asarray(b, np.uint32).reshape(256)); return len(blocks)-1
n_ = S1_mats(False); s_ = S1_mats(True)
def a3_idx(sig, m):
    g = unit_g(sig, m)
    if g == 0: return 9
    if g == 128: return 8
    return (g >> 7) + (0 if g % 4 == 1 else 4)
a3 = {}
for sig in range(8):
    for m in range(32):
        M = A3(sig, m)*HSCALE; i = a3_idx(sig, m)
        if i in a3: assert np.allclose(a3[i], M), (sig, m)
        a3[i] = M
T_S1N = add(opA(n_[0])); add(opA(n_[1])); add(opA(n_[2]))
add(opA(a3[0]))
Bre, Bim = B1_mats(); T_B1 = add(opB(Bre)); add(opB(Bim))
tc, ts = twiddles()
T_TW = len(blocks)
for arr in (tc, ts):
    for blk in range(3): add(arr[blk].astype(np.float32).view(np.uint32))
T_A2 = len(blocks)
for r0 in (0, 20):
    M = A2_mats(r0)/HSCALE
    for blk in range(3):
        for ch in range(3): add(opA(M[blk, ch]))
assert len(blocks) == 30
T_S1S = add(opA(s_[0])); add(opA(s_[1])); add(opA(s_[2])); T_DEL = add(opA(s_[3])); add(opA(s_[4]))
T_A3 = len(blocks)
for i in range(10): add(opA(a3[i]))
T_ADDR = len(blocks)
at = np.zeros((2, 320, 2), np.uint32)
for ty, (sig, m) in enumerate(((2, 1), (1, 0))):
    for tid in range(320):
        w, l = divmod(tid, 64); n, mq = l % 16, l//16
        v = [L_V + vaddr(acol(sig, m, mq//2, 64*w+4*n+2*bop+(mq % 2))) for bop in range(2)]
        v += [L_V + 6400 + vaddr(acol(sig, m, mq % 2, 64*w+4*n+2*(mq//2)+sub)) for sub in range(2)]
        at[ty, tid] = [v[0] | (v[1] << 16), v[2] | (v[3] << 16)]
for i in range(5): add(at.reshape(-1)[256*i:256*i+256])

vL16, vH1s2, vH2ld, vC1ld, vRtW, vRtR, vH2st, vStR, vStW = 1, 2, 3, 4, 5, 6, 7, 8, 9
vVAB, vVC, vVrd, vVrd2 = 10, 12, 14, 15
X = 16; A3r = 32; S1r = 36; B1r = 48; TWc = 56; TWs = 68; A2r = 80; CM = 116; DEL = 148
vXT = 156; vMask0 = 160; vGa = 161; vGb = 162; vT16 = 163; vZ = 164
T = 168
def vr(b, n=4): return f'v[{b}:{b+n-1}]'
def v2(b): return f'v[{b}:{b+1}]'
sW, sSig, sM, sG, sType, sSpec, sLayer, sMode = 's3', 's4', 's5', 's26', 's27', 's28', 's29', 's30'
sH1st, sH1ld0, sH1ld1, sH2st, sH2ld, sTag, sFlip, sSpin = 's31', 's32', 's33', 's34', 's35', 's36', 's37', 's38'
sFlag, sCl, sEpoch, sGi = 's39', 's44', 's45', 's46'
sInv, sEps = 's[40:41]', 's[42:43]'
SX, SO, SWS, STB = 's[8:11]', 's[12:15]', 's[16:19]', 's[24:25]'
a = Asm()
nst = []
def stamp(name, inloop=False, real=False):
    if STAMPS:
        i = len(nst); nst.append(name)
        assert i < 16
        ins = f's_{"memrealtime" if real else "memtime"} s[{60+2*i}:{61+2*i}]'
        if inloop: a(f's_cmp_lg_u32 {sLayer}, {SLAYER}\ns_cbranch_scc1 L_stk{i}\n{ins}\nL_stk{i}:')
        else: a(ins)
def clean5(soff):
    for i in range(4): a(f'buffer_store_dwordx4 {vr(vZ)}, v{vL16}, {SWS}, {soff} offen offset:{1024*i} sc1')
    a(f's_add_u32 s7, {soff}, 4096\nbuffer_store_dwordx4 {vr(vZ)}, v{vL16}, {SWS}, s7 offen sc1')

stamp('start'); stamp('rstart', real=True)
n_v, kq_v = T+10, T+11
a(f'''
s_load_dwordx2 s[16:17], s[0:1], 96
s_load_dwordx2 s[8:9], s[0:1], 0
s_load_dwordx2 s[12:13], s[0:1], 80
s_cmp_ge_u32 s2, 256
s_cbranch_scc1 L_end
s_getpc_b64 s[24:25]
s_add_u32 s24, s24, tbl@rel32@lo+4
s_addc_u32 s25, s25, tbl@rel32@hi+12
v_lshrrev_b32 v{T+1}, 6, v0
v_and_b32 v{T}, 63, v0
v_readfirstlane_b32 {sW}, v{T+1}
v_lshlrev_b32 v{vL16}, 4, v{T}
v_lshlrev_b32 v{vT16}, 4, v0
s_and_b32 {sSig}, s2, 7
s_lshr_b32 {sM}, s2, 3
s_lshl_b32 s6, {sSig}, 2
s_lshr_b32 s6, 0x9654d210, s6
s_and_b32 s6, s6, 15
s_lshl_b32 {sG}, {sM}, 4
s_add_u32 {sG}, {sG}, s6
s_cmp_eq_u32 {sSig}, 0
s_cselect_b32 s7, 248, 0
s_cmp_ge_u32 {sM}, 16
s_cselect_b32 s7, s7, 0
s_sub_u32 {sG}, {sG}, s7
s_and_b32 {sType}, {sG}, 1
s_lshr_b32 s7, {sG}, 7
s_lshl_b32 s92, {sType}, 2
s_sub_u32 s7, s7, s92
s_add_u32 s7, s7, {4 + T_A3 - 3}
s_cmp_eq_u32 {sG}, 128
s_cselect_b32 s7, {8 + T_A3 - 3}, s7
s_cmp_eq_u32 {sG}, 0
s_cselect_b32 s7, {9 + T_A3 - 3}, s7
s_cselect_b32 s92, {T_S1S*1024}, 0
s_lshl_b32 s7, s7, 10
s_mul_i32 s93, {sW}, 6144
s_cmp_eq_u32 {sW}, 0
s_cselect_b32 s92, s92, s93
s_cselect_b32 s7, s7, s93
s_add_u32 m0, s93, {L_TB}
v_add_u32 v{T+2}, s92, v{vL16}
v_add_u32 v{T+3}, s7, v{vL16}
s_add_u32 s93, s93, 4096
v_add_u32 v{T+8}, s93, v{vL16}
global_load_lds_dwordx4 v{T+2}, {STB}
global_load_lds_dwordx4 v{T+2}, {STB} offset:1024
global_load_lds_dwordx4 v{T+2}, {STB} offset:2048
global_load_lds_dwordx4 v{T+3}, {STB} offset:3072
s_add_u32 m0, s93, {L_TB}
s_mul_i32 s7, {sType}, 2560
s_add_u32 s7, s7, {T_ADDR*1024}
global_load_lds_dwordx4 v{T+8}, {STB}
global_load_lds_dwordx4 v{T+8}, {STB} offset:1024
v_lshl_add_u32 v{T+2}, v0, 3, s7
global_load_dwordx2 {v2(T+4)}, v{T+2}, {STB}
''')
a(f'''
v_and_b32 v{n_v}, 15, v0
v_bfe_u32 v{kq_v}, v0, 4, 2
v_lshlrev_b32 v{T+12}, 1, v{n_v}
v_and_b32 v{T+12}, 15, v{T+12}
v_lshrrev_b32 v{T+13}, 3, v{n_v}
v_lshl_add_u32 v{T+12}, v{T+13}, 5, v{T+12}
s_cmp_eq_u32 {sW}, 4
s_cselect_b64 vcc, -1, 0
s_cselect_b32 s93, 1, 128
s_lshl_b32 s92, {sW}, 5
s_cselect_b32 s92, 256, s92
'''.replace('s_lshl_b32 s92, {sW}, 5\ns_cselect_b32 s92, 256, s92', 'XX').replace('XX', ''))
a.ins = [i for i in a.ins if not (i.text.startswith('s_lshl_b32 s92, s3, 5') or i.text.startswith('s_cselect_b32 s92, 256, s92'))]
a(f'''
s_cselect_b32 s92, 8, {sW}
s_lshl_b32 s92, s92, 5
v_cndmask_b32 v{T+12}, v{n_v}, v{T+12}, vcc
s_mul_i32 s94, {sType}, 320
v_lshrrev_b32 v{T+13}, 1, v{kq_v}
v_mul_u32_u24 v{T+14}, s94, v{T+13}
v_add3_u32 v{T+12}, v{T+12}, v{T+14}, s92
s_xor_b32 s94, {sType}, 1
v_and_b32 v{T+13}, s94, v{T+13}
v_xor_b32 v{T+13}, v{T+13}, v{kq_v}
v_and_b32 v{T+13}, 1, v{T+13}
v_cmp_eq_u32 vcc, 1, v{T+13}
v_add_u32 v{T+14}, 16, v{T+12}
v_add_u32 v{T+15}, s93, v{T+12}
v_add_u32 v{T+16}, s93, v{T+14}
''')
ecol = [T+12, T+14, T+15, T+16]
for kl in range(4):
    a(f'v_sub_u32 v{T+17}, 640, v{ecol[kl]}\nv_cndmask_b32 v{vXT+kl}, v{ecol[kl]}, v{T+17}, vcc')
a(f'''
s_mul_i32 s94, s94, 320
v_cmp_gt_u32 vcc, 2, v{kq_v}
v_mov_b32 v{T+17}, s94
v_cndmask_b32 v{T+17}, 0, v{T+17}, vcc
v_cmp_eq_u32 vcc, 0, v{T+12}
v_cndmask_b32 v{vXT}, v{vXT}, v{T+17}, vcc
s_sub_u32 s92, 0, {sG}
s_and_b32 s92, s92, 511
s_cmp_eq_u32 {sG}, 0
s_cselect_b32 s92, 256, s92
s_mul_i32 s92, s92, 1280
s_mul_i32 s93, {sG}, 1280
v_and_b32 v{T+13}, 1, v{kq_v}
v_cmp_eq_u32 vcc, 1, v{T+13}
v_mov_b32 v{T+14}, s93
v_mov_b32 v{T+15}, s92
v_cndmask_b32 v{T+14}, v{T+14}, v{T+15}, vcc
v_cmp_ne_u32 vcc, 0, v{vXT}
v_mul_u32_u24 v{T+13}, 0x1400, v{T+13}
v_add_u32 v{T+13}, {L_XT}, v{T+13}
v_cndmask_b32 v{vMask0}, 0, -1, vcc
''')
for kl in range(4): a(f'v_lshl_add_u32 v{T+20+kl}, v{vXT+kl}, 1, v{T+14}')
for kl in range(4): a(f'v_lshl_add_u32 v{vXT+kl}, v{vXT+kl}, 1, v{T+13}')
for i in range(16): a(f'v_mov_b32 v{X+i}, 0')
for i in range(4): a(f'v_mov_b32 v{vZ+i}, 0')
a(f'''
s_lshl_b32 {sGi}, {sSig}, 5
s_add_u32 {sGi}, {sGi}, {sM}
s_mul_i32 s94, {sGi}, 5120
s_add_u32 s94, s94, {H1BASE}
s_mul_i32 {sCl}, s2, 5120
s_add_u32 {sCl}, {sCl}, {H2BASE}
s_mov_b32 s10, 2621440
s_mov_b32 s11, 0x20000
s_mov_b32 s18, {WS_BYTES}
s_mov_b32 s19, 0x20000
s_mov_b32 s47, 655360
s_mov_b32 s48, 1310720
s_mov_b32 s49, 1966080
s_cmp_lg_u32 {sW}, 4
s_waitcnt lgkmcnt(0)
s_cbranch_scc1 L_noclean
s_load_dword {sEpoch}, s[16:17], 0
''')
clean5('s94'); clean5(sCl)
a('L_noclean:')
for kl in range(4):
    for j in range(4):
        a(f'buffer_load_short_d16_hi v{X+4*kl+j}, v{T+20+kl}, {SX}, {["0", "s47", "s48", "s49"][j]} offen')
a(f'''
s_add_u32 s94, s94, {H1STR}
s_add_u32 {sCl}, {sCl}, {BUF}
buffer_store_dwordx4 {vr(vZ)}, v{vT16}, {SWS}, s94 offen sc1
buffer_store_dwordx4 {vr(vZ)}, v{vT16}, {SWS}, {sCl} offen sc1
s_add_u32 {sCl}, {sCl}, {BUF}
''')
stamp('kernarg')
a(f'''
s_or_b32 s7, s2, {sW}
s_cmp_lg_u32 s7, 0
s_cbranch_scc1 L_nodel
v_add_u32 v{T+2}, {T_DEL*1024}, v{vL16}
global_load_dwordx4 {vr(DEL)}, v{T+2}, {STB}
global_load_dwordx4 {vr(DEL+4)}, v{T+2}, {STB} offset:1024
L_nodel:
s_lshr_b32 s95, {sM}, 3
s_cmp_eq_u32 {sW}, 4
s_cbranch_scc1 L_cm_done
''')
a(f'''
s_lshl_b32 s7, s95, 2
s_lshr_b32 s7, 0x1120, s7
s_and_b32 s7, s7, 3
s_add_u32 s96, s6, 256
s_cmp_eq_u32 {sSig}, 0
s_cselect_b32 s96, 8, s96
s_lshl_b32 s94, {sW}, 4
s_add_u32 s6, s6, s94
s_add_u32 s96, s96, s94
v_lshl_add_u32 v{T+13}, v{n_v}, 2, s7
v_lshl_add_u32 v{T+14}, v{kq_v}, 6, s6
v_lshl_add_u32 v{T+15}, v{kq_v}, 6, s96
v_add_u32 v{T+12}, 64, v{T+13}
s_mov_b32 s94, {f2u(1/2048):#x}
s_lshl_b32 s7, {sW}, 2
s_add_u32 s7, s7, {L_CM}
v_add_u32 v{T+2}, s7, v{vL16}
''')
G = T+24
for hi in range(2):
    for ch in range(2):
        i = G + 2*(2*hi+ch)
        a(f'v_mul_u32_u24 v{i}, v{T+13-hi}, v{T+14+ch}')
for k in range(4): a(f'v_and_b32 v{G+2*k}, 0x7ff, v{G+2*k}')
for k in range(4): a(f'v_cvt_f32_u32 v{G+2*k}, v{G+2*k}')
for k in range(4): a(f'v_mul_f32 v{G+2*k}, s94, v{G+2*k}')
for k in range(4): a(f'v_sin_f32 v{G+2*k+1}, v{G+2*k}\nv_cos_f32 v{G+2*k}, v{G+2*k}')
for k in range(4): a(f'v_cvt_pk_f16_f32 v{G+8+2*k}, v{G+2*k}, v{G+2*k+1}\nv_cvt_pk_f16_f32 v{G+9+2*k}, -v{G+2*k+1}, v{G+2*k}')
a(f's_cmp_lg_u32 {sSig}, 0\ns_cbranch_scc1 L_cm_wr')
for hi in range(2):
    b = G+8+4*hi
    a(f'v_mov_b32 v{b+1}, 0\nv_mov_b32 v{b+3}, v{b+2}\nv_mov_b32 v{b+2}, 0')
a(f'''
v_and_b32 v{T+17}, 1, v0
v_lshlrev_b32 v{T+17}, 4, v{T+17}
v_mov_b32 v{T+18}, 0x3c00
v_lshlrev_b32 v{T+17}, v{T+17}, v{T+18}
v_cmp_gt_u32 vcc, 16, v0
v_cndmask_b32 v{G+8}, v{G+8}, v{T+17}, vcc
v_cndmask_b32 v{G+12}, v{G+12}, v{T+17}, vcc
L_cm_wr:
''')
for hi in range(2):
    for ch in range(2):
        for rio in range(2):
            a(f'ds_write_b32 v{T+2}, v{G+8+2*(2*hi+ch)+rio} offset:{((hi*2+rio)*2+ch)*1024}')
a('L_cm_done:')
a(f'''
v_mul_u32_u24 v{T+12}, 205, v0
v_lshrrev_b32 v{T+13}, 11, v{T+12}
v_lshrrev_b32 v{T+12}, 14, v{T+12}
v_mul_u32_u24 v{T+14}, 0x9fb00, v{T+12}
v_add3_u32 v{vGa}, v{T+14}, v{vT16}, s93
v_add3_u32 v{vGb}, v{T+14}, v{vT16}, s92
v_mul_u32_u24 v{T+14}, 10080, v{T+13}
v_add_u32 v{vH2st}, v{T+14}, v{vT16}
s_and_b32 s93, {sM}, 7
s_mul_i32 s93, s93, 160
s_lshl_b32 s94, {sSig}, 7
s_add_u32 s92, s94, {sM}
s_mul_i32 s92, s92, 1280
s_mul_i32 {sH1st}, {sW}, 40960
s_add_u32 {sH1st}, {sH1st}, s92
s_add_u32 {sH1st}, {sH1st}, {H1BASE}
s_lshl_b32 s96, s95, 5
s_add_u32 s96, s96, s94
s_mul_i32 {sH1ld0}, s96, 1280
s_add_u32 {sH1ld0}, {sH1ld0}, s93
s_lshl_b32 s96, {sW}, 5
s_add_u32 s96, s96, {H1BASE}
s_add_u32 {sH1ld0}, {sH1ld0}, s96
s_add_u32 {sH1ld1}, {sH1ld0}, 20480
s_lshl_b32 s96, s95, 8
s_add_u32 s96, s96, {sSig}
s_mul_i32 {sH2st}, s96, 1280
s_add_u32 {sH2st}, {sH2st}, s93
s_add_u32 {sH2st}, {sH2st}, {H2BASE}
s_mov_b32 {sH2ld}, {H2BASE}
v_add_u32 v{vRtR}, {L_RT}, v{vT16}
v_lshrrev_b32 v{vH1s2}, 1, v{vL16}
v_add_u32 v{vH1s2}, 1024, v{vH1s2}
v_cmp_le_u32 vcc, 512, v{vL16}
v_mov_b32 v{T+13}, 0x40000000
v_cndmask_b32 v{vH1s2}, v{vH1s2}, v{T+13}, vcc
s_movk_i32 s7, 5120
v_lshlrev_b32 v{T+13}, 2, v{n_v}
v_mad_u32_u24 v{vC1ld}, v{kq_v}, s7, v{T+13}
s_lshl_b32 s7, {sW}, 5
s_add_u32 s7, s7, {L_RT}
v_mul_u32_u24 v{vRtW}, 160, v{n_v}
v_lshlrev_b32 v{vStR}, 4, v{kq_v}
v_add3_u32 v{vRtW}, v{vRtW}, v{vStR}, s7
s_cmp_lt_u32 {sW}, 2
s_cselect_b32 s7, 3200, 0
s_lshl_b32 s7, s7, {sW}
v_mul_u32_u24 v{vVrd}, 80, v{n_v}
v_add3_u32 v{vVrd}, v{vVrd}, v{vStR}, s7
v_and_b32 v{vVrd2}, 7, v0
v_mul_u32_u24 v{vVrd2}, 80, v{vVrd2}
s_add_u32 s7, s7, 2560
v_add3_u32 v{vVrd2}, v{vVrd2}, v{vStR}, s7
v_add_u32 v{vStR}, {L_ST}, v{vStR}
s_lshl_b32 s7, {sW}, 6
v_add_u32 v{vStW}, s7, v{vStR}
s_cmp_eq_u32 {sW}, 3
s_cselect_b32 s7, 9216, 0
v_add_u32 v{T+2}, {L_TB}, v{vL16}
v_add_u32 v{T+3}, s7, v{T+2}
s_cmp_eq_u32 {sW}, 4
s_cbranch_scc1 L_tw4
s_waitcnt vmcnt(19) lgkmcnt(0)
s_barrier
''')
stamp('tbl')
def common_reads():
    for i in range(3): a(f'ds_read_b128 {vr(S1r+4*i)}, v{T+2} offset:{1024*i}')
common_reads()
for i in range(2): a(f'ds_read_b128 {vr(B1r+4*i)}, v{T+2} offset:{1024*(T_B1+i)}')
for i in range(6): a(f'ds_read_b128 {vr(TWc+4*i)}, v{T+2} offset:{1024*(T_TW+i)}')
for i in range(9): a(f'ds_read_b128 {vr(A2r+4*i)}, v{T+3} offset:{1024*(T_A2+i)}')
a(f'''
s_branch L_tabdone
L_tw4:
s_waitcnt vmcnt(29)
s_barrier
''')
common_reads()
a(f'''
s_getreg_b32 s7, hwreg(HW_REG_XCC_ID, 0, 4)
s_waitcnt lgkmcnt(0)
s_mul_i32 {sFlag}, {sEpoch}, 0x9e3779b1
s_add_u32 {sFlag}, {sFlag}, 0x7f4a7c15
s_and_b32 {sFlag}, {sFlag}, -16
s_or_b32 {sFlag}, {sFlag}, s7
v_mov_b32 v{T+13}, {sFlag}
s_lshl_b32 s7, {sGi}, 7
s_add_u32 s7, s7, {FLAGS}
s_mov_b64 exec, 1
s_waitcnt vmcnt(18)
buffer_store_dword v{T+13}, off, {SWS}, s7 sc1
s_mov_b64 exec, -1
L_tabdone:
ds_read_b128 {vr(A3r)}, v{T+2} offset:3072
''')
for i in range(8): a(f'ds_read_b128 {vr(CM+4*i)}, v{T+2} offset:{L_CM-L_TB+1024*i}')
a(f'''
s_and_b32 s7, {sG}, 127
s_lshr_b32 s7, s7, 2
s_sub_u32 s94, 0, {sG}
s_and_b32 s94, s94, 127
s_lshr_b32 s94, s94, 2
s_bfe_u32 s95, {sG}, 0x10001
s_cmp_eq_u32 {sType}, 1
s_cselect_b32 s94, s7, s94
s_cselect_b32 s96, 2, s95
s_cselect_b32 s95, 3, s95
s_lshl_b32 s96, s96, 5
s_lshl_b32 s95, s95, 5
s_add_u32 s7, s7, s96
s_add_u32 s94, s94, s95
s_mul_i32 s7, s7, 10240
s_mul_i32 s94, s94, 10240
s_lshl_b32 s95, {sW}, 8
s_add_u32 s7, s7, s95
s_add_u32 s94, s94, s95
v_mov_b32 v{vH2ld}, s7
v_mov_b32 v{T+13}, s94
v_cmp_le_u32 vcc, 2, v{kq_v}
v_and_b32 v{T+14}, 1, v{kq_v}
v_cndmask_b32 v{vH2ld}, v{vH2ld}, v{T+13}, vcc
v_mul_u32_u24 v{T+14}, 0x1400, v{T+14}
v_lshlrev_b32 v{T+13}, 4, v{n_v}
v_add3_u32 v{vH2ld}, v{vH2ld}, v{T+13}, v{T+14}
s_mov_b32 s14, 2621440
s_mov_b32 s15, 0x20000
s_mov_b32 s40, {f2u(1/640):#x}
s_mov_b32 s41, s40
s_mov_b32 s42, {f2u(1e-5):#x}
s_mov_b32 s43, s42
s_mov_b32 {sLayer}, 0
s_mov_b32 {sTag}, 1
s_mov_b32 {sFlip}, 0
s_waitcnt vmcnt(2)
v_and_b32 v{vVAB}, 0xffff, v{T+4}
v_lshrrev_b32 v{vVAB+1}, 16, v{T+4}
v_and_b32 v{vVC}, 0xffff, v{T+5}
v_lshrrev_b32 v{vVC+1}, 16, v{T+5}
''')
Sx, Qx = T, T+4
a('L_loop:')
stamp('top', True)
for p in range(2):
    a(f'v_pk_add_f32 {v2(Sx+2*p)}, {v2(X+2*p)}, {v2(X+4+2*p)}')
    a(f'v_pk_mul_f32 {v2(Qx+2*p)}, {v2(X+2*p)}, {v2(X+2*p)}')
for kl in range(1, 4):
    for p in range(2):
        b = X+4*kl+2*p
        a(f'v_pk_fma_f32 {v2(Qx+2*p)}, {v2(b)}, {v2(b)}, {v2(Qx+2*p)}')
        if kl > 1: a(f'v_pk_add_f32 {v2(Sx+2*p)}, {v2(Sx+2*p)}, {v2(b)}')
for j in range(4): a(f'v_permlane32_swap_b32 v{Sx+j}, v{Qx+j}')
for p in range(2): a(f'v_pk_add_f32 {v2(Sx+2*p)}, {v2(Sx+2*p)}, {v2(Qx+2*p)}')
for sh in (8, 4, 2, 1):
    for j in range(4): a(f'v_add_f32_dpp v{Sx+j}, v{Sx+j}, v{Sx+j} row_ror:{sh} row_mask:0xf bank_mask:0xf')
a(f'''
s_mov_b32 exec_lo, 0x00010001
s_mov_b32 exec_hi, 0x00010001
ds_write_b128 v{vStW}, {vr(Sx)}
s_mov_b64 exec, -1
s_waitcnt lgkmcnt(0)
s_barrier
''')
stamp('bar1', True)
P = T+8
for w in range(5): a(f'ds_read_b128 {vr(P+4*w)}, v{vStR} offset:{64*w}')
for w, cnt in ((1, 3), (2, 2), (3, 1), (4, 0)):
    a(f's_waitcnt lgkmcnt({cnt})')
    for p in range(2): a(f'v_pk_add_f32 {v2(P+2*p)}, {v2(P+2*p)}, {v2(P+4*w+2*p)}')
Q2 = P+4
for j in range(4): a(f'v_mov_b32 v{Q2+j}, v{P+j}')
for j in range(4): a(f'v_permlane32_swap_b32 v{P+j}, v{Q2+j}')
for p in range(2):
    a(f'v_pk_mul_f32 {v2(P+2*p)}, {v2(P+2*p)}, {sInv}')
    a(f'v_pk_mul_f32 {v2(Q2+2*p)}, {v2(Q2+2*p)}, {sInv}')
for p in range(2): a(f'v_pk_fma_f32 {v2(Q2+2*p)}, {v2(P+2*p)}, {v2(P+2*p)}, {v2(Q2+2*p)} neg_lo:[1,0,0] neg_hi:[1,0,0]')
for j in range(4): a(f'v_max_f32 v{Q2+j}, 0, v{Q2+j}')
for p in range(2): a(f'v_pk_add_f32 {v2(Q2+2*p)}, {v2(Q2+2*p)}, {sEps}')
for j in range(4): a(f'v_rsq_f32 v{Q2+j}, v{Q2+j}')
for p in range(2): a(f'v_pk_mul_f32 {v2(P+2*p)}, {v2(P+2*p)}, {v2(Q2+2*p)} neg_lo:[1,0] neg_hi:[1,0]')
N_ = T+16; Bo = T+32
for kl in range(4):
    for p in range(2): a(f'v_pk_fma_f32 {v2(N_+4*kl+2*p)}, {v2(X+4*kl+2*p)}, {v2(Q2+2*p)}, {v2(P+2*p)}')
for kl in range(4):
    for p in range(2): a(f'v_cvt_pk_f16_f32 v{Bo+2*kl+p}, v{N_+4*kl+2*p}, v{N_+4*kl+2*p+1}')
D0, D1, DC = T, T+4, T+8
a(f'''
v_mfma_f32_16x16x32_f16 {vr(D0)}, {vr(S1r)}, {vr(Bo)}, 0
v_mfma_f32_16x16x32_f16 {vr(DC)}, {vr(S1r+4)}, {vr(Bo)}, 0
v_mfma_f32_16x16x32_f16 {vr(D1)}, {vr(S1r)}, {vr(Bo+4)}, 0
v_mfma_f32_16x16x32_f16 {vr(DC)}, {vr(S1r+8)}, {vr(Bo+4)}, {vr(DC)}
s_or_b32 s7, s2, {sW}
s_cmp_lg_u32 s7, 0
s_cbranch_scc1 L_nofix
s_waitcnt vmcnt(0)
v_mfma_f32_16x16x32_f16 {vr(T+16)}, {vr(DEL)}, {vr(Bo)}, 0
v_mfma_f32_16x16x32_f16 {vr(T+20)}, {vr(DEL+4)}, {vr(Bo)}, 0
s_mov_b32 exec_lo, 0x00010001
s_mov_b32 exec_hi, 0x00010001
''')
for p in range(2): a(f'v_pk_add_f32 {v2(D0+2*p)}, {v2(D0+2*p)}, {v2(T+16+2*p)}')
for p in range(2): a(f'v_pk_add_f32 {v2(DC+2*p)}, {v2(DC+2*p)}, {v2(T+20+2*p)}')
a('s_mov_b64 exec, -1\nL_nofix:\ns_nop 1')
W_ = T+24
a(f'''
v_cvt_pk_f16_f32 v{W_}, v{D0}, v{D0+1}
v_cvt_pk_f16_f32 v{W_+1}, v{D0+2}, v{D0+3}
ds_write_b32 v{vVAB}, v{W_}
ds_write_b32 v{vVAB}, v{W_+1} offset:3200
v_cvt_pk_f16_f32 v{W_+2}, v{D1}, v{D1+1}
v_cvt_pk_f16_f32 v{W_+3}, v{D1+2}, v{D1+3}
v_cvt_pk_f16_f32 v{W_+4}, v{DC}, v{DC+1}
v_cvt_pk_f16_f32 v{W_+5}, v{DC+2}, v{DC+3}
ds_write_b32 v{vVAB+1}, v{W_+2}
ds_write_b32 v{vVAB+1}, v{W_+3} offset:3200
ds_write_b32 v{vVC}, v{W_+4}
ds_write_b32 v{vVC+1}, v{W_+5}
''')
stamp('s1w', True)
a(f'''
s_cmp_lg_u32 {sLayer}, 0
s_cbranch_scc1 L_nohs
s_cmp_lg_u32 {sW}, 4
s_cbranch_scc1 L_nohs
s_mov_b32 {sSpin}, {SPIN}
v_lshlrev_b32 v{T+1}, 3, v{vL16}
s_lshl_b32 s7, {sSig}, 12
s_add_u32 s7, s7, {FLAGS}
s_mov_b32 exec_hi, 0
L_hs:
buffer_load_dword v{T}, v{T+1}, {SWS}, s7 offen sc1
s_sub_u32 {sSpin}, {sSpin}, 1
s_cbranch_scc1 L_hs_done
s_waitcnt vmcnt(0)
v_xor_b32 v{T}, {sFlag}, v{T}
v_cmp_lt_u32 vcc, 15, v{T}
s_cbranch_vccnz L_hs
L_hs_done:
s_waitcnt vmcnt(0)
v_cmp_ne_u32 vcc, 0, v{T}
s_mov_b64 exec, -1
s_cmp_lg_u32 vcc_lo, 0
s_cselect_b32 s7, 1, {FORCE_SLOW}
v_mov_b32 v{T}, s7
v_mov_b32 v{T+1}, {L_MODE}
ds_write_b32 v{T+1}, v{T}
L_nohs:
s_waitcnt vmcnt(0) lgkmcnt(0)
s_barrier
''')
stamp('bar2', True)
a(f's_cmp_eq_u32 {sW}, 4\ns_cbranch_scc1 L_w4')
Ad = T; Tr = T+12; Ti = T+24; B2 = T+36; O = T+48
a(f'''
ds_read_b128 {vr(Ad)}, v{vVrd}
ds_read_b128 {vr(Ad+4)}, v{vVrd} offset:1280
ds_read_b128 {vr(Ad+8)}, v{vVrd2}
s_cmp_lg_u32 {sLayer}, 0
s_cbranch_scc1 L_nomode
v_mov_b32 v{O}, {L_MODE}
ds_read_b32 v{O}, v{O}
s_waitcnt lgkmcnt(0)
v_readfirstlane_b32 {sMode}, v{O}
L_nomode:
''')
for blk in range(3):
    a(f's_waitcnt lgkmcnt({2-blk})')
    a(f'v_mfma_f32_16x16x32_f16 {vr(Tr+4*blk)}, {vr(Ad+4*blk)}, {vr(B1r)}, 0')
    a(f'v_mfma_f32_16x16x32_f16 {vr(Ti+4*blk)}, {vr(Ad+4*blk)}, {vr(B1r+4)}, 0')
for ch in range(3):
    Pt = T+60; Qt = T+64
    for p in range(2):
        r_, i_ = Tr+4*ch+2*p, Ti+4*ch+2*p; c_ = TWc+4*ch+2*p
        a(f'v_pk_mul_f32 {v2(Pt+2*p)}, {v2(r_)}, {v2(c_)}')
        a(f'v_pk_mul_f32 {v2(Qt+2*p)}, {v2(i_)}, {v2(c_)}')
    for p in range(2):
        r_, i_ = Tr+4*ch+2*p, Ti+4*ch+2*p; s_2 = TWs+4*ch+2*p
        a(f'v_pk_fma_f32 {v2(Pt+2*p)}, {v2(i_)}, {v2(s_2)}, {v2(Pt+2*p)}')
        a(f'v_pk_fma_f32 {v2(Qt+2*p)}, {v2(r_)}, {v2(s_2)}, {v2(Qt+2*p)} neg_lo:[1,0,0] neg_hi:[1,0,0]')
    for i in range(4): a(f'v_cvt_pk_f16_f32 v{B2+4*ch+i}, v{Pt+i}, v{Qt+i}')
    for blk in range(3):
        c_in = '0' if ch == 0 else vr(O+4*blk)
        a(f'v_mfma_f32_16x16x32_f16 {vr(O+4*blk)}, {vr(A2r+(blk*3+ch)*4)}, {vr(B2+4*ch)}, {c_in}')
Wo = T
for i in range(6): a(f'v_cvt_pk_f16_f32 v{Wo+i}, v{O+2*i}, v{O+2*i+1}')
a(f'''
s_cmp_ge_u32 {sW}, 2
s_cbranch_scc1 L_noslot
v_readlane_b32 s7, v{Wo+4}, 32
v_writelane_b32 v{Wo}, s7, 0
L_noslot:
''')
for i in range(6): a(f'v_and_or_b32 v{Wo+i}, v{Wo+i}, -2, {sTag}')
a(f'''
s_cmp_lg_u32 {sMode}, 0
s_cbranch_scc1 L_st_slow
buffer_store_dwordx4 {vr(Wo)}, v{vL16}, {SWS}, {sH1st} offen
buffer_store_dwordx2 {v2(Wo+4)}, v{vH1s2}, {SWS}, {sH1st} offen
s_branch L_cphase
L_w4:
s_cmp_ge_u32 {sLayer}, 2
s_cbranch_scc1 L_cphase
''')
clean5(sCl)
a(f'''
s_add_u32 {sCl}, {sCl}, {BUF}
s_cmp_lg_u32 {sLayer}, 0
s_cbranch_scc1 L_cphase
s_mov_b32 {sSpin}, {SPIN}
v_lshlrev_b32 v{T+4}, 3, v{vL16}
v_add_u32 v{T+4}, {FLAGS}, v{T+4}
s_movk_i32 s92, 0x2000
s_movk_i32 s93, 0x4000
s_movk_i32 s94, 0x6000
L_hs2:
buffer_load_dword v{T}, v{T+4}, {SWS}, 0 offen sc1
buffer_load_dword v{T+1}, v{T+4}, {SWS}, s92 offen sc1
buffer_load_dword v{T+2}, v{T+4}, {SWS}, s93 offen sc1
buffer_load_dword v{T+3}, v{T+4}, {SWS}, s94 offen sc1
s_sub_u32 {sSpin}, {sSpin}, 1
s_cbranch_scc1 L_cphase
s_waitcnt vmcnt(0)
v_xor_b32 v{T}, {sFlag}, v{T}
v_xor_b32 v{T+1}, {sFlag}, v{T+1}
v_xor_b32 v{T+2}, {sFlag}, v{T+2}
v_xor_b32 v{T+3}, {sFlag}, v{T+3}
v_or3_b32 v{T}, v{T}, v{T+1}, v{T+2}
v_or_b32 v{T}, v{T}, v{T+3}
v_cmp_lt_u32 vcc, 15, v{T}
s_cbranch_vccnz L_hs2
s_branch L_cphase
L_st_slow:
buffer_store_dwordx4 {vr(Wo)}, v{vL16}, {SWS}, {sH1st} offen sc1
buffer_store_dwordx2 {v2(Wo+4)}, v{vH1s2}, {SWS}, {sH1st} offen sc1
L_cphase:
''')
stamp('h1st', True)
Ca = T+8; Dm = T+16; K_ = T+32
a(f'''
s_mov_b32 {sSpin}, {SPIN}
s_mov_b32 exec_lo, 0x00ff00ff
s_mov_b32 exec_hi, 0x00ff00ff
L_poll1:
''')
for ch in range(2):
    for u in range(4):
        a(f'buffer_load_dword v{Ca+4*ch+u}, v{vC1ld}, {SWS}, {sH1ld0 if ch == 0 else sH1ld1} offen offset:{1280*u} sc1')
a(f'''
s_sub_u32 {sSpin}, {sSpin}, 1
s_cbranch_scc1 L_poll1_done
s_waitcnt vmcnt(0)
''')
tt = sum((((i >> 2 & 1) ^ (i & 1)) & ((i >> 1 & 1) ^ (i & 1))) << i for i in range(8))
for i in range(4): a(f'v_bitop3_b32 v{K_+i}, v{Ca+2*i}, v{Ca+2*i+1}, {sFlip} bitop3:{tt:#x}')
a(f'''
v_bitop3_b32 v{K_}, v{K_}, v{K_+1}, v{K_+2} bitop3:0x80
v_bitop3_b32 v{K_}, v{K_}, v{K_+3}, 1 bitop3:0x80
v_cmp_eq_u32 vcc, 0, v{K_}
s_cbranch_vccnz L_poll1
L_poll1_done:
s_waitcnt vmcnt(0)
s_mov_b64 exec, -1
''')
stamp('h1ok', True)
for hi in range(2):
    for ch in range(2):
        for rio in range(2):
            d = Dm + (hi*2+rio)*4
            a(f'v_mfma_f32_16x16x32_f16 {vr(d)}, {vr(Ca+4*ch)}, {vr(CM+((hi*2+rio)*2+ch)*4)}, {"0" if ch == 0 else vr(d)}')
a('s_mov_b32 exec_hi, 0')
for hi in range(2):
    for i in range(4): a(f'v_cvt_pk_f16_f32 v{K_+4*hi+i}, v{Dm+8*hi+i}, v{Dm+8*hi+4+i}')
    for i in range(4): a(f'v_or_b32 v{K_+4*hi+i}, 1, v{K_+4*hi+i}')
    a(f'ds_write_b128 v{vRtW}, {vr(K_+4*hi)} offset:{2560*hi}')
a(f'''
s_mov_b64 exec, -1
s_waitcnt lgkmcnt(0)
s_barrier
ds_read_b128 {vr(T)}, v{vRtR}
s_waitcnt lgkmcnt(0)
buffer_store_dwordx4 {vr(T)}, v{vH2st}, {SWS}, {sH2st} offen sc1
s_mov_b32 {sSpin}, {SPIN}
''')
stamp('h2st', True)
a('s_waitcnt vmcnt(0)')
stamp('h2ack', True)
a('L_poll2:')
Lh = T+4; K2 = T+20
for u in range(4): a(f'buffer_load_dwordx4 {vr(Lh+4*u)}, v{vH2ld}, {SWS}, {sH2ld} offen offset:{1280*u} sc1')
a(f'''
s_sub_u32 {sSpin}, {sSpin}, 1
s_cbranch_scc1 L_poll2_done
s_waitcnt vmcnt(0)
''')
for i in range(5): a(f'v_bitop3_b32 v{K2+i}, v{Lh+3*i}, v{Lh+3*i+1}, v{Lh+3*i+2} bitop3:0x80')
a(f'''
v_bitop3_b32 v{K2}, v{K2}, v{K2+1}, v{K2+2} bitop3:0x80
v_bitop3_b32 v{K2+3}, v{K2+3}, v{K2+4}, v{Lh+15} bitop3:0x80
v_bitop3_b32 v{K2}, v{K2}, v{K2+3}, 1 bitop3:0x80
v_cmp_eq_u32 vcc, 0, v{K2}
s_cbranch_vccnz L_poll2
L_poll2_done:
s_waitcnt vmcnt(0)
''')
stamp('h2ok', True)
for kl in range(1, 4): a(f'v_swap_b32 v{Lh+kl}, v{Lh+4*kl}')
for u in range(4): a(f'v_and_b32 v{Lh+u}, v{vMask0}, v{Lh+u}')
for (u, kl) in ((1, 2), (1, 3), (2, 3)): a(f'v_swap_b32 v{Lh+4*u+kl}, v{Lh+4*kl+u}')
for kl in range(4): a(f'v_mfma_f32_16x16x32_f16 {vr(X+4*kl)}, {vr(A3r)}, {vr(Lh+4*kl)}, {vr(X+4*kl)}')
a(f'''
s_add_u32 {sLayer}, {sLayer}, 1
s_add_u32 {sH2st}, {sH2st}, {BUF}
s_add_u32 {sH2ld}, {sH2ld}, {BUF}
s_xor_b32 {sH1st}, {sH1st}, {H1STR}
s_xor_b32 {sH1ld0}, {sH1ld0}, {H1STR}
s_xor_b32 {sH1ld1}, {sH1ld1}, {H1STR}
s_cmp_ge_u32 {sLayer}, 2
s_cselect_b32 {sTag}, 0, 1
s_cselect_b32 {sFlip}, -1, 0
s_cmp_lt_u32 {sLayer}, {NLAYER}
s_cbranch_scc1 L_loop
''')
F = T
for kl in range(4):
    for p in range(2): a(f'v_cvt_pk_bf16_f32 v{F+2*kl+p}, v{X+4*kl+2*p}, v{X+4*kl+2*p+1}')
for kl in range(4):
    for p in range(2):
        a(f'ds_write_b16 v{vXT+kl}, v{F+2*kl+p} offset:{2560*p}')
        a(f'ds_write_b16_d16_hi v{vXT+kl}, v{F+2*kl+p} offset:{2560*p+1280}')
OUTF = ' ' + opts.get('outf', '').replace('+', ' ') if opts.get('outf') else ''
a(f'''
s_waitcnt lgkmcnt(0)
s_barrier
ds_read_b128 {vr(T+8)}, v{vRtR} offset:{L_XT-L_RT}
ds_read_b128 {vr(T+12)}, v{vRtR} offset:{L_XT-L_RT+5120}
s_waitcnt lgkmcnt(1)
buffer_store_dwordx4 {vr(T+8)}, v{vGa}, {SO}, 0 offen{OUTF}
s_waitcnt lgkmcnt(0)
buffer_store_dwordx4 {vr(T+12)}, v{vGb}, {SO}, 0 offen{OUTF}
s_lshl_b32 s7, s2, 3
s_add_u32 s7, s7, {sW}
s_cmp_lg_u32 s7, 4
s_cbranch_scc1 L_noep
s_add_u32 s7, {sEpoch}, 1
v_mov_b32 v{T}, s7
s_mov_b64 exec, 1
buffer_store_dword v{T}, off, {SWS}, 0
s_mov_b64 exec, -1
L_noep:
''')
if STAMPS:
    a('s_waitcnt vmcnt(0)'); stamp('end'); stamp('rend', real=True)
    a(f's_waitcnt lgkmcnt(0)\ns_cmp_lg_u32 {sW}, {opt("swave")}\ns_cbranch_scc1 L_end')
    a(f's_lshl_b32 s7, s2, 7\ns_add_u32 s7, s7, {STAMP_OFF}\nv_mov_b32 v1, 0\ns_mov_b64 exec, 1')
    for i in range(len(nst)): a(f'v_mov_b32 v2, s{60+2*i}\nbuffer_store_dword v2, v1, {SWS}, s7 offen offset:{4*i}')
a('L_end:\ns_endpgm')

hdr = open('interleave_layers__spectral_fnet__spectral_fnet__prompt.s.ref').read().split('; Override')[0]
out = hdr + ('; STAMPS ' + ' '.join(nst) + '\n' if STAMPS else '') + f'; @launch grid=(256,1,1) block=(320,1,1) lds={LDS_BYTES}\n'
out += f'.amdgcn_target "amdgcn-amd-amdhsa--gfx950"\n.text\n.globl {KNAME}\n.p2align 8\n.type {KNAME},@function\n{KNAME}:\n'
out += a.text()
out += f'''.section .rodata,"a"
.p2align 6
.amdhsa_kernel {KNAME}
  .amdhsa_next_free_vgpr 240
  .amdhsa_next_free_sgpr 102
  .amdhsa_accum_offset 240
  .amdhsa_group_segment_fixed_size 0
  .amdhsa_kernarg_size 104
  .amdhsa_user_sgpr_count 2
  .amdhsa_user_sgpr_kernarg_segment_ptr 1
  .amdhsa_system_sgpr_workgroup_id_x 1
.end_amdhsa_kernel
.p2align 10
tbl:
'''
for f in blocks:
    for i in range(0, 256, 8): out += '.long ' + ','.join(f'{int(x):#x}' for x in f[i:i+8]) + '\n'
open(sys.argv[1], 'w').write(out)
print('instrs', len(a.ins), 'nops inserted', a.nops, 'table blocks', len(blocks), 'bytes', len(out))
```

```python
import sys, struct
import numpy as np
from design import *
from asmlib import Asm

KNAME = "interleave_layers__spectral_fnet__spectral_fnet__prompt_kernel"
opts = dict(a.split('=') for a in sys.argv[2:] if '=' in a)
def opt(k, d=0): return int(opts.get(k, d))
STAMPS = opt('stamps'); FORCE_SLOW = opt('slow'); NLAYER = opt('layers', 4); SPIN = opt('spin', 200000); SLAYER = opt('slayer')

def f2u(f): return struct.unpack('<I', struct.pack('<f', f))[0]
BUF = 1310720
FLAGS = 4096; H1BASE = 0x10000; H1STR = 0x200000; H2BASE = 0x400000; WS_BYTES = H2BASE + 4*BUF
STAMP_OFF = WS_BYTES
if STAMPS: WS_BYTES += 256*128
L_V = 0; L_ST = 9600; L_MODE = 9920; L_RT = 9984; L_XT = 15360; L_TB = 25600; L_CM = L_TB + 30*1024; LDS_BYTES = L_CM + 8192
def vaddr(col): return (col % 40)*80 + (col//40)*4
def opA(M):
    h = M.astype(np.float16).view(np.uint16).astype(np.uint32)
    out = np.zeros((64, 4), np.uint32)
    for l in range(64):
        r = h[l % 16, 8*(l//16):8*(l//16)+8]
        out[l] = r[0::2] | (r[1::2] << 16)
    return out
def opB(N): return opA(N.T)
blocks = []
def add(b): blocks.append(np.asarray(b, np.uint32).reshape(256)); return len(blocks)-1
n_ = S1_mats(False); s_ = S1_mats(True)
def a3_idx(sig, m):
    g = unit_g(sig, m)
    if g == 0: return 9
    if g == 128: return 8
    return (g >> 7) + (0 if g % 4 == 1 else 4)
a3 = {}
for sig in range(8):
    for m in range(32):
        M = A3(sig, m)*HSCALE; i = a3_idx(sig, m)
        if i in a3: assert np.allclose(a3[i], M), (sig, m)
        a3[i] = M
T_S1N = add(opA(n_[0])); add(opA(n_[1])); add(opA(n_[2]))
add(opA(a3[0]))
Bre, Bim = B1_mats(); T_B1 = add(opB(Bre)); add(opB(Bim))
tc, ts = twiddles()
T_TW = len(blocks)
for arr in (tc, ts):
    for blk in range(3): add(arr[blk].astype(np.float32).view(np.uint32))
T_A2 = len(blocks)
for r0 in (0, 20):
    M = A2_mats(r0)/HSCALE
    for blk in range(3):
        for ch in range(3): add(opA(M[blk, ch]))
assert len(blocks) == 30
T_S1S = add(opA(s_[0])); add(opA(s_[1])); add(opA(s_[2])); T_DEL = add(opA(s_[3])); add(opA(s_[4]))
T_A3 = len(blocks)
for i in range(10): add(opA(a3[i]))
T_ADDR = len(blocks)
at = np.zeros((2, 320, 2), np.uint32)
for ty, (sig, m) in enumerate(((2, 1), (1, 0))):
    for tid in range(320):
        w, l = divmod(tid, 64); n, mq = l % 16, l//16
        v = [L_V + vaddr(acol(sig, m, mq//2, 64*w+4*n+2*bop+(mq % 2))) for bop in range(2)]
        v += [L_V + 6400 + vaddr(acol(sig, m, mq % 2, 64*w+4*n+2*(mq//2)+sub)) for sub in range(2)]
        at[ty, tid] = [v[0] | (v[1] << 16), v[2] | (v[3] << 16)]
for i in range(5): add(at.reshape(-1)[256*i:256*i+256])

vL16, vH1s2, vH2ld, vC1ld, vRtW, vRtR, vH2st, vStR, vStW = 1, 2, 3, 4, 5, 6, 7, 8, 9
vVAB, vVC, vVrd, vVrd2 = 10, 12, 14, 15
X = 16; A3r = 32; S1r = 36; B1r = 48; TWc = 56; TWs = 68; A2r = 80; CM = 116; DEL = 148
vXT = 156; vMask0 = 160; vGa = 161; vGb = 162; vT16 = 163; vZ = 164
T = 168
def vr(b, n=4): return f'v[{b}:{b+n-1}]'
def v2(b): return f'v[{b}:{b+1}]'
sW, sSig, sM, sG, sType, sSpec, sLayer, sMode = 's3', 's4', 's5', 's26', 's27', 's28', 's29', 's30'
sH1st, sH1ld0, sH1ld1, sH2st, sH2ld, sTag, sFlip, sSpin = 's31', 's32', 's33', 's34', 's35', 's36', 's37', 's38'
sFlag, sCl, sEpoch, sGi = 's39', 's44', 's45', 's46'
sInv, sEps = 's[40:41]', 's[42:43]'
SX, SO, SWS, STB = 's[8:11]', 's[12:15]', 's[16:19]', 's[24:25]'
a = Asm()
nst = []
SST = opt('sstart')
def sst(name):
    if SST: stamp(name)
def stamp(name, inloop=False, real=False):
    if SST and inloop and name not in ('top', 'bar1'): return
    if STAMPS:
        i = len(nst); nst.append(name)
        assert i < 16
        ins = f's_{"memrealtime" if real else "memtime"} s[{60+2*i}:{61+2*i}]'
        if inloop: a(f's_cmp_lg_u32 {sLayer}, {SLAYER}\ns_cbranch_scc1 L_stk{i}\n{ins}\nL_stk{i}:')
        else: a(ins)
def clean5(soff):
    for i in range(4): a(f'buffer_store_dwordx4 {vr(vZ)}, v{vL16}, {SWS}, {soff} offen offset:{1024*i} sc1')
    a(f's_add_u32 s7, {soff}, 4096\nbuffer_store_dwordx4 {vr(vZ)}, v{vL16}, {SWS}, s7 offen sc1')

stamp('start'); stamp('rstart', real=True)
n_v, kq_v = T+10, T+11
a(f'''
s_load_dwordx2 s[16:17], s[0:1], 96
s_load_dwordx2 s[8:9], s[0:1], 0
s_load_dwordx2 s[12:13], s[0:1], 80
s_cmp_ge_u32 s2, 256
s_cbranch_scc1 L_end
s_getpc_b64 s[24:25]
s_add_u32 s24, s24, tbl@rel32@lo+4
s_addc_u32 s25, s25, tbl@rel32@hi+12
v_lshrrev_b32 v{T+1}, 6, v0
v_and_b32 v{T}, 63, v0
v_readfirstlane_b32 {sW}, v{T+1}
v_lshlrev_b32 v{vL16}, 4, v{T}
v_lshlrev_b32 v{vT16}, 4, v0
s_and_b32 {sSig}, s2, 7
s_lshr_b32 {sM}, s2, 3
s_lshl_b32 s6, {sSig}, 2
s_lshr_b32 s6, 0x9654d210, s6
s_and_b32 s6, s6, 15
s_lshl_b32 {sG}, {sM}, 4
s_add_u32 {sG}, {sG}, s6
s_cmp_eq_u32 {sSig}, 0
s_cselect_b32 s7, 248, 0
s_cmp_ge_u32 {sM}, 16
s_cselect_b32 s7, s7, 0
s_sub_u32 {sG}, {sG}, s7
s_and_b32 {sType}, {sG}, 1
s_lshr_b32 s7, {sG}, 7
s_lshl_b32 s92, {sType}, 2
s_sub_u32 s7, s7, s92
s_add_u32 s7, s7, {4 + T_A3 - 3}
s_cmp_eq_u32 {sG}, 128
s_cselect_b32 s7, {8 + T_A3 - 3}, s7
s_cmp_eq_u32 {sG}, 0
s_cselect_b32 s7, {9 + T_A3 - 3}, s7
s_cselect_b32 s92, {T_S1S*1024}, 0
s_lshl_b32 s7, s7, 10
s_mul_i32 s93, {sW}, 6144
s_cmp_eq_u32 {sW}, 0
s_cselect_b32 s92, s92, s93
s_cselect_b32 s7, s7, s93
s_add_u32 m0, s93, {L_TB}
v_add_u32 v{T+2}, s92, v{vL16}
v_add_u32 v{T+3}, s7, v{vL16}
s_add_u32 s93, s93, 4096
v_add_u32 v{T+8}, s93, v{vL16}
global_load_lds_dwordx4 v{T+2}, {STB}
global_load_lds_dwordx4 v{T+2}, {STB} offset:1024
global_load_lds_dwordx4 v{T+2}, {STB} offset:2048
global_load_lds_dwordx4 v{T+3}, {STB} offset:3072
s_add_u32 m0, s93, {L_TB}
s_mul_i32 s7, {sType}, 2560
s_add_u32 s7, s7, {T_ADDR*1024}
global_load_lds_dwordx4 v{T+8}, {STB}
global_load_lds_dwordx4 v{T+8}, {STB} offset:1024
v_lshl_add_u32 v{T+2}, v0, 3, s7
global_load_dwordx2 {v2(T+4)}, v{T+2}, {STB}
''')
sst('dma')
a(f'''
v_and_b32 v{n_v}, 15, v0
v_bfe_u32 v{kq_v}, v0, 4, 2
v_lshlrev_b32 v{T+12}, 1, v{n_v}
v_and_b32 v{T+12}, 15, v{T+12}
v_lshrrev_b32 v{T+13}, 3, v{n_v}
v_lshl_add_u32 v{T+12}, v{T+13}, 5, v{T+12}
s_cmp_eq_u32 {sW}, 4
s_cselect_b64 vcc, -1, 0
s_cselect_b32 s93, 1, 128
s_lshl_b32 s92, {sW}, 5
s_cselect_b32 s92, 256, s92
'''.replace('s_lshl_b32 s92, {sW}, 5\ns_cselect_b32 s92, 256, s92', 'XX').replace('XX', ''))
a.ins = [i for i in a.ins if not (i.text.startswith('s_lshl_b32 s92, s3, 5') or i.text.startswith('s_cselect_b32 s92, 256, s92'))]
a(f'''
s_cselect_b32 s92, 8, {sW}
s_lshl_b32 s92, s92, 5
v_cndmask_b32 v{T+12}, v{n_v}, v{T+12}, vcc
s_mul_i32 s94, {sType}, 320
v_lshrrev_b32 v{T+13}, 1, v{kq_v}
v_mul_u32_u24 v{T+14}, s94, v{T+13}
v_add3_u32 v{T+12}, v{T+12}, v{T+14}, s92
s_xor_b32 s94, {sType}, 1
v_and_b32 v{T+13}, s94, v{T+13}
v_xor_b32 v{T+13}, v{T+13}, v{kq_v}
v_and_b32 v{T+13}, 1, v{T+13}
v_cmp_eq_u32 vcc, 1, v{T+13}
v_add_u32 v{T+14}, 16, v{T+12}
v_add_u32 v{T+15}, s93, v{T+12}
v_add_u32 v{T+16}, s93, v{T+14}
''')
ecol = [T+12, T+14, T+15, T+16]
for kl in range(4):
    a(f'v_sub_u32 v{T+17}, 640, v{ecol[kl]}\nv_cndmask_b32 v{vXT+kl}, v{ecol[kl]}, v{T+17}, vcc')
a(f'''
s_mul_i32 s94, s94, 320
v_cmp_gt_u32 vcc, 2, v{kq_v}
v_mov_b32 v{T+17}, s94
v_cndmask_b32 v{T+17}, 0, v{T+17}, vcc
v_cmp_eq_u32 vcc, 0, v{T+12}
v_cndmask_b32 v{vXT}, v{vXT}, v{T+17}, vcc
s_sub_u32 s92, 0, {sG}
s_and_b32 s92, s92, 511
s_cmp_eq_u32 {sG}, 0
s_cselect_b32 s92, 256, s92
s_mul_i32 s92, s92, 1280
s_mul_i32 s93, {sG}, 1280
v_and_b32 v{T+13}, 1, v{kq_v}
v_cmp_eq_u32 vcc, 1, v{T+13}
v_mov_b32 v{T+14}, s93
v_mov_b32 v{T+15}, s92
v_cndmask_b32 v{T+14}, v{T+14}, v{T+15}, vcc
v_cmp_ne_u32 vcc, 0, v{vXT}
v_mul_u32_u24 v{T+13}, 0x1400, v{T+13}
v_add_u32 v{T+13}, {L_XT}, v{T+13}
v_cndmask_b32 v{vMask0}, 0, -1, vcc
''')
for kl in range(4): a(f'v_lshl_add_u32 v{T+20+kl}, v{vXT+kl}, 1, v{T+14}')
for kl in range(4): a(f'v_lshl_add_u32 v{vXT+kl}, v{vXT+kl}, 1, v{T+13}')
for i in range(16): a(f'v_mov_b32 v{X+i}, 0')
for i in range(4): a(f'v_mov_b32 v{vZ+i}, 0')
a(f'''
s_lshl_b32 {sGi}, {sSig}, 5
s_add_u32 {sGi}, {sGi}, {sM}
s_mul_i32 s94, {sGi}, 5120
s_add_u32 s94, s94, {H1BASE}
s_mul_i32 {sCl}, s2, 5120
s_add_u32 {sCl}, {sCl}, {H2BASE}
s_mov_b32 s10, 2621440
s_mov_b32 s11, 0x20000
s_mov_b32 s18, {WS_BYTES}
s_mov_b32 s19, 0x20000
s_mov_b32 s47, 655360
s_mov_b32 s48, 1310720
s_mov_b32 s49, 1966080
''')
sst('prek')
a(f'''
s_waitcnt lgkmcnt(0)
''')
sst('karr')
a(f'''
s_cmp_lg_u32 {sW}, 4
s_cbranch_scc1 L_noclean
s_load_dword {sEpoch}, s[16:17], 0
''')
clean5('s94'); clean5(sCl)
a('L_noclean:')
for kl in range(4):
    for j in range(4):
        a(f'buffer_load_short_d16_hi v{X+4*kl+j}, v{T+20+kl}, {SX}, {["0", "s47", "s48", "s49"][j]} offen')
a(f'''
s_add_u32 s94, s94, {H1STR}
s_add_u32 {sCl}, {sCl}, {BUF}
buffer_store_dwordx4 {vr(vZ)}, v{vT16}, {SWS}, s94 offen sc1
buffer_store_dwordx4 {vr(vZ)}, v{vT16}, {SWS}, {sCl} offen sc1
s_add_u32 {sCl}, {sCl}, {BUF}
''')
stamp('kernarg')
a(f'''
s_or_b32 s7, s2, {sW}
s_cmp_lg_u32 s7, 0
s_cbranch_scc1 L_nodel
v_add_u32 v{T+2}, {T_DEL*1024}, v{vL16}
global_load_dwordx4 {vr(DEL)}, v{T+2}, {STB}
global_load_dwordx4 {vr(DEL+4)}, v{T+2}, {STB} offset:1024
L_nodel:
s_lshr_b32 s95, {sM}, 3
s_cmp_eq_u32 {sW}, 4
s_cbranch_scc1 L_cm_done
''')
a(f'''
s_lshl_b32 s7, s95, 2
s_lshr_b32 s7, 0x1120, s7
s_and_b32 s7, s7, 3
s_add_u32 s96, s6, 256
s_cmp_eq_u32 {sSig}, 0
s_cselect_b32 s96, 8, s96
s_lshl_b32 s94, {sW}, 4
s_add_u32 s6, s6, s94
s_add_u32 s96, s96, s94
v_lshl_add_u32 v{T+13}, v{n_v}, 2, s7
v_lshl_add_u32 v{T+14}, v{kq_v}, 6, s6
v_lshl_add_u32 v{T+15}, v{kq_v}, 6, s96
v_add_u32 v{T+12}, 64, v{T+13}
s_mov_b32 s94, {f2u(1/2048):#x}
s_lshl_b32 s7, {sW}, 2
s_add_u32 s7, s7, {L_CM}
v_add_u32 v{T+2}, s7, v{vL16}
''')
G = T+24
for hi in range(2):
    for ch in range(2):
        i = G + 2*(2*hi+ch)
        a(f'v_mul_u32_u24 v{i}, v{T+13-hi}, v{T+14+ch}')
for k in range(4): a(f'v_and_b32 v{G+2*k}, 0x7ff, v{G+2*k}')
for k in range(4): a(f'v_cvt_f32_u32 v{G+2*k}, v{G+2*k}')
for k in range(4): a(f'v_mul_f32 v{G+2*k}, s94, v{G+2*k}')
for k in range(4): a(f'v_sin_f32 v{G+2*k+1}, v{G+2*k}\nv_cos_f32 v{G+2*k}, v{G+2*k}')
for k in range(4): a(f'v_cvt_pk_f16_f32 v{G+8+2*k}, v{G+2*k}, v{G+2*k+1}\nv_cvt_pk_f16_f32 v{G+9+2*k}, -v{G+2*k+1}, v{G+2*k}')
a(f's_cmp_lg_u32 {sSig}, 0\ns_cbranch_scc1 L_cm_wr')
for hi in range(2):
    b = G+8+4*hi
    a(f'v_mov_b32 v{b+1}, 0\nv_mov_b32 v{b+3}, v{b+2}\nv_mov_b32 v{b+2}, 0')
a(f'''
v_and_b32 v{T+17}, 1, v0
v_lshlrev_b32 v{T+17}, 4, v{T+17}
v_mov_b32 v{T+18}, 0x3c00
v_lshlrev_b32 v{T+17}, v{T+17}, v{T+18}
v_cmp_gt_u32 vcc, 16, v0
v_cndmask_b32 v{G+8}, v{G+8}, v{T+17}, vcc
v_cndmask_b32 v{G+12}, v{G+12}, v{T+17}, vcc
L_cm_wr:
''')
for hi in range(2):
    for ch in range(2):
        for rio in range(2):
            a(f'ds_write_b32 v{T+2}, v{G+8+2*(2*hi+ch)+rio} offset:{((hi*2+rio)*2+ch)*1024}')
a('L_cm_done:')
sst('cm')
a(f'''
v_mul_u32_u24 v{T+12}, 205, v0
v_lshrrev_b32 v{T+13}, 11, v{T+12}
v_lshrrev_b32 v{T+12}, 14, v{T+12}
v_mul_u32_u24 v{T+14}, 0x9fb00, v{T+12}
v_add3_u32 v{vGa}, v{T+14}, v{vT16}, s93
v_add3_u32 v{vGb}, v{T+14}, v{vT16}, s92
v_mul_u32_u24 v{T+14}, 10080, v{T+13}
v_add_u32 v{vH2st}, v{T+14}, v{vT16}
s_and_b32 s93, {sM}, 7
s_mul_i32 s93, s93, 160
s_lshl_b32 s94, {sSig}, 7
s_add_u32 s92, s94, {sM}
s_mul_i32 s92, s92, 1280
s_mul_i32 {sH1st}, {sW}, 40960
s_add_u32 {sH1st}, {sH1st}, s92
s_add_u32 {sH1st}, {sH1st}, {H1BASE}
s_lshl_b32 s96, s95, 5
s_add_u32 s96, s96, s94
s_mul_i32 {sH1ld0}, s96, 1280
s_add_u32 {sH1ld0}, {sH1ld0}, s93
s_lshl_b32 s96, {sW}, 5
s_add_u32 s96, s96, {H1BASE}
s_add_u32 {sH1ld0}, {sH1ld0}, s96
s_add_u32 {sH1ld1}, {sH1ld0}, 20480
s_lshl_b32 s96, s95, 8
s_add_u32 s96, s96, {sSig}
s_mul_i32 {sH2st}, s96, 1280
s_add_u32 {sH2st}, {sH2st}, s93
s_add_u32 {sH2st}, {sH2st}, {H2BASE}
s_mov_b32 {sH2ld}, {H2BASE}
v_add_u32 v{vRtR}, {L_RT}, v{vT16}
v_lshrrev_b32 v{vH1s2}, 1, v{vL16}
v_add_u32 v{vH1s2}, 1024, v{vH1s2}
v_cmp_le_u32 vcc, 512, v{vL16}
v_mov_b32 v{T+13}, 0x40000000
v_cndmask_b32 v{vH1s2}, v{vH1s2}, v{T+13}, vcc
s_movk_i32 s7, 5120
v_lshlrev_b32 v{T+13}, 2, v{n_v}
v_mad_u32_u24 v{vC1ld}, v{kq_v}, s7, v{T+13}
s_lshl_b32 s7, {sW}, 5
s_add_u32 s7, s7, {L_RT}
v_mul_u32_u24 v{vRtW}, 160, v{n_v}
v_lshlrev_b32 v{vStR}, 4, v{kq_v}
v_add3_u32 v{vRtW}, v{vRtW}, v{vStR}, s7
s_cmp_lt_u32 {sW}, 2
s_cselect_b32 s7, 3200, 0
s_lshl_b32 s7, s7, {sW}
v_mul_u32_u24 v{vVrd}, 80, v{n_v}
v_add3_u32 v{vVrd}, v{vVrd}, v{vStR}, s7
v_and_b32 v{vVrd2}, 7, v0
v_mul_u32_u24 v{vVrd2}, 80, v{vVrd2}
s_add_u32 s7, s7, 2560
v_add3_u32 v{vVrd2}, v{vVrd2}, v{vStR}, s7
v_add_u32 v{vStR}, {L_ST}, v{vStR}
s_lshl_b32 s7, {sW}, 6
v_add_u32 v{vStW}, s7, v{vStR}
s_cmp_eq_u32 {sW}, 3
s_cselect_b32 s7, 9216, 0
v_add_u32 v{T+2}, {L_TB}, v{vL16}
v_add_u32 v{T+3}, s7, v{T+2}
''')
sst('pretbl')
a(f'''
s_cmp_eq_u32 {sW}, 4
s_cbranch_scc1 L_tw4
s_waitcnt vmcnt(19) lgkmcnt(0)
s_barrier
''')
stamp('tbl')
def common_reads():
    for i in range(3): a(f'ds_read_b128 {vr(S1r+4*i)}, v{T+2} offset:{1024*i}')
common_reads()
for i in range(2): a(f'ds_read_b128 {vr(B1r+4*i)}, v{T+2} offset:{1024*(T_B1+i)}')
for i in range(6): a(f'ds_read_b128 {vr(TWc+4*i)}, v{T+2} offset:{1024*(T_TW+i)}')
for i in range(9): a(f'ds_read_b128 {vr(A2r+4*i)}, v{T+3} offset:{1024*(T_A2+i)}')
a(f'''
s_branch L_tabdone
L_tw4:
s_waitcnt vmcnt(29)
s_barrier
''')
common_reads()
a(f'''
s_getreg_b32 s7, hwreg(HW_REG_XCC_ID, 0, 4)
s_waitcnt lgkmcnt(0)
s_mul_i32 {sFlag}, {sEpoch}, 0x9e3779b1
s_add_u32 {sFlag}, {sFlag}, 0x7f4a7c15
s_and_b32 {sFlag}, {sFlag}, -16
s_or_b32 {sFlag}, {sFlag}, s7
v_mov_b32 v{T+13}, {sFlag}
s_lshl_b32 s7, {sGi}, 7
s_add_u32 s7, s7, {FLAGS}
s_mov_b64 exec, 1
s_waitcnt vmcnt(18)
buffer_store_dword v{T+13}, off, {SWS}, s7 sc1
s_mov_b64 exec, -1
L_tabdone:
ds_read_b128 {vr(A3r)}, v{T+2} offset:3072
''')
for i in range(8): a(f'ds_read_b128 {vr(CM+4*i)}, v{T+2} offset:{L_CM-L_TB+1024*i}')
a(f'''
s_and_b32 s7, {sG}, 127
s_lshr_b32 s7, s7, 2
s_sub_u32 s94, 0, {sG}
s_and_b32 s94, s94, 127
s_lshr_b32 s94, s94, 2
s_bfe_u32 s95, {sG}, 0x10001
s_cmp_eq_u32 {sType}, 1
s_cselect_b32 s94, s7, s94
s_cselect_b32 s96, 2, s95
s_cselect_b32 s95, 3, s95
s_lshl_b32 s96, s96, 5
s_lshl_b32 s95, s95, 5
s_add_u32 s7, s7, s96
s_add_u32 s94, s94, s95
s_mul_i32 s7, s7, 10240
s_mul_i32 s94, s94, 10240
s_lshl_b32 s95, {sW}, 8
s_add_u32 s7, s7, s95
s_add_u32 s94, s94, s95
v_mov_b32 v{vH2ld}, s7
v_mov_b32 v{T+13}, s94
v_cmp_le_u32 vcc, 2, v{kq_v}
v_and_b32 v{T+14}, 1, v{kq_v}
v_cndmask_b32 v{vH2ld}, v{vH2ld}, v{T+13}, vcc
v_mul_u32_u24 v{T+14}, 0x1400, v{T+14}
v_lshlrev_b32 v{T+13}, 4, v{n_v}
v_add3_u32 v{vH2ld}, v{vH2ld}, v{T+13}, v{T+14}
s_mov_b32 s14, 2621440
s_mov_b32 s15, 0x20000
s_mov_b32 s40, {f2u(1/640):#x}
s_mov_b32 s41, s40
s_mov_b32 s42, {f2u(1e-5):#x}
s_mov_b32 s43, s42
s_mov_b32 {sLayer}, 0
s_mov_b32 {sTag}, 1
s_mov_b32 {sFlip}, 0
''')
sst('prex')
a(f'''
s_waitcnt vmcnt(2)
v_and_b32 v{vVAB}, 0xffff, v{T+4}
v_lshrrev_b32 v{vVAB+1}, 16, v{T+4}
v_and_b32 v{vVC}, 0xffff, v{T+5}
v_lshrrev_b32 v{vVC+1}, 16, v{T+5}
''')
Sx, Qx = T, T+4
a('L_loop:')
stamp('top', True)
for p in range(2):
    a(f'v_pk_add_f32 {v2(Sx+2*p)}, {v2(X+2*p)}, {v2(X+4+2*p)}')
    a(f'v_pk_mul_f32 {v2(Qx+2*p)}, {v2(X+2*p)}, {v2(X+2*p)}')
for kl in range(1, 4):
    for p in range(2):
        b = X+4*kl+2*p
        a(f'v_pk_fma_f32 {v2(Qx+2*p)}, {v2(b)}, {v2(b)}, {v2(Qx+2*p)}')
        if kl > 1: a(f'v_pk_add_f32 {v2(Sx+2*p)}, {v2(Sx+2*p)}, {v2(b)}')
for j in range(4): a(f'v_permlane32_swap_b32 v{Sx+j}, v{Qx+j}')
for p in range(2): a(f'v_pk_add_f32 {v2(Sx+2*p)}, {v2(Sx+2*p)}, {v2(Qx+2*p)}')
for sh in (8, 4, 2, 1):
    for j in range(4): a(f'v_add_f32_dpp v{Sx+j}, v{Sx+j}, v{Sx+j} row_ror:{sh} row_mask:0xf bank_mask:0xf')
a(f'''
s_mov_b32 exec_lo, 0x00010001
s_mov_b32 exec_hi, 0x00010001
ds_write_b128 v{vStW}, {vr(Sx)}
s_mov_b64 exec, -1
s_waitcnt lgkmcnt(0)
s_barrier
''')
stamp('bar1', True)
P = T+8
for w in range(5): a(f'ds_read_b128 {vr(P+4*w)}, v{vStR} offset:{64*w}')
for w, cnt in ((1, 3), (2, 2), (3, 1), (4, 0)):
    a(f's_waitcnt lgkmcnt({cnt})')
    for p in range(2): a(f'v_pk_add_f32 {v2(P+2*p)}, {v2(P+2*p)}, {v2(P+4*w+2*p)}')
Q2 = P+4
for j in range(4): a(f'v_mov_b32 v{Q2+j}, v{P+j}')
for j in range(4): a(f'v_permlane32_swap_b32 v{P+j}, v{Q2+j}')
for p in range(2):
    a(f'v_pk_mul_f32 {v2(P+2*p)}, {v2(P+2*p)}, {sInv}')
    a(f'v_pk_mul_f32 {v2(Q2+2*p)}, {v2(Q2+2*p)}, {sInv}')
for p in range(2): a(f'v_pk_fma_f32 {v2(Q2+2*p)}, {v2(P+2*p)}, {v2(P+2*p)}, {v2(Q2+2*p)} neg_lo:[1,0,0] neg_hi:[1,0,0]')
for j in range(4): a(f'v_max_f32 v{Q2+j}, 0, v{Q2+j}')
for p in range(2): a(f'v_pk_add_f32 {v2(Q2+2*p)}, {v2(Q2+2*p)}, {sEps}')
for j in range(4): a(f'v_rsq_f32 v{Q2+j}, v{Q2+j}')
for p in range(2): a(f'v_pk_mul_f32 {v2(P+2*p)}, {v2(P+2*p)}, {v2(Q2+2*p)} neg_lo:[1,0] neg_hi:[1,0]')
N_ = T+16; Bo = T+32
for kl in range(4):
    for p in range(2): a(f'v_pk_fma_f32 {v2(N_+4*kl+2*p)}, {v2(X+4*kl+2*p)}, {v2(Q2+2*p)}, {v2(P+2*p)}')
for kl in range(4):
    for p in range(2): a(f'v_cvt_pk_f16_f32 v{Bo+2*kl+p}, v{N_+4*kl+2*p}, v{N_+4*kl+2*p+1}')
D0, D1, DC = T, T+4, T+8
a(f'''
v_mfma_f32_16x16x32_f16 {vr(D0)}, {vr(S1r)}, {vr(Bo)}, 0
v_mfma_f32_16x16x32_f16 {vr(DC)}, {vr(S1r+4)}, {vr(Bo)}, 0
v_mfma_f32_16x16x32_f16 {vr(D1)}, {vr(S1r)}, {vr(Bo+4)}, 0
v_mfma_f32_16x16x32_f16 {vr(DC)}, {vr(S1r+8)}, {vr(Bo+4)}, {vr(DC)}
s_or_b32 s7, s2, {sW}
s_cmp_lg_u32 s7, 0
s_cbranch_scc1 L_nofix
s_waitcnt vmcnt(0)
v_mfma_f32_16x16x32_f16 {vr(T+16)}, {vr(DEL)}, {vr(Bo)}, 0
v_mfma_f32_16x16x32_f16 {vr(T+20)}, {vr(DEL+4)}, {vr(Bo)}, 0
s_mov_b32 exec_lo, 0x00010001
s_mov_b32 exec_hi, 0x00010001
''')
for p in range(2): a(f'v_pk_add_f32 {v2(D0+2*p)}, {v2(D0+2*p)}, {v2(T+16+2*p)}')
for p in range(2): a(f'v_pk_add_f32 {v2(DC+2*p)}, {v2(DC+2*p)}, {v2(T+20+2*p)}')
a('s_mov_b64 exec, -1\nL_nofix:\ns_nop 1')
W_ = T+24
a(f'''
v_cvt_pk_f16_f32 v{W_}, v{D0}, v{D0+1}
v_cvt_pk_f16_f32 v{W_+1}, v{D0+2}, v{D0+3}
ds_write_b32 v{vVAB}, v{W_}
ds_write_b32 v{vVAB}, v{W_+1} offset:3200
v_cvt_pk_f16_f32 v{W_+2}, v{D1}, v{D1+1}
v_cvt_pk_f16_f32 v{W_+3}, v{D1+2}, v{D1+3}
v_cvt_pk_f16_f32 v{W_+4}, v{DC}, v{DC+1}
v_cvt_pk_f16_f32 v{W_+5}, v{DC+2}, v{DC+3}
ds_write_b32 v{vVAB+1}, v{W_+2}
ds_write_b32 v{vVAB+1}, v{W_+3} offset:3200
ds_write_b32 v{vVC}, v{W_+4}
ds_write_b32 v{vVC+1}, v{W_+5}
''')
stamp('s1w', True)
a(f'''
s_cmp_lg_u32 {sLayer}, 0
s_cbranch_scc1 L_nohs
s_cmp_lg_u32 {sW}, 4
s_cbranch_scc1 L_nohs
s_mov_b32 {sSpin}, {SPIN}
v_lshlrev_b32 v{T+1}, 3, v{vL16}
s_lshl_b32 s7, {sSig}, 12
s_add_u32 s7, s7, {FLAGS}
s_mov_b32 exec_hi, 0
L_hs:
buffer_load_dword v{T}, v{T+1}, {SWS}, s7 offen sc1
s_sub_u32 {sSpin}, {sSpin}, 1
s_cbranch_scc1 L_hs_done
s_waitcnt vmcnt(0)
v_xor_b32 v{T}, {sFlag}, v{T}
v_cmp_lt_u32 vcc, 15, v{T}
s_cbranch_vccnz L_hs
L_hs_done:
s_waitcnt vmcnt(0)
v_cmp_ne_u32 vcc, 0, v{T}
s_mov_b64 exec, -1
s_cmp_lg_u32 vcc_lo, 0
s_cselect_b32 s7, 1, {FORCE_SLOW}
v_mov_b32 v{T}, s7
v_mov_b32 v{T+1}, {L_MODE}
ds_write_b32 v{T+1}, v{T}
L_nohs:
s_waitcnt vmcnt(0) lgkmcnt(0)
s_barrier
''')
stamp('bar2', True)
a(f's_cmp_eq_u32 {sW}, 4\ns_cbranch_scc1 L_w4')
Ad = T; Tr = T+12; Ti = T+24; B2 = T+36; O = T+48
a(f'''
ds_read_b128 {vr(Ad)}, v{vVrd}
ds_read_b128 {vr(Ad+4)}, v{vVrd} offset:1280
ds_read_b128 {vr(Ad+8)}, v{vVrd2}
s_cmp_lg_u32 {sLayer}, 0
s_cbranch_scc1 L_nomode
v_mov_b32 v{O}, {L_MODE}
ds_read_b32 v{O}, v{O}
s_waitcnt lgkmcnt(0)
v_readfirstlane_b32 {sMode}, v{O}
L_nomode:
''')
for blk in range(3):
    a(f's_waitcnt lgkmcnt({2-blk})')
    a(f'v_mfma_f32_16x16x32_f16 {vr(Tr+4*blk)}, {vr(Ad+4*blk)}, {vr(B1r)}, 0')
    a(f'v_mfma_f32_16x16x32_f16 {vr(Ti+4*blk)}, {vr(Ad+4*blk)}, {vr(B1r+4)}, 0')
for ch in range(3):
    Pt = T+60; Qt = T+64
    for p in range(2):
        r_, i_ = Tr+4*ch+2*p, Ti+4*ch+2*p; c_ = TWc+4*ch+2*p
        a(f'v_pk_mul_f32 {v2(Pt+2*p)}, {v2(r_)}, {v2(c_)}')
        a(f'v_pk_mul_f32 {v2(Qt+2*p)}, {v2(i_)}, {v2(c_)}')
    for p in range(2):
        r_, i_ = Tr+4*ch+2*p, Ti+4*ch+2*p; s_2 = TWs+4*ch+2*p
        a(f'v_pk_fma_f32 {v2(Pt+2*p)}, {v2(i_)}, {v2(s_2)}, {v2(Pt+2*p)}')
        a(f'v_pk_fma_f32 {v2(Qt+2*p)}, {v2(r_)}, {v2(s_2)}, {v2(Qt+2*p)} neg_lo:[1,0,0] neg_hi:[1,0,0]')
    for i in range(4): a(f'v_cvt_pk_f16_f32 v{B2+4*ch+i}, v{Pt+i}, v{Qt+i}')
    for blk in range(3):
        c_in = '0' if ch == 0 else vr(O+4*blk)
        a(f'v_mfma_f32_16x16x32_f16 {vr(O+4*blk)}, {vr(A2r+(blk*3+ch)*4)}, {vr(B2+4*ch)}, {c_in}')
Wo = T
for i in range(6): a(f'v_cvt_pk_f16_f32 v{Wo+i}, v{O+2*i}, v{O+2*i+1}')
a(f'''
s_cmp_ge_u32 {sW}, 2
s_cbranch_scc1 L_noslot
v_readlane_b32 s7, v{Wo+4}, 32
v_writelane_b32 v{Wo}, s7, 0
L_noslot:
''')
for i in range(6): a(f'v_and_or_b32 v{Wo+i}, v{Wo+i}, -2, {sTag}')
a(f'''
s_cmp_lg_u32 {sMode}, 0
s_cbranch_scc1 L_st_slow
buffer_store_dwordx4 {vr(Wo)}, v{vL16}, {SWS}, {sH1st} offen
buffer_store_dwordx2 {v2(Wo+4)}, v{vH1s2}, {SWS}, {sH1st} offen
s_branch L_cphase
L_w4:
s_cmp_ge_u32 {sLayer}, 2
s_cbranch_scc1 L_cphase
''')
clean5(sCl)
a(f'''
s_add_u32 {sCl}, {sCl}, {BUF}
s_cmp_lg_u32 {sLayer}, 0
s_cbranch_scc1 L_cphase
s_mov_b32 {sSpin}, {SPIN}
v_lshlrev_b32 v{T+4}, 3, v{vL16}
v_add_u32 v{T+4}, {FLAGS}, v{T+4}
s_movk_i32 s92, 0x2000
s_movk_i32 s93, 0x4000
s_movk_i32 s94, 0x6000
L_hs2:
buffer_load_dword v{T}, v{T+4}, {SWS}, 0 offen sc1
buffer_load_dword v{T+1}, v{T+4}, {SWS}, s92 offen sc1
buffer_load_dword v{T+2}, v{T+4}, {SWS}, s93 offen sc1
buffer_load_dword v{T+3}, v{T+4}, {SWS}, s94 offen sc1
s_sub_u32 {sSpin}, {sSpin}, 1
s_cbranch_scc1 L_cphase
s_waitcnt vmcnt(0)
v_xor_b32 v{T}, {sFlag}, v{T}
v_xor_b32 v{T+1}, {sFlag}, v{T+1}
v_xor_b32 v{T+2}, {sFlag}, v{T+2}
v_xor_b32 v{T+3}, {sFlag}, v{T+3}
v_or3_b32 v{T}, v{T}, v{T+1}, v{T+2}
v_or_b32 v{T}, v{T}, v{T+3}
v_cmp_lt_u32 vcc, 15, v{T}
s_cbranch_vccnz L_hs2
s_branch L_cphase
L_st_slow:
buffer_store_dwordx4 {vr(Wo)}, v{vL16}, {SWS}, {sH1st} offen sc1
buffer_store_dwordx2 {v2(Wo+4)}, v{vH1s2}, {SWS}, {sH1st} offen sc1
L_cphase:
''')
stamp('h1st', True)
Ca = T+8; Dm = T+16; K_ = T+32
a(f'''
s_mov_b32 {sSpin}, {SPIN}
s_mov_b32 exec_lo, 0x00ff00ff
s_mov_b32 exec_hi, 0x00ff00ff
L_poll1:
''')
for ch in range(2):
    for u in range(4):
        a(f'buffer_load_dword v{Ca+4*ch+u}, v{vC1ld}, {SWS}, {sH1ld0 if ch == 0 else sH1ld1} offen offset:{1280*u} sc1')
a(f'''
s_sub_u32 {sSpin}, {sSpin}, 1
s_cbranch_scc1 L_poll1_done
s_waitcnt vmcnt(0)
''')
tt = sum((((i >> 2 & 1) ^ (i & 1)) & ((i >> 1 & 1) ^ (i & 1))) << i for i in range(8))
for i in range(4): a(f'v_bitop3_b32 v{K_+i}, v{Ca+2*i}, v{Ca+2*i+1}, {sFlip} bitop3:{tt:#x}')
a(f'''
v_bitop3_b32 v{K_}, v{K_}, v{K_+1}, v{K_+2} bitop3:0x80
v_bitop3_b32 v{K_}, v{K_}, v{K_+3}, 1 bitop3:0x80
v_cmp_eq_u32 vcc, 0, v{K_}
s_cbranch_vccnz L_poll1
L_poll1_done:
s_waitcnt vmcnt(0)
s_mov_b64 exec, -1
''')
stamp('h1ok', True)
for hi in range(2):
    for ch in range(2):
        for rio in range(2):
            d = Dm + (hi*2+rio)*4
            a(f'v_mfma_f32_16x16x32_f16 {vr(d)}, {vr(Ca+4*ch)}, {vr(CM+((hi*2+rio)*2+ch)*4)}, {"0" if ch == 0 else vr(d)}')
a('s_mov_b32 exec_hi, 0')
for hi in range(2):
    for i in range(4): a(f'v_cvt_pk_f16_f32 v{K_+4*hi+i}, v{Dm+8*hi+i}, v{Dm+8*hi+4+i}')
    for i in range(4): a(f'v_or_b32 v{K_+4*hi+i}, 1, v{K_+4*hi+i}')
    a(f'ds_write_b128 v{vRtW}, {vr(K_+4*hi)} offset:{2560*hi}')
a(f'''
s_mov_b64 exec, -1
s_waitcnt lgkmcnt(0)
s_barrier
ds_read_b128 {vr(T)}, v{vRtR}
s_waitcnt lgkmcnt(0)
buffer_store_dwordx4 {vr(T)}, v{vH2st}, {SWS}, {sH2st} offen sc1
s_mov_b32 {sSpin}, {SPIN}
''')
stamp('h2st', True)
a('s_waitcnt vmcnt(0)')
stamp('h2ack', True)
a('L_poll2:')
Lh = T+4; K2 = T+20
for u in range(4): a(f'buffer_load_dwordx4 {vr(Lh+4*u)}, v{vH2ld}, {SWS}, {sH2ld} offen offset:{1280*u} sc1')
a(f'''
s_sub_u32 {sSpin}, {sSpin}, 1
s_cbranch_scc1 L_poll2_done
s_waitcnt vmcnt(0)
''')
for i in range(5): a(f'v_bitop3_b32 v{K2+i}, v{Lh+3*i}, v{Lh+3*i+1}, v{Lh+3*i+2} bitop3:0x80')
a(f'''
v_bitop3_b32 v{K2}, v{K2}, v{K2+1}, v{K2+2} bitop3:0x80
v_bitop3_b32 v{K2+3}, v{K2+3}, v{K2+4}, v{Lh+15} bitop3:0x80
v_bitop3_b32 v{K2}, v{K2}, v{K2+3}, 1 bitop3:0x80
v_cmp_eq_u32 vcc, 0, v{K2}
s_cbranch_vccnz L_poll2
L_poll2_done:
s_waitcnt vmcnt(0)
''')
stamp('h2ok', True)
for kl in range(1, 4): a(f'v_swap_b32 v{Lh+kl}, v{Lh+4*kl}')
for u in range(4): a(f'v_and_b32 v{Lh+u}, v{vMask0}, v{Lh+u}')
for (u, kl) in ((1, 2), (1, 3), (2, 3)): a(f'v_swap_b32 v{Lh+4*u+kl}, v{Lh+4*kl+u}')
for kl in range(4): a(f'v_mfma_f32_16x16x32_f16 {vr(X+4*kl)}, {vr(A3r)}, {vr(Lh+4*kl)}, {vr(X+4*kl)}')
a(f'''
s_add_u32 {sLayer}, {sLayer}, 1
s_add_u32 {sH2st}, {sH2st}, {BUF}
s_add_u32 {sH2ld}, {sH2ld}, {BUF}
s_xor_b32 {sH1st}, {sH1st}, {H1STR}
s_xor_b32 {sH1ld0}, {sH1ld0}, {H1STR}
s_xor_b32 {sH1ld1}, {sH1ld1}, {H1STR}
s_cmp_ge_u32 {sLayer}, 2
s_cselect_b32 {sTag}, 0, 1
s_cselect_b32 {sFlip}, -1, 0
s_cmp_lt_u32 {sLayer}, {NLAYER}
s_cbranch_scc1 L_loop
''')
F = T
for kl in range(4):
    for p in range(2): a(f'v_cvt_pk_bf16_f32 v{F+2*kl+p}, v{X+4*kl+2*p}, v{X+4*kl+2*p+1}')
for kl in range(4):
    for p in range(2):
        a(f'ds_write_b16 v{vXT+kl}, v{F+2*kl+p} offset:{2560*p}')
        a(f'ds_write_b16_d16_hi v{vXT+kl}, v{F+2*kl+p} offset:{2560*p+1280}')
OUTF = ' ' + opts.get('outf', '').replace('+', ' ') if opts.get('outf') else ''
a(f'''
s_waitcnt lgkmcnt(0)
s_barrier
ds_read_b128 {vr(T+8)}, v{vRtR} offset:{L_XT-L_RT}
ds_read_b128 {vr(T+12)}, v{vRtR} offset:{L_XT-L_RT+5120}
s_waitcnt lgkmcnt(1)
buffer_store_dwordx4 {vr(T+8)}, v{vGa}, {SO}, 0 offen{OUTF}
s_waitcnt lgkmcnt(0)
buffer_store_dwordx4 {vr(T+12)}, v{vGb}, {SO}, 0 offen{OUTF}
s_lshl_b32 s7, s2, 3
s_add_u32 s7, s7, {sW}
s_cmp_lg_u32 s7, 4
s_cbranch_scc1 L_noep
s_add_u32 s7, {sEpoch}, 1
v_mov_b32 v{T}, s7
s_mov_b64 exec, 1
buffer_store_dword v{T}, off, {SWS}, 0
s_mov_b64 exec, -1
L_noep:
''')
if STAMPS:
    a('s_waitcnt vmcnt(0)'); stamp('end'); stamp('rend', real=True)
    a(f's_waitcnt lgkmcnt(0)\ns_cmp_lg_u32 {sW}, {opt("swave")}\ns_cbranch_scc1 L_end')
    a(f's_lshl_b32 s7, s2, 7\ns_add_u32 s7, s7, {STAMP_OFF}\nv_mov_b32 v1, 0\ns_mov_b64 exec, 1')
    for i in range(len(nst)): a(f'v_mov_b32 v2, s{60+2*i}\nbuffer_store_dword v2, v1, {SWS}, s7 offen offset:{4*i}')
a('L_end:\ns_endpgm')

hdr = open('interleave_layers__spectral_fnet__spectral_fnet__prompt.s.ref').read().split('; Override')[0]
out = hdr + ('; STAMPS ' + ' '.join(nst) + '\n' if STAMPS else '') + f'; @launch grid=(256,1,1) block=(320,1,1) lds={LDS_BYTES}\n'
out += f'.amdgcn_target "amdgcn-amd-amdhsa--gfx950"\n.text\n.globl {KNAME}\n.p2align 8\n.type {KNAME},@function\n{KNAME}:\n'
out += a.text()
out += f'''.section .rodata,"a"
.p2align 6
.amdhsa_kernel {KNAME}
  .amdhsa_next_free_vgpr 240
  .amdhsa_next_free_sgpr 102
  .amdhsa_accum_offset 240
  .amdhsa_group_segment_fixed_size 0
  .amdhsa_kernarg_size 104
  .amdhsa_user_sgpr_count 2
  .amdhsa_user_sgpr_kernarg_segment_ptr 1
  .amdhsa_system_sgpr_workgroup_id_x 1
.end_amdhsa_kernel
.p2align 10
tbl:
'''
for f in blocks:
    for i in range(0, 256, 8): out += '.long ' + ','.join(f'{int(x):#x}' for x in f[i:i+8]) + '\n'
open(sys.argv[1], 'w').write(out)
print('instrs', len(a.ins), 'nops inserted', a.nops, 'table blocks', len(blocks), 'bytes', len(out))
```

```python
import sys, struct
import numpy as np
from design import *
from asmlib import Asm

KNAME = "interleave_layers__spectral_fnet__spectral_fnet__prompt_kernel"
opts = dict(a.split('=') for a in sys.argv[2:] if '=' in a)
def opt(k, d=0): return int(opts.get(k, d))
STAMPS = opt('stamps'); FORCE_SLOW = opt('slow'); NLAYER = opt('layers', 4); SPIN = opt('spin', 200000); SLAYER = opt('slayer')

def f2u(f): return struct.unpack('<I', struct.pack('<f', f))[0]
BUF = 1310720
FLAGS = 4096; H1BASE = 0x40000; H1STR = 0x200000; H2BASE = 0x400000; WS_BYTES = H2BASE + 4*BUF
STAMP_OFF = WS_BYTES
if STAMPS: WS_BYTES += 256*128
L_V = 0; L_ST = 9600; L_MODE = 9920; L_RT = 9984; L_XT = 15360; L_TB = 25600; L_CM = L_TB + 30*1024; LDS_BYTES = L_CM + 8192
def vaddr(col): return (col % 40)*80 + (col//40)*4
def opA(M):
    h = M.astype(np.float16).view(np.uint16).astype(np.uint32)
    out = np.zeros((64, 4), np.uint32)
    for l in range(64):
        r = h[l % 16, 8*(l//16):8*(l//16)+8]
        out[l] = r[0::2] | (r[1::2] << 16)
    return out
def opB(N): return opA(N.T)
blocks = []
def add(b): blocks.append(np.asarray(b, np.uint32).reshape(256)); return len(blocks)-1
n_ = S1_mats(False); s_ = S1_mats(True)
def a3_idx(sig, m):
    g = unit_g(sig, m)
    if g == 0: return 9
    if g == 128: return 8
    return (g >> 7) + (0 if g % 4 == 1 else 4)
a3 = {}
for sig in range(8):
    for m in range(32):
        M = A3(sig, m)*HSCALE; i = a3_idx(sig, m)
        if i in a3: assert np.allclose(a3[i], M), (sig, m)
        a3[i] = M
T_S1N = add(opA(n_[0])); add(opA(n_[1])); add(opA(n_[2]))
add(opA(a3[0]))
Bre, Bim = B1_mats(); T_B1 = add(opB(Bre)); add(opB(Bim))
tc, ts = twiddles()
T_TW = len(blocks)
for arr in (tc, ts):
    for blk in range(3): add(arr[blk].astype(np.float32).view(np.uint32))
T_A2 = len(blocks)
for r0 in (0, 20):
    M = A2_mats(r0)/HSCALE
    for blk in range(3):
        for ch in range(3): add(opA(M[blk, ch]))
assert len(blocks) == 30
T_S1S = add(opA(s_[0])); add(opA(s_[1])); add(opA(s_[2])); T_DEL = add(opA(s_[3])); add(opA(s_[4]))
T_A3 = len(blocks)
for i in range(10): add(opA(a3[i]))
T_ADDR = len(blocks)
at = np.zeros((2, 320, 2), np.uint32)
for ty, (sig, m) in enumerate(((2, 1), (1, 0))):
    for tid in range(320):
        w, l = divmod(tid, 64); n, mq = l % 16, l//16
        v = [L_V + vaddr(acol(sig, m, mq//2, 64*w+4*n+2*bop+(mq % 2))) for bop in range(2)]
        v += [L_V + 6400 + vaddr(acol(sig, m, mq % 2, 64*w+4*n+2*(mq//2)+sub)) for sub in range(2)]
        at[ty, tid] = [v[0] | (v[1] << 16), v[2] | (v[3] << 16)]
for i in range(5): add(at.reshape(-1)[256*i:256*i+256])

vL16, vH1s2, vH2ld, vC1ld, vRtW, vRtR, vH2st, vStR, vStW = 1, 2, 3, 4, 5, 6, 7, 8, 9
vVAB, vVC, vVrd, vVrd2 = 10, 12, 14, 15
X = 16; A3r = 32; S1r = 36; B1r = 48; TWc = 56; TWs = 68; A2r = 80; CM = 116; DEL = 148
vXT = 156; vMask0 = 160; vGa = 161; vGb = 162; vT16 = 163; vZ = 164
T = 168
def vr(b, n=4): return f'v[{b}:{b+n-1}]'
def v2(b): return f'v[{b}:{b+1}]'
sW, sSig, sM, sG, sType, sSpec, sLayer, sMode = 's3', 's4', 's5', 's26', 's27', 's28', 's29', 's30'
sH1st, sH1ld0, sH1ld1, sH2st, sH2ld, sTag, sFlip, sSpin = 's31', 's32', 's33', 's34', 's35', 's36', 's37', 's38'
sFlag, sCl, sEpoch, sGi = 's39', 's44', 's45', 's46'
sInv, sEps = 's[40:41]', 's[42:43]'
SX, SO, SWS, STB = 's[8:11]', 's[12:15]', 's[16:19]', 's[24:25]'
a = Asm()
nst = []
SST = opt('sstart')
def sst(name):
    if SST: stamp(name)
def stamp(name, inloop=False, real=False):
    if SST and inloop and name not in ('top', 'bar1'): return
    if STAMPS:
        i = len(nst); nst.append(name)
        assert i < 16
        ins = f's_{"memrealtime" if real else "memtime"} s[{60+2*i}:{61+2*i}]'
        if inloop: a(f's_cmp_lg_u32 {sLayer}, {SLAYER}\ns_cbranch_scc1 L_stk{i}\n{ins}\nL_stk{i}:')
        else: a(ins)
def clean5(soff, fl=' sc1'):
    for i in range(4): a(f'buffer_store_dwordx4 {vr(vZ)}, v{vL16}, {SWS}, {soff} offen offset:{1024*i}{fl}')
    a(f's_add_u32 s7, {soff}, 4096\nbuffer_store_dwordx4 {vr(vZ)}, v{vL16}, {SWS}, s7 offen{fl}')

stamp('start'); stamp('rstart', real=True)
n_v, kq_v = T+10, T+11
HW = 5
a(f"""
s_load_dwordx2 s[16:17], s[0:1], 96
s_load_dwordx2 s[8:9], s[0:1], 0
s_load_dwordx2 s[12:13], s[0:1], 80
v_lshrrev_b32 v{T+1}, 6, v0
s_cmp_ge_u32 s2, 256
s_cbranch_scc1 L_end
v_readfirstlane_b32 {sW}, v{T+1}
v_and_b32 v{T}, 63, v0
s_and_b32 {sSig}, s2, 7
s_lshr_b32 {sM}, s2, 3
v_lshlrev_b32 v{vL16}, 4, v{T}
s_mov_b32 s18, {WS_BYTES}
s_mov_b32 s19, 0x20000
s_cmp_eq_u32 {sW}, {HW}
s_cbranch_scc1 L_hk
s_getpc_b64 s[24:25]
s_add_u32 s24, s24, tbl@rel32@lo+4
s_addc_u32 s25, s25, tbl@rel32@hi+12
s_lshl_b32 s6, {sSig}, 2
s_lshr_b32 s6, 0x9654d210, s6
s_and_b32 s6, s6, 15
s_lshl_b32 {sG}, {sM}, 4
s_add_u32 {sG}, {sG}, s6
s_cmp_eq_u32 {sSig}, 0
s_cselect_b32 s7, 248, 0
s_cmp_ge_u32 {sM}, 16
s_cselect_b32 s7, s7, 0
s_sub_u32 {sG}, {sG}, s7
s_and_b32 {sType}, {sG}, 1
""")
DMA = f"""
s_lshr_b32 s7, {sG}, 7
s_lshl_b32 s94, {sType}, 2
s_sub_u32 s7, s7, s94
s_add_u32 s7, s7, {4 + T_A3 - 3}
s_cmp_eq_u32 {sG}, 128
s_cselect_b32 s7, {8 + T_A3 - 3}, s7
s_cmp_eq_u32 {sG}, 0
s_cselect_b32 s7, {9 + T_A3 - 3}, s7
s_cselect_b32 s94, {T_S1S*1024}, 0
s_lshl_b32 s7, s7, 10
s_mul_i32 s95, {sW}, 6144
s_cmp_eq_u32 {sW}, 0
s_cselect_b32 s94, s94, s95
s_cselect_b32 s7, s7, s95
s_add_u32 m0, s95, {L_TB}
v_add_u32 v{T+2}, s94, v{vL16}
v_add_u32 v{T+3}, s7, v{vL16}
s_add_u32 s95, s95, 4096
v_add_u32 v{T+8}, s95, v{vL16}
global_load_lds_dwordx4 v{T+2}, {STB}
global_load_lds_dwordx4 v{T+2}, {STB} offset:1024
global_load_lds_dwordx4 v{T+2}, {STB} offset:2048
global_load_lds_dwordx4 v{T+3}, {STB} offset:3072
s_add_u32 m0, s95, {L_TB}
s_mul_i32 s7, {sType}, 2560
s_add_u32 s7, s7, {T_ADDR*1024}
global_load_lds_dwordx4 v{T+8}, {STB}
global_load_lds_dwordx4 v{T+8}, {STB} offset:1024
v_lshl_add_u32 v{T+2}, v0, 3, s7
global_load_dwordx2 {v2(vVAB)}, v{T+2}, {STB}
"""
if not opt("latedma"): a(DMA)
if opt('latedma') == 3:
    lines = DMA.strip().split('\n')
    early = [];
    k = [i for i, l in enumerate(lines) if l.startswith('global_load_lds')]
    early = lines[:k[0]] + [f's_cmp_lg_u32 {sW}, 0', 's_cbranch_scc1 L_nodma0'] + lines[k[0]:k[3]+1] + ['L_nodma0:'] + [l for l in lines[k[3]+1:] if not l.startswith('global_load_lds') and 'm0' not in l]
    a('\n'.join(early))
a(f"""
s_sub_u32 s92, 0, {sG}
s_and_b32 s92, s92, 511
s_cmp_eq_u32 {sG}, 0
s_cselect_b32 s92, 256, s92
s_mul_i32 s92, s92, 1280
s_mul_i32 s93, {sG}, 1280
v_mul_u32_u24 v{T+12}, 205, v0
v_lshlrev_b32 v{vT16}, 4, v0
v_lshrrev_b32 v{T+12}, 14, v{T+12}
v_mul_u32_u24 v{T+14}, 0x9fb00, v{T+12}
s_lshl_b32 s7, {sW}, 10
s_add_u32 m0, s7, {L_XT}
v_add3_u32 v{vGa}, v{T+14}, v{vT16}, s93
v_add3_u32 v{vGb}, v{T+14}, v{vT16}, s92
s_mov_b32 s10, 2621440
s_mov_b32 s11, 0x20000
""")
sst('prek')
a(f"""
s_waitcnt lgkmcnt(0)
buffer_load_dwordx4 v{vGa}, {SX}, 0 offen lds
s_add_u32 m0, s7, {L_XT+5120}
s_or_b32 s7, s2, {sW}
buffer_load_dwordx4 v{vGb}, {SX}, 0 offen lds
""")
sst('xiss')
a(f"""
s_cmp_lg_u32 s7, 0
s_cbranch_scc1 L_nodel
v_add_u32 v{T+2}, {T_DEL*1024}, v{vL16}
global_load_dwordx4 {vr(DEL)}, v{T+2}, {STB}
global_load_dwordx4 {vr(DEL+4)}, v{T+2}, {STB} offset:1024
L_nodel:
v_and_b32 v{n_v}, 15, v0
v_bfe_u32 v{kq_v}, v0, 4, 2
v_lshlrev_b32 v{T+12}, 1, v{n_v}
v_lshrrev_b32 v{T+13}, 3, v{n_v}
v_and_b32 v{T+12}, 15, v{T+12}
s_cmp_eq_u32 {sW}, 4
s_cselect_b64 vcc, -1, 0
v_lshl_add_u32 v{T+12}, v{T+13}, 5, v{T+12}
s_cselect_b32 s93, 1, 128
s_cselect_b32 s92, 8, {sW}
s_lshl_b32 s92, s92, 5
v_cndmask_b32 v{T+12}, v{n_v}, v{T+12}, vcc
s_mul_i32 s94, {sType}, 320
v_lshrrev_b32 v{T+13}, 1, v{kq_v}
v_mul_u32_u24 v{T+14}, s94, v{T+13}
s_xor_b32 s94, {sType}, 1
v_and_b32 v{T+13}, s94, v{T+13}
v_add3_u32 v{T+12}, v{T+12}, v{T+14}, s92
v_xor_b32 v{T+13}, v{T+13}, v{kq_v}
v_add_u32 v{T+14}, 16, v{T+12}
v_and_b32 v{T+13}, 1, v{T+13}
v_add_u32 v{T+15}, s93, v{T+12}
v_cmp_eq_u32 vcc, 1, v{T+13}
v_add_u32 v{T+16}, s93, v{T+14}
s_mul_i32 s94, s94, 320
""")
ecol = [T+12, T+14, T+15, T+16]
for kl in range(4): a(f'v_sub_u32 v{T+17+kl}, 640, v{ecol[kl]}')
for kl in range(4): a(f'v_cndmask_b32 v{vXT+kl}, v{ecol[kl]}, v{T+17+kl}, vcc')
a(f"""
v_cmp_gt_u32 vcc, 2, v{kq_v}
v_mov_b32 v{T+17}, s94
v_and_b32 v{T+13}, 1, v{kq_v}
v_cndmask_b32 v{T+17}, 0, v{T+17}, vcc
v_cmp_eq_u32 vcc, 0, v{T+12}
v_mul_u32_u24 v{T+13}, 0x1400, v{T+13}
v_add_u32 v{T+13}, {L_XT}, v{T+13}
v_cndmask_b32 v{vXT}, v{vXT}, v{T+17}, vcc
v_cmp_ne_u32 vcc, 0, v{vXT}
""")
for kl in range(4): a(f'v_lshl_add_u32 v{vXT+kl}, v{vXT+kl}, 1, v{T+13}')
a(f'v_cndmask_b32 v{vMask0}, 0, -1, vcc')
for i in range(16): a(f'v_mov_b32 v{X+i}, 0')
if opt('latedma') == 1: a(DMA)
sst('dma')
a(f"""
s_lshr_b32 s95, {sM}, 3
s_cmp_eq_u32 {sW}, 4
s_cbranch_scc1 L_cm_done
s_lshl_b32 s7, s95, 2
s_lshr_b32 s7, 0x1120, s7
s_and_b32 s7, s7, 3
s_add_u32 s96, s6, 256
s_cmp_eq_u32 {sSig}, 0
s_cselect_b32 s96, 8, s96
s_lshl_b32 s94, {sW}, 4
s_add_u32 s6, s6, s94
s_add_u32 s96, s96, s94
v_lshl_add_u32 v{T+13}, v{n_v}, 2, s7
v_lshl_add_u32 v{T+14}, v{kq_v}, 6, s6
v_lshl_add_u32 v{T+15}, v{kq_v}, 6, s96
v_add_u32 v{T+12}, 64, v{T+13}
s_mov_b32 s94, {f2u(1/2048):#x}
s_lshl_b32 s7, {sW}, 2
s_add_u32 s7, s7, {L_CM}
v_add_u32 v{T+2}, s7, v{vL16}
""")
G = T+24
for hi in range(2):
    for ch in range(2):
        i = G + 2*(2*hi+ch)
        a(f'v_mul_u32_u24 v{i}, v{T+13-hi}, v{T+14+ch}')
for k in range(4): a(f'v_and_b32 v{G+2*k}, 0x7ff, v{G+2*k}')
for k in range(4): a(f'v_cvt_f32_u32 v{G+2*k}, v{G+2*k}')
for k in range(4): a(f'v_mul_f32 v{G+2*k}, s94, v{G+2*k}')
for k in range(4): a(f'v_sin_f32 v{G+2*k+1}, v{G+2*k}\nv_cos_f32 v{G+2*k}, v{G+2*k}')
for k in range(4): a(f'v_cvt_pk_f16_f32 v{G+8+2*k}, v{G+2*k}, v{G+2*k+1}\nv_cvt_pk_f16_f32 v{G+9+2*k}, -v{G+2*k+1}, v{G+2*k}')
a(f's_cmp_lg_u32 {sSig}, 0\ns_cbranch_scc1 L_cm_wr')
for hi in range(2):
    b = G+8+4*hi
    a(f'v_mov_b32 v{b+1}, 0\nv_mov_b32 v{b+3}, v{b+2}\nv_mov_b32 v{b+2}, 0')
a(f"""
v_and_b32 v{T+17}, 1, v0
v_lshlrev_b32 v{T+17}, 4, v{T+17}
v_mov_b32 v{T+18}, 0x3c00
v_lshlrev_b32 v{T+17}, v{T+17}, v{T+18}
v_cmp_gt_u32 vcc, 16, v0
v_cndmask_b32 v{G+8}, v{G+8}, v{T+17}, vcc
v_cndmask_b32 v{G+12}, v{G+12}, v{T+17}, vcc
L_cm_wr:
""")
for hi in range(2):
    for ch in range(2):
        for rio in range(2):
            a(f'ds_write_b32 v{T+2}, v{G+8+2*(2*hi+ch)+rio} offset:{((hi*2+rio)*2+ch)*1024}')
a('L_cm_done:')
if opt('latedma') == 2: a(DMA.replace('s95', 's98'))
sst('cm')
a(f"""
v_lshlrev_b32 v{vStR}, 4, v{kq_v}
s_lshl_b32 s7, {sW}, 6
s_add_u32 s7, s7, {L_ST}
v_add_u32 v{vStW}, s7, v{vStR}
s_mov_b32 s40, {f2u(1/640):#x}
s_mov_b32 s41, s40
s_mov_b32 s42, {f2u(1e-5):#x}
s_mov_b32 s43, s42
s_mov_b32 {sLayer}, 0
s_mov_b32 {sTag}, 1
s_mov_b32 {sFlip}, 0
v_mul_u32_u24 v{T+12}, 205, v0
v_lshrrev_b32 v{T+13}, 11, v{T+12}
v_mul_u32_u24 v{T+14}, 10080, v{T+13}
v_add_u32 v{vH2st}, v{T+14}, v{vT16}
s_and_b32 s93, {sM}, 7
s_mul_i32 s93, s93, 160
s_lshl_b32 s94, {sSig}, 7
s_add_u32 s92, s94, {sM}
s_mul_i32 s92, s92, 1280
s_mul_i32 {sH1st}, {sW}, 40960
s_add_u32 {sH1st}, {sH1st}, s92
s_add_u32 {sH1st}, {sH1st}, {H1BASE}
s_lshl_b32 s96, s95, 5
s_add_u32 s96, s96, s94
s_mul_i32 {sH1ld0}, s96, 1280
s_add_u32 {sH1ld0}, {sH1ld0}, s93
s_lshl_b32 s96, {sW}, 5
s_add_u32 s96, s96, {H1BASE}
s_add_u32 {sH1ld0}, {sH1ld0}, s96
s_add_u32 {sH1ld1}, {sH1ld0}, 20480
s_lshl_b32 s96, s95, 8
s_add_u32 s96, s96, {sSig}
s_mul_i32 {sH2st}, s96, 1280
s_add_u32 {sH2st}, {sH2st}, s93
s_add_u32 {sH2st}, {sH2st}, {H2BASE}
s_mov_b32 {sH2ld}, {H2BASE}
v_add_u32 v{vRtR}, {L_RT}, v{vT16}
v_lshrrev_b32 v{vH1s2}, 1, v{vL16}
v_add_u32 v{vH1s2}, 1024, v{vH1s2}
v_cmp_le_u32 vcc, 512, v{vL16}
v_mov_b32 v{T+13}, 0x40000000
v_cndmask_b32 v{vH1s2}, v{vH1s2}, v{T+13}, vcc
s_movk_i32 s7, 5120
v_lshlrev_b32 v{T+13}, 2, v{n_v}
v_mad_u32_u24 v{vC1ld}, v{kq_v}, s7, v{T+13}
s_lshl_b32 s7, {sW}, 5
s_add_u32 s7, s7, {L_RT}
v_mul_u32_u24 v{vRtW}, 160, v{n_v}
v_add3_u32 v{vRtW}, v{vRtW}, v{vStR}, s7
s_cmp_lt_u32 {sW}, 2
s_cselect_b32 s7, 3200, 0
s_lshl_b32 s7, s7, {sW}
v_mul_u32_u24 v{vVrd}, 80, v{n_v}
v_add3_u32 v{vVrd}, v{vVrd}, v{vStR}, s7
v_and_b32 v{vVrd2}, 7, v0
v_mul_u32_u24 v{vVrd2}, 80, v{vVrd2}
s_add_u32 s7, s7, 2560
v_add3_u32 v{vVrd2}, v{vVrd2}, v{vStR}, s7
v_add_u32 v{vStR}, {L_ST}, v{vStR}
s_and_b32 s7, {sG}, 127
s_lshr_b32 s7, s7, 2
s_sub_u32 s94, 0, {sG}
s_and_b32 s94, s94, 127
s_lshr_b32 s94, s94, 2
s_bfe_u32 s95, {sG}, 0x10001
s_cmp_eq_u32 {sType}, 1
s_cselect_b32 s94, s7, s94
s_cselect_b32 s96, 2, s95
s_cselect_b32 s95, 3, s95
s_lshl_b32 s96, s96, 5
s_lshl_b32 s95, s95, 5
s_add_u32 s7, s7, s96
s_add_u32 s94, s94, s95
s_mul_i32 s7, s7, 10240
s_mul_i32 s94, s94, 10240
s_lshl_b32 s95, {sW}, 8
s_add_u32 s7, s7, s95
s_add_u32 s94, s94, s95
v_mov_b32 v{vH2ld}, s7
v_mov_b32 v{T+13}, s94
v_cmp_le_u32 vcc, 2, v{kq_v}
v_and_b32 v{T+14}, 1, v{kq_v}
v_cndmask_b32 v{vH2ld}, v{vH2ld}, v{T+13}, vcc
v_mul_u32_u24 v{T+14}, 0x1400, v{T+14}
v_lshlrev_b32 v{T+13}, 4, v{n_v}
v_add3_u32 v{vH2ld}, v{vH2ld}, v{T+13}, v{T+14}
s_mov_b32 s14, 2621440
s_mov_b32 s15, 0x20000
v_add_u32 v{vZ}, {L_TB}, v{vL16}
""")
sst('prex')
a('s_waitcnt vmcnt(0) lgkmcnt(0)\ns_barrier')
sst('bar0')
for kl in range(4):
    for j in range(4): a(f'ds_read_u16_d16_hi v{X+4*kl+j}, v{vXT+kl} offset:{1280*j}')
for i in range(3): a(f'ds_read_b128 {vr(S1r+4*i)}, v{vZ} offset:{1024*i}')
if opt('latedma') == 3:
    a(f'''s_mul_i32 s95, {sW}, 6144
v_add_u32 v{T+2}, s95, v{vL16}
s_add_u32 m0, s95, {L_TB}
s_add_u32 s95, s95, 4096
v_add_u32 v{T+3}, s95, v{vL16}
s_cmp_eq_u32 {sW}, 0
s_cbranch_scc1 L_nodma1
global_load_lds_dwordx4 v{T+2}, {STB}
global_load_lds_dwordx4 v{T+2}, {STB} offset:1024
global_load_lds_dwordx4 v{T+2}, {STB} offset:2048
global_load_lds_dwordx4 v{T+2}, {STB} offset:3072
L_nodma1:
s_add_u32 m0, s95, {L_TB}
s_nop 0
global_load_lds_dwordx4 v{T+3}, {STB}
global_load_lds_dwordx4 v{T+3}, {STB} offset:1024''')
a(f'''v_and_b32 v{vVC}, 0xffff, v{vVAB+1}
v_lshrrev_b32 v{vVC+1}, 16, v{vVAB+1}
v_lshrrev_b32 v{vVAB+1}, 16, v{vVAB}
v_and_b32 v{vVAB}, 0xffff, v{vVAB}
s_waitcnt lgkmcnt(3)''')
Sx, Qx = T, T+4
a('L_loop:')
stamp('top', True)
for p in range(2):
    a(f'v_pk_add_f32 {v2(Sx+2*p)}, {v2(X+2*p)}, {v2(X+4+2*p)}')
    a(f'v_pk_mul_f32 {v2(Qx+2*p)}, {v2(X+2*p)}, {v2(X+2*p)}')
for kl in range(1, 4):
    for p in range(2):
        b = X+4*kl+2*p
        a(f'v_pk_fma_f32 {v2(Qx+2*p)}, {v2(b)}, {v2(b)}, {v2(Qx+2*p)}')
        if kl > 1: a(f'v_pk_add_f32 {v2(Sx+2*p)}, {v2(Sx+2*p)}, {v2(b)}')
for j in range(4): a(f'v_permlane32_swap_b32 v{Sx+j}, v{Qx+j}')
for p in range(2): a(f'v_pk_add_f32 {v2(Sx+2*p)}, {v2(Sx+2*p)}, {v2(Qx+2*p)}')
for sh in (8, 4, 2, 1):
    for j in range(4): a(f'v_add_f32_dpp v{Sx+j}, v{Sx+j}, v{Sx+j} row_ror:{sh} row_mask:0xf bank_mask:0xf')
a(f'''
s_mov_b32 exec_lo, 0x00010001
s_mov_b32 exec_hi, 0x00010001
ds_write_b128 v{vStW}, {vr(Sx)}
s_mov_b64 exec, -1
s_waitcnt vmcnt(0) lgkmcnt(0)
s_barrier
''')
stamp('bar1', True)
P = T+8
for w in range(5): a(f'ds_read_b128 {vr(P+4*w)}, v{vStR} offset:{64*w}')
for w, cnt in ((1, 3), (2, 2), (3, 1), (4, 0)):
    a(f's_waitcnt lgkmcnt({cnt})')
    for p in range(2): a(f'v_pk_add_f32 {v2(P+2*p)}, {v2(P+2*p)}, {v2(P+4*w+2*p)}')
Q2 = P+4
for j in range(4): a(f'v_mov_b32 v{Q2+j}, v{P+j}')
for j in range(4): a(f'v_permlane32_swap_b32 v{P+j}, v{Q2+j}')
for p in range(2):
    a(f'v_pk_mul_f32 {v2(P+2*p)}, {v2(P+2*p)}, {sInv}')
    a(f'v_pk_mul_f32 {v2(Q2+2*p)}, {v2(Q2+2*p)}, {sInv}')
for p in range(2): a(f'v_pk_fma_f32 {v2(Q2+2*p)}, {v2(P+2*p)}, {v2(P+2*p)}, {v2(Q2+2*p)} neg_lo:[1,0,0] neg_hi:[1,0,0]')
for j in range(4): a(f'v_max_f32 v{Q2+j}, 0, v{Q2+j}')
for p in range(2): a(f'v_pk_add_f32 {v2(Q2+2*p)}, {v2(Q2+2*p)}, {sEps}')
for j in range(4): a(f'v_rsq_f32 v{Q2+j}, v{Q2+j}')
for p in range(2): a(f'v_pk_mul_f32 {v2(P+2*p)}, {v2(P+2*p)}, {v2(Q2+2*p)} neg_lo:[1,0] neg_hi:[1,0]')
N_ = T+16; Bo = T+32
for kl in range(4):
    for p in range(2): a(f'v_pk_fma_f32 {v2(N_+4*kl+2*p)}, {v2(X+4*kl+2*p)}, {v2(Q2+2*p)}, {v2(P+2*p)}')
for kl in range(4):
    for p in range(2): a(f'v_cvt_pk_f16_f32 v{Bo+2*kl+p}, v{N_+4*kl+2*p}, v{N_+4*kl+2*p+1}')
D0, D1, DC = T, T+4, T+8
a(f'''
v_mfma_f32_16x16x32_f16 {vr(D0)}, {vr(S1r)}, {vr(Bo)}, 0
v_mfma_f32_16x16x32_f16 {vr(DC)}, {vr(S1r+4)}, {vr(Bo)}, 0
v_mfma_f32_16x16x32_f16 {vr(D1)}, {vr(S1r)}, {vr(Bo+4)}, 0
v_mfma_f32_16x16x32_f16 {vr(DC)}, {vr(S1r+8)}, {vr(Bo+4)}, {vr(DC)}
s_or_b32 s7, s2, {sW}
s_cmp_lg_u32 s7, 0
s_cbranch_scc1 L_nofix
v_mfma_f32_16x16x32_f16 {vr(T+16)}, {vr(DEL)}, {vr(Bo)}, 0
v_mfma_f32_16x16x32_f16 {vr(T+20)}, {vr(DEL+4)}, {vr(Bo)}, 0
s_mov_b32 exec_lo, 0x00010001
s_mov_b32 exec_hi, 0x00010001
''')
for p in range(2): a(f'v_pk_add_f32 {v2(D0+2*p)}, {v2(D0+2*p)}, {v2(T+16+2*p)}')
for p in range(2): a(f'v_pk_add_f32 {v2(DC+2*p)}, {v2(DC+2*p)}, {v2(T+20+2*p)}')
a('s_mov_b64 exec, -1\nL_nofix:\ns_nop 1')
W_ = T+24
a(f'''
v_cvt_pk_f16_f32 v{W_}, v{D0}, v{D0+1}
v_cvt_pk_f16_f32 v{W_+1}, v{D0+2}, v{D0+3}
ds_write_b32 v{vVAB}, v{W_}
ds_write_b32 v{vVAB}, v{W_+1} offset:3200
v_cvt_pk_f16_f32 v{W_+2}, v{D1}, v{D1+1}
v_cvt_pk_f16_f32 v{W_+3}, v{D1+2}, v{D1+3}
v_cvt_pk_f16_f32 v{W_+4}, v{DC}, v{DC+1}
v_cvt_pk_f16_f32 v{W_+5}, v{DC+2}, v{DC+3}
ds_write_b32 v{vVAB+1}, v{W_+2}
ds_write_b32 v{vVAB+1}, v{W_+3} offset:3200
ds_write_b32 v{vVC}, v{W_+4}
ds_write_b32 v{vVC+1}, v{W_+5}
''')
stamp('s1w', True)
a(f"""
s_cmp_lg_u32 {sLayer}, 0
s_cbranch_scc1 L_nohs
s_cmp_eq_u32 {sW}, 4
s_cbranch_scc1 L_nohs
s_cmp_eq_u32 {sW}, 3
s_cselect_b32 s7, 9216, 0
v_add_u32 v{vZ+1}, s7, v{vZ}
""")
for i in range(2): a(f'ds_read_b128 {vr(B1r+4*i)}, v{vZ} offset:{1024*(T_B1+i)}')
for i in range(6): a(f'ds_read_b128 {vr(TWc+4*i)}, v{vZ} offset:{1024*(T_TW+i)}')
for i in range(9): a(f'ds_read_b128 {vr(A2r+4*i)}, v{vZ+1} offset:{1024*(T_A2+i)}')
a("""
L_nohs:
s_waitcnt lgkmcnt(0)
s_barrier
""")
stamp('bar2', True)
a(f's_cmp_eq_u32 {sW}, 4\ns_cbranch_scc1 L_cphase')
Ad = T; Tr = T+12; Ti = T+24; B2 = T+36; O = T+48
a(f'''
ds_read_b128 {vr(Ad)}, v{vVrd}
ds_read_b128 {vr(Ad+4)}, v{vVrd} offset:1280
ds_read_b128 {vr(Ad+8)}, v{vVrd2}
s_cmp_lg_u32 {sLayer}, 0
s_cbranch_scc1 L_nomode
v_mov_b32 v{O}, {L_MODE}
ds_read_b32 v{O}, v{O}
s_waitcnt lgkmcnt(0)
v_readfirstlane_b32 {sMode}, v{O}
L_nomode:
''')
for blk in range(3):
    a(f's_waitcnt lgkmcnt({2-blk})')
    a(f'v_mfma_f32_16x16x32_f16 {vr(Tr+4*blk)}, {vr(Ad+4*blk)}, {vr(B1r)}, 0')
    a(f'v_mfma_f32_16x16x32_f16 {vr(Ti+4*blk)}, {vr(Ad+4*blk)}, {vr(B1r+4)}, 0')
for ch in range(3):
    Pt = T+60; Qt = T+64
    for p in range(2):
        r_, i_ = Tr+4*ch+2*p, Ti+4*ch+2*p; c_ = TWc+4*ch+2*p
        a(f'v_pk_mul_f32 {v2(Pt+2*p)}, {v2(r_)}, {v2(c_)}')
        a(f'v_pk_mul_f32 {v2(Qt+2*p)}, {v2(i_)}, {v2(c_)}')
    for p in range(2):
        r_, i_ = Tr+4*ch+2*p, Ti+4*ch+2*p; s_2 = TWs+4*ch+2*p
        a(f'v_pk_fma_f32 {v2(Pt+2*p)}, {v2(i_)}, {v2(s_2)}, {v2(Pt+2*p)}')
        a(f'v_pk_fma_f32 {v2(Qt+2*p)}, {v2(r_)}, {v2(s_2)}, {v2(Qt+2*p)} neg_lo:[1,0,0] neg_hi:[1,0,0]')
    for i in range(4): a(f'v_cvt_pk_f16_f32 v{B2+4*ch+i}, v{Pt+i}, v{Qt+i}')
    for blk in range(3):
        c_in = '0' if ch == 0 else vr(O+4*blk)
        a(f'v_mfma_f32_16x16x32_f16 {vr(O+4*blk)}, {vr(A2r+(blk*3+ch)*4)}, {vr(B2+4*ch)}, {c_in}')
Wo = T
for i in range(6): a(f'v_cvt_pk_f16_f32 v{Wo+i}, v{O+2*i}, v{O+2*i+1}')
a(f'''
s_cmp_ge_u32 {sW}, 2
s_cbranch_scc1 L_noslot
v_readlane_b32 s7, v{Wo+4}, 32
v_writelane_b32 v{Wo}, s7, 0
L_noslot:
''')
for i in range(6): a(f'v_and_or_b32 v{Wo+i}, v{Wo+i}, -2, {sTag}')
a(f'''
s_cmp_lg_u32 {sMode}, 0
s_cbranch_scc1 L_st_slow
buffer_store_dwordx4 {vr(Wo)}, v{vL16}, {SWS}, {sH1st} offen
buffer_store_dwordx2 {v2(Wo+4)}, v{vH1s2}, {SWS}, {sH1st} offen
s_branch L_cphase
L_st_slow:
buffer_store_dwordx4 {vr(Wo)}, v{vL16}, {SWS}, {sH1st} offen sc1
buffer_store_dwordx2 {v2(Wo+4)}, v{vH1s2}, {SWS}, {sH1st} offen sc1
L_cphase:
''')
stamp('h1st', True)
Ca = T+8; Dm = T+16; K_ = T+32
a(f's_cmp_lg_u32 {sLayer}, 0\ns_cbranch_scc1 L_nocm')
for i in range(8): a(f'ds_read_b128 {vr(CM+4*i)}, v{vZ} offset:{L_CM-L_TB+1024*i}')
a(f'ds_read_b128 {vr(A3r)}, v{vZ} offset:3072\nL_nocm:')
a(f'''
s_mov_b32 {sSpin}, {SPIN}
s_mov_b32 exec_lo, 0x00ff00ff
s_mov_b32 exec_hi, 0x00ff00ff
L_poll1:
''')
for ch in range(2):
    for u in range(4):
        a(f'buffer_load_dword v{Ca+4*ch+u}, v{vC1ld}, {SWS}, {sH1ld0 if ch == 0 else sH1ld1} offen offset:{1280*u} sc1')
a(f'''
s_sub_u32 {sSpin}, {sSpin}, 1
s_cbranch_scc1 L_poll1_done
s_waitcnt vmcnt(0)
''')
tt = sum((((i >> 2 & 1) ^ (i & 1)) & ((i >> 1 & 1) ^ (i & 1))) << i for i in range(8))
for i in range(4): a(f'v_bitop3_b32 v{K_+i}, v{Ca+2*i}, v{Ca+2*i+1}, {sFlip} bitop3:{tt:#x}')
a(f'''
v_bitop3_b32 v{K_}, v{K_}, v{K_+1}, v{K_+2} bitop3:0x80
v_bitop3_b32 v{K_}, v{K_}, v{K_+3}, 1 bitop3:0x80
v_cmp_eq_u32 vcc, 0, v{K_}
s_cbranch_vccnz L_poll1
L_poll1_done:
s_waitcnt vmcnt(0) lgkmcnt(0)
s_mov_b64 exec, -1
''')
stamp('h1ok', True)
for hi in range(2):
    for ch in range(2):
        for rio in range(2):
            d = Dm + (hi*2+rio)*4
            a(f'v_mfma_f32_16x16x32_f16 {vr(d)}, {vr(Ca+4*ch)}, {vr(CM+((hi*2+rio)*2+ch)*4)}, {"0" if ch == 0 else vr(d)}')
a('s_mov_b32 exec_hi, 0')
for hi in range(2):
    for i in range(4): a(f'v_cvt_pk_f16_f32 v{K_+4*hi+i}, v{Dm+8*hi+i}, v{Dm+8*hi+4+i}')
    for i in range(4): a(f'v_or_b32 v{K_+4*hi+i}, 1, v{K_+4*hi+i}')
    a(f'ds_write_b128 v{vRtW}, {vr(K_+4*hi)} offset:{2560*hi}')
a(f'''
s_mov_b64 exec, -1
s_waitcnt lgkmcnt(0)
s_barrier
ds_read_b128 {vr(T)}, v{vRtR}
s_waitcnt lgkmcnt(0)
buffer_store_dwordx4 {vr(T)}, v{vH2st}, {SWS}, {sH2st} offen sc1
s_mov_b32 {sSpin}, {SPIN}
''')
stamp('h2st', True)
a('s_waitcnt vmcnt(0)')
stamp('h2ack', True)
a('L_poll2:')
Lh = T+4; K2 = T+20
for u in range(4): a(f'buffer_load_dwordx4 {vr(Lh+4*u)}, v{vH2ld}, {SWS}, {sH2ld} offen offset:{1280*u} sc1')
a(f'''
s_sub_u32 {sSpin}, {sSpin}, 1
s_cbranch_scc1 L_poll2_done
s_waitcnt vmcnt(0)
''')
for i in range(5): a(f'v_bitop3_b32 v{K2+i}, v{Lh+3*i}, v{Lh+3*i+1}, v{Lh+3*i+2} bitop3:0x80')
a(f'''
v_bitop3_b32 v{K2}, v{K2}, v{K2+1}, v{K2+2} bitop3:0x80
v_bitop3_b32 v{K2+3}, v{K2+3}, v{K2+4}, v{Lh+15} bitop3:0x80
v_bitop3_b32 v{K2}, v{K2}, v{K2+3}, 1 bitop3:0x80
v_cmp_eq_u32 vcc, 0, v{K2}
s_cbranch_vccnz L_poll2
L_poll2_done:
s_waitcnt vmcnt(0)
''')
stamp('h2ok', True)
for kl in range(1, 4): a(f'v_swap_b32 v{Lh+kl}, v{Lh+4*kl}')
for u in range(4): a(f'v_and_b32 v{Lh+u}, v{vMask0}, v{Lh+u}')
for (u, kl) in ((1, 2), (1, 3), (2, 3)): a(f'v_swap_b32 v{Lh+4*u+kl}, v{Lh+4*kl+u}')
for kl in range(4): a(f'v_mfma_f32_16x16x32_f16 {vr(X+4*kl)}, {vr(A3r)}, {vr(Lh+4*kl)}, {vr(X+4*kl)}')
a(f'''
s_add_u32 {sLayer}, {sLayer}, 1
s_add_u32 {sH2st}, {sH2st}, {BUF}
s_add_u32 {sH2ld}, {sH2ld}, {BUF}
s_xor_b32 {sH1st}, {sH1st}, {H1STR}
s_xor_b32 {sH1ld0}, {sH1ld0}, {H1STR}
s_xor_b32 {sH1ld1}, {sH1ld1}, {H1STR}
s_cmp_ge_u32 {sLayer}, 2
s_cselect_b32 {sTag}, 0, 1
s_cselect_b32 {sFlip}, -1, 0
s_cmp_lt_u32 {sLayer}, {NLAYER}
s_cbranch_scc1 L_loop
''')
F = T
for kl in range(4):
    for p in range(2): a(f'v_cvt_pk_bf16_f32 v{F+2*kl+p}, v{X+4*kl+2*p}, v{X+4*kl+2*p+1}')
for kl in range(4):
    for p in range(2):
        a(f'ds_write_b16 v{vXT+kl}, v{F+2*kl+p} offset:{2560*p}')
        a(f'ds_write_b16_d16_hi v{vXT+kl}, v{F+2*kl+p} offset:{2560*p+1280}')
OUTF = ' ' + opts.get('outf', '').replace('+', ' ') if opts.get('outf') else ''
a(f'''
s_waitcnt lgkmcnt(0)
s_barrier
ds_read_b128 {vr(T+8)}, v{vRtR} offset:{L_XT-L_RT}
ds_read_b128 {vr(T+12)}, v{vRtR} offset:{L_XT-L_RT+5120}
s_waitcnt lgkmcnt(1)
buffer_store_dwordx4 {vr(T+8)}, v{vGa}, {SO}, 0 offen{OUTF}
s_waitcnt lgkmcnt(0)
buffer_store_dwordx4 {vr(T+12)}, v{vGb}, {SO}, 0 offen{OUTF}
''')
def stamp_dump(hk):
    if hk: a(f's_memtime s[{60+2*nst.index("end")}:{61+2*nst.index("end")}]\ns_memrealtime s[{60+2*nst.index("rend")}:{61+2*nst.index("rend")}]\ns_waitcnt lgkmcnt(0)')
    a(f's_lshl_b32 s7, s2, 7\ns_add_u32 s7, s7, {STAMP_OFF}\nv_mov_b32 v1, 0\ns_mov_b64 exec, 1')
    for i in range(len(nst)): a(f'v_mov_b32 v2, s{60+2*i}\nbuffer_store_dword v2, v1, {SWS}, s7 offen offset:{4*i}')
if STAMPS:
    a('s_waitcnt vmcnt(0)'); stamp('end'); stamp('rend', real=True)
    a(f's_waitcnt lgkmcnt(0)\ns_cmp_lg_u32 {sW}, {opt("swave")}\ns_cbranch_scc1 L_end')
    stamp_dump(False)
a('L_end:\ns_endpgm')
def fhash(dst, src):
    a(f'v_mul_lo_u32 v{dst}, v{src}, s50\nv_add_u32 v{dst}, s51, v{dst}')
def hs_group(lbl, x3):
    a(f"""
s_mov_b32 exec_hi, 0
s_lshl_b32 s7, {sSig}, 12
s_add_u32 s7, s7, {FLAGS}
s_mov_b32 {sSpin}, {SPIN}
{lbl}:
buffer_load_dwordx3 v[{T}:{T+2}], v{T+4}, {SWS}, s7 offen sc1
s_sub_u32 {sSpin}, {sSpin}, 1
s_cbranch_scc1 {lbl}_done
s_waitcnt vmcnt(0)
""")
    fhash(T, T)
    a(f"""
v_xor_b32 v{T}, v{T}, v{T+(2 if x3 else 1)}
v_cmp_lt_u32 vcc, 15, v{T}
s_cbranch_vccnz {lbl}
{lbl}_done:
s_waitcnt vmcnt(0)
v_and_b32 v{T+1}, 15, v{T+1}
v_cmp_ne_u32 vcc, s6, v{T+1}
s_mov_b64 exec, -1
""")
def hs_all(lbl):
    a(f's_mov_b32 {sSpin}, {SPIN}\n{lbl}:')
    for i, r in enumerate(('s92', 's93', 's95', 's96')): a(f'buffer_load_dwordx2 {v2(T+8+2*i)}, v{T+4}, {SWS}, {r} offen sc1')
    a(f's_sub_u32 {sSpin}, {sSpin}, 1\ns_cbranch_scc1 {lbl}_done\ns_waitcnt vmcnt(0)')
    for i in range(4): fhash(T+8+2*i, T+8+2*i)
    for i in range(4): a(f'v_xor_b32 v{T+8+2*i}, v{T+8+2*i}, v{T+9+2*i}')
    a(f"""
v_or3_b32 v{T}, v{T+8}, v{T+10}, v{T+12}
v_or_b32 v{T}, v{T}, v{T+14}
v_cmp_lt_u32 vcc, 15, v{T}
s_cbranch_vccnz {lbl}
{lbl}_done:
s_waitcnt vmcnt(0)
""")
def flag_store(v, soff, off):
    a(f"""
s_mov_b64 exec, 1
s_waitcnt vmcnt(0)
buffer_store_dword v{v}, off, {SWS}, {soff} offset:{off} sc1
s_mov_b64 exec, -1
""")
def hstamp(n):
    if opt('hstamp'): a(f's_memtime s[{60+2*nst.index(n)}:{61+2*nst.index(n)}]')
a('L_hk:')
if opt('pref'):
    a(f"""
s_getpc_b64 s[24:25]
L_pc2:
s_add_u32 s50, s24, tbl@rel32@lo+4
s_addc_u32 s51, s25, tbl@rel32@hi+12
s_sub_u32 s24, s24, L_pc2-{KNAME}
s_subb_u32 s25, s25, 0
v_lshlrev_b32 v{T+4}, 3, v{vL16}
s_lshl_b32 s7, {sM}, 8
s_min_u32 s7, s7, L_codeend-{KNAME}-136
v_add_u32 v{T+5}, s7, v{T+4}
s_lshl_b32 s7, {sM}, 10
v_add_u32 v{T+6}, s7, v{T+4}
s_mov_b64 exec, 3
global_load_dword v{T+7}, v{T+5}, s[24:25]
s_mov_b64 exec, 0xff
global_load_dword v{T+8}, v{T+6}, s[50:51]
s_mov_b64 exec, -1
""")
for i in range(4): a(f'v_mov_b32 v{vZ+i}, 0')
a(f"""
s_lshl_b32 {sGi}, {sSig}, 5
s_add_u32 {sGi}, {sGi}, {sM}
s_lshl_b32 s97, {sGi}, 7
s_add_u32 s97, s97, {FLAGS}
s_add_u32 s99, s97, 0x8000
s_mul_i32 s94, {sGi}, 5120
s_add_u32 s94, s94, {H1BASE}
s_add_u32 s98, s94, {H1STR}
s_mul_i32 {sCl}, s2, 5120
s_add_u32 {sCl}, {sCl}, {H2BASE}
s_waitcnt lgkmcnt(0)
buffer_load_dword v{T+16}, off, {SWS}, s97
buffer_load_dword v{T+17}, off, {SWS}, s99
""")
if opt('touch'):
    a(f"""
s_mov_b32 s14, 2621440
s_mov_b32 s15, 0x20000
v_lshlrev_b32 v{T+18}, 17, v{vL16}
s_lshl_b32 s7, s2, 7
s_mov_b64 exec, 3
buffer_load_dword v{T+19}, v{T+18}, {SO}, s7 offen
s_mov_b64 exec, 31
buffer_load_dword v{T+20}, v{T+18}, {SWS}, s7 offen
s_mov_b64 exec, -1
""")
clean5('s94', ''); clean5('s98', '')
a(f"""
s_getreg_b32 s6, hwreg(HW_REG_XCC_ID, 0, 4)
v_lshlrev_b32 v{T+4}, 3, v{vL16}
s_mov_b32 s92, {FLAGS+0x8000}
s_mov_b32 s93, {FLAGS+0xa000}
s_mov_b32 s95, {FLAGS+0xc000}
s_mov_b32 s96, {FLAGS+0xe000}
s_mov_b32 s50, 0x9e3779b1
s_mov_b32 s51, 0x7f4a7c15
""")
hstamp('top')
if opt('hk2'): a('s_barrier')
a(f's_waitcnt vmcnt({12 if opt("touch") else 10})')
fhash(T+5, T+16); fhash(T+6, T+17)
a(f'v_and_or_b32 v{T+5}, v{T+5}, -16, s6')
hstamp('bar1')
flag_store(T+5, 's97', 4)
hstamp('s1w')
clean5(sCl)
a(f's_add_u32 {sCl}, {sCl}, {BUF}')
clean5(sCl)
a(f's_add_u32 {sCl}, {sCl}, {BUF}\ns_barrier')
if not opt('hk2'):
    flag_store(T+6, 's99', 4)
    hstamp('bar2')
    a('s_barrier')
else: hstamp('bar2')
hs_group('L_hs', False)
if opt('hk2'):
    a('s_mov_b64 s[52:53], vcc')
    flag_store(T+6, 's99', 4)
    a('s_mov_b64 vcc, s[52:53]')
hstamp('h1st')
a(f"""
s_cmp_lg_u32 vcc_lo, 0
s_cselect_b32 {sMode}, 1, {FORCE_SLOW}
v_mov_b32 v{T}, {sMode}
v_mov_b32 v{T+1}, {L_MODE}
ds_write_b32 v{T+1}, v{T}
s_cmp_eq_u32 {sMode}, 0
s_cbranch_scc1 L_hk_go
""")
clean5('s94'); clean5('s98')
flag_store(T+5, 's97', 8)
hs_group('L_hsb', True)
a(f"""
L_hk_go:
s_waitcnt lgkmcnt(0)
s_barrier
""")
hs_all('L_hs2')
hstamp('h1ok')
a('s_barrier\ns_barrier')
clean5(sCl)
a(f's_add_u32 {sCl}, {sCl}, {BUF}')
clean5(sCl)
a('s_waitcnt vmcnt(5)')
hstamp('h2st')
a('s_barrier\ns_waitcnt vmcnt(0)\ns_barrier\ns_barrier')
a(f"""
v_add_u32 v{T+16}, 1, v{T+16}
v_add_u32 v{T+17}, 1, v{T+17}
s_mov_b64 exec, 1
buffer_store_dword v{T+16}, off, {SWS}, s97
buffer_store_dword v{T+17}, off, {SWS}, s99
""")
if opt('hstamp'):
    stamp_dump(True)
a('s_endpgm\nL_codeend:')

hdr = open('interleave_layers__spectral_fnet__spectral_fnet__prompt.s.ref').read().split('; Override')[0]
out = hdr + ('; STAMPS ' + ' '.join(nst) + '\n' if STAMPS else '') + f'; @launch grid=(256,1,1) block=(384,1,1) lds={LDS_BYTES}\n'
out += f'.amdgcn_target "amdgcn-amd-amdhsa--gfx950"\n.text\n.globl {KNAME}\n.p2align 8\n.type {KNAME},@function\n{KNAME}:\n'
out += a.text()
out += f'''.section .rodata,"a"
.p2align 6
.amdhsa_kernel {KNAME}
  .amdhsa_next_free_vgpr 240
  .amdhsa_next_free_sgpr 102
  .amdhsa_accum_offset 240
  .amdhsa_group_segment_fixed_size 0
  .amdhsa_kernarg_size 104
  .amdhsa_user_sgpr_count 2
  .amdhsa_user_sgpr_kernarg_segment_ptr 1
  .amdhsa_system_sgpr_workgroup_id_x 1
.end_amdhsa_kernel
.p2align 10
tbl:
'''
for f in blocks:
    for i in range(0, 256, 8): out += '.long ' + ','.join(f'{int(x):#x}' for x in f[i:i+8]) + '\n'
open(sys.argv[1], 'w').write(out)
print('instrs', len(a.ins), 'nops inserted', a.nops, 'table blocks', len(blocks), 'bytes', len(out))
```

```python
import sys, struct
import numpy as np
from design import *
from asmlib import Asm

KNAME = "interleave_layers__spectral_fnet__spectral_fnet__prompt_kernel"
opts = dict(a.split('=') for a in sys.argv[2:] if '=' in a)
def opt(k, d=0): return int(opts.get(k, d))
STAMPS = opt('stamps'); FORCE_SLOW = opt('slow'); NLAYER = opt('layers', 4); SPIN = opt('spin', 200000); SLAYER = opt('slayer')

def f2u(f): return struct.unpack('<I', struct.pack('<f', f))[0]
BUF = 1310720
FLAGS = 4096; H1BASE = 0x40000; H1STR = 0x200000; H2BASE = 0x400000; WS_BYTES = H2BASE + 4*BUF
STAMP_OFF = WS_BYTES
if STAMPS or opts.get('rp'): WS_BYTES += 256*128
L_V = 0; L_ST = 9600; L_MODE = 9920; L_RT = 9984; L_XT = 15360; L_TB = 25600; L_CM = L_TB + 30*1024; LDS_BYTES = L_CM + 8192
def vaddr(col): return (col % 40)*80 + (col//40)*4
def opA(M):
    h = M.astype(np.float16).view(np.uint16).astype(np.uint32)
    out = np.zeros((64, 4), np.uint32)
    for l in range(64):
        r = h[l % 16, 8*(l//16):8*(l//16)+8]
        out[l] = r[0::2] | (r[1::2] << 16)
    return out
def opB(N): return opA(N.T)
blocks = []
def add(b): blocks.append(np.asarray(b, np.uint32).reshape(256)); return len(blocks)-1
n_ = S1_mats(False); s_ = S1_mats(True)
def a3_idx(sig, m):
    g = unit_g(sig, m)
    if g == 0: return 9
    if g == 128: return 8
    return (g >> 7) + (0 if g % 4 == 1 else 4)
a3 = {}
for sig in range(8):
    for m in range(32):
        M = A3(sig, m)*HSCALE; i = a3_idx(sig, m)
        if i in a3: assert np.allclose(a3[i], M), (sig, m)
        a3[i] = M
T_S1N = add(opA(n_[0])); add(opA(n_[1])); add(opA(n_[2]))
add(opA(a3[0]))
Bre, Bim = B1_mats(); T_B1 = add(opB(Bre)); add(opB(Bim))
tc, ts = twiddles()
T_TW = len(blocks)
for arr in (tc, ts):
    for blk in range(3): add(arr[blk].astype(np.float32).view(np.uint32))
T_A2 = len(blocks)
for r0 in (0, 20):
    M = A2_mats(r0)/HSCALE
    for blk in range(3):
        for ch in range(3): add(opA(M[blk, ch]))
assert len(blocks) == 30
T_S1S = add(opA(s_[0])); add(opA(s_[1])); add(opA(s_[2])); T_DEL = add(opA(s_[3])); add(opA(s_[4]))
T_A3 = len(blocks)
for i in range(10): add(opA(a3[i]))
T_ADDR = len(blocks)
at = np.zeros((2, 320, 2), np.uint32)
for ty, (sig, m) in enumerate(((2, 1), (1, 0))):
    for tid in range(320):
        w, l = divmod(tid, 64); n, mq = l % 16, l//16
        v = [L_V + vaddr(acol(sig, m, mq//2, 64*w+4*n+2*bop+(mq % 2))) for bop in range(2)]
        v += [L_V + 6400 + vaddr(acol(sig, m, mq % 2, 64*w+4*n+2*(mq//2)+sub)) for sub in range(2)]
        at[ty, tid] = [v[0] | (v[1] << 16), v[2] | (v[3] << 16)]
for i in range(5): add(at.reshape(-1)[256*i:256*i+256])

vL16, vH1s2, vH2ld, vC1ld, vRtW, vRtR, vH2st, vStR, vStW = 1, 2, 3, 4, 5, 6, 7, 8, 9
vVAB, vVC, vVrd, vVrd2 = 10, 12, 14, 15
X = 16; A3r = 32; S1r = 36; B1r = 48; TWc = 56; TWs = 68; A2r = 80; CM = 116; DEL = 148
vXT = 156; vMask0 = 160; vGa = 161; vGb = 162; vT16 = 163; vZ = 164
T = 168
def vr(b, n=4): return f'v[{b}:{b+n-1}]'
def v2(b): return f'v[{b}:{b+1}]'
sW, sSig, sM, sG, sType, sSpec, sLayer, sMode = 's3', 's4', 's5', 's26', 's27', 's28', 's29', 's30'
sH1st, sH1ld0, sH1ld1, sH2st, sH2ld, sTag, sFlip, sSpin = 's31', 's32', 's33', 's34', 's35', 's36', 's37', 's38'
sFlag, sCl, sEpoch, sGi = 's39', 's44', 's45', 's46'
sInv, sEps = 's[40:41]', 's[42:43]'
SX, SO, SWS, STB = 's[8:11]', 's[12:15]', 's[16:19]', 's[24:25]'
a = Asm()
nst = []
SST = opt('sstart')
def sst(name):
    if SST or RP: stamp(name)
RP = opts.get('rp'); RPL = opt('rpl')
def stamp(name, inloop=False, real=False):
    if RP:
        if name == 'start': a('s_memrealtime s[60:61]')
        if name == RP:
            if inloop: a(f's_cmp_lg_u32 {sLayer}, {RPL}\ns_cbranch_scc1 L_rpk\ns_memrealtime s[62:63]\nL_rpk:')
            else: a('s_memrealtime s[62:63]')
        return
    if SST and inloop and name not in ('top', 'bar1'): return
    if STAMPS:
        i = len(nst); nst.append(name)
        assert i < 16
        ins = f's_{"memrealtime" if real else "memtime"} s[{60+2*i}:{61+2*i}]'
        if inloop: a(f's_cmp_lg_u32 {sLayer}, {SLAYER}\ns_cbranch_scc1 L_stk{i}\n{ins}\nL_stk{i}:')
        else: a(ins)
def clean5(soff, fl=' sc1'):
    for i in range(4): a(f'buffer_store_dwordx4 {vr(vZ)}, v{vL16}, {SWS}, {soff} offen offset:{1024*i}{fl}')
    a(f's_add_u32 s7, {soff}, 4096\nbuffer_store_dwordx4 {vr(vZ)}, v{vL16}, {SWS}, s7 offen{fl}')

stamp('start'); stamp('rstart', real=True)
n_v, kq_v = T+10, T+11
HW = 5
a(f"""
s_load_dwordx2 s[16:17], s[0:1], 96
s_load_dwordx2 s[8:9], s[0:1], 0
s_load_dwordx2 s[12:13], s[0:1], 80
v_lshrrev_b32 v{T+1}, 6, v0
s_cmp_ge_u32 s2, 256
s_cbranch_scc1 L_end
v_readfirstlane_b32 {sW}, v{T+1}
v_and_b32 v{T}, 63, v0
s_and_b32 {sSig}, s2, 7
s_lshr_b32 {sM}, s2, 3
v_lshlrev_b32 v{vL16}, 4, v{T}
s_mov_b32 s18, {WS_BYTES}
s_mov_b32 s19, 0x20000
s_cmp_eq_u32 {sW}, {HW}
s_cbranch_scc1 L_hk
s_getpc_b64 s[24:25]
s_add_u32 s24, s24, tbl@rel32@lo+4
s_addc_u32 s25, s25, tbl@rel32@hi+12
s_lshl_b32 s6, {sSig}, 2
s_lshr_b32 s6, 0x9654d210, s6
s_and_b32 s6, s6, 15
s_lshl_b32 {sG}, {sM}, 4
s_add_u32 {sG}, {sG}, s6
s_cmp_eq_u32 {sSig}, 0
s_cselect_b32 s7, 248, 0
s_cmp_ge_u32 {sM}, 16
s_cselect_b32 s7, s7, 0
s_sub_u32 {sG}, {sG}, s7
s_and_b32 {sType}, {sG}, 1
""")
DMA = f"""
s_lshr_b32 s7, {sG}, 7
s_lshl_b32 s94, {sType}, 2
s_sub_u32 s7, s7, s94
s_add_u32 s7, s7, {4 + T_A3 - 3}
s_cmp_eq_u32 {sG}, 128
s_cselect_b32 s7, {8 + T_A3 - 3}, s7
s_cmp_eq_u32 {sG}, 0
s_cselect_b32 s7, {9 + T_A3 - 3}, s7
s_cselect_b32 s94, {T_S1S*1024}, 0
s_lshl_b32 s7, s7, 10
s_mul_i32 s95, {sW}, 6144
s_cmp_eq_u32 {sW}, 0
s_cselect_b32 s94, s94, s95
s_cselect_b32 s7, s7, s95
s_add_u32 m0, s95, {L_TB}
v_add_u32 v{T+2}, s94, v{vL16}
v_add_u32 v{T+3}, s7, v{vL16}
s_add_u32 s95, s95, 4096
v_add_u32 v{T+8}, s95, v{vL16}
global_load_lds_dwordx4 v{T+2}, {STB}
global_load_lds_dwordx4 v{T+2}, {STB} offset:1024
global_load_lds_dwordx4 v{T+2}, {STB} offset:2048
global_load_lds_dwordx4 v{T+3}, {STB} offset:3072
s_add_u32 m0, s95, {L_TB}
s_mul_i32 s7, {sType}, 2560
s_add_u32 s7, s7, {T_ADDR*1024}
global_load_lds_dwordx4 v{T+8}, {STB}
global_load_lds_dwordx4 v{T+8}, {STB} offset:1024
v_lshl_add_u32 v{T+2}, v0, 3, s7
global_load_dwordx2 {v2(vVAB)}, v{T+2}, {STB}
"""
if not opt("latedma"): a(DMA)
if opt('latedma') == 3:
    lines = DMA.strip().split('\n')
    early = [];
    k = [i for i, l in enumerate(lines) if l.startswith('global_load_lds')]
    early = lines[:k[0]] + [f's_cmp_lg_u32 {sW}, 0', 's_cbranch_scc1 L_nodma0'] + lines[k[0]:k[3]+1] + ['L_nodma0:'] + [l for l in lines[k[3]+1:] if not l.startswith('global_load_lds') and 'm0' not in l]
    a('\n'.join(early))
a(f"""
s_sub_u32 s92, 0, {sG}
s_and_b32 s92, s92, 511
s_cmp_eq_u32 {sG}, 0
s_cselect_b32 s92, 256, s92
s_mul_i32 s92, s92, 1280
s_mul_i32 s93, {sG}, 1280
v_mul_u32_u24 v{T+12}, 205, v0
v_lshlrev_b32 v{vT16}, 4, v0
v_lshrrev_b32 v{T+12}, 14, v{T+12}
v_mul_u32_u24 v{T+14}, 0x9fb00, v{T+12}
s_lshl_b32 s7, {sW}, 10
s_add_u32 m0, s7, {L_XT}
v_add3_u32 v{vGa}, v{T+14}, v{vT16}, s93
v_add3_u32 v{vGb}, v{T+14}, v{vT16}, s92
s_mov_b32 s10, 2621440
s_mov_b32 s11, 0x20000
""")
sst('prek')
a(f"""
s_waitcnt lgkmcnt(0)
buffer_load_dwordx4 v{vGa}, {SX}, 0 offen lds
s_add_u32 m0, s7, {L_XT+5120}
s_or_b32 s7, s2, {sW}
buffer_load_dwordx4 v{vGb}, {SX}, 0 offen lds
""")
sst('xiss')
a(f"""
s_cmp_lg_u32 s7, 0
s_cbranch_scc1 L_nodel
v_add_u32 v{T+2}, {T_DEL*1024}, v{vL16}
global_load_dwordx4 {vr(DEL)}, v{T+2}, {STB}
global_load_dwordx4 {vr(DEL+4)}, v{T+2}, {STB} offset:1024
L_nodel:
v_and_b32 v{n_v}, 15, v0
v_bfe_u32 v{kq_v}, v0, 4, 2
v_lshlrev_b32 v{T+12}, 1, v{n_v}
v_lshrrev_b32 v{T+13}, 3, v{n_v}
v_and_b32 v{T+12}, 15, v{T+12}
s_cmp_eq_u32 {sW}, 4
s_cselect_b64 vcc, -1, 0
v_lshl_add_u32 v{T+12}, v{T+13}, 5, v{T+12}
s_cselect_b32 s93, 1, 128
s_cselect_b32 s92, 8, {sW}
s_lshl_b32 s92, s92, 5
v_cndmask_b32 v{T+12}, v{n_v}, v{T+12}, vcc
s_mul_i32 s94, {sType}, 320
v_lshrrev_b32 v{T+13}, 1, v{kq_v}
v_mul_u32_u24 v{T+14}, s94, v{T+13}
s_xor_b32 s94, {sType}, 1
v_and_b32 v{T+13}, s94, v{T+13}
v_add3_u32 v{T+12}, v{T+12}, v{T+14}, s92
v_xor_b32 v{T+13}, v{T+13}, v{kq_v}
v_add_u32 v{T+14}, 16, v{T+12}
v_and_b32 v{T+13}, 1, v{T+13}
v_add_u32 v{T+15}, s93, v{T+12}
v_cmp_eq_u32 vcc, 1, v{T+13}
v_add_u32 v{T+16}, s93, v{T+14}
s_mul_i32 s94, s94, 320
""")
ecol = [T+12, T+14, T+15, T+16]
for kl in range(4): a(f'v_sub_u32 v{T+17+kl}, 640, v{ecol[kl]}')
for kl in range(4): a(f'v_cndmask_b32 v{vXT+kl}, v{ecol[kl]}, v{T+17+kl}, vcc')
a(f"""
v_cmp_gt_u32 vcc, 2, v{kq_v}
v_mov_b32 v{T+17}, s94
v_and_b32 v{T+13}, 1, v{kq_v}
v_cndmask_b32 v{T+17}, 0, v{T+17}, vcc
v_cmp_eq_u32 vcc, 0, v{T+12}
v_mul_u32_u24 v{T+13}, 0x1400, v{T+13}
v_add_u32 v{T+13}, {L_XT}, v{T+13}
v_cndmask_b32 v{vXT}, v{vXT}, v{T+17}, vcc
v_cmp_ne_u32 vcc, 0, v{vXT}
""")
for kl in range(4): a(f'v_lshl_add_u32 v{vXT+kl}, v{vXT+kl}, 1, v{T+13}')
a(f'v_cndmask_b32 v{vMask0}, 0, -1, vcc')
for i in range(16): a(f'v_mov_b32 v{X+i}, 0')
if opt('latedma') == 1: a(DMA)
sst('dma')
a(f"""
s_lshr_b32 s95, {sM}, 3
s_cmp_eq_u32 {sW}, 4
s_cbranch_scc1 L_cm_done
s_lshl_b32 s7, s95, 2
s_lshr_b32 s7, 0x1120, s7
s_and_b32 s7, s7, 3
s_add_u32 s96, s6, 256
s_cmp_eq_u32 {sSig}, 0
s_cselect_b32 s96, 8, s96
s_lshl_b32 s94, {sW}, 4
s_add_u32 s6, s6, s94
s_add_u32 s96, s96, s94
v_lshl_add_u32 v{T+13}, v{n_v}, 2, s7
v_lshl_add_u32 v{T+14}, v{kq_v}, 6, s6
v_lshl_add_u32 v{T+15}, v{kq_v}, 6, s96
v_add_u32 v{T+12}, 64, v{T+13}
s_mov_b32 s94, {f2u(1/2048):#x}
s_lshl_b32 s7, {sW}, 2
s_add_u32 s7, s7, {L_CM}
v_add_u32 v{T+2}, s7, v{vL16}
""")
G = T+24
for hi in range(2):
    for ch in range(2):
        i = G + 2*(2*hi+ch)
        a(f'v_mul_u32_u24 v{i}, v{T+13-hi}, v{T+14+ch}')
for k in range(4): a(f'v_and_b32 v{G+2*k}, 0x7ff, v{G+2*k}')
for k in range(4): a(f'v_cvt_f32_u32 v{G+2*k}, v{G+2*k}')
for k in range(4): a(f'v_mul_f32 v{G+2*k}, s94, v{G+2*k}')
for k in range(4): a(f'v_sin_f32 v{G+2*k+1}, v{G+2*k}\nv_cos_f32 v{G+2*k}, v{G+2*k}')
for k in range(4): a(f'v_cvt_pk_f16_f32 v{G+8+2*k}, v{G+2*k}, v{G+2*k+1}\nv_cvt_pk_f16_f32 v{G+9+2*k}, -v{G+2*k+1}, v{G+2*k}')
a(f's_cmp_lg_u32 {sSig}, 0\ns_cbranch_scc1 L_cm_wr')
for hi in range(2):
    b = G+8+4*hi
    a(f'v_mov_b32 v{b+1}, 0\nv_mov_b32 v{b+3}, v{b+2}\nv_mov_b32 v{b+2}, 0')
a(f"""
v_and_b32 v{T+17}, 1, v0
v_lshlrev_b32 v{T+17}, 4, v{T+17}
v_mov_b32 v{T+18}, 0x3c00
v_lshlrev_b32 v{T+17}, v{T+17}, v{T+18}
v_cmp_gt_u32 vcc, 16, v0
v_cndmask_b32 v{G+8}, v{G+8}, v{T+17}, vcc
v_cndmask_b32 v{G+12}, v{G+12}, v{T+17}, vcc
L_cm_wr:
""")
for hi in range(2):
    for ch in range(2):
        for rio in range(2):
            a(f'ds_write_b32 v{T+2}, v{G+8+2*(2*hi+ch)+rio} offset:{((hi*2+rio)*2+ch)*1024}')
a('L_cm_done:')
if opt('latedma') == 2: a(DMA.replace('s95', 's98'))
sst('cm')
a(f"""
v_lshlrev_b32 v{vStR}, 4, v{kq_v}
s_lshl_b32 s7, {sW}, 6
s_add_u32 s7, s7, {L_ST}
v_add_u32 v{vStW}, s7, v{vStR}
s_mov_b32 s40, {f2u(1/640):#x}
s_mov_b32 s41, s40
s_mov_b32 s42, {f2u(1e-5):#x}
s_mov_b32 s43, s42
s_mov_b32 {sLayer}, 0
s_mov_b32 {sTag}, 1
s_mov_b32 {sFlip}, 0
v_mul_u32_u24 v{T+12}, 205, v0
v_lshrrev_b32 v{T+13}, 11, v{T+12}
v_mul_u32_u24 v{T+14}, 10080, v{T+13}
v_add_u32 v{vH2st}, v{T+14}, v{vT16}
s_and_b32 s93, {sM}, 7
s_mul_i32 s93, s93, 160
s_lshl_b32 s94, {sSig}, 7
s_add_u32 s92, s94, {sM}
s_mul_i32 s92, s92, 1280
s_mul_i32 {sH1st}, {sW}, 40960
s_add_u32 {sH1st}, {sH1st}, s92
s_add_u32 {sH1st}, {sH1st}, {H1BASE}
s_lshl_b32 s96, s95, 5
s_add_u32 s96, s96, s94
s_mul_i32 {sH1ld0}, s96, 1280
s_add_u32 {sH1ld0}, {sH1ld0}, s93
s_lshl_b32 s96, {sW}, 5
s_add_u32 s96, s96, {H1BASE}
s_add_u32 {sH1ld0}, {sH1ld0}, s96
s_add_u32 {sH1ld1}, {sH1ld0}, 20480
s_lshl_b32 s96, s95, 8
s_add_u32 s96, s96, {sSig}
s_mul_i32 {sH2st}, s96, 1280
s_add_u32 {sH2st}, {sH2st}, s93
s_add_u32 {sH2st}, {sH2st}, {H2BASE}
s_mov_b32 {sH2ld}, {H2BASE}
v_add_u32 v{vRtR}, {L_RT}, v{vT16}
v_lshrrev_b32 v{vH1s2}, 1, v{vL16}
v_add_u32 v{vH1s2}, 1024, v{vH1s2}
v_cmp_le_u32 vcc, 512, v{vL16}
v_mov_b32 v{T+13}, 0x40000000
v_cndmask_b32 v{vH1s2}, v{vH1s2}, v{T+13}, vcc
s_movk_i32 s7, 5120
v_lshlrev_b32 v{T+13}, 2, v{n_v}
v_mad_u32_u24 v{vC1ld}, v{kq_v}, s7, v{T+13}
s_lshl_b32 s7, {sW}, 5
s_add_u32 s7, s7, {L_RT}
v_mul_u32_u24 v{vRtW}, 160, v{n_v}
v_add3_u32 v{vRtW}, v{vRtW}, v{vStR}, s7
s_cmp_lt_u32 {sW}, 2
s_cselect_b32 s7, 3200, 0
s_lshl_b32 s7, s7, {sW}
v_mul_u32_u24 v{vVrd}, 80, v{n_v}
v_add3_u32 v{vVrd}, v{vVrd}, v{vStR}, s7
v_and_b32 v{vVrd2}, 7, v0
v_mul_u32_u24 v{vVrd2}, 80, v{vVrd2}
s_add_u32 s7, s7, 2560
v_add3_u32 v{vVrd2}, v{vVrd2}, v{vStR}, s7
v_add_u32 v{vStR}, {L_ST}, v{vStR}
s_and_b32 s7, {sG}, 127
s_lshr_b32 s7, s7, 2
s_sub_u32 s94, 0, {sG}
s_and_b32 s94, s94, 127
s_lshr_b32 s94, s94, 2
s_bfe_u32 s95, {sG}, 0x10001
s_cmp_eq_u32 {sType}, 1
s_cselect_b32 s94, s7, s94
s_cselect_b32 s96, 2, s95
s_cselect_b32 s95, 3, s95
s_lshl_b32 s96, s96, 5
s_lshl_b32 s95, s95, 5
s_add_u32 s7, s7, s96
s_add_u32 s94, s94, s95
s_mul_i32 s7, s7, 10240
s_mul_i32 s94, s94, 10240
s_lshl_b32 s95, {sW}, 8
s_add_u32 s7, s7, s95
s_add_u32 s94, s94, s95
v_mov_b32 v{vH2ld}, s7
v_mov_b32 v{T+13}, s94
v_cmp_le_u32 vcc, 2, v{kq_v}
v_and_b32 v{T+14}, 1, v{kq_v}
v_cndmask_b32 v{vH2ld}, v{vH2ld}, v{T+13}, vcc
v_mul_u32_u24 v{T+14}, 0x1400, v{T+14}
v_lshlrev_b32 v{T+13}, 4, v{n_v}
v_add3_u32 v{vH2ld}, v{vH2ld}, v{T+13}, v{T+14}
s_mov_b32 s14, 2621440
s_mov_b32 s15, 0x20000
v_add_u32 v{vZ}, {L_TB}, v{vL16}
""")
sst('prex')
a('s_waitcnt vmcnt(0) lgkmcnt(0)\ns_barrier')
sst('bar0')
for kl in range(4):
    for j in range(4): a(f'ds_read_u16_d16_hi v{X+4*kl+j}, v{vXT+kl} offset:{1280*j}')
for i in range(3): a(f'ds_read_b128 {vr(S1r+4*i)}, v{vZ} offset:{1024*i}')
if opt('latedma') == 3:
    a(f'''s_mul_i32 s95, {sW}, 6144
v_add_u32 v{T+2}, s95, v{vL16}
s_add_u32 m0, s95, {L_TB}
s_add_u32 s95, s95, 4096
v_add_u32 v{T+3}, s95, v{vL16}
s_cmp_eq_u32 {sW}, 0
s_cbranch_scc1 L_nodma1
global_load_lds_dwordx4 v{T+2}, {STB}
global_load_lds_dwordx4 v{T+2}, {STB} offset:1024
global_load_lds_dwordx4 v{T+2}, {STB} offset:2048
global_load_lds_dwordx4 v{T+2}, {STB} offset:3072
L_nodma1:
s_add_u32 m0, s95, {L_TB}
s_nop 0
global_load_lds_dwordx4 v{T+3}, {STB}
global_load_lds_dwordx4 v{T+3}, {STB} offset:1024''')
a(f'''v_and_b32 v{vVC}, 0xffff, v{vVAB+1}
v_lshrrev_b32 v{vVC+1}, 16, v{vVAB+1}
v_lshrrev_b32 v{vVAB+1}, 16, v{vVAB}
v_and_b32 v{vVAB}, 0xffff, v{vVAB}
s_waitcnt lgkmcnt(3)''')
Sx, Qx = T, T+4
a('L_loop:')
stamp('top', True)
for p in range(2):
    a(f'v_pk_add_f32 {v2(Sx+2*p)}, {v2(X+2*p)}, {v2(X+4+2*p)}')
    a(f'v_pk_mul_f32 {v2(Qx+2*p)}, {v2(X+2*p)}, {v2(X+2*p)}')
for kl in range(1, 4):
    for p in range(2):
        b = X+4*kl+2*p
        a(f'v_pk_fma_f32 {v2(Qx+2*p)}, {v2(b)}, {v2(b)}, {v2(Qx+2*p)}')
        if kl > 1: a(f'v_pk_add_f32 {v2(Sx+2*p)}, {v2(Sx+2*p)}, {v2(b)}')
for j in range(4): a(f'v_permlane32_swap_b32 v{Sx+j}, v{Qx+j}')
for p in range(2): a(f'v_pk_add_f32 {v2(Sx+2*p)}, {v2(Sx+2*p)}, {v2(Qx+2*p)}')
for sh in (8, 4, 2, 1):
    for j in range(4): a(f'v_add_f32_dpp v{Sx+j}, v{Sx+j}, v{Sx+j} row_ror:{sh} row_mask:0xf bank_mask:0xf')
a(f'''
s_mov_b32 exec_lo, 0x00010001
s_mov_b32 exec_hi, 0x00010001
ds_write_b128 v{vStW}, {vr(Sx)}
s_mov_b64 exec, -1
s_waitcnt vmcnt(0) lgkmcnt(0)
s_barrier
''')
stamp('bar1', True)
P = T+8
for w in range(5): a(f'ds_read_b128 {vr(P+4*w)}, v{vStR} offset:{64*w}')
for w, cnt in ((1, 3), (2, 2), (3, 1), (4, 0)):
    a(f's_waitcnt lgkmcnt({cnt})')
    for p in range(2): a(f'v_pk_add_f32 {v2(P+2*p)}, {v2(P+2*p)}, {v2(P+4*w+2*p)}')
Q2 = P+4
for j in range(4): a(f'v_mov_b32 v{Q2+j}, v{P+j}')
for j in range(4): a(f'v_permlane32_swap_b32 v{P+j}, v{Q2+j}')
for p in range(2):
    a(f'v_pk_mul_f32 {v2(P+2*p)}, {v2(P+2*p)}, {sInv}')
    a(f'v_pk_mul_f32 {v2(Q2+2*p)}, {v2(Q2+2*p)}, {sInv}')
for p in range(2): a(f'v_pk_fma_f32 {v2(Q2+2*p)}, {v2(P+2*p)}, {v2(P+2*p)}, {v2(Q2+2*p)} neg_lo:[1,0,0] neg_hi:[1,0,0]')
for j in range(4): a(f'v_max_f32 v{Q2+j}, 0, v{Q2+j}')
for p in range(2): a(f'v_pk_add_f32 {v2(Q2+2*p)}, {v2(Q2+2*p)}, {sEps}')
for j in range(4): a(f'v_rsq_f32 v{Q2+j}, v{Q2+j}')
for p in range(2): a(f'v_pk_mul_f32 {v2(P+2*p)}, {v2(P+2*p)}, {v2(Q2+2*p)} neg_lo:[1,0] neg_hi:[1,0]')
N_ = T+16; Bo = T+32
for kl in range(4):
    for p in range(2): a(f'v_pk_fma_f32 {v2(N_+4*kl+2*p)}, {v2(X+4*kl+2*p)}, {v2(Q2+2*p)}, {v2(P+2*p)}')
for kl in range(4):
    for p in range(2): a(f'v_cvt_pk_f16_f32 v{Bo+2*kl+p}, v{N_+4*kl+2*p}, v{N_+4*kl+2*p+1}')
D0, D1, DC = T, T+4, T+8
a(f'''
v_mfma_f32_16x16x32_f16 {vr(D0)}, {vr(S1r)}, {vr(Bo)}, 0
v_mfma_f32_16x16x32_f16 {vr(DC)}, {vr(S1r+4)}, {vr(Bo)}, 0
v_mfma_f32_16x16x32_f16 {vr(D1)}, {vr(S1r)}, {vr(Bo+4)}, 0
v_mfma_f32_16x16x32_f16 {vr(DC)}, {vr(S1r+8)}, {vr(Bo+4)}, {vr(DC)}
s_or_b32 s7, s2, {sW}
s_cmp_lg_u32 s7, 0
s_cbranch_scc1 L_nofix
v_mfma_f32_16x16x32_f16 {vr(T+16)}, {vr(DEL)}, {vr(Bo)}, 0
v_mfma_f32_16x16x32_f16 {vr(T+20)}, {vr(DEL+4)}, {vr(Bo)}, 0
s_mov_b32 exec_lo, 0x00010001
s_mov_b32 exec_hi, 0x00010001
''')
for p in range(2): a(f'v_pk_add_f32 {v2(D0+2*p)}, {v2(D0+2*p)}, {v2(T+16+2*p)}')
for p in range(2): a(f'v_pk_add_f32 {v2(DC+2*p)}, {v2(DC+2*p)}, {v2(T+20+2*p)}')
a('s_mov_b64 exec, -1\nL_nofix:\ns_nop 1')
W_ = T+24
a(f'''
v_cvt_pk_f16_f32 v{W_}, v{D0}, v{D0+1}
v_cvt_pk_f16_f32 v{W_+1}, v{D0+2}, v{D0+3}
ds_write_b32 v{vVAB}, v{W_}
ds_write_b32 v{vVAB}, v{W_+1} offset:3200
v_cvt_pk_f16_f32 v{W_+2}, v{D1}, v{D1+1}
v_cvt_pk_f16_f32 v{W_+3}, v{D1+2}, v{D1+3}
v_cvt_pk_f16_f32 v{W_+4}, v{DC}, v{DC+1}
v_cvt_pk_f16_f32 v{W_+5}, v{DC+2}, v{DC+3}
ds_write_b32 v{vVAB+1}, v{W_+2}
ds_write_b32 v{vVAB+1}, v{W_+3} offset:3200
ds_write_b32 v{vVC}, v{W_+4}
ds_write_b32 v{vVC+1}, v{W_+5}
''')
stamp('s1w', True)
a(f"""
s_cmp_lg_u32 {sLayer}, 0
s_cbranch_scc1 L_nohs
s_cmp_eq_u32 {sW}, 4
s_cbranch_scc1 L_nohs
s_cmp_eq_u32 {sW}, 3
s_cselect_b32 s7, 9216, 0
v_add_u32 v{vZ+1}, s7, v{vZ}
""")
for i in range(2): a(f'ds_read_b128 {vr(B1r+4*i)}, v{vZ} offset:{1024*(T_B1+i)}')
for i in range(6): a(f'ds_read_b128 {vr(TWc+4*i)}, v{vZ} offset:{1024*(T_TW+i)}')
for i in range(9): a(f'ds_read_b128 {vr(A2r+4*i)}, v{vZ+1} offset:{1024*(T_A2+i)}')
a("""
L_nohs:
s_waitcnt lgkmcnt(0)
s_barrier
""")
stamp('bar2', True)
a(f's_cmp_eq_u32 {sW}, 4\ns_cbranch_scc1 L_cphase')
Ad = T; Tr = T+12; Ti = T+24; B2 = T+36; O = T+48
a(f'''
ds_read_b128 {vr(Ad)}, v{vVrd}
ds_read_b128 {vr(Ad+4)}, v{vVrd} offset:1280
ds_read_b128 {vr(Ad+8)}, v{vVrd2}
s_cmp_lg_u32 {sLayer}, 0
s_cbranch_scc1 L_nomode
v_mov_b32 v{O}, {L_MODE}
ds_read_b32 v{O}, v{O}
s_waitcnt lgkmcnt(0)
v_readfirstlane_b32 {sMode}, v{O}
L_nomode:
''')
for blk in range(3):
    a(f's_waitcnt lgkmcnt({2-blk})')
    a(f'v_mfma_f32_16x16x32_f16 {vr(Tr+4*blk)}, {vr(Ad+4*blk)}, {vr(B1r)}, 0')
    a(f'v_mfma_f32_16x16x32_f16 {vr(Ti+4*blk)}, {vr(Ad+4*blk)}, {vr(B1r+4)}, 0')
for ch in range(3):
    Pt = T+60; Qt = T+64
    for p in range(2):
        r_, i_ = Tr+4*ch+2*p, Ti+4*ch+2*p; c_ = TWc+4*ch+2*p
        a(f'v_pk_mul_f32 {v2(Pt+2*p)}, {v2(r_)}, {v2(c_)}')
        a(f'v_pk_mul_f32 {v2(Qt+2*p)}, {v2(i_)}, {v2(c_)}')
    for p in range(2):
        r_, i_ = Tr+4*ch+2*p, Ti+4*ch+2*p; s_2 = TWs+4*ch+2*p
        a(f'v_pk_fma_f32 {v2(Pt+2*p)}, {v2(i_)}, {v2(s_2)}, {v2(Pt+2*p)}')
        a(f'v_pk_fma_f32 {v2(Qt+2*p)}, {v2(r_)}, {v2(s_2)}, {v2(Qt+2*p)} neg_lo:[1,0,0] neg_hi:[1,0,0]')
    for i in range(4): a(f'v_cvt_pk_f16_f32 v{B2+4*ch+i}, v{Pt+i}, v{Qt+i}')
    for blk in range(3):
        c_in = '0' if ch == 0 else vr(O+4*blk)
        a(f'v_mfma_f32_16x16x32_f16 {vr(O+4*blk)}, {vr(A2r+(blk*3+ch)*4)}, {vr(B2+4*ch)}, {c_in}')
Wo = T
for i in range(6): a(f'v_cvt_pk_f16_f32 v{Wo+i}, v{O+2*i}, v{O+2*i+1}')
a(f'''
s_cmp_ge_u32 {sW}, 2
s_cbranch_scc1 L_noslot
v_readlane_b32 s7, v{Wo+4}, 32
v_writelane_b32 v{Wo}, s7, 0
L_noslot:
''')
for i in range(6): a(f'v_and_or_b32 v{Wo+i}, v{Wo+i}, -2, {sTag}')
a(f'''
s_cmp_lg_u32 {sMode}, 0
s_cbranch_scc1 L_st_slow
buffer_store_dwordx4 {vr(Wo)}, v{vL16}, {SWS}, {sH1st} offen
buffer_store_dwordx2 {v2(Wo+4)}, v{vH1s2}, {SWS}, {sH1st} offen
s_branch L_cphase
L_st_slow:
buffer_store_dwordx4 {vr(Wo)}, v{vL16}, {SWS}, {sH1st} offen sc1
buffer_store_dwordx2 {v2(Wo+4)}, v{vH1s2}, {SWS}, {sH1st} offen sc1
L_cphase:
''')
stamp('h1st', True)
Ca = T+8; Dm = T+16; K_ = T+32
a(f's_cmp_lg_u32 {sLayer}, 0\ns_cbranch_scc1 L_nocm')
for i in range(8): a(f'ds_read_b128 {vr(CM+4*i)}, v{vZ} offset:{L_CM-L_TB+1024*i}')
a(f'ds_read_b128 {vr(A3r)}, v{vZ} offset:3072\nL_nocm:')
a(f'''
s_mov_b32 {sSpin}, {SPIN}
s_mov_b32 exec_lo, 0x00ff00ff
s_mov_b32 exec_hi, 0x00ff00ff
L_poll1:
''')
for ch in range(2):
    for u in range(4):
        a(f'buffer_load_dword v{Ca+4*ch+u}, v{vC1ld}, {SWS}, {sH1ld0 if ch == 0 else sH1ld1} offen offset:{1280*u} sc1')
a(f'''
s_sub_u32 {sSpin}, {sSpin}, 1
s_cbranch_scc1 L_poll1_done
s_waitcnt vmcnt(0)
''')
tt = sum((((i >> 2 & 1) ^ (i & 1)) & ((i >> 1 & 1) ^ (i & 1))) << i for i in range(8))
for i in range(4): a(f'v_bitop3_b32 v{K_+i}, v{Ca+2*i}, v{Ca+2*i+1}, {sFlip} bitop3:{tt:#x}')
a(f'''
v_bitop3_b32 v{K_}, v{K_}, v{K_+1}, v{K_+2} bitop3:0x80
v_bitop3_b32 v{K_}, v{K_}, v{K_+3}, 1 bitop3:0x80
v_cmp_eq_u32 vcc, 0, v{K_}
s_cbranch_vccnz L_poll1
L_poll1_done:
s_waitcnt vmcnt(0) lgkmcnt(0)
s_mov_b64 exec, -1
''')
stamp('h1ok', True)
for hi in range(2):
    for ch in range(2):
        for rio in range(2):
            d = Dm + (hi*2+rio)*4
            a(f'v_mfma_f32_16x16x32_f16 {vr(d)}, {vr(Ca+4*ch)}, {vr(CM+((hi*2+rio)*2+ch)*4)}, {"0" if ch == 0 else vr(d)}')
a('s_mov_b32 exec_hi, 0')
for hi in range(2):
    for i in range(4): a(f'v_cvt_pk_f16_f32 v{K_+4*hi+i}, v{Dm+8*hi+i}, v{Dm+8*hi+4+i}')
    for i in range(4): a(f'v_or_b32 v{K_+4*hi+i}, 1, v{K_+4*hi+i}')
    a(f'ds_write_b128 v{vRtW}, {vr(K_+4*hi)} offset:{2560*hi}')
a(f'''
s_mov_b64 exec, -1
s_waitcnt lgkmcnt(0)
s_barrier
ds_read_b128 {vr(T)}, v{vRtR}
s_waitcnt lgkmcnt(0)
buffer_store_dwordx4 {vr(T)}, v{vH2st}, {SWS}, {sH2st} offen sc1
s_mov_b32 {sSpin}, {SPIN}
''')
stamp('h2st', True)
a('s_waitcnt vmcnt(0)')
stamp('h2ack', True)
a('L_poll2:')
Lh = T+4; K2 = T+20
for u in range(4): a(f'buffer_load_dwordx4 {vr(Lh+4*u)}, v{vH2ld}, {SWS}, {sH2ld} offen offset:{1280*u} sc1')
a(f'''
s_sub_u32 {sSpin}, {sSpin}, 1
s_cbranch_scc1 L_poll2_done
s_waitcnt vmcnt(0)
''')
for i in range(5): a(f'v_bitop3_b32 v{K2+i}, v{Lh+3*i}, v{Lh+3*i+1}, v{Lh+3*i+2} bitop3:0x80')
a(f'''
v_bitop3_b32 v{K2}, v{K2}, v{K2+1}, v{K2+2} bitop3:0x80
v_bitop3_b32 v{K2+3}, v{K2+3}, v{K2+4}, v{Lh+15} bitop3:0x80
v_bitop3_b32 v{K2}, v{K2}, v{K2+3}, 1 bitop3:0x80
v_cmp_eq_u32 vcc, 0, v{K2}
s_cbranch_vccnz L_poll2
L_poll2_done:
s_waitcnt vmcnt(0)
''')
stamp('h2ok', True)
for kl in range(1, 4): a(f'v_swap_b32 v{Lh+kl}, v{Lh+4*kl}')
for u in range(4): a(f'v_and_b32 v{Lh+u}, v{vMask0}, v{Lh+u}')
for (u, kl) in ((1, 2), (1, 3), (2, 3)): a(f'v_swap_b32 v{Lh+4*u+kl}, v{Lh+4*kl+u}')
for kl in range(4): a(f'v_mfma_f32_16x16x32_f16 {vr(X+4*kl)}, {vr(A3r)}, {vr(Lh+4*kl)}, {vr(X+4*kl)}')
a(f'''
s_add_u32 {sLayer}, {sLayer}, 1
s_add_u32 {sH2st}, {sH2st}, {BUF}
s_add_u32 {sH2ld}, {sH2ld}, {BUF}
s_xor_b32 {sH1st}, {sH1st}, {H1STR}
s_xor_b32 {sH1ld0}, {sH1ld0}, {H1STR}
s_xor_b32 {sH1ld1}, {sH1ld1}, {H1STR}
s_cmp_ge_u32 {sLayer}, 2
s_cselect_b32 {sTag}, 0, 1
s_cselect_b32 {sFlip}, -1, 0
s_cmp_lt_u32 {sLayer}, {NLAYER}
s_cbranch_scc1 L_loop
''')
F = T
for kl in range(4):
    for p in range(2): a(f'v_cvt_pk_bf16_f32 v{F+2*kl+p}, v{X+4*kl+2*p}, v{X+4*kl+2*p+1}')
for kl in range(4):
    for p in range(2):
        a(f'ds_write_b16 v{vXT+kl}, v{F+2*kl+p} offset:{2560*p}')
        a(f'ds_write_b16_d16_hi v{vXT+kl}, v{F+2*kl+p} offset:{2560*p+1280}')
OUTF = ' ' + opts.get('outf', '').replace('+', ' ') if opts.get('outf') else ''
a(f'''
s_waitcnt lgkmcnt(0)
s_barrier
ds_read_b128 {vr(T+8)}, v{vRtR} offset:{L_XT-L_RT}
ds_read_b128 {vr(T+12)}, v{vRtR} offset:{L_XT-L_RT+5120}
s_waitcnt lgkmcnt(1)
buffer_store_dwordx4 {vr(T+8)}, v{vGa}, {SO}, 0 offen{OUTF}
s_waitcnt lgkmcnt(0)
buffer_store_dwordx4 {vr(T+12)}, v{vGb}, {SO}, 0 offen{OUTF}
''')
def stamp_dump(hk):
    if hk: a(f's_memtime s[{60+2*nst.index("end")}:{61+2*nst.index("end")}]\ns_memrealtime s[{60+2*nst.index("rend")}:{61+2*nst.index("rend")}]\ns_waitcnt lgkmcnt(0)')
    a(f's_lshl_b32 s7, s2, 7\ns_add_u32 s7, s7, {STAMP_OFF}\nv_mov_b32 v1, 0\ns_mov_b64 exec, 1')
    for i in range(len(nst)): a(f'v_mov_b32 v2, s{60+2*i}\nbuffer_store_dword v2, v1, {SWS}, s7 offen offset:{4*i}')
if STAMPS:
    a('s_waitcnt vmcnt(0)'); stamp('end'); stamp('rend', real=True)
    a(f's_waitcnt lgkmcnt(0)\ns_cmp_lg_u32 {sW}, {opt("swave")}\ns_cbranch_scc1 L_end')
    stamp_dump(False)
if RP:
    if RP == 'end': a('s_waitcnt vmcnt(0)\ns_memrealtime s[62:63]')
    if RP == 'fin': a('s_memrealtime s[62:63]')
    a(f's_waitcnt lgkmcnt(0)\ns_cmp_lg_u32 {sW}, 0\ns_cbranch_scc1 L_end\ns_lshl_b32 s7, s2, 3\ns_add_u32 s7, s7, {STAMP_OFF}\nv_mov_b32 v2, s60\nv_mov_b32 v3, s62\ns_mov_b64 exec, 1\nbuffer_store_dwordx2 v[2:3], off, {SWS}, s7')
a('L_end:\ns_endpgm')
def fhash(dst, src):
    a(f'v_mul_lo_u32 v{dst}, v{src}, s50\nv_add_u32 v{dst}, s51, v{dst}')
def hs_group(lbl, x3):
    a(f"""
s_mov_b32 exec_hi, 0
s_lshl_b32 s7, {sSig}, 12
s_add_u32 s7, s7, {FLAGS}
s_mov_b32 {sSpin}, {SPIN}
{lbl}:
buffer_load_dwordx3 v[{T}:{T+2}], v{T+4}, {SWS}, s7 offen sc1
s_sub_u32 {sSpin}, {sSpin}, 1
s_cbranch_scc1 {lbl}_done
s_waitcnt vmcnt(0)
""")
    fhash(T, T)
    a(f"""
v_xor_b32 v{T}, v{T}, v{T+(2 if x3 else 1)}
v_cmp_lt_u32 vcc, 15, v{T}
s_cbranch_vccnz {lbl}
{lbl}_done:
s_waitcnt vmcnt(0)
v_and_b32 v{T+1}, 15, v{T+1}
v_cmp_ne_u32 vcc, s6, v{T+1}
s_mov_b64 exec, -1
""")
def hs_all(lbl):
    a(f's_mov_b32 {sSpin}, {SPIN}\n{lbl}:')
    for i, r in enumerate(('s92', 's93', 's95', 's96')): a(f'buffer_load_dwordx2 {v2(T+8+2*i)}, v{T+4}, {SWS}, {r} offen sc1')
    a(f's_sub_u32 {sSpin}, {sSpin}, 1\ns_cbranch_scc1 {lbl}_done\ns_waitcnt vmcnt(0)')
    for i in range(4): fhash(T+8+2*i, T+8+2*i)
    for i in range(4): a(f'v_xor_b32 v{T+8+2*i}, v{T+8+2*i}, v{T+9+2*i}')
    a(f"""
v_or3_b32 v{T}, v{T+8}, v{T+10}, v{T+12}
v_or_b32 v{T}, v{T}, v{T+14}
v_cmp_lt_u32 vcc, 15, v{T}
s_cbranch_vccnz {lbl}
{lbl}_done:
s_waitcnt vmcnt(0)
""")
def flag_store(v, soff, off):
    a(f"""
s_mov_b64 exec, 1
s_waitcnt vmcnt(0)
buffer_store_dword v{v}, off, {SWS}, {soff} offset:{off} sc1
s_mov_b64 exec, -1
""")
def hstamp(n):
    if opt('hstamp'): a(f's_memtime s[{60+2*nst.index(n)}:{61+2*nst.index(n)}]')
a('L_hk:')
if opt('pref'):
    a(f"""
s_getpc_b64 s[24:25]
L_pc2:
s_add_u32 s50, s24, tbl@rel32@lo+4
s_addc_u32 s51, s25, tbl@rel32@hi+12
s_sub_u32 s24, s24, L_pc2-{KNAME}
s_subb_u32 s25, s25, 0
v_lshlrev_b32 v{T+4}, 3, v{vL16}
s_lshl_b32 s7, {sM}, 8
s_min_u32 s7, s7, L_codeend-{KNAME}-136
v_add_u32 v{T+5}, s7, v{T+4}
s_lshl_b32 s7, {sM}, 10
v_add_u32 v{T+6}, s7, v{T+4}
s_mov_b64 exec, 3
global_load_dword v{T+7}, v{T+5}, s[24:25]
s_mov_b64 exec, 0xff
global_load_dword v{T+8}, v{T+6}, s[50:51]
s_mov_b64 exec, -1
""")
for i in range(4): a(f'v_mov_b32 v{vZ+i}, 0')
a(f"""
s_lshl_b32 {sGi}, {sSig}, 5
s_add_u32 {sGi}, {sGi}, {sM}
s_lshl_b32 s97, {sGi}, 7
s_add_u32 s97, s97, {FLAGS}
s_add_u32 s99, s97, 0x8000
s_mul_i32 s94, {sGi}, 5120
s_add_u32 s94, s94, {H1BASE}
s_add_u32 s98, s94, {H1STR}
s_mul_i32 {sCl}, s2, 5120
s_add_u32 {sCl}, {sCl}, {H2BASE}
s_waitcnt lgkmcnt(0)
buffer_load_dword v{T+16}, off, {SWS}, s97
buffer_load_dword v{T+17}, off, {SWS}, s99
""")
if opt('touch'):
    a(f"""
s_mov_b32 s14, 2621440
s_mov_b32 s15, 0x20000
v_lshlrev_b32 v{T+18}, 17, v{vL16}
s_lshl_b32 s7, s2, 7
s_mov_b64 exec, 3
buffer_load_dword v{T+19}, v{T+18}, {SO}, s7 offen
s_mov_b64 exec, 31
buffer_load_dword v{T+20}, v{T+18}, {SWS}, s7 offen
s_mov_b64 exec, -1
""")
clean5('s94', ''); clean5('s98', '')
a(f"""
s_getreg_b32 s6, hwreg(HW_REG_XCC_ID, 0, 4)
v_lshlrev_b32 v{T+4}, 3, v{vL16}
s_mov_b32 s92, {FLAGS+0x8000}
s_mov_b32 s93, {FLAGS+0xa000}
s_mov_b32 s95, {FLAGS+0xc000}
s_mov_b32 s96, {FLAGS+0xe000}
s_mov_b32 s50, 0x9e3779b1
s_mov_b32 s51, 0x7f4a7c15
""")
hstamp('top')
if opt('hk2'): a('s_barrier')
a(f's_waitcnt vmcnt({12 if opt("touch") else 10})')
fhash(T+5, T+16); fhash(T+6, T+17)
a(f'v_and_or_b32 v{T+5}, v{T+5}, -16, s6')
hstamp('bar1')
flag_store(T+5, 's97', 4)
hstamp('s1w')
clean5(sCl)
a(f's_add_u32 {sCl}, {sCl}, {BUF}')
clean5(sCl)
a(f's_add_u32 {sCl}, {sCl}, {BUF}\ns_barrier')
if not opt('hk2'):
    flag_store(T+6, 's99', 4)
    hstamp('bar2')
    a('s_barrier')
else: hstamp('bar2')
hs_group('L_hs', False)
if opt('hk2'):
    a('s_mov_b64 s[52:53], vcc')
    flag_store(T+6, 's99', 4)
    a('s_mov_b64 vcc, s[52:53]')
hstamp('h1st')
a(f"""
s_cmp_lg_u32 vcc_lo, 0
s_cselect_b32 {sMode}, 1, {FORCE_SLOW}
v_mov_b32 v{T}, {sMode}
v_mov_b32 v{T+1}, {L_MODE}
ds_write_b32 v{T+1}, v{T}
s_cmp_eq_u32 {sMode}, 0
s_cbranch_scc1 L_hk_go
""")
clean5('s94'); clean5('s98')
flag_store(T+5, 's97', 8)
hs_group('L_hsb', True)
a(f"""
L_hk_go:
s_waitcnt lgkmcnt(0)
s_barrier
""")
hs_all('L_hs2')
hstamp('h1ok')
a('s_barrier\ns_barrier')
clean5(sCl)
a(f's_add_u32 {sCl}, {sCl}, {BUF}')
clean5(sCl)
a('s_waitcnt vmcnt(5)')
hstamp('h2st')
a('s_barrier\ns_waitcnt vmcnt(0)\ns_barrier\ns_barrier')
a(f"""
v_add_u32 v{T+16}, 1, v{T+16}
v_add_u32 v{T+17}, 1, v{T+17}
s_mov_b64 exec, 1
buffer_store_dword v{T+16}, off, {SWS}, s97
buffer_store_dword v{T+17}, off, {SWS}, s99
""")
if opt('hstamp'):
    stamp_dump(True)
a('s_endpgm\nL_codeend:')

hdr = open('interleave_layers__spectral_fnet__spectral_fnet__prompt.s.ref').read().split('; Override')[0]
out = hdr + ('; STAMPS ' + ' '.join(nst) + '\n' if STAMPS else '') + f'; @launch grid=(256,1,1) block=(384,1,1) lds={LDS_BYTES}\n'
out += f'.amdgcn_target "amdgcn-amd-amdhsa--gfx950"\n.text\n.globl {KNAME}\n.p2align 8\n.type {KNAME},@function\n{KNAME}:\n'
out += a.text()
if RP:
    out = out.replace('; @launch grid=(256,1,1) block=(384,1,1) lds=', f'; @launch kernel={KNAME} grid=(256,1,1) block=(384,1,1) lds=').replace('\n.amdgcn_target', '\n; @launch kernel=reveal_kernel grid=(1,1,1) block=(256,1,1) lds=64\n.amdgcn_target', 1)
    out += f'''.globl reveal_kernel
.p2align 8
.type reveal_kernel,@function
reveal_kernel:
  s_cmp_lg_u32 s2, 0
  s_cbranch_scc1 LR_end
  s_load_dwordx2 s[8:9], s[0:1], 96
  s_mov_b32 s10, {WS_BYTES}
  s_mov_b32 s11, 0x20000
  s_mov_b32 s3, {STAMP_OFF}
  v_lshlrev_b32 v1, 3, v0
  v_mov_b32 v4, 0
  v_mov_b32 v5, -1
  v_mov_b32 v6, {0 if opt('rpmax', 1) else -1}
  ds_write_b32 v4, v5
  ds_write_b32 v4, v6 offset:4
  s_waitcnt lgkmcnt(0)
  buffer_load_dwordx2 v[2:3], v1, s[8:11], s3 offen
  s_barrier
  s_waitcnt vmcnt(0)
  ds_min_u32 v4, v2
  ds_{'max' if opt('rpmax', 1) else 'min'}_u32 v4, v3 offset:4
  s_waitcnt lgkmcnt(0)
  s_barrier
  ds_read_b64 v[2:3], v4
  s_waitcnt lgkmcnt(0)
  v_sub_u32 v2, v3, v2
  v_min_u32 v2, 5000, v2
  v_mul_u32_u24 v2, 10, v2
  s_memrealtime s[12:13]
  v_readfirstlane_b32 s16, v2
  s_waitcnt lgkmcnt(0)
LR_spin:
  s_memrealtime s[14:15]
  s_waitcnt lgkmcnt(0)
  s_sub_u32 s17, s14, s12
  s_cmp_lt_u32 s17, s16
  s_cbranch_scc1 LR_spin
LR_end:
  s_endpgm
'''
out += f'''.section .rodata,"a"
.p2align 6
.amdhsa_kernel {KNAME}
  .amdhsa_next_free_vgpr 240
  .amdhsa_next_free_sgpr 102
  .amdhsa_accum_offset 240
  .amdhsa_group_segment_fixed_size 0
  .amdhsa_kernarg_size 104
  .amdhsa_user_sgpr_count 2
  .amdhsa_user_sgpr_kernarg_segment_ptr 1
  .amdhsa_system_sgpr_workgroup_id_x 1
.end_amdhsa_kernel
''' + '''.p2align 6
.amdhsa_kernel reveal_kernel
  .amdhsa_next_free_vgpr 16
  .amdhsa_next_free_sgpr 32
  .amdhsa_accum_offset 16
  .amdhsa_group_segment_fixed_size 0
  .amdhsa_kernarg_size 104
  .amdhsa_user_sgpr_count 2
  .amdhsa_user_sgpr_kernarg_segment_ptr 1
  .amdhsa_system_sgpr_workgroup_id_x 1
.end_amdhsa_kernel
''' * (1 if RP else 0) + '''.p2align 10
tbl:
'''
for f in blocks:
    for i in range(0, 256, 8): out += '.long ' + ','.join(f'{int(x):#x}' for x in f[i:i+8]) + '\n'
open(sys.argv[1], 'w').write(out)
print('instrs', len(a.ins), 'nops inserted', a.nops, 'table blocks', len(blocks), 'bytes', len(out))
```

```python
import re
REG = re.compile(r'^(-|\|)?([vsa])(\d+)$')
RNG = re.compile(r'^(-)?([vsa])\[(\d+):(\d+)\]$')
TRANS = ('v_exp_f32','v_log_f32','v_rcp_f32','v_rsq_f32','v_sqrt_f32','v_sin_f32','v_cos_f32')
def regs_of(tok):
    tok = tok.strip()
    m = REG.match(tok)
    if m: return {(m.group(2), int(m.group(3)))}
    m = RNG.match(tok)
    if m: return {(m.group(2), i) for i in range(int(m.group(3)), int(m.group(4))+1)}
    if tok == 'vcc': return {('s', 106), ('s', 107)}
    if tok == 'vcc_lo': return {('s', 106)}
    if tok == 'vcc_hi': return {('s', 107)}
    if tok == 'exec': return {('s', 126), ('s', 127)}
    if tok == 'exec_lo': return {('s', 126)}
    if tok == 'exec_hi': return {('s', 127)}
    if tok == 'm0': return {('s', 124)}
    return set()
class Ins:
    def __init__(self, text):
        self.text = text
        t = text.split(';')[0].strip()
        self.label = t.endswith(':')
        self.op = t.split()[0] if t and not self.label else ''
        rest = t[len(self.op):].strip()
        toks = [x.strip() for x in re.split(r',(?![^\[]*\])', rest)] if rest else []
        if toks:
            last = toks[-1].split()
            toks[-1] = last[0] if last else ''
            self.mods = ' '.join(last[1:])
        else: self.mods = ''
        self.toks = toks
        op = self.op
        self.w = set(); self.r = set(); self.srcc = set(); self.ab = set()
        self.mfma = op.startswith('v_mfma')
        self.valu = op.startswith('v_') and not self.mfma
        self.trans = op.replace('_e32','').replace('_e64','') in TRANS
        self.perm = op.startswith('v_permlane')
        self.dpp = op.endswith('_dpp') or 'row_' in self.mods or 'quad_perm' in self.mods
        self.rdlane = op.startswith('v_readlane') or op.startswith('v_readfirstlane')
        self.vmem = op.startswith('buffer_') or op.startswith('global_')
        self.ds = op.startswith('ds_')
        self.salu = op.startswith('s_')
        self.widestore = self.vmem and 'store' in op and ('x3' in op or 'x4' in op)
        R = [regs_of(x) for x in toks]
        if self.mfma:
            self.w = R[0]; self.ab = R[1] | R[2]; self.srcc = R[3]; self.r = self.ab | self.srcc
        elif self.valu:
            if op.startswith('v_swap') or self.perm:
                self.w = R[0] | R[1]; self.r = R[0] | R[1]
            else:
                self.w = set(R[0]);
                for x in R[1:]: self.r |= x
                if op.startswith('v_fmac') or op.startswith('v_writelane') or op.startswith('v_pk_fmac'): self.r |= R[0]
                if op.startswith('v_cndmask') and len(toks) == 3: self.r |= regs_of('vcc')
        elif self.ds:
            if 'read' in op:
                self.w = R[0]; self.r = R[1] | (R[0] if 'd16' in op else set())
            else:
                for x in R: self.r |= x
        elif self.vmem:
            if '_lds_' in op or self.mods.endswith('lds') or ' lds' in (' '+self.mods):
                for x in R: self.r |= x
                self.r |= regs_of('m0')
            elif 'load' in op:
                self.w = R[0]
                for x in R[1:]: self.r |= x
            else:
                for x in R: self.r |= x
            self.sdata = R[0] if op.startswith('buffer_') else (R[1] if len(R) > 1 else set())
        elif self.salu:
            if op in ('s_nop','s_waitcnt','s_barrier','s_endpgm','s_sleep','s_setprio') or op.startswith('s_cbranch') or op == 's_branch':
                pass
            elif op.startswith('s_cmp') or op.startswith('s_bitcmp'):
                for x in R: self.r |= x
            else:
                self.w = set(R[0])
                for x in R[1:]: self.r |= x
    def states(self):
        if self.label or not self.op: return 0
        if self.op == 's_nop': return int(self.toks[0], 0) + 1
        return 1
def vg(s): return {x for x in s if x[0] in 'va'}
def sg(s): return {x for x in s if x[0] == 's'}
def need(p, c):
    n = 0
    cv_r, cv_w = vg(c.r), vg(c.w)
    if p.valu:
        pw = vg(p.w); ps = sg(p.w)
        if c.mfma and pw & cv_r: n = max(n, 2)
        if c.perm and pw & cv_r: n = max(n, 2)
        if c.dpp and pw & cv_r: n = max(n, 2)
        if c.rdlane and pw & cv_r: n = max(n, 1)
        if p.trans and c.valu and not c.trans and pw & cv_r: n = max(n, 1)
        if p.trans and c.mfma and pw & cv_r: n = max(n, 2)
        if ps:
            if c.vmem and ps & sg(c.r): n = max(n, 5)
            if c.valu and ps & sg(c.r): n = max(n, 4 if (c.op.startswith('v_writelane') or c.op.startswith('v_readlane')) else 2)
            if c.salu and ps & sg(c.r): n = max(n, 1)
            if c.op.startswith('s_cbranch_vcc') and ps & regs_of('vcc'): n = max(n, 1)
    if p.mfma:
        if c.mfma:
            if p.w & c.ab: n = max(n, 8)
            if p.w & c.srcc and p.w != c.srcc: n = max(n, 6)
            if p.w & c.w and not (p.w == c.srcc and c.w == p.w): n = max(n, 6)
        else:
            if (c.valu or c.vmem or c.ds) and (p.w & (cv_r | cv_w)): n = max(n, 8)
            if c.valu and (p.srcc & cv_w): n = max(n, 3)
    if p.salu and c.vmem and ('_lds_' in c.op or ' lds' in (' '+c.mods)) and (p.w & regs_of('m0')): n = max(n, 1)
    if p.widestore and (c.valu or c.mfma) and (p.sdata & cv_w): n = max(n, 2)
    if p.widestore and (c.vmem or c.ds) and (p.sdata & cv_w): n = max(n, 1)
    if p.ds and 'write' in p.op and ('b128' in p.op or 'b96' in p.op) and c.valu and (vg(p.r) & cv_w): n = max(n, 0)
    return n
class Asm:
    def __init__(self):
        self.ins = []
        self.nops = 0
    def __call__(self, text):
        for line in text.split('\n'):
            line = line.strip()
            if not line or line.startswith(';'): continue
            c = Ins(line)
            if not c.label and c.op:
                req = 0; dist = 0
                for p in reversed(self.ins):
                    if dist >= 12: break
                    if p.op and not p.label:
                        k = need(p, c)
                        if k - dist > req: req = k - dist
                    dist += p.states()
                if req > 0:
                    self.ins.append(Ins(f's_nop {req-1}')); self.nops += 1
            self.ins.append(c)
    def text(self):
        return '\n'.join(('' if i.label else '  ') + i.text for i in self.ins) + '\n'

import subprocess, tempfile, os
def sizes_of(asm_obj, extra=''):
    src = '.amdgcn_target "amdgcn-amd-amdhsa--gfx950"\n.text\n' + extra + asm_obj.text() + '.section .rodata\ntbl:\n.long 0\n'
    with tempfile.TemporaryDirectory() as d:
        open(d+'/a.s', 'w').write(src)
        r = subprocess.run(['clang', '-x', 'assembler', '-target', 'amdgcn-amd-amdhsa', '-mcpu=gfx950', '-c', d+'/a.s', '-o', d+'/a.o'], capture_output=True, text=True)
        assert r.returncode == 0, r.stderr
        o = subprocess.run(['llvm-objdump', '-d', '--mcpu=gfx950', d+'/a.o'], capture_output=True, text=True).stdout
    sz = []
    for line in o.split('\n'):
        m = re.search(r'// [0-9A-F]{12}: ((?:[0-9A-F]{8} ?)+)', line)
        if m: sz.append(4*len(m.group(1).split()))
    real = [i for i in asm_obj.ins if not i.label]
    assert len(sz) == len(real), (len(sz), len(real))
    return sz
PROMOTABLE = ('v_mul_f32', 'v_max_f32', 'v_add_f32', 'v_or_b32', 'v_and_b32', 'v_xor_b32', 'v_mov_b32', 'v_rsq_f32', 'v_add_u32', 'v_sub_u32',
              'v_lshlrev_b32', 'v_lshrrev_b32', 'v_cmp_eq_u32', 'v_cmp_lt_u32', 'v_cmp_ne_u32', 'v_cvt_f32_u32', 'v_sin_f32', 'v_cos_f32', 'v_min_u32', 'v_mul_u32_u24',
              'v_permlane32_swap_b32', 'v_cndmask_b32', 'v_cmp_le_u32', 'v_cmp_gt_u32')
def align_pass(asm_obj, extra='', minrun=3):
    sz = sizes_of(asm_obj, extra)
    items = []; k = 0
    for i in asm_obj.ins:
        if i.label: items.append([i, 0])
        else: items.append([i, sz[k]]); k += 1
    out = []; addr = 0; promoted = padded = 0
    for idx, (ins, s) in enumerate(items):
        if s == 8 and addr % 8 == 4:
            run = 0
            for j in range(idx, len(items)):
                if items[j][1] == 8: run += 1
                elif items[j][1] == 4: break
            cand = None
            for j in range(len(out)-1, -1, -1):
                p, ps = out[j]
                if ps == 0: continue
                if ps == 8: break
                if p.op in PROMOTABLE: cand = j; break
            if cand is not None:
                p = out[cand][0]
                out[cand] = [Ins(p.text.replace(p.op, p.op + '_e64', 1)), 8]; addr += 4; promoted += 1
            elif run >= minrun:
                out.append([Ins('s_nop 0'), 4]); addr += 4; padded += 1
        out.append([ins, s]); addr += s
    asm_obj.ins = [x[0] for x in out]
    return promoted, padded
```

```python
import numpy as np
S, D = 2048, 640
HSCALE = 8.0

def s0_of(sig):
    return [0, 1, 2, 13, 4, 5, 6, 9][sig]

def unit_g(sig, m):
    if sig == 0:
        return 16*m if m < 16 else 8 + 16*(m-16)
    return s0_of(sig) + 16*m

def is_special(sig, m): return sig == 0 and m == 0

def rows_of(sig, m):
    g = unit_g(sig, m)
    a = [g + 512*j for j in range(4)]
    if is_special(sig, m):
        b = [256 + 512*j for j in range(4)]
    else:
        b = [((-g) % 512) + 512*j for j in range(4)]
    return [a, b]

def slot_cr(kappa):
    if kappa < 256:
        l, j = divmod(kappa, 4)
        c, mq = l % 16, l // 16
        r = 2*mq + j if j < 2 else 8 + 2*mq + (j-2)
    else:
        l, j = divmod(kappa-256, 2)
        c, mq = l % 16, l // 16
        r = 16 + 2*mq + j
    return c, r

def seg_e(q, kappa):
    c, r = slot_cr(kappa)
    if q == 3: return c + 16*(r+20)
    if q < 2 and kappa == 0: return 320
    return c + 16*r

def seg_t2(q): return [0, 2, 1, 1][q]

def src_of(sig, m):
    g = unit_g(sig, m); tp = g % 128; t2 = tp % 4
    if t2 == 1:
        return [(2, tp//4), (3, tp//4)]
    q = 0 if t2 == 0 else 1
    return [(q, tp//4), (q, ((-g) % 128)//4)]

def acol(sig, m, h, kappa):
    g = unit_g(sig, m)
    (q, _t1) = src_of(sig, m)[h]
    e = seg_e(q, kappa)
    if g % 4 == 1: return e
    if h == 0: return e
    if kappa == 0: return 0
    return (-e) % D

def t0_of(sig, m, h, st, j):
    g = unit_g(sig, m); rows = rows_of(sig, m)
    row = rows[st][j]
    direct = (g % 4 == 1) or h == 0
    if st == 1: direct = not direct
    t = row if direct else (-row) % S
    (q, t1) = src_of(sig, m)[h]
    assert t % 128 == seg_t2(q) + 4*t1, (sig, m, h, st, j, t)
    return t // 128

def A3(sig, m):
    A = np.zeros((16, 32))
    for mq in range(4):
        h, st = divmod(mq, 2)
        for j in range(4):
            t0 = t0_of(sig, m, h, st, j)
            for sg in range(8):
                k = 16*h + 2*sg
                if sg == 0:
                    A[4*mq+j, k] = 1.0; A[4*mq+j, k+1] = (-1.0)**t0
                else:
                    th = 2*np.pi*((t0*s0_of(sg)) % 16)/16
                    A[4*mq+j, k] = np.cos(th); A[4*mq+j, k+1] = np.sin(th)
    return A

def s1_coef(special):
    co = np.zeros((2, 6, 2, 2, 4)); de = np.zeros((2, 6, 2, 2, 4))
    if not special:
        base = np.array([[1,0,-1,0],[0,-1,0,1],[1,1,1,1],[0,0,0,0],[1,-1,1,-1],[0,0,0,0]], float)
        for h in range(2):
            for st in range(2):
                co[h, :, h, st, :] = base if st == 0 else base[:, ::-1]
        return co, de
    for oi, t2 in enumerate([1, 0, 2]):
        for st in range(2):
            for j in range(4):
                jp = 2*j + st
                cA = 0.5*(np.exp(-2j*np.pi*t2*jp/8) + 1j*np.exp(-2j*np.pi*(t2+4)*jp/8))
                cB = 0.5*(np.exp(2j*np.pi*t2*jp/8) + 1j*np.exp(2j*np.pi*(t2+4)*jp/8))
                for h in range(2):
                    h_same = h if st == 0 else h ^ 1
                    h_mirr = h_same ^ 1
                    co[h, 2*oi, h_same, st, j] += cA.real; co[h, 2*oi+1, h_same, st, j] += cA.imag
                    co[h, 2*oi, h_mirr, st, j] += cB.real; co[h, 2*oi+1, h_mirr, st, j] += cB.imag
                    want = np.zeros((2, 2)); have = np.zeros((2, 2))
                    want[h] = [(cA+cB).real, (cA+cB).imag]
                    have[h_same] += [cA.real, cA.imag]; have[h_mirr] += [cB.real, cB.imag]
                    for hi in range(2):
                        de[h, 2*oi, hi, st, j] = want[hi, 0]-have[hi, 0]
                        de[h, 2*oi+1, hi, st, j] = want[hi, 1]-have[hi, 1]
    return co, de

def S1_mats(special):
    co, de = s1_coef(special)
    def build(cf):
        AB = np.zeros((16, 32)); C = [np.zeros((16, 32)), np.zeros((16, 32))]
        for ho in range(2):
            for sub in range(2):
                for hi in range(2):
                    for st in range(2):
                        for j in range(4):
                            k = 8*(2*hi+st) + 4*sub + j
                            for o in range(4):
                                AB[4*(2*ho+sub)+o, k] = cf[ho, o, hi, st, j]
                            for bop in range(2):
                                for ri in range(2):
                                    C[bop][4*(2*bop+ho) + 2*sub + ri, k] = cf[ho, 4+ri, hi, st, j]
        return AB, C[0], C[1]
    AB, C0, C1 = build(co)
    dAB, dC0, _ = build(de)
    for ho in range(2):
        dAB[4*(2*ho+1):4*(2*ho+1)+4, :] = 0
        dC0[4*ho+2:4*ho+4, :] = 0
    return AB, C0, C1, dAB, dC0

def B1_mats():
    Bre = np.zeros((32, 16)); Bim = np.zeros((32, 16))
    for b in range(16):
        for c in range(16):
            th = 2*np.pi*((b*c) % 16)/16
            Bre[2*b, c] = np.cos(th); Bre[2*b+1, c] = np.sin(th)
            Bim[2*b, c] = -np.sin(th); Bim[2*b+1, c] = np.cos(th)
    return Bre, Bim

def twiddles():
    co = np.zeros((3, 64, 4)); si = np.zeros((3, 64, 4))
    for blk in range(3):
        for l in range(64):
            c, mq = l % 16, l//16
            for i in range(4):
                a = 16*blk + 4*mq + i
                if a < 40:
                    th = 2*np.pi*((a*c) % 640)/640
                    co[blk, l, i] = np.cos(th); si[blk, l, i] = np.sin(th)
    return co, si

def A2_mats(r0):
    out = np.zeros((3, 3, 16, 32))
    for blk in range(3):
        for ch in range(3):
            for mm in range(16):
                mq, rr, rio = mm//4, (mm % 4)//2, mm % 2
                r = r0 + 8*blk + 2*mq + rr
                for kq in range(4):
                    for i in range(4):
                        a = 16*ch + 4*kq + i
                        if a >= 40: continue
                        th = 2*np.pi*((r*a) % 40)/40
                        k = 8*kq + 2*i
                        if rio == 0:
                            out[blk, ch, mm, k] = np.cos(th); out[blk, ch, mm, k+1] = np.sin(th)
                        else:
                            out[blk, ch, mm, k] = -np.sin(th); out[blk, ch, mm, k+1] = np.cos(th)
    return out

def C_mats(sig, q):
    t2 = seg_t2(q)
    out = np.zeros((2, 2, 2, 32, 16))
    for hi in range(2):
        for n in range(16):
            t1 = 16*hi + n; tp = t2 + 4*t1
            for p in range(32):
                ch, k = p//16, 2*(p % 16)
                g = unit_g(sig, p)
                th = 2*np.pi*((tp*g) % S)/S
                c_, s_ = np.cos(th), np.sin(th)
                if sig != 0:
                    out[hi, 0, ch, k, n] = c_; out[hi, 0, ch, k+1, n] = s_
                    out[hi, 1, ch, k, n] = -s_; out[hi, 1, ch, k+1, n] = c_
                elif p == 0:
                    out[hi, 0, ch, k + (t1 & 1), n] = 1.0
                else:
                    rio = 0 if p < 16 else 1
                    out[hi, rio, ch, k, n] = c_; out[hi, rio, ch, k+1, n] = s_
    return out / HSCALE

def E_mat(special):
    co, _ = s1_coef(special)
    E = np.zeros((16, 32))
    for hi in range(2):
        for st in range(2):
            for j in range(4):
                k = 8*(2*hi+st) + j
                for ho in range(2):
                    for o in range(4): E[4*ho+o, k] = co[ho, o, hi, st, j]
                    for ri in range(2): E[8+2*ho+ri, k] = co[ho, 4+ri, hi, st, j]
    return E

def A2_mats6(r0):
    out = A2_mats(r0)
    b2 = out[2].copy()
    for mq, src in enumerate([2, 0, 1, 3]):
        out[2, :, 4*mq:4*mq+4, :] = b2[:, 4*src:4*src+4, :]
    return out
```

```python
import sys, struct
import numpy as np
from design import *
from asmlib import Asm, align_pass, Ins

KNAME = "interleave_layers__spectral_fnet__spectral_fnet__prompt_kernel"
opts = dict(a.split('=') for a in sys.argv[2:] if '=' in a)
def opt(k, d=0): return int(opts.get(k, d))
STAMPS = opt('stamps'); FORCE_SLOW = opt('slow'); NLAYER = opt('layers', 4); SPIN = opt('spin', 200000); SLAYER = opt('slayer')
SST = opt('sstart')
def f2u(f): return struct.unpack('<I', struct.pack('<f', f))[0]
BUF = 1310720
FLAGS = 4096; H1BASE = 0x40000; H1STR = 0x200000; H2BASE = 0x400000; WS_BYTES = H2BASE + 4*BUF
STAMP_OFF = WS_BYTES
if STAMPS: WS_BYTES += 256*128
L_V = 0; L_ST = 9600; L_MODE = 9856; L_GO = 9860; L_OWN = 9864; L_JUNK = 9872; L_EXP = 15104; HF = FLAGS + 0x2000; L_RT = 9984; L_XT = 15360; L_TB = 25600; L_CM = L_TB + 16*1024; LDS_BYTES = L_CM + 8192
OOB = 0x40000000
def vaddr(col): return (col % 40)*80 + (col//40)*4
def opA(M):
    h = M.astype(np.float16).view(np.uint16).astype(np.uint32)
    out = np.zeros((64, 4), np.uint32)
    for l in range(64):
        r = h[l % 16, 8*(l//16):8*(l//16)+8]
        out[l] = r[0::2] | (r[1::2] << 16)
    return out
def opB(N): return opA(N.T)
blocks = []
def add(b): blocks.append(np.asarray(b, np.uint32).reshape(256)); return len(blocks)-1
n_ = S1_mats(False); s_ = S1_mats(True)
def a3_idx(sig, m):
    g = unit_g(sig, m)
    if g == 0: return 9
    if g == 128: return 8
    return (g >> 7) + (0 if g % 4 == 1 else 4)
a3 = {}
for sig in range(8):
    for m in range(32):
        M = A3(sig, m)*HSCALE; i = a3_idx(sig, m)
        if i in a3: assert np.allclose(a3[i], M), (sig, m)
        a3[i] = M
for M in (n_[0], n_[1], n_[2], E_mat(False)): add(opA(M))
T_A3L = add(opA(a3[0]))
Bre, Bim = B1_mats(); T_B1 = add(opB(Bre)); add(opB(Bim))
T_A2 = len(blocks)
M = A2_mats6(0)/HSCALE; M2 = A2_mats6(20)/HSCALE
sgn = np.array([(-1.0)**((k % 8)//2) for k in range(32)])
assert np.allclose(M2, M*sgn)
for blk in range(3):
    for ch in range(3): add(opA(M[blk, ch]))
assert len(blocks) == 16
T_S1S = len(blocks)
for M in (s_[0], s_[1], s_[2], E_mat(True)): add(opA(M))
T_DEL = add(opA(s_[3])); add(opA(s_[4]))
T_A3 = len(blocks)
for i in range(10): add(opA(a3[i]))
T_ADDR = len(blocks)
at = np.zeros((2, 256, 4), np.uint32)
for ty, (sig, m) in enumerate(((2, 1), (1, 0))):
    for tid in range(256):
        w, l = divmod(tid, 64); n, mq = l % 16, l//16
        v = [vaddr(acol(sig, m, mq//2, 64*w+4*n+2*bop+(mq % 2))) for bop in range(2)]
        v += [6400 + vaddr(acol(sig, m, mq % 2, 64*w+4*n+2*(mq//2)+sub)) for sub in range(2)]
        k5 = 256 + 16*w + n
        if mq < 2: v += [vaddr(acol(sig, m, mq, k5)), 3200 + vaddr(acol(sig, m, mq, k5))]
        elif mq == 2: v += [6400 + vaddr(acol(sig, m, 0, k5)), 6400 + vaddr(acol(sig, m, 1, k5))]
        else: v += [L_JUNK + 4*n, L_JUNK + 4*n]
        at[ty, tid, :3] = [v[0] | (v[1] << 16), v[2] | (v[3] << 16), v[4] | (v[5] << 16)]
for i in range(8): add(at.reshape(-1)[256*i:256*i+256])
for i in range(640): assert (i*205) >> 14 == i//80
for i in range(320): assert (i*205) >> 11 == i//10

vL16, vH1s2, vH2ld, vH2ld5, vC1ld, vRtW, vRtR, vRtR2, vH2st, vH2st2, vStR, vStW = range(1, 13)
vVrd, vVrd2, vEps = 13, 14, 15
vV = 16
vXT = 22
vMask0 = 27; vG = 28
vTB = 31
vZc = 248
X = 32
A3r = 52; S1r = 56; B1r = 72; TWc = 80; TWs = 92; A2r = 104; CM = 140; DEL = 172
Bo = 180
T = 192
vZ = 4
def vr(b, n=4): return f'v[{b}:{b+n-1}]'
def v2(b): return f'v[{b}:{b+1}]'
sW, sSig, sM, sG, sType, sLayer, sMode = 's3', 's4', 's5', 's26', 's27', 's29', 's30'
sH1st, sH1ld0, sH1ld1, sH2st, sH2ld, sTag, sFlip, sSpin = 's31', 's32', 's33', 's34', 's35', 's36', 's37', 's38'
sCl, sGi, sInv, sFix = 's44', 's46', 's40', 's41'
sSlot = 's[42:43]'
SX, SO, SWS, STB = 's[8:11]', 's[12:15]', 's[16:19]', 's[24:25]'
HW = 4
a = Asm()
nst = []
def stamp(name, inloop=False, real=False):
    if SST and inloop and name not in ('top', 'bar1'): return
    if STAMPS:
        i = len(nst); nst.append(name)
        assert i < 16
        ins = f's_{"memrealtime" if real else "memtime"} s[{60+2*i}:{61+2*i}]'
        a(ins)
LATE = ('h2ack', 'h2ok')
def sst(name):
    if SST: stamp(name)
def clean5(soff, fl=' sc1'):
    for i in range(4): a(f'buffer_store_dwordx4 {vr(vZ)}, v{vL16}, {SWS}, {soff} offen offset:{1024*i}{fl}')
    a(f's_add_u32 s7, {soff}, 4096\nbuffer_store_dwordx4 {vr(vZ)}, v{vL16}, {SWS}, s7 offen{fl}')
def mfma(d, A, B, C): a(f'v_mfma_f32_16x16x32_f16 {vr(d)}, {vr(A)}, {vr(B)}, {"0" if C is None else vr(C)}')

stamp('start'); stamp('rstart', real=True)
n_v, kq_v = T+10, T+11
a(f"""
s_load_dwordx2 s[16:17], s[0:1], 96
s_load_dwordx2 s[8:9], s[0:1], 0
s_load_dwordx2 s[12:13], s[0:1], 80
v_lshrrev_b32 v{T+1}, 6, v0
s_cmp_ge_u32 s2, 256
s_cbranch_scc1 L_end
""")
if opt('cpref', 1):
    a(f"""
s_getpc_b64 s[24:25]
v_lshlrev_b32 v{T+2}, 7, v0
v_min_u32 v{T+2}, L_codeend-{KNAME}-64, v{T+2}
global_load_dword v255, v{T+2}, s[24:25]
""")
a(f"""
v_readfirstlane_b32 {sW}, v{T+1}
v_and_b32 v{T}, 63, v0
s_and_b32 {sSig}, s2, 7
s_lshr_b32 {sM}, s2, 3
v_lshlrev_b32 v{vL16}, 4, v{T}
s_mov_b32 s18, {WS_BYTES}
s_mov_b32 s19, 0x20000
s_mov_b32 s14, 2621440
s_mov_b32 s15, 0x20000
s_cmp_eq_u32 {sW}, {HW}
s_cbranch_scc1 L_hk
s_lshl_b32 s6, {sSig}, 2
s_lshr_b32 s6, 0x9654d210, s6
s_and_b32 s6, s6, 15
s_lshl_b32 {sG}, {sM}, 4
s_add_u32 {sG}, {sG}, s6
s_cmp_eq_u32 {sSig}, 0
s_cselect_b32 s7, 248, 0
s_cmp_ge_u32 {sM}, 16
s_cselect_b32 s7, s7, 0
s_sub_u32 {sG}, {sG}, s7
s_and_b32 {sType}, {sG}, 1
""")
a(f"""
s_getpc_b64 s[24:25]
s_add_u32 s24, s24, tbl@rel32@lo+4
s_addc_u32 s25, s25, tbl@rel32@hi+12
s_lshr_b32 s7, {sG}, 7
s_lshl_b32 s94, {sType}, 2
s_sub_u32 s7, s7, s94
s_add_u32 s7, s7, {4 + T_A3}
s_cmp_eq_u32 {sG}, 128
s_cselect_b32 s7, {8 + T_A3}, s7
s_cmp_eq_u32 {sG}, 0
s_cselect_b32 s7, {9 + T_A3}, s7
s_cselect_b32 s94, {T_S1S*1024}, 0
s_lshl_b32 s7, s7, 10
s_lshl_b32 s95, {sW}, 12
s_cmp_eq_u32 {sW}, 0
s_cselect_b32 s94, s94, s95
s_cmp_eq_u32 {sW}, 1
s_cselect_b32 s7, s7, s94
s_add_u32 m0, s95, {L_TB}
v_add_u32 v{T+2}, s94, v{vL16}
v_add_u32 v{T+3}, s7, v{vL16}
s_lshl_b32 s7, {sType}, 12
s_add_u32 s7, s7, {T_ADDR*1024}
global_load_lds_dwordx4 v{T+3}, {STB}
global_load_lds_dwordx4 v{T+2}, {STB} offset:1024
global_load_lds_dwordx4 v{T+2}, {STB} offset:2048
global_load_lds_dwordx4 v{T+2}, {STB} offset:3072
v_lshl_add_u32 v{T+2}, v0, 4, s7
global_load_dwordx3 v[{vV}:{vV+2}], v{T+2}, {STB}
s_or_b32 {sFix}, s2, {sW}
""")
a(f"""
s_cmp_lg_u32 {sFix}, 0
s_cbranch_scc1 L_nodel
v_add_u32 v{T+2}, {T_DEL*1024}, v{vL16}
global_load_dwordx4 {vr(DEL)}, v{T+2}, {STB}
global_load_dwordx4 {vr(DEL+4)}, v{T+2}, {STB} offset:1024
L_nodel:
""")
a(f"""
s_sub_u32 s92, 0, {sG}
s_and_b32 s92, s92, 511
s_cmp_eq_u32 {sG}, 0
s_cselect_b32 s92, 256, s92
s_mul_i32 s92, s92, 1280
s_mul_i32 s93, {sG}, 1280
s_sub_u32 s92, s92, s93
s_sub_u32 s92, s92, {4*655360}
s_mov_b32 s10, 2621440
s_mov_b32 s11, 0x20000
s_mov_b32 s96, 0x9fb00
v_lshlrev_b32 v{vRtR}, 4, v0
""")
for i in range(3):
    a(f"""v_add_u32 v{T+12}, {256*i}, v0
v_mul_u32_u24 v{T+12}, 205, v{T+12}
v_lshrrev_b32 v{T+12}, 14, v{T+12}
v_mov_b32 v{T+13}, s92
v_cmp_le_u32 vcc, 4, v{T+12}
v_mad_u32_u24 v{T+12}, v{T+12}, s96, v{vRtR}
v_cndmask_b32 v{T+13}, 0, v{T+13}, vcc
v_add3_u32 v{vG+i}, v{T+12}, v{T+13}, s93""".replace(f'v_add_u32 v{T+12}, 0, v0\nv_mul_u32_u24 v{T+12}, 205, v{T+12}', f'v_mul_u32_u24 v{T+12}, 205, v0'))
    if i < 2: a(f's_add_u32 s93, s93, 4096')
a(f"""
""")
sst('prek')
a(f"""
s_waitcnt lgkmcnt(0)
s_lshl_b32 s7, {sW}, 10
s_add_u32 m0, s7, {L_XT}
s_nop 1
buffer_load_dwordx4 v{vG}, {SX}, 0 offen lds
s_add_u32 m0, s7, {L_XT+4096}
s_cmp_ge_u32 {sW}, 2
buffer_load_dwordx4 v{vG+1}, {SX}, 0 offen lds
s_cbranch_scc1 L_nox2
s_add_u32 m0, s7, {L_XT+8192}
s_nop 0
buffer_load_dwordx4 v{vG+2}, {SX}, 0 offen lds
s_branch L_x2
L_nox2:
v_mov_b32 v{vG+2}, {OOB}
buffer_load_dword v254, v{vG+2}, {SX}, 0 offen
L_x2:
""")
sst('xiss')
sst('dma')
a(f"""
v_and_b32 v{n_v}, 15, v0
v_bfe_u32 v{kq_v}, v0, 4, 2
s_mul_i32 s94, {sType}, 320
v_lshrrev_b32 v{T+13}, 1, v{kq_v}
v_mul_u32_u24 v{T+14}, s94, v{T+13}
s_lshl_b32 s92, {sW}, 5
v_add3_u32 v{T+12}, v{n_v}, v{T+14}, s92
s_and_b32 s92, {sW}, 1
s_lshl_b32 s92, s92, 3
s_lshr_b32 s93, {sW}, 1
s_lshl_b32 s93, s93, 5
s_add_u32 s92, s92, s93
s_add_u32 s92, s92, 256
v_lshrrev_b32 v{T+17}, 1, v{n_v}
v_and_b32 v{T+18}, 1, v0
v_add3_u32 v{T+17}, v{T+17}, v{T+14}, s92
v_lshl_add_u32 v{T+17}, v{T+18}, 4, v{T+17}
s_xor_b32 s94, {sType}, 1
v_and_b32 v{T+13}, s94, v{T+13}
v_xor_b32 v{T+13}, v{T+13}, v{kq_v}
v_add_u32 v{T+14}, 16, v{T+12}
v_and_b32 v{T+13}, 1, v{T+13}
v_add_u32 v{T+15}, 128, v{T+12}
v_cmp_eq_u32 vcc, 1, v{T+13}
v_add_u32 v{T+16}, 144, v{T+12}
s_mul_i32 s94, s94, 320
""")
ecol = [T+12, T+14, T+15, T+16, T+17]
for kl in range(5): a(f'v_sub_u32 v{T+18+kl}, 640, v{ecol[kl]}')
for kl in range(5): a(f'v_cndmask_b32 v{vXT+kl}, v{ecol[kl]}, v{T+18+kl}, vcc')
a(f"""
v_cmp_gt_u32 vcc, 2, v{kq_v}
v_mov_b32 v{T+17}, s94
v_and_b32 v{T+13}, 1, v{kq_v}
v_cndmask_b32 v{T+17}, 0, v{T+17}, vcc
v_cmp_eq_u32 vcc, 0, v{T+12}
v_mul_u32_u24 v{T+9}, 0x1400, v{T+13}
v_add_u32 v{T+14}, {L_XT}, v{T+9}
v_cndmask_b32 v{vXT}, v{vXT}, v{T+17}, vcc
v_cmp_ne_u32 vcc, 0, v{vXT}
""")
for kl in range(5): a(f'v_lshl_add_u32 v{vXT+kl}, v{vXT+kl}, 1, v{T+14}')
a(f'v_cndmask_b32 v{vMask0}, 0, -1, vcc')
for i in range(20): a(f'v_mov_b32 v{X+i}, 0')
for i in range(4): a(f'v_mov_b32 v{vZc+i}, 0')
a(f"""
s_lshr_b32 s95, {sM}, 3
s_lshl_b32 s7, s95, 2
s_lshr_b32 s7, 0x1120, s7
s_and_b32 s7, s7, 3
s_add_u32 s96, s6, 256
s_cmp_eq_u32 {sSig}, 0
s_cselect_b32 s96, 8, s96
s_lshl_b32 s94, {sW}, 4
s_add_u32 s6, s6, s94
s_add_u32 s96, s96, s94
v_lshl_add_u32 v{T+13}, v{n_v}, 2, s7
v_lshl_add_u32 v{T+14}, v{kq_v}, 6, s6
v_lshl_add_u32 v{T+15}, v{kq_v}, 6, s96
v_add_u32 v{T+12}, 64, v{T+13}
s_mov_b32 s94, {f2u(1/2048):#x}
""")
G = T+24
for hi in range(2):
    for ch in range(2): a(f'v_mul_u32_u24 v{G+2*(2*hi+ch)}, v{T+13-hi}, v{T+14+ch}')
for k in range(4): a(f'v_and_b32 v{G+2*k}, 0x7ff, v{G+2*k}')
for k in range(4): a(f'v_cvt_f32_u32 v{G+2*k}, v{G+2*k}')
for k in range(4): a(f'v_mul_f32 v{G+2*k}, s94, v{G+2*k}')
for k in range(4): a(f'v_sin_f32 v{G+2*k+1}, v{G+2*k}\nv_cos_f32 v{G+2*k}, v{G+2*k}')
for k in range(4): a(f'v_cvt_pk_f16_f32 v{G+8+2*k}, v{G+2*k}, v{G+2*k+1}\nv_cvt_pk_f16_f32 v{G+9+2*k}, -v{G+2*k+1}, v{G+2*k}')
a(f's_cmp_lg_u32 {sSig}, 0\ns_cbranch_scc1 L_cm_done')
for hi in range(2):
    b = G+8+4*hi
    a(f'v_mov_b32 v{b+1}, 0\nv_mov_b32 v{b+3}, v{b+2}\nv_mov_b32 v{b+2}, 0')
a(f"""
v_and_b32 v{T+17}, 1, v0
v_lshlrev_b32 v{T+17}, 4, v{T+17}
v_mov_b32 v{T+18}, 0x3c00
v_lshlrev_b32 v{T+17}, v{T+17}, v{T+18}
v_cmp_gt_u32 vcc, 16, v0
v_cndmask_b32 v{G+8}, v{G+8}, v{T+17}, vcc
v_cndmask_b32 v{G+12}, v{G+12}, v{T+17}, vcc
L_cm_done:
""")
sst('cm')
a(f'''
v_lshlrev_b32 v{T+12}, 2, v{kq_v}
v_mul_u32_u24 v{T+12}, v{T+12}, v{n_v}
v_cvt_f32_u32 v{T+12}, v{T+12}
v_cvt_f32_u32 v{T+13}, v{n_v}
v_mul_f32 v{T+12}, {f2u(1/640):#x}, v{T+12}
v_mul_f32 v{T+13}, {f2u(1/640):#x}, v{T+13}
''')
for blk in range(3):
    for i in range(4):
        k = 16*blk + i
        if k == 0: src = T+12
        else:
            src = T+14
            a(f'v_fmamk_f32 v{T+14}, v{T+13}, {f2u(float(k)):#x}, v{T+12}')
        a(f'v_cos_f32 v{TWc+4*blk+i}, v{src}\nv_sin_f32 v{TWs+4*blk+i}, v{src}')
a(f"""
s_mov_b32 {sInv}, {f2u(1/640):#x}
v_mov_b32 v{vEps}, {f2u(1e-5):#x}
v_mov_b32 v{Bo+10}, 0
v_mov_b32 v{Bo+11}, 0
s_mov_b32 {sLayer}, 0
s_mov_b32 {sTag}, 1
s_mov_b32 {sFlip}, 0
s_cmp_lt_u32 {sW}, 2
s_cselect_b64 {sSlot}, 1, 0
s_cselect_b32 s7, 3200, 0
s_cselect_b32 s52, 12, 8
s_cselect_b32 s53, 0, 32
s_lshl_b32 s7, s7, {sW}
v_lshlrev_b32 v{T+12}, 4, v{kq_v}
v_mul_u32_u24 v{vVrd}, 80, v{n_v}
v_add3_u32 v{vVrd}, v{vVrd}, v{T+12}, s7
v_and_b32 v{vVrd2}, 7, v0
v_mul_u32_u24 v{vVrd2}, 80, v{vVrd2}
s_add_u32 s7, s7, 2560
v_add3_u32 v{vVrd2}, v{vVrd2}, v{T+12}, s7
s_mul_i32 s54, s52, {sW}
s_lshl_b32 s54, s54, 2
s_add_u32 s54, s54, s53
s_sub_u32 s7, s52, 1
v_min_u32 v{T+13}, s7, v{n_v}
v_lshlrev_b32 v{T+13}, 2, v{T+13}
s_movk_i32 s7, 5120
v_mad_u32_u24 v{vC1ld}, v{kq_v}, s7, v{T+13}
v_mul_u32_u24 v{vRtW}, 160, v{n_v}
s_add_u32 s7, s54, {L_RT}
v_add3_u32 v{vRtW}, v{vRtW}, v{T+12}, s7
s_lshl_b32 s7, s52, 2
v_cmp_gt_u32 vcc, s7, v{T+12}
v_add_u32 v{T+13}, {L_XT}, v{vL16}
v_cndmask_b32 v{vRtW}, v{T+13}, v{vRtW}, vcc
v_mul_u32_u24 v{T+13}, 205, v0
v_lshrrev_b32 v{T+13}, 11, v{T+13}
v_mul_u32_u24 v{T+13}, 10080, v{T+13}
v_add_u32 v{vH2st}, v{T+13}, v{vRtR}
s_lshl_b32 s7, {sW}, 4
s_add_u32 s7, s7, 256
v_add_u32 v{T+13}, s7, v{n_v}
v_lshlrev_b32 v{vRtR2}, 4, v{T+13}
v_mul_u32_u24 v{T+13}, 205, v{T+13}
v_lshrrev_b32 v{T+13}, 11, v{T+13}
v_mul_u32_u24 v{T+13}, 10080, v{T+13}
v_add_u32 v{vH2st2}, v{T+13}, v{vRtR2}
v_cmp_eq_u32 vcc, 0, v{kq_v}
v_mov_b32 v{T+13}, {OOB}
v_cndmask_b32 v{vH2st2}, v{T+13}, v{vH2st2}, vcc
v_add_u32 v{vRtR}, {L_RT}, v{vRtR}
v_add_u32 v{vRtR2}, {L_RT}, v{vRtR2}
v_lshrrev_b32 v{vH1s2}, 1, v{vL16}
v_add_u32 v{vH1s2}, {1024-128}, v{vH1s2}
v_add_u32 v{T+14}, -1, v{kq_v}
v_cmp_gt_u32 vcc, 2, v{T+14}
v_cndmask_b32 v{vH1s2}, v{T+13}, v{vH1s2}, vcc
v_and_b32 v{T+13}, 1, v{kq_v}
v_lshlrev_b32 v{T+13}, 7, v{T+13}
v_and_b32 v{T+14}, 3, v0
v_lshl_add_u32 v{vStR}, v{T+14}, 5, v{T+13}
v_add_u32 v{vStR}, {L_ST}, v{vStR}
v_bfe_u32 v{T+14}, v0, 2, 1
v_lshl_add_u32 v{T+13}, v{T+14}, 6, v{T+13}
v_bfe_u32 v{T+14}, v0, 3, 1
v_lshl_add_u32 v{T+13}, v{T+14}, 5, v{T+13}
v_bfe_u32 v{T+14}, v0, 5, 1
v_lshl_add_u32 v{T+13}, v{T+14}, 2, v{T+13}
s_lshl_b32 s7, {sW}, 3
s_add_u32 s7, s7, {L_ST}
v_add_u32 v{vStW}, s7, v{T+13}
s_and_b32 s93, {sM}, 7
s_mul_i32 s93, s93, 160
s_lshl_b32 s94, {sSig}, 7
s_add_u32 s92, s94, {sM}
s_mul_i32 s92, s92, 1280
s_mul_i32 {sH1st}, {sW}, 40960
s_add_u32 {sH1st}, {sH1st}, s92
s_add_u32 {sH1st}, {sH1st}, {H1BASE}
s_lshl_b32 s96, s95, 5
s_add_u32 s96, s96, s94
s_mul_i32 {sH1ld0}, s96, 1280
s_add_u32 {sH1ld0}, {sH1ld0}, s93
s_add_u32 s96, s54, {H1BASE}
s_add_u32 {sH1ld0}, {sH1ld0}, s96
s_add_u32 {sH1ld1}, {sH1ld0}, 20480
s_lshl_b32 s96, s95, 8
s_add_u32 s96, s96, {sSig}
s_mul_i32 {sH2st}, s96, 1280
s_add_u32 {sH2st}, {sH2st}, s93
s_add_u32 {sH2st}, {sH2st}, {H2BASE}
s_mov_b32 {sH2ld}, {H2BASE-BUF}
s_add_u32 {sCl}, {sH2st}, {2*BUF}
s_and_b32 s7, {sG}, 127
s_lshr_b32 s7, s7, 2
s_sub_u32 s94, 0, {sG}
s_and_b32 s94, s94, 127
s_lshr_b32 s94, s94, 2
s_bfe_u32 s95, {sG}, 0x10001
s_cmp_eq_u32 {sType}, 1
s_cselect_b32 s94, s7, s94
s_cselect_b32 s96, 2, s95
s_cselect_b32 s95, 3, s95
s_lshl_b32 s96, s96, 5
s_lshl_b32 s95, s95, 5
s_add_u32 s7, s7, s96
s_add_u32 s94, s94, s95
s_mul_i32 s7, s7, 10240
s_mul_i32 s94, s94, 10240
v_mov_b32 v{T+12}, s7
v_mov_b32 v{T+13}, s94
v_cmp_le_u32 vcc, 2, v{kq_v}
s_lshl_b32 s95, {sW}, 8
s_lshl_b32 s96, {sW}, 6
v_cndmask_b32 v{T+12}, v{T+12}, v{T+13}, vcc
s_add_u32 s96, s96, 1024
v_add_u32 v{T+12}, v{T+12}, v{T+9}
v_lshlrev_b32 v{T+13}, 4, v{n_v}
v_add3_u32 v{vH2ld}, v{T+12}, v{T+13}, s95
v_lshlrev_b32 v{T+13}, 2, v{n_v}
v_add3_u32 v{vH2ld5}, v{T+12}, v{T+13}, s96
v_add_u32 v{vTB}, {L_TB}, v{vL16}
s_lshl_b32 s7, {sW}, 2
v_add_u32 v{T+2}, s7, v{vTB}
""")
sst('prex')
for hi in range(2):
    for ch in range(2):
        for rio in range(2):
            a(f'ds_write_b32 v{T+2}, v{G+8+2*(2*hi+ch)+rio} offset:{L_CM-L_TB+((hi*2+rio)*2+ch)*1024}')
a('s_waitcnt vmcnt(3) lgkmcnt(0)\ns_barrier')
sst('bart')
for i in range(4): a(f'ds_read_b128 {vr(S1r+4*i)}, v{vTB} offset:{1024*i}')
for i in range(9): a(f'ds_read_b128 {vr(A2r+4*i)}, v{vTB} offset:{1024*(T_A2+i)}')
for i in range(2): a(f'ds_read_b128 {vr(B1r+4*i)}, v{vTB} offset:{1024*(T_B1+i)}')
for i in range(8): a(f'ds_read_b128 {vr(CM+4*i)}, v{vTB} offset:{L_CM-L_TB+1024*i}')
a(f'ds_read_b128 {vr(A3r)}, v{vTB} offset:{1024*T_A3L}')
for i in (2, 1, 0): a(f'v_lshrrev_b32 v{vV+2*i+1}, 16, v{vV+i}\nv_and_b32 v{vV+2*i}, 0xffff, v{vV+i}')
a(f's_cmp_eq_u32 {sW}, 3\ns_cselect_b32 s7, 0x80008000, 0\ns_waitcnt lgkmcnt(11)')
for i in range(18): a(f'v_xor_b32 v{A2r+2*i+1}, s7, v{A2r+2*i+1}')
a('s_waitcnt vmcnt(0)\ns_barrier')
sst('bar0')
for kl in range(5):
    for j in range(4): a(f'ds_read_u16_d16_hi v{X+4*kl+j}, v{vXT+kl} offset:{1280*j}')
a('s_waitcnt lgkmcnt(0)')
Sx, Qx = T, T+4
a('L_loop:')
stamp('top', True)
for p in range(2):
    a(f'v_pk_add_f32 {v2(Sx+2*p)}, {v2(X+2*p)}, {v2(X+4+2*p)}')
    a(f'v_pk_mul_f32 {v2(Qx+2*p)}, {v2(X+2*p)}, {v2(X+2*p)}')
for kl in range(1, 5):
    for p in range(2):
        b = X+4*kl+2*p
        a(f'v_pk_fma_f32 {v2(Qx+2*p)}, {v2(b)}, {v2(b)}, {v2(Qx+2*p)}')
        if kl > 1: a(f'v_pk_add_f32 {v2(Sx+2*p)}, {v2(Sx+2*p)}, {v2(b)}')
for j in range(4): a(f'v_permlane32_swap_b32 v{Sx+j}, v{Qx+j}')
for p in range(2): a(f'v_pk_add_f32 {v2(Sx+2*p)}, {v2(Sx+2*p)}, {v2(Qx+2*p)}')
def dpp(d, s, ctl, bank): a(f'v_add_f32_dpp v{d}, v{s}, v{s} {ctl} row_mask:0xf bank_mask:{bank:#x}')
dpp(Sx, Sx, 'row_ror:8', 3); dpp(Sx, Sx+1, 'row_ror:8', 12); dpp(Sx+2, Sx+2, 'row_ror:8', 3); dpp(Sx+2, Sx+3, 'row_ror:8', 12)
dpp(Sx, Sx, 'row_shl:4', 5); dpp(Sx, Sx+2, 'row_shr:4', 10)
dpp(Sx, Sx, 'quad_perm:[1,0,3,2]', 15); dpp(Sx, Sx, 'quad_perm:[2,3,0,1]', 15)
a(f"""
ds_write_b32 v{vStW}, v{Sx}
s_waitcnt lgkmcnt(0)
s_barrier
""")
stamp('bar1', True)
P = T+8; RS = T+16; NB = T+20
a(f"""
ds_read_b128 {vr(P)}, v{vStR}
ds_read_b128 {vr(P+4)}, v{vStR} offset:16
s_waitcnt lgkmcnt(1)
v_pk_add_f32 {v2(P)}, {v2(P)}, {v2(P+2)}
s_waitcnt lgkmcnt(0)
v_pk_add_f32 {v2(P+4)}, {v2(P+4)}, {v2(P+6)}
v_pk_add_f32 {v2(P)}, {v2(P)}, {v2(P+4)}
v_mul_f32 v{P}, {sInv}, v{P}
v_fma_f32 v{P+1}, v{P+1}, {sInv}, v{vEps}
v_fma_f32 v{P+1}, -v{P}, v{P}, v{P+1}
v_max_f32 v{P+1}, v{P+1}, v{vEps}
v_rsq_f32 v{P+1}, v{P+1}
v_mul_f32 v{P}, -v{P}, v{P+1}
""")
for j in range(4): a(f'v_mov_b32_dpp v{RS+j}, v{P+1} quad_perm:[{j},{j},{j},{j}] row_mask:0xf bank_mask:0xf')
for j in range(4): a(f'v_mov_b32_dpp v{NB+j}, v{P} quad_perm:[{j},{j},{j},{j}] row_mask:0xf bank_mask:0xf')
N_ = T+24
D0, D1, DC, DE = T, T+4, T+8, T+12
def norm(kl):
    for p in range(2): a(f'v_pk_fma_f32 {v2(N_+4*(kl%2)+2*p)}, {v2(X+4*kl+2*p)}, {v2(RS+2*p)}, {v2(NB+2*p)}')
def cvtn(kl):
    for p in range(2): a(f'v_cvt_pk_f16_f32 v{Bo+2*kl+p}, v{N_+4*(kl%2)+2*p}, v{N_+4*(kl%2)+2*p+1}')
norm(0); norm(1); cvtn(0); cvtn(1); norm(2); norm(3)
mfma(D0, S1r, Bo, None); mfma(DC, S1r+4, Bo, None)
cvtn(2); cvtn(3); norm(4)
mfma(D1, S1r, Bo+4, None); mfma(DC, S1r+8, Bo+4, DC)
cvtn(4)
a(f's_cmp_lg_u32 {sFix}, 0')
W_ = T+32
a(f'v_cvt_pk_f16_f32 v{W_}, v{D0}, v{D0+1}')
mfma(DE, S1r+12, Bo+8, None)
a(f's_cbranch_scc0 L_fix\nL_nofix:')
a(f"""
v_cvt_pk_f16_f32 v{W_+1}, v{D0+2}, v{D0+3}
ds_write_b32 v{vV}, v{W_}
ds_write_b32 v{vV}, v{W_+1} offset:3200
v_cvt_pk_f16_f32 v{W_+2}, v{D1}, v{D1+1}
v_cvt_pk_f16_f32 v{W_+3}, v{D1+2}, v{D1+3}
v_cvt_pk_f16_f32 v{W_+4}, v{DC}, v{DC+1}
v_cvt_pk_f16_f32 v{W_+5}, v{DC+2}, v{DC+3}
ds_write_b32 v{vV+1}, v{W_+2}
ds_write_b32 v{vV+1}, v{W_+3} offset:3200
v_cvt_pk_f16_f32 v{W_+6}, v{DE}, v{DE+1}
v_cvt_pk_f16_f32 v{W_+7}, v{DE+2}, v{DE+3}
ds_write_b32 v{vV+2}, v{W_+4}
ds_write_b32 v{vV+3}, v{W_+5}
ds_write_b32 v{vV+4}, v{W_+6}
ds_write_b32 v{vV+5}, v{W_+7}
""")
stamp('s1w', True)
a(f's_cmp_eq_u32 {sLayer}, 0\ns_waitcnt lgkmcnt(0)\ns_barrier')
stamp('bar2', True)
Ad = T; Tr = T+12; Ti = T+24; B2 = T+36; O = T; Pt = T+48; Qt = T+52
a(f"""
ds_read_b128 {vr(Ad)}, v{vVrd}
ds_read_b128 {vr(Ad+4)}, v{vVrd} offset:1280
ds_read_b128 {vr(Ad+8)}, v{vVrd2}
s_cbranch_scc1 L_l0b
L_l0b_ret:
""")
for blk in range(3):
    a(f's_waitcnt lgkmcnt({2-blk})')
    mfma(Tr+4*blk, Ad+4*blk, B1r, None); mfma(Ti+4*blk, Ad+4*blk, B1r+4, None)
for ch in range(3):
    for p in range(2):
        r_, i_ = Tr+4*ch+2*p, Ti+4*ch+2*p; c_ = TWc+4*ch+2*p
        a(f'v_pk_mul_f32 {v2(Pt+2*p)}, {v2(r_)}, {v2(c_)}')
        a(f'v_pk_mul_f32 {v2(Qt+2*p)}, {v2(i_)}, {v2(c_)}')
    for p in range(2):
        r_, i_ = Tr+4*ch+2*p, Ti+4*ch+2*p; s_2 = TWs+4*ch+2*p
        a(f'v_pk_fma_f32 {v2(Pt+2*p)}, {v2(i_)}, {v2(s_2)}, {v2(Pt+2*p)}')
        a(f'v_pk_fma_f32 {v2(Qt+2*p)}, {v2(r_)}, {v2(s_2)}, {v2(Qt+2*p)} neg_lo:[1,0,0] neg_hi:[1,0,0]')
        if ch > 0 and p == 0: mfma(O+8, A2r+(6+ch-1)*4, B2+4*(ch-1), None if ch == 1 else O+8)
    for i in range(4): a(f'v_cvt_pk_f16_f32 v{B2+4*ch+i}, v{Pt+i}, v{Qt+i}')
    if ch == 2: a(f's_cmp_lg_u32 {sMode}, 0')
    for blk in ((0, 1) if ch < 2 else (2, 0, 1)):
        mfma(O+4*blk, A2r+(blk*3+ch)*4, B2+4*ch, None if ch == 0 else O+4*blk)
Wo = T+12
for i in (4, 5, 0, 1, 2, 3): a(f'v_cvt_pk_f16_f32 v{Wo+i}, v{O+2*i}, v{O+2*i+1}')
a(f'v_cndmask_b32 v{Wo}, v{Wo}, v{Wo+4}, {sSlot}')
for i in (4, 5, 1, 2, 3, 0): a(f'v_and_or_b32 v{Wo+i}, v{Wo+i}, -2, {sTag}')
a(f"""
s_cbranch_scc1 L_st_slow
buffer_store_dwordx4 {vr(Wo)}, v{vL16}, {SWS}, {sH1st} offen
buffer_store_dwordx2 {v2(Wo+4)}, v{vH1s2}, {SWS}, {sH1st} offen
L_cphase:
""")
stamp('h1st', True)
Ca = T+20; Dm = T+28; K_ = T+44
a(f"""
s_mov_b32 {sSpin}, {SPIN}
s_xor_b32 {sH1st}, {sH1st}, {H1STR}
s_add_u32 {sH2ld}, {sH2ld}, {BUF}
s_cmp_eq_u32 {sLayer}, 0
s_cbranch_scc1 L_l0c
L_l0c_ret:
""")
if opt('ack1'): a('s_waitcnt vmcnt(0)')
a('L_poll1:')
for ch in range(2):
    for u in range(4):
        a(f'buffer_load_dword v{Ca+4*ch+u}, v{vC1ld}, {SWS}, {sH1ld0 if ch == 0 else sH1ld1} offen offset:{1280*u} sc1')
a(f's_sub_u32 {sSpin}, {sSpin}, 1\ns_cbranch_scc1 L_poll1_to\ns_waitcnt vmcnt(0)')
tt = sum((((i >> 2 & 1) ^ (i & 1)) & ((i >> 1 & 1) ^ (i & 1))) << i for i in range(8))
for i in range(4): a(f'v_bitop3_b32 v{K_+i}, v{Ca+2*i}, v{Ca+2*i+1}, {sFlip} bitop3:{tt:#x}')
def cm(hi, ch, rio):
    d = Dm + (hi*2+rio)*4
    mfma(d, Ca+4*ch, CM+((hi*2+rio)*2+ch)*4, None if ch == 0 else d)
cm(0, 0, 0)
a(f'v_bitop3_b32 v{K_}, v{K_}, v{K_+1}, v{K_+2} bitop3:0x80')
cm(0, 0, 1)
a(f'v_bitop3_b32 v{K_}, v{K_}, v{K_+3}, 1 bitop3:0x80')
cm(0, 1, 0)
a(f'v_cmp_eq_u32 vcc, 0, v{K_}')
cm(0, 1, 1)
a('s_cbranch_vccnz L_poll1\nL_poll1_done:')
stamp('h1ok', True)
cm(1, 0, 0); cm(1, 0, 1); cm(1, 1, 0); cm(1, 1, 1)
for hi in range(2):
    for i in range(4): a(f'v_cvt_pk_f16_f32 v{K_+4*hi+i}, v{Dm+8*hi+i}, v{Dm+8*hi+4+i}')
    for i in range(4): a(f'v_or_b32 v{K_+4*hi+i}, 1, v{K_+4*hi+i}')
    a(f'ds_write_b128 v{vRtW}, {vr(K_+4*hi)} offset:{2560*hi}')
a(f"""
s_waitcnt lgkmcnt(0)
s_barrier
ds_read_b128 {vr(T)}, v{vRtR}
ds_read_b128 {vr(T+4)}, v{vRtR2}
s_waitcnt lgkmcnt(1)
buffer_store_dwordx4 {vr(T)}, v{vH2st}, {SWS}, {sH2st} offen sc1
s_waitcnt lgkmcnt(0)
buffer_store_dwordx4 {vr(T+4)}, v{vH2st2}, {SWS}, {sH2st} offen sc1
""")
stamp('h2st', True)
CLN = f's_mov_b32 {sCl}, {OOB}' if opt('h3', 1) else f's_add_u32 {sCl}, {sCl}, {BUF}'
a(f"""
buffer_store_dwordx4 {vr(vZc)}, v{vH2st}, {SWS}, {sCl} offen sc1
buffer_store_dwordx4 {vr(vZc)}, v{vH2st2}, {SWS}, {sCl} offen sc1
{CLN}
s_mov_b32 {sSpin}, {SPIN}
s_add_u32 {sLayer}, {sLayer}, 1
s_add_u32 {sH2st}, {sH2st}, {BUF}
s_xor_b32 {sH1ld0}, {sH1ld0}, {H1STR}
s_xor_b32 {sH1ld1}, {sH1ld1}, {H1STR}
s_cmp_ge_u32 {sLayer}, 2
s_cselect_b32 {sTag}, 0, 1
s_cselect_b32 {sFlip}, -1, 0
s_cmp_eq_u32 {sLayer}, 1
s_cbranch_scc1 L_l0d
L_l0d_ret:
s_waitcnt vmcnt(2)
""")
stamp('h2ack', True)
a('L_poll2:')
Lh = T+8; K2 = T+28
for u in range(4): a(f'buffer_load_dwordx4 {vr(Lh+4*u)}, v{vH2ld}, {SWS}, {sH2ld} offen offset:{1280*u} sc1')
for u in range(4): a(f'buffer_load_dword v{Lh+16+u}, v{vH2ld5}, {SWS}, {sH2ld} offen offset:{1280*u} sc1')
a(f's_sub_u32 {sSpin}, {sSpin}, 1\ns_cbranch_scc1 L_poll2_to\ns_waitcnt vmcnt(0)')
for i in range(6): a(f'v_bitop3_b32 v{K2+i}, v{Lh+3*i}, v{Lh+3*i+1}, v{Lh+3*i+2} bitop3:0x80')
a(f"""
v_bitop3_b32 v{K2}, v{K2}, v{K2+1}, v{K2+2} bitop3:0x80
v_bitop3_b32 v{K2+3}, v{K2+3}, v{K2+4}, v{K2+5} bitop3:0x80
v_bitop3_b32 v{K2+1}, v{Lh+18}, v{Lh+19}, 1 bitop3:0x80
v_bitop3_b32 v{K2}, v{K2}, v{K2+3}, v{K2+1} bitop3:0x80
v_cmp_eq_u32 vcc, 0, v{K2}
v_swap_b32 v{Lh+1}, v{Lh+4}
s_cbranch_vccnz L_poll2
L_poll2_done:
""")
stamp('h2ok', True)
mfma(X+16, A3r, Lh+16, X+16)
for kl in range(2, 4): a(f'v_swap_b32 v{Lh+kl}, v{Lh+4*kl}')
for u in range(4): a(f'v_and_b32 v{Lh+u}, v{vMask0}, v{Lh+u}')
a(f'v_swap_b32 v{Lh+6}, v{Lh+9}\nv_swap_b32 v{Lh+7}, v{Lh+13}')
mfma(X, A3r, Lh, X)
a(f'v_swap_b32 v{Lh+11}, v{Lh+14}')
mfma(X+4, A3r, Lh+4, X+4)
a(f's_cmp_lt_u32 {sLayer}, {NLAYER}')
mfma(X+8, A3r, Lh+8, X+8); mfma(X+12, A3r, Lh+12, X+12)
a('s_nop 3\ns_cbranch_scc1 L_loop')
F = T
for kl in range(5):
    for p in range(2): a(f'v_cvt_pk_bf16_f32 v{F+2*kl+p}, v{X+4*kl+2*p}, v{X+4*kl+2*p+1}')
    for p in range(2):
        a(f'ds_write_b16 v{vXT+kl}, v{F+2*kl+p} offset:{2560*p}')
        a(f'ds_write_b16_d16_hi v{vXT+kl}, v{F+2*kl+p} offset:{2560*p+1280}')
a('s_waitcnt lgkmcnt(0)\ns_barrier')
for i in range(3): a(f'ds_read_b128 {vr(T+12+4*i)}, v{vRtR} offset:{L_XT-L_RT+4096*i}')
for i in range(3): a(f's_waitcnt lgkmcnt({2-i})\nbuffer_store_dwordx4 {vr(T+12+4*i)}, v{vG+i}, {SO}, 0 offen')
def stamp_dump(hk):
    if hk: a(f's_memtime s[{60+2*nst.index("end")}:{61+2*nst.index("end")}]\ns_memrealtime s[{60+2*nst.index("rend")}:{61+2*nst.index("rend")}]\ns_waitcnt lgkmcnt(0)')
    a(f's_lshl_b32 s7, s2, 7\ns_add_u32 s7, s7, {STAMP_OFF}\nv_mov_b32 v1, 0\ns_mov_b64 exec, 1')
    for i in range(len(nst)): a(f'v_mov_b32 v2, s{60+2*i}\nbuffer_store_dword v2, v1, {SWS}, s7 offen offset:{4*i}')
if STAMPS:
    a('s_waitcnt vmcnt(0)'); stamp('end'); stamp('rend', real=True)
    a(f's_waitcnt lgkmcnt(0)\ns_cmp_lg_u32 {sW}, {opt("swave")}\ns_cbranch_scc1 L_end')
    stamp_dump(False)
a('L_end:\ns_endpgm')
a('L_fix:\ns_nop 7')
mfma(T+40, DEL, Bo, None); mfma(T+44, DEL+4, Bo, None)
a('s_mov_b32 exec_lo, 0x00010001\ns_mov_b32 exec_hi, 0x00010001')
for p in range(2): a(f'v_pk_add_f32 {v2(D0+2*p)}, {v2(D0+2*p)}, {v2(T+40+2*p)}')
for p in range(2): a(f'v_pk_add_f32 {v2(DC+2*p)}, {v2(DC+2*p)}, {v2(T+44+2*p)}')
a(f's_mov_b64 exec, -1\nv_cvt_pk_f16_f32 v{W_}, v{D0}, v{D0+1}\ns_branch L_nofix')
a(f"""
L_l0b:
v_mov_b32 v{T+50}, {L_MODE}
ds_read_b32 v{T+50}, v{T+50}
s_waitcnt lgkmcnt(0)
v_readfirstlane_b32 {sMode}, v{T+50}
s_branch L_l0b_ret
L_l0c:
v_mov_b32 v{T+50}, {L_OWN}
v_lshrrev_b32 v{T+51}, 2, v{vL16}
v_and_b32 v{T+51}, 127, v{T+51}
ds_read_b32 v{T+50}, v{T+50}
ds_read_b32 v{T+52}, v{T+51} offset:{L_EXP}
s_lshl_b32 s7, {sSig}, 2
s_add_u32 s92, s7, {sW}
s_lshl_b32 s92, s92, 5
s_add_u32 s92, s92, {sM}
s_lshl_b32 s92, s92, 2
s_add_u32 s92, s92, {HF}
s_lshr_b32 s93, {sM}, 3
s_add_u32 s93, s93, s7
s_lshl_b32 s93, s93, 7
s_add_u32 s93, s93, {HF}
s_cmp_lg_u32 {sMode}, 0
s_mov_b64 exec, 1
s_waitcnt vmcnt(0) lgkmcnt(0)
s_cbranch_scc1 L_l0c_slow
buffer_store_dword v{T+50}, off, {SWS}, s92
s_branch L_l0c_p
L_l0c_slow:
buffer_store_dword v{T+50}, off, {SWS}, s92 sc1
L_l0c_p:
s_mov_b64 exec, -1
L_l0c_poll:
buffer_load_dword v{T+53}, v{T+51}, {SWS}, s93 offen sc1
s_sub_u32 {sSpin}, {sSpin}, 1
s_cbranch_scc1 L_l0c_ret
s_waitcnt vmcnt(0)
v_cmp_ne_u32 vcc, v{T+53}, v{T+52}
s_cbranch_vccnz L_l0c_poll
s_branch L_poll1
L_l0d:
v_mov_b32 v{T+50}, {L_GO}
L_l0d_spin:
ds_read_b32 v{T+51}, v{T+50}
s_waitcnt lgkmcnt(0)
v_cmp_eq_u32 vcc, 0, v{T+51}
s_cbranch_vccnz L_l0d_spin
s_branch L_l0d_ret
L_st_slow:
buffer_store_dwordx4 {vr(Wo)}, v{vL16}, {SWS}, {sH1st} offen sc1
buffer_store_dwordx2 {v2(Wo+4)}, v{vH1s2}, {SWS}, {sH1st} offen sc1
s_branch L_cphase
L_poll1_to:
s_waitcnt vmcnt(0)
s_branch L_poll1_done
L_poll2_to:
s_waitcnt vmcnt(0)
s_branch L_poll2_done
""")
H = 8
def fhash(dst, src): a(f'v_mul_lo_u32 v{dst}, v{src}, s50\nv_add_u32 v{dst}, s51, v{dst}')
def hs_group(lbl, x3, pre=False):
    a(f"""
s_mov_b32 exec_hi, 0
s_mov_b32 {sSpin}, {SPIN}
{'s_branch ' + lbl + '_chk' if pre else ''}
{lbl}:
buffer_load_dwordx3 v[{H}:{H+2}], v{vL16}, {SWS}, s54 offen sc1
s_sub_u32 {sSpin}, {sSpin}, 1
s_cbranch_scc1 {lbl}_to
s_waitcnt vmcnt(0)
{lbl}_chk:
""")
    fhash(H, H)
    a(f"""
v_xor_b32 v{H}, v{H}, v{H+(2 if x3 else 1)}
v_cmp_lt_u32 vcc, 15, v{H}
s_cbranch_vccnz {lbl}
s_branch {lbl}_done
{lbl}_to:
s_waitcnt vmcnt(0)
{lbl}_done:
v_lshrrev_b32 v{H+3}, 2, v{vL16}
ds_write_b32 v{H+3}, v{H+1} offset:{L_EXP}
v_and_b32 v{H+3}, 15, v{H+1}
v_cmp_ne_u32 vcc, s6, v{H+3}
s_mov_b64 exec, -1
""")
def hs_all(lbl, pre=False):
    a(f's_mov_b32 {sSpin}, {SPIN}')
    if pre: a(f's_branch {lbl}_w')
    a(f'{lbl}:')
    for i, r in enumerate(('s92', 's93', 's95', 's96')): a(f'buffer_load_dwordx2 {v2(H+8+2*i)}, v{vL16}, {SWS}, {r} offen sc1')
    a(f's_sub_u32 {sSpin}, {sSpin}, 1\ns_cbranch_scc1 {lbl}_done\n{lbl}_w:\ns_waitcnt vmcnt(0)')
    for i in range(4): fhash(H+8+2*i, H+8+2*i)
    for i in range(4): a(f'v_xor_b32 v{H+8+2*i}, v{H+8+2*i}, v{H+9+2*i}')
    a(f"""
v_or3_b32 v{H}, v{H+8}, v{H+10}, v{H+12}
v_or_b32 v{H}, v{H}, v{H+14}
v_cmp_lt_u32 vcc, 15, v{H}
s_cbranch_vccnz {lbl}
{lbl}_done:
s_waitcnt vmcnt(0)
""")
def flag_store(v, soff, off):
    a(f's_mov_b64 exec, 1\ns_waitcnt vmcnt(0)\nbuffer_store_dword v{v}, off, {SWS}, {soff} offset:{off} sc1\ns_mov_b64 exec, -1')
def hstamp(n):
    if opt('hstamp'): a(f's_memtime s[{60+2*nst.index(n)}:{61+2*nst.index(n)}]')
a('L_hk:')
if opt('prio', 1): a('s_setprio 3')
for i in range(4): a(f'v_mov_b32 v{vZ+i}, 0')
a(f"""
s_lshl_b32 {sGi}, {sSig}, 5
s_add_u32 {sGi}, {sGi}, {sM}
s_lshl_b32 s97, {sGi}, 4
s_add_u32 s97, s97, {FLAGS}
s_mul_i32 s94, {sGi}, 5120
s_add_u32 {sCl}, s94, {H2BASE+BUF}
s_add_u32 s94, s94, {H1BASE}
v_lshlrev_b32 v{H+18}, 8, v{vL16}
s_mov_b64 exec, 3
s_waitcnt lgkmcnt(0)
buffer_load_dword v{H+16}, v{H+18}, {SWS}, s97 offen
s_mov_b64 exec, -1
v_lshlrev_b32 v{H+4}, 3, v{vL16}
v_min_u32 v{H+21}, 4992, v{H+4}
s_lshl_b32 s7, {sSig}, 9
s_add_u32 s7, s7, {HF}
{'' if opt('nopf') else f'buffer_load_dword v{H+27}, v{H+21}, {SWS}, s94 offen'}
v_min_u32 v{H+21}, 384, v{H+4}
buffer_load_dword v{H+28}, v{H+21}, {SWS}, s7 offen
""")
a('L_hk2:')
a(f"""
s_add_u32 s98, s94, {H1STR}
s_getreg_b32 s6, hwreg(HW_REG_XCC_ID, 0, 4)
s_mov_b32 s92, {FLAGS+0x1000}
s_mov_b32 s93, {FLAGS+0x1400}
s_mov_b32 s95, {FLAGS+0x1800}
s_mov_b32 s96, {FLAGS+0x1c00}
s_mov_b32 s50, 0x9e3779b1
s_mov_b32 s51, 0x7f4a7c15
v_mov_b32 v{H+1}, {L_MODE}
ds_write_b32 v{H+1}, v{vZ} offset:4
s_lshr_b32 s52, {sM}, 3
s_lshl_b32 s52, s52, 8
s_add_u32 s52, s52, {sSig}
s_mul_i32 s52, s52, 1280
s_and_b32 s53, {sM}, 7
s_mul_i32 s53, s53, 160
s_add_u32 s52, s52, s53
s_add_u32 s52, s52, {H2BASE}
s_movk_i32 s53, 10080
s_lshl_b32 s54, {sSig}, 9
s_add_u32 s54, s54, {FLAGS}
""")
for i in range(5):
    a(f"""v_add_u32 v{H+22+i}, {1024*i}, v{vL16}
v_mul_u32_u24 v{H+21}, 205, v{H+22+i}
v_lshrrev_b32 v{H+21}, 15, v{H+21}
v_mad_u32_u24 v{H+22+i}, v{H+21}, s53, v{H+22+i}""")
hstamp('top')
a(f's_waitcnt vmcnt({1 if opt("nopf") else 2}) lgkmcnt(0)')
fhash(H+5, H+16)
a(f'v_and_or_b32 v{H+5}, v{H+5}, -16, s6')
def flag_lane(lane, off):
    a(f's_mov_b64 exec, {1 << lane}\ns_waitcnt vmcnt(0)\nbuffer_store_dword v{H+5}, v{H+18}, {SWS}, s97 offen offset:{off} sc1\ns_mov_b64 exec, -1')
def hs_issue():
    for i, r in enumerate(('s92', 's93', 's95', 's96')): a(f'buffer_load_dwordx2 {v2(H+8+2*i)}, v{vL16}, {SWS}, {r} offen sc1')
hstamp('bar1')
a(f's_mov_b64 exec, 1\nbuffer_store_dword v{H+5}, v{H+18}, {SWS}, s97 offen offset:4 sc1\nv_mov_b32 v{H+1}, {L_OWN}\nds_write_b32 v{H+1}, v{H+5}\ns_mov_b64 exec, -1')
hstamp('s1w')
a(f"""
s_barrier
s_barrier
s_mov_b32 exec_hi, 0
buffer_load_dwordx3 v[{H}:{H+2}], v{vL16}, {SWS}, s54 offen sc1
s_mov_b64 exec, -1
""")
if opt('clate'): a('s_barrier')
for i in range(5): a(f'buffer_store_dwordx4 {vr(vZ)}, v{H+22+i}, {SWS}, s52 offen sc1')
clean5(sCl); clean5('s98', '')
a(f's_add_u32 {sCl}, {sCl}, {BUF}')
if not opt('clate'): a('s_barrier')
a('s_mov_b32 exec_hi, 0\ns_waitcnt vmcnt(15)')
hstamp('bar2')
hs_group('L_hs', False, True)
a(f's_cmp_lg_u32 vcc_lo, 0\ns_cselect_b32 {sMode}, 1, {FORCE_SLOW}')
hstamp('h1st')
a(f"""
v_mov_b32 v{H}, {sMode}
v_mov_b32 v{H+1}, {L_MODE}
ds_write_b32 v{H+1}, v{H}
s_cmp_eq_u32 {sMode}, 0
s_cbranch_scc1 L_hk_go
""")
clean5('s98')
a('L_hk_go:\ns_waitcnt lgkmcnt(0)\ns_barrier')
flag_lane(1, 4)
a('s_barrier')
hs_all('L_hs2')
a(f'v_mov_b32 v{H}, 1\nv_mov_b32 v{H+1}, {L_GO}\nds_write_b32 v{H+1}, v{H}')
hstamp('h1ok')
a('s_barrier')
if opt('h3', 1):
    a(f's_add_u32 {sCl}, {sCl}, {BUF}'); clean5(sCl)
a(f"""
v_lshlrev_b32 v{H+19}, 17, v{vL16}
s_lshl_b32 s7, s2, 7
v_add_u32 v{H+16}, 1, v{H+16}
s_mov_b64 exec, 3
buffer_load_dword v{H+20}, v{H+19}, {SO}, s7 offen
s_barrier
s_waitcnt vmcnt(0)
s_barrier
s_barrier
buffer_store_dword v{H+16}, v{H+18}, {SWS}, s97 offen
""")
if opt('hstamp'): stamp_dump(True)
a('s_endpgm\nL_codeend:')

if opt('hfront', 1):
    li = [k for k, i in enumerate(a.ins) if i.text in ('L_hk:', 'L_hk2:')]
    hk = a.ins[li[0]:li[1]]
    rest = a.ins[:li[0]] + a.ins[li[1]:]
    b = [k for k, i in enumerate(rest) if i.text == 's_cbranch_scc1 L_hk'][0]
    a.ins = rest[:b] + [Ins('s_cbranch_scc0 L_main')] + hk + [Ins('s_branch L_hk2'), Ins('L_main:')] + rest[b+1:]
if opt('nodma'): a.ins = [i for i in a.ins if not i.op.startswith('global_load_lds')]
if opt('align', 1): print('align', align_pass(a, KNAME + ':\n'))
hdr = open('interleave_layers__spectral_fnet__spectral_fnet__prompt.s.ref').read().split('; Override')[0]
out = hdr + ('; STAMPS ' + ' '.join(nst) + '\n' if STAMPS else '') + f'; @launch grid=(256,1,1) block=(320,1,1) lds={LDS_BYTES}\n'
out += f'.amdgcn_target "amdgcn-amd-amdhsa--gfx950"\n.text\n.globl {KNAME}\n.p2align 8\n.type {KNAME},@function\n{KNAME}:\n'
out += a.text()
out += f'''.section .rodata,"a"
.p2align 6
.amdhsa_kernel {KNAME}
  .amdhsa_next_free_vgpr 256
  .amdhsa_next_free_sgpr 102
  .amdhsa_accum_offset 256
  .amdhsa_group_segment_fixed_size 0
  .amdhsa_kernarg_size 104
  .amdhsa_user_sgpr_count 2
  .amdhsa_user_sgpr_kernarg_segment_ptr 1
  .amdhsa_system_sgpr_workgroup_id_x 1
.end_amdhsa_kernel
.p2align 10
tbl:
'''
for f in blocks:
    for i in range(0, 256, 8): out += '.long ' + ','.join(f'{int(x):#x}' for x in f[i:i+8]) + '\n'
open(sys.argv[1], 'w').write(out)
print('instrs', len(a.ins), 'nops inserted', a.nops, 'table blocks', len(blocks), 'bytes', len(out))
```

```python
import sys, struct
import numpy as np
from design import *
from asmlib import Asm, align_pass, Ins

KNAME = "interleave_layers__spectral_fnet__spectral_fnet__prompt_kernel"
opts = dict(a.split('=') for a in sys.argv[2:] if '=' in a)
def opt(k, d=0): return int(opts.get(k, d))
STAMPS = opt('stamps'); FORCE_SLOW = opt('slow'); NLAYER = opt('layers', 4); SPIN = opt('spin', 200000); SLAYER = opt('slayer')
SST = opt('sstart')
def f2u(f): return struct.unpack('<I', struct.pack('<f', f))[0]
BUF = 1310720
FLAGS = 4096; H1BASE = 0x40000; H1STR = 0x200000; H2BASE = 0x400000; WS_BYTES = H2BASE + 4*BUF
STAMP_OFF = WS_BYTES
if STAMPS: WS_BYTES += 256*128
L_V = 0; L_ST = 9600; L_MODE = 9856; L_GO = 9860; L_OWN = 9864; L_JUNK = 9872; L_EXP = 15104; HF = FLAGS + 0x2000; L_RT = 9984; L_XT = 15360; L_TB = 25600; L_CM = L_TB + 16*1024; LDS_BYTES = L_CM + 8192
OOB = 0x40000000
WSADD = f's_add_u32 s16, s16, {opt("wsoff") << 20}\ns_addc_u32 s17, s17, 0' if opt('wsoff') else ''
def vaddr(col): return (col % 40)*80 + (col//40)*4
def opA(M):
    h = M.astype(np.float16).view(np.uint16).astype(np.uint32)
    out = np.zeros((64, 4), np.uint32)
    for l in range(64):
        r = h[l % 16, 8*(l//16):8*(l//16)+8]
        out[l] = r[0::2] | (r[1::2] << 16)
    return out
def opB(N): return opA(N.T)
blocks = []
def add(b): blocks.append(np.asarray(b, np.uint32).reshape(256)); return len(blocks)-1
n_ = S1_mats(False); s_ = S1_mats(True)
def a3_idx(sig, m):
    g = unit_g(sig, m)
    if g == 0: return 9
    if g == 128: return 8
    return (g >> 7) + (0 if g % 4 == 1 else 4)
a3 = {}
for sig in range(8):
    for m in range(32):
        M = A3(sig, m)*HSCALE; i = a3_idx(sig, m)
        if i in a3: assert np.allclose(a3[i], M), (sig, m)
        a3[i] = M
for M in (n_[0], n_[1], n_[2], E_mat(False)): add(opA(M))
T_A3L = add(opA(a3[0]))
Bre, Bim = B1_mats(); T_B1 = add(opB(Bre)); add(opB(Bim))
T_A2 = len(blocks)
M = A2_mats6(0)/HSCALE; M2 = A2_mats6(20)/HSCALE
sgn = np.array([(-1.0)**((k % 8)//2) for k in range(32)])
assert np.allclose(M2, M*sgn)
for blk in range(3):
    for ch in range(3): add(opA(M[blk, ch]))
assert len(blocks) == 16
T_S1S = len(blocks)
for M in (s_[0], s_[1], s_[2], E_mat(True)): add(opA(M))
T_DEL = add(opA(s_[3])); add(opA(s_[4]))
T_A3 = len(blocks)
for i in range(10): add(opA(a3[i]))
T_ADDR = len(blocks)
at = np.zeros((2, 256, 4), np.uint32)
for ty, (sig, m) in enumerate(((2, 1), (1, 0))):
    for tid in range(256):
        w, l = divmod(tid, 64); n, mq = l % 16, l//16
        v = [vaddr(acol(sig, m, mq//2, 64*w+4*n+2*bop+(mq % 2))) for bop in range(2)]
        v += [6400 + vaddr(acol(sig, m, mq % 2, 64*w+4*n+2*(mq//2)+sub)) for sub in range(2)]
        k5 = 256 + 16*w + n
        if mq < 2: v += [vaddr(acol(sig, m, mq, k5)), 3200 + vaddr(acol(sig, m, mq, k5))]
        elif mq == 2: v += [6400 + vaddr(acol(sig, m, 0, k5)), 6400 + vaddr(acol(sig, m, 1, k5))]
        else: v += [L_JUNK + 4*n, L_JUNK + 4*n]
        at[ty, tid, :3] = [v[0] | (v[1] << 16), v[2] | (v[3] << 16), v[4] | (v[5] << 16)]
for i in range(8): add(at.reshape(-1)[256*i:256*i+256])
for i in range(640): assert (i*205) >> 14 == i//80
for i in range(320): assert (i*205) >> 11 == i//10

vL16, vH1s2, vH2ld, vH2ld5, vC1ld, vRtW, vRtR, vRtR2, vH2st, vH2st2, vStR, vStW = range(1, 13)
vVrd, vVrd2, vEps = 13, 14, 15
vV = 16
vXT = 22
vMask0 = 27; vG = 28
vTB = 31
vZc = 248
X = 32
A3r = 52; S1r = 56; B1r = 72; TWc = 80; TWs = 92; A2r = 104; CM = 140; DEL = 172
Bo = 180
T = 192
vZ = 4
def vr(b, n=4): return f'v[{b}:{b+n-1}]'
def v2(b): return f'v[{b}:{b+1}]'
sW, sSig, sM, sG, sType, sLayer, sMode = 's3', 's4', 's5', 's26', 's27', 's29', 's30'
sH1st, sH1ld0, sH1ld1, sH2st, sH2ld, sTag, sFlip, sSpin = 's31', 's32', 's33', 's34', 's35', 's36', 's37', 's38'
sCl, sGi, sInv, sFix = 's44', 's46', 's40', 's41'
sSlot = 's[42:43]'
SX, SO, SWS, STB = 's[8:11]', 's[12:15]', 's[16:19]', 's[24:25]'
HW = 4
a = Asm()
nst = []
def stamp(name, inloop=False, real=False):
    if SST and inloop and name not in ('top', 'bar1'): return
    if STAMPS:
        i = len(nst); nst.append(name)
        assert i < 16
        ins = f's_{"memrealtime" if real else "memtime"} s[{60+2*i}:{61+2*i}]'
        a(ins)
LATE = ('h2ack', 'h2ok')
def sst(name):
    if SST: stamp(name)
def clean5(soff, fl=' sc1'):
    for i in range(4): a(f'buffer_store_dwordx4 {vr(vZ)}, v{vL16}, {SWS}, {soff} offen offset:{1024*i}{fl}')
    a(f's_add_u32 s7, {soff}, 4096\nbuffer_store_dwordx4 {vr(vZ)}, v{vL16}, {SWS}, s7 offen{fl}')
def mfma(d, A, B, C): a(f'v_mfma_f32_16x16x32_f16 {vr(d)}, {vr(A)}, {vr(B)}, {"0" if C is None else vr(C)}')

stamp('start'); stamp('rstart', real=True)
n_v, kq_v = T+10, T+11
a(f"""
s_load_dwordx2 s[16:17], s[0:1], 96
s_load_dwordx2 s[8:9], s[0:1], 0
s_load_dwordx2 s[12:13], s[0:1], 80
v_lshrrev_b32 v{T+1}, 6, v0
s_cmp_ge_u32 s2, 256
s_cbranch_scc1 L_end
""")
if opt('cpref', 1):
    a(f"""
s_getpc_b64 s[24:25]
v_lshlrev_b32 v{T+2}, 7, v0
v_min_u32 v{T+2}, L_codeend-{KNAME}-64, v{T+2}
global_load_dword v255, v{T+2}, s[24:25]
""")
a(f"""
v_readfirstlane_b32 {sW}, v{T+1}
v_and_b32 v{T}, 63, v0
s_and_b32 {sSig}, s2, 7
s_lshr_b32 {sM}, s2, 3
v_lshlrev_b32 v{vL16}, 4, v{T}
s_mov_b32 s18, {WS_BYTES}
s_mov_b32 s19, 0x20000
s_mov_b32 s14, 2621440
s_mov_b32 s15, 0x20000
s_cmp_eq_u32 {sW}, {HW}
s_cbranch_scc1 L_hk
s_lshl_b32 s6, {sSig}, 2
s_lshr_b32 s6, 0x9654d210, s6
s_and_b32 s6, s6, 15
s_lshl_b32 {sG}, {sM}, 4
s_add_u32 {sG}, {sG}, s6
s_cmp_eq_u32 {sSig}, 0
s_cselect_b32 s7, 248, 0
s_cmp_ge_u32 {sM}, 16
s_cselect_b32 s7, s7, 0
s_sub_u32 {sG}, {sG}, s7
s_and_b32 {sType}, {sG}, 1
""")
a(f"""
s_getpc_b64 s[24:25]
s_add_u32 s24, s24, tbl@rel32@lo+4
s_addc_u32 s25, s25, tbl@rel32@hi+12
s_lshr_b32 s7, {sG}, 7
s_lshl_b32 s94, {sType}, 2
s_sub_u32 s7, s7, s94
s_add_u32 s7, s7, {4 + T_A3}
s_cmp_eq_u32 {sG}, 128
s_cselect_b32 s7, {8 + T_A3}, s7
s_cmp_eq_u32 {sG}, 0
s_cselect_b32 s7, {9 + T_A3}, s7
s_cselect_b32 s94, {T_S1S*1024}, 0
s_lshl_b32 s7, s7, 10
s_lshl_b32 s95, {sW}, 12
s_cmp_eq_u32 {sW}, 0
s_cselect_b32 s94, s94, s95
s_cmp_eq_u32 {sW}, 1
s_cselect_b32 s7, s7, s94
s_add_u32 m0, s95, {L_TB}
v_add_u32 v{T+2}, s94, v{vL16}
v_add_u32 v{T+3}, s7, v{vL16}
s_lshl_b32 s7, {sType}, 12
s_add_u32 s7, s7, {T_ADDR*1024}
global_load_lds_dwordx4 v{T+3}, {STB}
global_load_lds_dwordx4 v{T+2}, {STB} offset:1024
global_load_lds_dwordx4 v{T+2}, {STB} offset:2048
global_load_lds_dwordx4 v{T+2}, {STB} offset:3072
v_lshl_add_u32 v{T+2}, v0, 4, s7
global_load_dwordx3 v[{vV}:{vV+2}], v{T+2}, {STB}
s_or_b32 {sFix}, s2, {sW}
""")
a(f"""
s_cmp_lg_u32 {sFix}, 0
s_cbranch_scc1 L_nodel
v_add_u32 v{T+2}, {T_DEL*1024}, v{vL16}
global_load_dwordx4 {vr(DEL)}, v{T+2}, {STB}
global_load_dwordx4 {vr(DEL+4)}, v{T+2}, {STB} offset:1024
L_nodel:
""")
a(f"""
s_sub_u32 s92, 0, {sG}
s_and_b32 s92, s92, 511
s_cmp_eq_u32 {sG}, 0
s_cselect_b32 s92, 256, s92
s_mul_i32 s92, s92, 1280
s_mul_i32 s93, {sG}, 1280
s_sub_u32 s92, s92, s93
s_sub_u32 s92, s92, {4*655360}
s_mov_b32 s10, 2621440
s_mov_b32 s11, 0x20000
s_mov_b32 s96, 0x9fb00
v_lshlrev_b32 v{vRtR}, 4, v0
""")
for i in range(3):
    a(f"""v_add_u32 v{T+12}, {256*i}, v0
v_mul_u32_u24 v{T+12}, 205, v{T+12}
v_lshrrev_b32 v{T+12}, 14, v{T+12}
v_mov_b32 v{T+13}, s92
v_cmp_le_u32 vcc, 4, v{T+12}
v_mad_u32_u24 v{T+12}, v{T+12}, s96, v{vRtR}
v_cndmask_b32 v{T+13}, 0, v{T+13}, vcc
v_add3_u32 v{vG+i}, v{T+12}, v{T+13}, s93""".replace(f'v_add_u32 v{T+12}, 0, v0\nv_mul_u32_u24 v{T+12}, 205, v{T+12}', f'v_mul_u32_u24 v{T+12}, 205, v0'))
    if i < 2: a(f's_add_u32 s93, s93, 4096')
a(f"""
""")
sst('prek')
a(f"""
s_waitcnt lgkmcnt(0)
s_lshl_b32 s7, {sW}, 10
s_add_u32 m0, s7, {L_XT}
{WSADD or 's_nop 1'}
buffer_load_dwordx4 v{vG}, {SX}, 0 offen lds
s_add_u32 m0, s7, {L_XT+4096}
s_cmp_ge_u32 {sW}, 2
buffer_load_dwordx4 v{vG+1}, {SX}, 0 offen lds
s_cbranch_scc1 L_nox2
s_add_u32 m0, s7, {L_XT+8192}
s_nop 0
buffer_load_dwordx4 v{vG+2}, {SX}, 0 offen lds
s_branch L_x2
L_nox2:
v_mov_b32 v{vG+2}, {OOB}
buffer_load_dword v254, v{vG+2}, {SX}, 0 offen
L_x2:
""")
sst('xiss')
sst('dma')
a(f"""
v_and_b32 v{n_v}, 15, v0
v_bfe_u32 v{kq_v}, v0, 4, 2
s_mul_i32 s94, {sType}, 320
v_lshrrev_b32 v{T+13}, 1, v{kq_v}
v_mul_u32_u24 v{T+14}, s94, v{T+13}
s_lshl_b32 s92, {sW}, 5
v_add3_u32 v{T+12}, v{n_v}, v{T+14}, s92
s_and_b32 s92, {sW}, 1
s_lshl_b32 s92, s92, 3
s_lshr_b32 s93, {sW}, 1
s_lshl_b32 s93, s93, 5
s_add_u32 s92, s92, s93
s_add_u32 s92, s92, 256
v_lshrrev_b32 v{T+17}, 1, v{n_v}
v_and_b32 v{T+18}, 1, v0
v_add3_u32 v{T+17}, v{T+17}, v{T+14}, s92
v_lshl_add_u32 v{T+17}, v{T+18}, 4, v{T+17}
s_xor_b32 s94, {sType}, 1
v_and_b32 v{T+13}, s94, v{T+13}
v_xor_b32 v{T+13}, v{T+13}, v{kq_v}
v_add_u32 v{T+14}, 16, v{T+12}
v_and_b32 v{T+13}, 1, v{T+13}
v_add_u32 v{T+15}, 128, v{T+12}
v_cmp_eq_u32 vcc, 1, v{T+13}
v_add_u32 v{T+16}, 144, v{T+12}
s_mul_i32 s94, s94, 320
""")
ecol = [T+12, T+14, T+15, T+16, T+17]
for kl in range(5): a(f'v_sub_u32 v{T+18+kl}, 640, v{ecol[kl]}')
for kl in range(5): a(f'v_cndmask_b32 v{vXT+kl}, v{ecol[kl]}, v{T+18+kl}, vcc')
a(f"""
v_cmp_gt_u32 vcc, 2, v{kq_v}
v_mov_b32 v{T+17}, s94
v_and_b32 v{T+13}, 1, v{kq_v}
v_cndmask_b32 v{T+17}, 0, v{T+17}, vcc
v_cmp_eq_u32 vcc, 0, v{T+12}
v_mul_u32_u24 v{T+9}, 0x1400, v{T+13}
v_add_u32 v{T+14}, {L_XT}, v{T+9}
v_cndmask_b32 v{vXT}, v{vXT}, v{T+17}, vcc
v_cmp_ne_u32 vcc, 0, v{vXT}
""")
for kl in range(5): a(f'v_lshl_add_u32 v{vXT+kl}, v{vXT+kl}, 1, v{T+14}')
a(f'v_cndmask_b32 v{vMask0}, 0, -1, vcc')
for i in range(20): a(f'v_mov_b32 v{X+i}, 0')
for i in range(4): a(f'v_mov_b32 v{vZc+i}, 0')
a(f"""
s_lshr_b32 s95, {sM}, 3
s_lshl_b32 s7, s95, 2
s_lshr_b32 s7, 0x1120, s7
s_and_b32 s7, s7, 3
s_add_u32 s96, s6, 256
s_cmp_eq_u32 {sSig}, 0
s_cselect_b32 s96, 8, s96
s_lshl_b32 s94, {sW}, 4
s_add_u32 s6, s6, s94
s_add_u32 s96, s96, s94
v_lshl_add_u32 v{T+13}, v{n_v}, 2, s7
v_lshl_add_u32 v{T+14}, v{kq_v}, 6, s6
v_lshl_add_u32 v{T+15}, v{kq_v}, 6, s96
v_add_u32 v{T+12}, 64, v{T+13}
s_mov_b32 s94, {f2u(1/2048):#x}
""")
G = T+24
for hi in range(2):
    for ch in range(2): a(f'v_mul_u32_u24 v{G+2*(2*hi+ch)}, v{T+13-hi}, v{T+14+ch}')
for k in range(4): a(f'v_and_b32 v{G+2*k}, 0x7ff, v{G+2*k}')
for k in range(4): a(f'v_cvt_f32_u32 v{G+2*k}, v{G+2*k}')
for k in range(4): a(f'v_mul_f32 v{G+2*k}, s94, v{G+2*k}')
for k in range(4): a(f'v_sin_f32 v{G+2*k+1}, v{G+2*k}\nv_cos_f32 v{G+2*k}, v{G+2*k}')
for k in range(4): a(f'v_cvt_pk_f16_f32 v{G+8+2*k}, v{G+2*k}, v{G+2*k+1}\nv_cvt_pk_f16_f32 v{G+9+2*k}, -v{G+2*k+1}, v{G+2*k}')
a(f's_cmp_lg_u32 {sSig}, 0\ns_cbranch_scc1 L_cm_done')
for hi in range(2):
    b = G+8+4*hi
    a(f'v_mov_b32 v{b+1}, 0\nv_mov_b32 v{b+3}, v{b+2}\nv_mov_b32 v{b+2}, 0')
a(f"""
v_and_b32 v{T+17}, 1, v0
v_lshlrev_b32 v{T+17}, 4, v{T+17}
v_mov_b32 v{T+18}, 0x3c00
v_lshlrev_b32 v{T+17}, v{T+17}, v{T+18}
v_cmp_gt_u32 vcc, 16, v0
v_cndmask_b32 v{G+8}, v{G+8}, v{T+17}, vcc
v_cndmask_b32 v{G+12}, v{G+12}, v{T+17}, vcc
L_cm_done:
""")
sst('cm')
a(f'''
v_lshlrev_b32 v{T+12}, 2, v{kq_v}
v_mul_u32_u24 v{T+12}, v{T+12}, v{n_v}
v_cvt_f32_u32 v{T+12}, v{T+12}
v_cvt_f32_u32 v{T+13}, v{n_v}
v_mul_f32 v{T+12}, {f2u(1/640):#x}, v{T+12}
v_mul_f32 v{T+13}, {f2u(1/640):#x}, v{T+13}
''')
for blk in range(3):
    for i in range(4):
        k = 16*blk + i
        if k == 0: src = T+12
        else:
            src = T+14
            a(f'v_fmamk_f32 v{T+14}, v{T+13}, {f2u(float(k)):#x}, v{T+12}')
        a(f'v_cos_f32 v{TWc+4*blk+i}, v{src}\nv_sin_f32 v{TWs+4*blk+i}, v{src}')
a(f"""
s_mov_b32 {sInv}, {f2u(1/640):#x}
v_mov_b32 v{vEps}, {f2u(1e-5):#x}
v_mov_b32 v{Bo+10}, 0
v_mov_b32 v{Bo+11}, 0
s_mov_b32 {sLayer}, 0
s_mov_b32 {sTag}, 1
s_mov_b32 {sFlip}, 0
s_cmp_lt_u32 {sW}, 2
s_cselect_b64 {sSlot}, 1, 0
s_cselect_b32 s7, 3200, 0
s_cselect_b32 s52, 12, 8
s_cselect_b32 s53, 0, 32
s_lshl_b32 s7, s7, {sW}
v_lshlrev_b32 v{T+12}, 4, v{kq_v}
v_mul_u32_u24 v{vVrd}, 80, v{n_v}
v_add3_u32 v{vVrd}, v{vVrd}, v{T+12}, s7
v_and_b32 v{vVrd2}, 7, v0
v_mul_u32_u24 v{vVrd2}, 80, v{vVrd2}
s_add_u32 s7, s7, 2560
v_add3_u32 v{vVrd2}, v{vVrd2}, v{T+12}, s7
s_mul_i32 s54, s52, {sW}
s_lshl_b32 s54, s54, 2
s_add_u32 s54, s54, s53
s_sub_u32 s7, s52, 1
v_min_u32 v{T+13}, s7, v{n_v}
v_lshlrev_b32 v{T+13}, 2, v{T+13}
s_movk_i32 s7, 5120
v_mad_u32_u24 v{vC1ld}, v{kq_v}, s7, v{T+13}
v_mul_u32_u24 v{vRtW}, 160, v{n_v}
s_add_u32 s7, s54, {L_RT}
v_add3_u32 v{vRtW}, v{vRtW}, v{T+12}, s7
s_lshl_b32 s7, s52, 2
v_cmp_gt_u32 vcc, s7, v{T+12}
v_add_u32 v{T+13}, {L_XT}, v{vL16}
v_cndmask_b32 v{vRtW}, v{T+13}, v{vRtW}, vcc
v_mul_u32_u24 v{T+13}, 205, v0
v_lshrrev_b32 v{T+13}, 11, v{T+13}
v_mul_u32_u24 v{T+13}, 10080, v{T+13}
v_add_u32 v{vH2st}, v{T+13}, v{vRtR}
s_lshl_b32 s7, {sW}, 4
s_add_u32 s7, s7, 256
v_add_u32 v{T+13}, s7, v{n_v}
v_lshlrev_b32 v{vRtR2}, 4, v{T+13}
v_mul_u32_u24 v{T+13}, 205, v{T+13}
v_lshrrev_b32 v{T+13}, 11, v{T+13}
v_mul_u32_u24 v{T+13}, 10080, v{T+13}
v_add_u32 v{vH2st2}, v{T+13}, v{vRtR2}
v_cmp_eq_u32 vcc, 0, v{kq_v}
v_mov_b32 v{T+13}, {OOB}
v_cndmask_b32 v{vH2st2}, v{T+13}, v{vH2st2}, vcc
v_add_u32 v{vRtR}, {L_RT}, v{vRtR}
v_add_u32 v{vRtR2}, {L_RT}, v{vRtR2}
v_lshrrev_b32 v{vH1s2}, 1, v{vL16}
v_add_u32 v{vH1s2}, {1024-128}, v{vH1s2}
v_add_u32 v{T+14}, -1, v{kq_v}
v_cmp_gt_u32 vcc, 2, v{T+14}
v_cndmask_b32 v{vH1s2}, v{T+13}, v{vH1s2}, vcc
v_and_b32 v{T+13}, 1, v{kq_v}
v_lshlrev_b32 v{T+13}, 7, v{T+13}
v_and_b32 v{T+14}, 3, v0
v_lshl_add_u32 v{vStR}, v{T+14}, 5, v{T+13}
v_add_u32 v{vStR}, {L_ST}, v{vStR}
v_bfe_u32 v{T+14}, v0, 2, 1
v_lshl_add_u32 v{T+13}, v{T+14}, 6, v{T+13}
v_bfe_u32 v{T+14}, v0, 3, 1
v_lshl_add_u32 v{T+13}, v{T+14}, 5, v{T+13}
v_bfe_u32 v{T+14}, v0, 5, 1
v_lshl_add_u32 v{T+13}, v{T+14}, 2, v{T+13}
s_lshl_b32 s7, {sW}, 3
s_add_u32 s7, s7, {L_ST}
v_add_u32 v{vStW}, s7, v{T+13}
s_and_b32 s93, {sM}, 7
s_mul_i32 s93, s93, 160
s_lshl_b32 s94, {sSig}, 7
s_add_u32 s92, s94, {sM}
s_mul_i32 s92, s92, 1280
s_mul_i32 {sH1st}, {sW}, 40960
s_add_u32 {sH1st}, {sH1st}, s92
s_add_u32 {sH1st}, {sH1st}, {H1BASE}
s_lshl_b32 s96, s95, 5
s_add_u32 s96, s96, s94
s_mul_i32 {sH1ld0}, s96, 1280
s_add_u32 {sH1ld0}, {sH1ld0}, s93
s_add_u32 s96, s54, {H1BASE}
s_add_u32 {sH1ld0}, {sH1ld0}, s96
s_add_u32 {sH1ld1}, {sH1ld0}, 20480
s_lshl_b32 s96, s95, 8
s_add_u32 s96, s96, {sSig}
s_mul_i32 {sH2st}, s96, 1280
s_add_u32 {sH2st}, {sH2st}, s93
s_add_u32 {sH2st}, {sH2st}, {H2BASE}
s_mov_b32 {sH2ld}, {H2BASE-BUF}
s_add_u32 {sCl}, {sH2st}, {2*BUF}
s_and_b32 s7, {sG}, 127
s_lshr_b32 s7, s7, 2
s_sub_u32 s94, 0, {sG}
s_and_b32 s94, s94, 127
s_lshr_b32 s94, s94, 2
s_bfe_u32 s95, {sG}, 0x10001
s_cmp_eq_u32 {sType}, 1
s_cselect_b32 s94, s7, s94
s_cselect_b32 s96, 2, s95
s_cselect_b32 s95, 3, s95
s_lshl_b32 s96, s96, 5
s_lshl_b32 s95, s95, 5
s_add_u32 s7, s7, s96
s_add_u32 s94, s94, s95
s_mul_i32 s7, s7, 10240
s_mul_i32 s94, s94, 10240
v_mov_b32 v{T+12}, s7
v_mov_b32 v{T+13}, s94
v_cmp_le_u32 vcc, 2, v{kq_v}
s_lshl_b32 s95, {sW}, 8
s_lshl_b32 s96, {sW}, 6
v_cndmask_b32 v{T+12}, v{T+12}, v{T+13}, vcc
s_add_u32 s96, s96, 1024
v_add_u32 v{T+12}, v{T+12}, v{T+9}
v_lshlrev_b32 v{T+13}, 4, v{n_v}
v_add3_u32 v{vH2ld}, v{T+12}, v{T+13}, s95
v_lshlrev_b32 v{T+13}, 2, v{n_v}
v_add3_u32 v{vH2ld5}, v{T+12}, v{T+13}, s96
v_add_u32 v{vTB}, {L_TB}, v{vL16}
s_lshl_b32 s7, {sW}, 2
v_add_u32 v{T+2}, s7, v{vTB}
""")
sst('prex')
for hi in range(2):
    for ch in range(2):
        for rio in range(2):
            a(f'ds_write_b32 v{T+2}, v{G+8+2*(2*hi+ch)+rio} offset:{L_CM-L_TB+((hi*2+rio)*2+ch)*1024}')
a('s_waitcnt vmcnt(3) lgkmcnt(0)\ns_barrier')
sst('bart')
for i in range(4): a(f'ds_read_b128 {vr(S1r+4*i)}, v{vTB} offset:{1024*i}')
for i in range(9): a(f'ds_read_b128 {vr(A2r+4*i)}, v{vTB} offset:{1024*(T_A2+i)}')
for i in range(2): a(f'ds_read_b128 {vr(B1r+4*i)}, v{vTB} offset:{1024*(T_B1+i)}')
for i in range(8): a(f'ds_read_b128 {vr(CM+4*i)}, v{vTB} offset:{L_CM-L_TB+1024*i}')
a(f'ds_read_b128 {vr(A3r)}, v{vTB} offset:{1024*T_A3L}')
for i in (2, 1, 0): a(f'v_lshrrev_b32 v{vV+2*i+1}, 16, v{vV+i}\nv_and_b32 v{vV+2*i}, 0xffff, v{vV+i}')
a(f's_cmp_eq_u32 {sW}, 3\ns_cselect_b32 s7, 0x80008000, 0\ns_waitcnt lgkmcnt(11)')
for i in range(18): a(f'v_xor_b32 v{A2r+2*i+1}, s7, v{A2r+2*i+1}')
a('s_waitcnt vmcnt(0)\ns_barrier')
sst('bar0')
for kl in range(5):
    for j in range(4): a(f'ds_read_u16_d16_hi v{X+4*kl+j}, v{vXT+kl} offset:{1280*j}')
a('s_waitcnt lgkmcnt(0)')
Sx, Qx = T, T+4
a('L_loop:')
stamp('top', True)
for p in range(2):
    a(f'v_pk_add_f32 {v2(Sx+2*p)}, {v2(X+2*p)}, {v2(X+4+2*p)}')
    a(f'v_pk_mul_f32 {v2(Qx+2*p)}, {v2(X+2*p)}, {v2(X+2*p)}')
for kl in range(1, 5):
    for p in range(2):
        b = X+4*kl+2*p
        a(f'v_pk_fma_f32 {v2(Qx+2*p)}, {v2(b)}, {v2(b)}, {v2(Qx+2*p)}')
        if kl > 1: a(f'v_pk_add_f32 {v2(Sx+2*p)}, {v2(Sx+2*p)}, {v2(b)}')
for j in range(4): a(f'v_permlane32_swap_b32 v{Sx+j}, v{Qx+j}')
for p in range(2): a(f'v_pk_add_f32 {v2(Sx+2*p)}, {v2(Sx+2*p)}, {v2(Qx+2*p)}')
def dpp(d, s, ctl, bank): a(f'v_add_f32_dpp v{d}, v{s}, v{s} {ctl} row_mask:0xf bank_mask:{bank:#x}')
dpp(Sx, Sx, 'row_ror:8', 3); dpp(Sx, Sx+1, 'row_ror:8', 12); dpp(Sx+2, Sx+2, 'row_ror:8', 3); dpp(Sx+2, Sx+3, 'row_ror:8', 12)
dpp(Sx, Sx, 'row_shl:4', 5); dpp(Sx, Sx+2, 'row_shr:4', 10)
dpp(Sx, Sx, 'quad_perm:[1,0,3,2]', 15); dpp(Sx, Sx, 'quad_perm:[2,3,0,1]', 15)
a(f"""
ds_write_b32 v{vStW}, v{Sx}
s_waitcnt lgkmcnt(0)
s_barrier
""")
stamp('bar1', True)
P = T+8; RS = T+16; NB = T+20
a(f"""
ds_read_b128 {vr(P)}, v{vStR}
ds_read_b128 {vr(P+4)}, v{vStR} offset:16
s_waitcnt lgkmcnt(1)
v_pk_add_f32 {v2(P)}, {v2(P)}, {v2(P+2)}
s_waitcnt lgkmcnt(0)
v_pk_add_f32 {v2(P+4)}, {v2(P+4)}, {v2(P+6)}
v_pk_add_f32 {v2(P)}, {v2(P)}, {v2(P+4)}
v_mul_f32 v{P}, {sInv}, v{P}
v_fma_f32 v{P+1}, v{P+1}, {sInv}, v{vEps}
v_fma_f32 v{P+1}, -v{P}, v{P}, v{P+1}
v_max_f32 v{P+1}, v{P+1}, v{vEps}
v_rsq_f32 v{P+1}, v{P+1}
v_mul_f32 v{P}, -v{P}, v{P+1}
""")
for j in range(4): a(f'v_mov_b32_dpp v{RS+j}, v{P+1} quad_perm:[{j},{j},{j},{j}] row_mask:0xf bank_mask:0xf')
for j in range(4): a(f'v_mov_b32_dpp v{NB+j}, v{P} quad_perm:[{j},{j},{j},{j}] row_mask:0xf bank_mask:0xf')
N_ = T+24
D0, D1, DC, DE = T, T+4, T+8, T+12
def norm(kl):
    for p in range(2): a(f'v_pk_fma_f32 {v2(N_+4*(kl%2)+2*p)}, {v2(X+4*kl+2*p)}, {v2(RS+2*p)}, {v2(NB+2*p)}')
def cvtn(kl):
    for p in range(2): a(f'v_cvt_pk_f16_f32 v{Bo+2*kl+p}, v{N_+4*(kl%2)+2*p}, v{N_+4*(kl%2)+2*p+1}')
norm(0); norm(1); cvtn(0); cvtn(1); norm(2); norm(3)
mfma(D0, S1r, Bo, None); mfma(DC, S1r+4, Bo, None)
cvtn(2); cvtn(3); norm(4)
mfma(D1, S1r, Bo+4, None); mfma(DC, S1r+8, Bo+4, DC)
cvtn(4)
a(f's_cmp_lg_u32 {sFix}, 0')
W_ = T+32
a(f'v_cvt_pk_f16_f32 v{W_}, v{D0}, v{D0+1}')
mfma(DE, S1r+12, Bo+8, None)
a(f's_cbranch_scc0 L_fix\nL_nofix:')
a(f"""
v_cvt_pk_f16_f32 v{W_+1}, v{D0+2}, v{D0+3}
ds_write_b32 v{vV}, v{W_}
ds_write_b32 v{vV}, v{W_+1} offset:3200
v_cvt_pk_f16_f32 v{W_+2}, v{D1}, v{D1+1}
v_cvt_pk_f16_f32 v{W_+3}, v{D1+2}, v{D1+3}
v_cvt_pk_f16_f32 v{W_+4}, v{DC}, v{DC+1}
v_cvt_pk_f16_f32 v{W_+5}, v{DC+2}, v{DC+3}
ds_write_b32 v{vV+1}, v{W_+2}
ds_write_b32 v{vV+1}, v{W_+3} offset:3200
v_cvt_pk_f16_f32 v{W_+6}, v{DE}, v{DE+1}
v_cvt_pk_f16_f32 v{W_+7}, v{DE+2}, v{DE+3}
ds_write_b32 v{vV+2}, v{W_+4}
ds_write_b32 v{vV+3}, v{W_+5}
ds_write_b32 v{vV+4}, v{W_+6}
ds_write_b32 v{vV+5}, v{W_+7}
""")
stamp('s1w', True)
a(f's_cmp_eq_u32 {sLayer}, 0\ns_waitcnt lgkmcnt(0)\ns_barrier')
stamp('bar2', True)
Ad = T; Tr = T+12; Ti = T+24; B2 = T+36; O = T; Pt = T+48; Qt = T+52
a(f"""
ds_read_b128 {vr(Ad)}, v{vVrd}
ds_read_b128 {vr(Ad+4)}, v{vVrd} offset:1280
ds_read_b128 {vr(Ad+8)}, v{vVrd2}
s_cbranch_scc1 L_l0b
L_l0b_ret:
""")
for blk in range(3):
    a(f's_waitcnt lgkmcnt({2-blk})')
    mfma(Tr+4*blk, Ad+4*blk, B1r, None); mfma(Ti+4*blk, Ad+4*blk, B1r+4, None)
for ch in range(3):
    for p in range(2):
        r_, i_ = Tr+4*ch+2*p, Ti+4*ch+2*p; c_ = TWc+4*ch+2*p
        a(f'v_pk_mul_f32 {v2(Pt+2*p)}, {v2(r_)}, {v2(c_)}')
        a(f'v_pk_mul_f32 {v2(Qt+2*p)}, {v2(i_)}, {v2(c_)}')
    for p in range(2):
        r_, i_ = Tr+4*ch+2*p, Ti+4*ch+2*p; s_2 = TWs+4*ch+2*p
        a(f'v_pk_fma_f32 {v2(Pt+2*p)}, {v2(i_)}, {v2(s_2)}, {v2(Pt+2*p)}')
        a(f'v_pk_fma_f32 {v2(Qt+2*p)}, {v2(r_)}, {v2(s_2)}, {v2(Qt+2*p)} neg_lo:[1,0,0] neg_hi:[1,0,0]')
        if ch > 0 and p == 0: mfma(O+8, A2r+(6+ch-1)*4, B2+4*(ch-1), None if ch == 1 else O+8)
    for i in range(4): a(f'v_cvt_pk_f16_f32 v{B2+4*ch+i}, v{Pt+i}, v{Qt+i}')
    if ch == 2: a(f's_cmp_lg_u32 {sMode}, 0')
    for blk in ((0, 1) if ch < 2 else (2, 0, 1)):
        mfma(O+4*blk, A2r+(blk*3+ch)*4, B2+4*ch, None if ch == 0 else O+4*blk)
Wo = T+12
for i in (4, 5, 0, 1, 2, 3): a(f'v_cvt_pk_f16_f32 v{Wo+i}, v{O+2*i}, v{O+2*i+1}')
a(f'v_cndmask_b32 v{Wo}, v{Wo}, v{Wo+4}, {sSlot}')
for i in (4, 5, 1, 2, 3, 0): a(f'v_and_or_b32 v{Wo+i}, v{Wo+i}, -2, {sTag}')
a(f"""
s_cbranch_scc1 L_st_slow
buffer_store_dwordx4 {vr(Wo)}, v{vL16}, {SWS}, {sH1st} offen
buffer_store_dwordx2 {v2(Wo+4)}, v{vH1s2}, {SWS}, {sH1st} offen
L_cphase:
""")
stamp('h1st', True)
Ca = T+20; Dm = T+28; K_ = T+44
a(f"""
s_mov_b32 {sSpin}, {SPIN}
s_xor_b32 {sH1st}, {sH1st}, {H1STR}
s_add_u32 {sH2ld}, {sH2ld}, {BUF}
s_cmp_eq_u32 {sLayer}, 0
s_cbranch_scc1 L_l0c
L_l0c_ret:
""")
if opt('ack1'): a('s_waitcnt vmcnt(0)')
a('L_poll1:')
for ch in range(2):
    for u in range(4):
        a(f'buffer_load_dword v{Ca+4*ch+u}, v{vC1ld}, {SWS}, {sH1ld0 if ch == 0 else sH1ld1} offen offset:{1280*u} sc1')
a(f's_sub_u32 {sSpin}, {sSpin}, 1\ns_cbranch_scc1 L_poll1_to\ns_waitcnt vmcnt(0)')
tt = sum((((i >> 2 & 1) ^ (i & 1)) & ((i >> 1 & 1) ^ (i & 1))) << i for i in range(8))
for i in range(4): a(f'v_bitop3_b32 v{K_+i}, v{Ca+2*i}, v{Ca+2*i+1}, {sFlip} bitop3:{tt:#x}')
def cm(hi, ch, rio):
    d = Dm + (hi*2+rio)*4
    mfma(d, Ca+4*ch, CM+((hi*2+rio)*2+ch)*4, None if ch == 0 else d)
cm(0, 0, 0)
a(f'v_bitop3_b32 v{K_}, v{K_}, v{K_+1}, v{K_+2} bitop3:0x80')
cm(0, 0, 1)
a(f'v_bitop3_b32 v{K_}, v{K_}, v{K_+3}, 1 bitop3:0x80')
cm(0, 1, 0)
a(f'v_cmp_eq_u32 vcc, 0, v{K_}')
cm(0, 1, 1)
a('s_cbranch_vccnz L_poll1\nL_poll1_done:')
stamp('h1ok', True)
cm(1, 0, 0); cm(1, 0, 1); cm(1, 1, 0); cm(1, 1, 1)
for hi in range(2):
    for i in range(4): a(f'v_cvt_pk_f16_f32 v{K_+4*hi+i}, v{Dm+8*hi+i}, v{Dm+8*hi+4+i}')
    for i in range(4): a(f'v_or_b32 v{K_+4*hi+i}, 1, v{K_+4*hi+i}')
    a(f'ds_write_b128 v{vRtW}, {vr(K_+4*hi)} offset:{2560*hi}')
a(f"""
s_waitcnt lgkmcnt(0)
s_barrier
ds_read_b128 {vr(T)}, v{vRtR}
ds_read_b128 {vr(T+4)}, v{vRtR2}
s_waitcnt lgkmcnt(1)
buffer_store_dwordx4 {vr(T)}, v{vH2st}, {SWS}, {sH2st} offen sc1
s_waitcnt lgkmcnt(0)
buffer_store_dwordx4 {vr(T+4)}, v{vH2st2}, {SWS}, {sH2st} offen sc1
""")
stamp('h2st', True)
CLN = f's_mov_b32 {sCl}, {OOB}' if opt('h3', 1) else f's_add_u32 {sCl}, {sCl}, {BUF}'
a(f"""
buffer_store_dwordx4 {vr(vZc)}, v{vH2st}, {SWS}, {sCl} offen sc1
buffer_store_dwordx4 {vr(vZc)}, v{vH2st2}, {SWS}, {sCl} offen sc1
{CLN}
s_mov_b32 {sSpin}, {SPIN}
s_add_u32 {sLayer}, {sLayer}, 1
s_add_u32 {sH2st}, {sH2st}, {BUF}
s_xor_b32 {sH1ld0}, {sH1ld0}, {H1STR}
s_xor_b32 {sH1ld1}, {sH1ld1}, {H1STR}
s_cmp_ge_u32 {sLayer}, 2
s_cselect_b32 {sTag}, 0, 1
s_cselect_b32 {sFlip}, -1, 0
s_cmp_eq_u32 {sLayer}, 1
s_cbranch_scc1 L_l0d
L_l0d_ret:
s_waitcnt vmcnt(2)
""")
stamp('h2ack', True)
a('L_poll2:')
Lh = T+8; K2 = T+28
for u in range(4): a(f'buffer_load_dwordx4 {vr(Lh+4*u)}, v{vH2ld}, {SWS}, {sH2ld} offen offset:{1280*u} sc1')
for u in range(4): a(f'buffer_load_dword v{Lh+16+u}, v{vH2ld5}, {SWS}, {sH2ld} offen offset:{1280*u} sc1')
a(f's_sub_u32 {sSpin}, {sSpin}, 1\ns_cbranch_scc1 L_poll2_to\ns_waitcnt vmcnt(0)')
for i in range(6): a(f'v_bitop3_b32 v{K2+i}, v{Lh+3*i}, v{Lh+3*i+1}, v{Lh+3*i+2} bitop3:0x80')
a(f"""
v_bitop3_b32 v{K2}, v{K2}, v{K2+1}, v{K2+2} bitop3:0x80
v_bitop3_b32 v{K2+3}, v{K2+3}, v{K2+4}, v{K2+5} bitop3:0x80
v_bitop3_b32 v{K2+1}, v{Lh+18}, v{Lh+19}, 1 bitop3:0x80
v_bitop3_b32 v{K2}, v{K2}, v{K2+3}, v{K2+1} bitop3:0x80
v_cmp_eq_u32 vcc, 0, v{K2}
v_swap_b32 v{Lh+1}, v{Lh+4}
s_cbranch_vccnz L_poll2
L_poll2_done:
""")
stamp('h2ok', True)
mfma(X+16, A3r, Lh+16, X+16)
for kl in range(2, 4): a(f'v_swap_b32 v{Lh+kl}, v{Lh+4*kl}')
for u in range(4): a(f'v_and_b32 v{Lh+u}, v{vMask0}, v{Lh+u}')
a(f'v_swap_b32 v{Lh+6}, v{Lh+9}\nv_swap_b32 v{Lh+7}, v{Lh+13}')
mfma(X, A3r, Lh, X)
a(f'v_swap_b32 v{Lh+11}, v{Lh+14}')
mfma(X+4, A3r, Lh+4, X+4)
a(f's_cmp_lt_u32 {sLayer}, {NLAYER}')
mfma(X+8, A3r, Lh+8, X+8); mfma(X+12, A3r, Lh+12, X+12)
a('s_nop 3\ns_cbranch_scc1 L_loop')
F = T
for kl in range(5):
    for p in range(2): a(f'v_cvt_pk_bf16_f32 v{F+2*kl+p}, v{X+4*kl+2*p}, v{X+4*kl+2*p+1}')
    for p in range(2):
        a(f'ds_write_b16 v{vXT+kl}, v{F+2*kl+p} offset:{2560*p}')
        a(f'ds_write_b16_d16_hi v{vXT+kl}, v{F+2*kl+p} offset:{2560*p+1280}')
a('s_waitcnt lgkmcnt(0)\ns_barrier')
for i in range(3): a(f'ds_read_b128 {vr(T+12+4*i)}, v{vRtR} offset:{L_XT-L_RT+4096*i}')
for i in range(3): a(f's_waitcnt lgkmcnt({2-i})\nbuffer_store_dwordx4 {vr(T+12+4*i)}, v{vG+i}, {SO}, 0 offen')
def stamp_dump(hk):
    if hk: a(f's_memtime s[{60+2*nst.index("end")}:{61+2*nst.index("end")}]\ns_memrealtime s[{60+2*nst.index("rend")}:{61+2*nst.index("rend")}]\ns_waitcnt lgkmcnt(0)')
    a(f's_lshl_b32 s7, s2, 7\ns_add_u32 s7, s7, {STAMP_OFF}\nv_mov_b32 v1, 0\ns_mov_b64 exec, 1')
    for i in range(len(nst)): a(f'v_mov_b32 v2, s{60+2*i}\nbuffer_store_dword v2, v1, {SWS}, s7 offen offset:{4*i}')
if STAMPS:
    a('s_waitcnt vmcnt(0)'); stamp('end'); stamp('rend', real=True)
    a(f's_waitcnt lgkmcnt(0)\ns_cmp_lg_u32 {sW}, {opt("swave")}\ns_cbranch_scc1 L_end')
    stamp_dump(False)
a('L_end:\ns_endpgm')
a('L_fix:\ns_nop 7')
mfma(T+40, DEL, Bo, None); mfma(T+44, DEL+4, Bo, None)
a('s_mov_b32 exec_lo, 0x00010001\ns_mov_b32 exec_hi, 0x00010001')
for p in range(2): a(f'v_pk_add_f32 {v2(D0+2*p)}, {v2(D0+2*p)}, {v2(T+40+2*p)}')
for p in range(2): a(f'v_pk_add_f32 {v2(DC+2*p)}, {v2(DC+2*p)}, {v2(T+44+2*p)}')
a(f's_mov_b64 exec, -1\nv_cvt_pk_f16_f32 v{W_}, v{D0}, v{D0+1}\ns_branch L_nofix')
a(f"""
L_l0b:
v_mov_b32 v{T+50}, {L_MODE}
ds_read_b32 v{T+50}, v{T+50}
s_waitcnt lgkmcnt(0)
v_readfirstlane_b32 {sMode}, v{T+50}
s_branch L_l0b_ret
L_l0c:
v_mov_b32 v{T+50}, {L_OWN}
v_lshrrev_b32 v{T+51}, 2, v{vL16}
v_and_b32 v{T+51}, 127, v{T+51}
ds_read_b32 v{T+50}, v{T+50}
ds_read_b32 v{T+52}, v{T+51} offset:{L_EXP}
s_lshl_b32 s7, {sSig}, 2
s_add_u32 s92, s7, {sW}
s_lshl_b32 s92, s92, 5
s_add_u32 s92, s92, {sM}
s_lshl_b32 s92, s92, 2
s_add_u32 s92, s92, {HF}
s_lshr_b32 s93, {sM}, 3
s_add_u32 s93, s93, s7
s_lshl_b32 s93, s93, 7
s_add_u32 s93, s93, {HF}
s_cmp_lg_u32 {sMode}, 0
s_mov_b64 exec, 1
s_waitcnt vmcnt(0) lgkmcnt(0)
s_cbranch_scc1 L_l0c_slow
buffer_store_dword v{T+50}, off, {SWS}, s92
s_branch L_l0c_p
L_l0c_slow:
buffer_store_dword v{T+50}, off, {SWS}, s92 sc1
L_l0c_p:
s_mov_b64 exec, -1
L_l0c_poll:
buffer_load_dword v{T+53}, v{T+51}, {SWS}, s93 offen sc1
s_sub_u32 {sSpin}, {sSpin}, 1
s_cbranch_scc1 L_l0c_ret
s_waitcnt vmcnt(0)
v_cmp_ne_u32 vcc, v{T+53}, v{T+52}
s_cbranch_vccnz L_l0c_poll
s_branch L_poll1
L_l0d:
v_mov_b32 v{T+50}, {L_GO}
L_l0d_spin:
ds_read_b32 v{T+51}, v{T+50}
s_waitcnt lgkmcnt(0)
v_cmp_eq_u32 vcc, 0, v{T+51}
s_cbranch_vccnz L_l0d_spin
s_branch L_l0d_ret
L_st_slow:
buffer_store_dwordx4 {vr(Wo)}, v{vL16}, {SWS}, {sH1st} offen sc1
buffer_store_dwordx2 {v2(Wo+4)}, v{vH1s2}, {SWS}, {sH1st} offen sc1
s_branch L_cphase
L_poll1_to:
s_waitcnt vmcnt(0)
s_branch L_poll1_done
L_poll2_to:
s_waitcnt vmcnt(0)
s_branch L_poll2_done
""")
H = 8
def fhash(dst, src): a(f'v_mul_lo_u32 v{dst}, v{src}, s50\nv_add_u32 v{dst}, s51, v{dst}')
def hs_group(lbl, x3, pre=False):
    a(f"""
s_mov_b32 exec_hi, 0
s_mov_b32 {sSpin}, {SPIN}
{'s_branch ' + lbl + '_chk' if pre else ''}
{lbl}:
buffer_load_dwordx3 v[{H}:{H+2}], v{vL16}, {SWS}, s54 offen sc1
s_sub_u32 {sSpin}, {sSpin}, 1
s_cbranch_scc1 {lbl}_to
s_waitcnt vmcnt(0)
{lbl}_chk:
""")
    fhash(H, H)
    a(f"""
v_xor_b32 v{H}, v{H}, v{H+(2 if x3 else 1)}
v_cmp_lt_u32 vcc, 15, v{H}
s_cbranch_vccnz {lbl}
s_branch {lbl}_done
{lbl}_to:
s_waitcnt vmcnt(0)
{lbl}_done:
v_lshrrev_b32 v{H+3}, 2, v{vL16}
ds_write_b32 v{H+3}, v{H+1} offset:{L_EXP}
v_and_b32 v{H+3}, 15, v{H+1}
v_cmp_ne_u32 vcc, s6, v{H+3}
s_mov_b64 exec, -1
""")
def hs_all(lbl, pre=False):
    a(f's_mov_b32 {sSpin}, {SPIN}')
    if pre: a(f's_branch {lbl}_w')
    a(f'{lbl}:')
    for i, r in enumerate(('s92', 's93', 's95', 's96')): a(f'buffer_load_dwordx2 {v2(H+8+2*i)}, v{vL16}, {SWS}, {r} offen sc1')
    a(f's_sub_u32 {sSpin}, {sSpin}, 1\ns_cbranch_scc1 {lbl}_done\n{lbl}_w:\ns_waitcnt vmcnt(0)')
    for i in range(4): fhash(H+8+2*i, H+8+2*i)
    for i in range(4): a(f'v_xor_b32 v{H+8+2*i}, v{H+8+2*i}, v{H+9+2*i}')
    a(f"""
v_or3_b32 v{H}, v{H+8}, v{H+10}, v{H+12}
v_or_b32 v{H}, v{H}, v{H+14}
v_cmp_lt_u32 vcc, 15, v{H}
s_cbranch_vccnz {lbl}
{lbl}_done:
s_waitcnt vmcnt(0)
""")
def flag_store(v, soff, off):
    a(f's_mov_b64 exec, 1\ns_waitcnt vmcnt(0)\nbuffer_store_dword v{v}, off, {SWS}, {soff} offset:{off} sc1\ns_mov_b64 exec, -1')
def hstamp(n):
    if opt('hstamp'): a(f's_memtime s[{60+2*nst.index(n)}:{61+2*nst.index(n)}]')
a('L_hk:')
if opt('prio', 1): a('s_setprio 3')
for i in range(4): a(f'v_mov_b32 v{vZ+i}, 0')
a(f"""
s_lshl_b32 {sGi}, {sSig}, 5
s_add_u32 {sGi}, {sGi}, {sM}
s_lshl_b32 s97, {sGi}, 4
s_add_u32 s97, s97, {FLAGS}
s_mul_i32 s94, {sGi}, 5120
s_add_u32 {sCl}, s94, {H2BASE+BUF}
s_add_u32 s94, s94, {H1BASE}
v_lshlrev_b32 v{H+18}, 8, v{vL16}
s_mov_b64 exec, 3
s_waitcnt lgkmcnt(0)
{WSADD}
buffer_load_dword v{H+16}, v{H+18}, {SWS}, s97 offen
s_mov_b64 exec, -1
v_lshlrev_b32 v{H+4}, 3, v{vL16}
v_min_u32 v{H+21}, 4992, v{H+4}
s_lshl_b32 s7, {sSig}, 9
s_add_u32 s7, s7, {HF}
{'' if opt('nopf') else f'buffer_load_dword v{H+27}, v{H+21}, {SWS}, s94 offen'}
v_min_u32 v{H+21}, 384, v{H+4}
buffer_load_dword v{H+28}, v{H+21}, {SWS}, s7 offen
""")
a('L_hk2:')
a(f"""
s_add_u32 s98, s94, {H1STR}
s_getreg_b32 s6, hwreg(HW_REG_XCC_ID, 0, 4)
s_mov_b32 s92, {FLAGS+0x1000}
s_mov_b32 s93, {FLAGS+0x1400}
s_mov_b32 s95, {FLAGS+0x1800}
s_mov_b32 s96, {FLAGS+0x1c00}
s_mov_b32 s50, 0x9e3779b1
s_mov_b32 s51, 0x7f4a7c15
v_mov_b32 v{H+1}, {L_MODE}
ds_write_b32 v{H+1}, v{vZ} offset:4
s_lshr_b32 s52, {sM}, 3
s_lshl_b32 s52, s52, 8
s_add_u32 s52, s52, {sSig}
s_mul_i32 s52, s52, 1280
s_and_b32 s53, {sM}, 7
s_mul_i32 s53, s53, 160
s_add_u32 s52, s52, s53
s_add_u32 s52, s52, {H2BASE}
s_movk_i32 s53, 10080
s_lshl_b32 s54, {sSig}, 9
s_add_u32 s54, s54, {FLAGS}
""")
for i in range(5):
    a(f"""v_add_u32 v{H+22+i}, {1024*i}, v{vL16}
v_mul_u32_u24 v{H+21}, 205, v{H+22+i}
v_lshrrev_b32 v{H+21}, 15, v{H+21}
v_mad_u32_u24 v{H+22+i}, v{H+21}, s53, v{H+22+i}""")
hstamp('top')
a(f's_waitcnt vmcnt({1 if opt("nopf") else 2}) lgkmcnt(0)')
fhash(H+5, H+16)
a(f'v_and_or_b32 v{H+5}, v{H+5}, -16, s6')
def flag_lane(lane, off):
    a(f's_mov_b64 exec, {1 << lane}\ns_waitcnt vmcnt(0)\nbuffer_store_dword v{H+5}, v{H+18}, {SWS}, s97 offen offset:{off} sc1\ns_mov_b64 exec, -1')
def hs_issue():
    for i, r in enumerate(('s92', 's93', 's95', 's96')): a(f'buffer_load_dwordx2 {v2(H+8+2*i)}, v{vL16}, {SWS}, {r} offen sc1')
hstamp('bar1')
a(f's_mov_b64 exec, 1\nbuffer_store_dword v{H+5}, v{H+18}, {SWS}, s97 offen offset:4 sc1\nv_mov_b32 v{H+1}, {L_OWN}\nds_write_b32 v{H+1}, v{H+5}\ns_mov_b64 exec, -1')
hstamp('s1w')
a(f'v_lshlrev_b32 v{H+19}, 17, v{vL16}\ns_lshl_b32 s7, s2, 7\ns_mov_b64 exec, 3\nbuffer_load_dword v{H+20}, v{H+19}, {SO}, s7 offen\ns_mov_b64 exec, -1')
a(f"""
s_barrier
s_barrier
s_mov_b32 exec_hi, 0
buffer_load_dwordx3 v[{H}:{H+2}], v{vL16}, {SWS}, s54 offen sc1
s_mov_b64 exec, -1
""")
if opt('clate'): a('s_barrier')
for i in range(5): a(f'buffer_store_dwordx4 {vr(vZ)}, v{H+22+i}, {SWS}, s52 offen sc1')
clean5(sCl); clean5('s98', '')
a(f's_add_u32 {sCl}, {sCl}, {BUF}')
if not opt('clate'): a('s_barrier')
a('s_mov_b32 exec_hi, 0\ns_waitcnt vmcnt(15)')
hstamp('bar2')
hs_group('L_hs', False, True)
a(f's_cmp_lg_u32 vcc_lo, 0\ns_cselect_b32 {sMode}, 1, {FORCE_SLOW}')
hstamp('h1st')
a(f"""
v_mov_b32 v{H}, {sMode}
v_mov_b32 v{H+1}, {L_MODE}
ds_write_b32 v{H+1}, v{H}
s_cmp_eq_u32 {sMode}, 0
s_cbranch_scc1 L_hk_go
""")
clean5('s98')
a('L_hk_go:\ns_waitcnt lgkmcnt(0)\ns_barrier')
flag_lane(1, 4)
a('s_barrier')
hs_all('L_hs2')
a(f'v_mov_b32 v{H}, 1\nv_mov_b32 v{H+1}, {L_GO}\nds_write_b32 v{H+1}, v{H}')
hstamp('h1ok')
a('s_barrier')
if opt('h3', 1):
    a(f's_add_u32 {sCl}, {sCl}, {BUF}'); clean5(sCl)
a(f"""
v_add_u32 v{H+16}, 1, v{H+16}
s_mov_b64 exec, 3
s_barrier
s_waitcnt vmcnt(0)
s_barrier
s_barrier
buffer_store_dword v{H+16}, v{H+18}, {SWS}, s97 offen sc1
""")
if opt('hstamp'): stamp_dump(True)
a('s_endpgm\nL_codeend:')

if opt('hfront', 1):
    li = [k for k, i in enumerate(a.ins) if i.text in ('L_hk:', 'L_hk2:')]
    hk = a.ins[li[0]:li[1]]
    rest = a.ins[:li[0]] + a.ins[li[1]:]
    b = [k for k, i in enumerate(rest) if i.text == 's_cbranch_scc1 L_hk'][0]
    a.ins = rest[:b] + [Ins('s_cbranch_scc0 L_main')] + hk + [Ins('s_branch L_hk2'), Ins('L_main:')] + rest[b+1:]
if opt('nodma'): a.ins = [i for i in a.ins if not i.op.startswith('global_load_lds')]
if opt('align', 1): print('align', align_pass(a, KNAME + ':\n'))
hdr = open('interleave_layers__spectral_fnet__spectral_fnet__prompt.s.ref').read().split('; Override')[0]
out = hdr + ('; STAMPS ' + ' '.join(nst) + '\n' if STAMPS else '') + f'; @launch grid=(256,1,1) block=(320,1,1) lds={LDS_BYTES}\n'
out += f'.amdgcn_target "amdgcn-amd-amdhsa--gfx950"\n.text\n.globl {KNAME}\n.p2align 8\n.type {KNAME},@function\n{KNAME}:\n'
out += a.text()
out += f'''.section .rodata,"a"
.p2align 6
.amdhsa_kernel {KNAME}
  .amdhsa_next_free_vgpr 256
  .amdhsa_next_free_sgpr 102
  .amdhsa_accum_offset 256
  .amdhsa_group_segment_fixed_size 0
  .amdhsa_kernarg_size 104
  .amdhsa_user_sgpr_count 2
  .amdhsa_user_sgpr_kernarg_segment_ptr 1
  .amdhsa_system_sgpr_workgroup_id_x 1
.end_amdhsa_kernel
.p2align 10
tbl:
'''
for f in blocks:
    for i in range(0, 256, 8): out += '.long ' + ','.join(f'{int(x):#x}' for x in f[i:i+8]) + '\n'
open(sys.argv[1], 'w').write(out)
print('instrs', len(a.ins), 'nops inserted', a.nops, 'table blocks', len(blocks), 'bytes', len(out))
```

```python
import sys, struct
import numpy as np
from design import *
from asmlib import Asm, align_pass, Ins

KNAME = "interleave_layers__spectral_fnet__spectral_fnet__prompt_kernel"
opts = dict(a.split('=') for a in sys.argv[2:] if '=' in a)
def opt(k, d=0): return int(opts.get(k, d))
STAMPS = opt('stamps'); FORCE_SLOW = opt('slow'); NLAYER = opt('layers', 4); SPIN = opt('spin', 200000); SLAYER = opt('slayer')
SST = opt('sstart')
def f2u(f): return struct.unpack('<I', struct.pack('<f', f))[0]
BUF = 0x200000 if opt('wst', 1) else 1310720
FLAGS = 4096; H1BASE = 0x40000; H1STR = 0x200000; H2BASE = 0x410000; WS_BYTES = H2BASE + 3*BUF + 1310720
STAMP_OFF = WS_BYTES
if STAMPS or opts.get('rp'): WS_BYTES += 256*128
L_V = 0; L_ST = 9600; L_MODE = 9856; L_GO = 9860; L_OWN = 9864; L_JUNK = 9872; L_EXP = 15104; HF = FLAGS + 0x2000; L_RT = 9984; L_XT = 15360; L_TB = 25600; L_CM = L_TB + 16*1024; LDS_BYTES = L_CM + 8192
OOB = 0x40000000
WSADD = f's_add_u32 s16, s16, {opt("wsoff") << 20}\ns_addc_u32 s17, s17, 0' if opt('wsoff') else ''
def vaddr(col): return (col % 40)*80 + (col//40)*4
def opA(M):
    h = M.astype(np.float16).view(np.uint16).astype(np.uint32)
    out = np.zeros((64, 4), np.uint32)
    for l in range(64):
        r = h[l % 16, 8*(l//16):8*(l//16)+8]
        out[l] = r[0::2] | (r[1::2] << 16)
    return out
def opB(N): return opA(N.T)
blocks = []
def add(b): blocks.append(np.asarray(b, np.uint32).reshape(256)); return len(blocks)-1
n_ = S1_mats(False); s_ = S1_mats(True)
def a3_idx(sig, m):
    g = unit_g(sig, m)
    if g == 0: return 9
    if g == 128: return 8
    return (g >> 7) + (0 if g % 4 == 1 else 4)
a3 = {}
for sig in range(8):
    for m in range(32):
        M = A3(sig, m)*HSCALE; i = a3_idx(sig, m)
        if i in a3: assert np.allclose(a3[i], M), (sig, m)
        a3[i] = M
for M in (n_[0], n_[1], n_[2], E_mat(False)): add(opA(M))
T_A3L = add(opA(a3[0]))
Bre, Bim = B1_mats(); T_B1 = add(opB(Bre)); add(opB(Bim))
T_A2 = len(blocks)
M = A2_mats6(0)/HSCALE; M2 = A2_mats6(20)/HSCALE
sgn = np.array([(-1.0)**((k % 8)//2) for k in range(32)])
assert np.allclose(M2, M*sgn)
for blk in range(3):
    for ch in range(3): add(opA(M[blk, ch]))
assert len(blocks) == 16
T_S1S = len(blocks)
for M in (s_[0], s_[1], s_[2], E_mat(True)): add(opA(M))
T_DEL = add(opA(s_[3])); add(opA(s_[4]))
T_A3 = len(blocks)
for i in range(10): add(opA(a3[i]))
T_ADDR = len(blocks)
at = np.zeros((2, 256, 4), np.uint32)
for ty, (sig, m) in enumerate(((2, 1), (1, 0))):
    for tid in range(256):
        w, l = divmod(tid, 64); n, mq = l % 16, l//16
        v = [vaddr(acol(sig, m, mq//2, 64*w+4*n+2*bop+(mq % 2))) for bop in range(2)]
        v += [6400 + vaddr(acol(sig, m, mq % 2, 64*w+4*n+2*(mq//2)+sub)) for sub in range(2)]
        k5 = 256 + 16*w + n
        if mq < 2: v += [vaddr(acol(sig, m, mq, k5)), 3200 + vaddr(acol(sig, m, mq, k5))]
        elif mq == 2: v += [6400 + vaddr(acol(sig, m, 0, k5)), 6400 + vaddr(acol(sig, m, 1, k5))]
        else: v += [L_JUNK + 4*n, L_JUNK + 4*n]
        at[ty, tid, :3] = [v[0] | (v[1] << 16), v[2] | (v[3] << 16), v[4] | (v[5] << 16)]
for i in range(8): add(at.reshape(-1)[256*i:256*i+256])
for i in range(640): assert (i*205) >> 14 == i//80
for i in range(320): assert (i*205) >> 11 == i//10

vL16, vH1s2, vH2ld, vH2ld5, vC1ld, vRtW, vRtR, vRtR2, vH2st, vH2st2, vStR, vStW = range(1, 13)
vVrd, vVrd2, vEps = 13, 14, 15
vV = 16
vXT = 22
vMask0 = 27; vG = 28
vTB = 31
vZc = 248
X = 32
A3r = 52; S1r = 56; B1r = 72; TWc = 80; TWs = 92; A2r = 104; CM = 140; DEL = 172
Bo = 180
T = 192
vZ = 4
def vr(b, n=4): return f'v[{b}:{b+n-1}]'
def v2(b): return f'v[{b}:{b+1}]'
sW, sSig, sM, sG, sType, sLayer, sMode = 's3', 's4', 's5', 's26', 's27', 's29', 's30'
sH1st, sH1ld0, sH1ld1, sH2st, sH2ld, sTag, sFlip, sSpin = 's31', 's32', 's33', 's34', 's35', 's36', 's37', 's38'
sCl, sGi, sInv, sFix = 's44', 's46', 's40', 's41'
sSlot = 's[42:43]'
SX, SO, SWS, STB = 's[8:11]', 's[12:15]', 's[16:19]', 's[24:25]'
HW = 4
a = Asm()
nst = []
RP = opts.get('rp'); RPL = opt('rpl')
def stamp(name, inloop=False, real=False):
    if RP:
        if name == 'start': a('s_memrealtime s[60:61]')
        if name == RP:
            if inloop: a('s_memrealtime s[90:91]\ns_waitcnt lgkmcnt(0)\ns_movreld_b32 s80, s90')
            else: a('s_memrealtime s[62:63]')
        return
    if SST and inloop and name not in ('top', 'bar1'): return
    if STAMPS:
        i = len(nst); nst.append(name)
        assert i < 16
        ins = f's_{"memrealtime" if real else "memtime"} s[{60+2*i}:{61+2*i}]'
        a(ins)
LATE = ('h2ack', 'h2ok')
def sst(name):
    if SST or RP: stamp(name)
def clean5(soff, fl=' sc1'):
    for i in range(4): a(f'buffer_store_dwordx4 {vr(vZ)}, v{vL16}, {SWS}, {soff} offen offset:{1024*i}{fl}')
    a(f's_add_u32 s7, {soff}, 4096\nbuffer_store_dwordx4 {vr(vZ)}, v{vL16}, {SWS}, s7 offen{fl}')
def mfma(d, A, B, C): a(f'v_mfma_f32_16x16x32_f16 {vr(d)}, {vr(A)}, {vr(B)}, {"0" if C is None else vr(C)}')

stamp('start'); stamp('rstart', real=True)
n_v, kq_v = T+10, T+11
a(f"""
s_load_dwordx2 s[16:17], s[0:1], 96
s_load_dwordx2 s[8:9], s[0:1], 0
s_load_dwordx2 s[12:13], s[0:1], 80
v_lshrrev_b32 v{T+1}, 6, v0
s_cmp_ge_u32 s2, 256
s_cbranch_scc1 L_end
""")
if opt('cpref', 1):
    a(f"""
s_getpc_b64 s[24:25]
v_lshlrev_b32 v{T+2}, 7, v0
v_min_u32 v{T+2}, L_codeend-{KNAME}-64, v{T+2}
global_load_dword v255, v{T+2}, s[24:25]
""")
a(f"""
v_readfirstlane_b32 {sW}, v{T+1}
v_and_b32 v{T}, 63, v0
s_and_b32 {sSig}, s2, 7
s_lshr_b32 {sM}, s2, 3
v_lshlrev_b32 v{vL16}, 4, v{T}
s_mov_b32 s18, {WS_BYTES}
s_mov_b32 s19, 0x20000
s_mov_b32 s14, 2621440
s_mov_b32 s15, 0x20000
s_cmp_eq_u32 {sW}, {HW}
s_cbranch_scc1 L_hk
s_lshl_b32 s6, {sSig}, 2
s_lshr_b32 s6, 0x9654d210, s6
s_and_b32 s6, s6, 15
s_lshl_b32 {sG}, {sM}, 4
s_add_u32 {sG}, {sG}, s6
s_cmp_eq_u32 {sSig}, 0
s_cselect_b32 s7, 248, 0
s_cmp_ge_u32 {sM}, 16
s_cselect_b32 s7, s7, 0
s_sub_u32 {sG}, {sG}, s7
s_and_b32 {sType}, {sG}, 1
""")
a(f"""
s_getpc_b64 s[24:25]
s_add_u32 s24, s24, tbl@rel32@lo+4
s_addc_u32 s25, s25, tbl@rel32@hi+12
s_lshr_b32 s7, {sG}, 7
s_lshl_b32 s94, {sType}, 2
s_sub_u32 s7, s7, s94
s_add_u32 s7, s7, {4 + T_A3}
s_cmp_eq_u32 {sG}, 128
s_cselect_b32 s7, {8 + T_A3}, s7
s_cmp_eq_u32 {sG}, 0
s_cselect_b32 s7, {9 + T_A3}, s7
s_cselect_b32 s94, {T_S1S*1024}, 0
s_lshl_b32 s7, s7, 10
s_lshl_b32 s95, {sW}, 12
s_cmp_eq_u32 {sW}, 0
s_cselect_b32 s94, s94, s95
s_cmp_eq_u32 {sW}, 1
s_cselect_b32 s7, s7, s94
s_add_u32 m0, s95, {L_TB}
v_add_u32 v{T+2}, s94, v{vL16}
v_add_u32 v{T+3}, s7, v{vL16}
s_lshl_b32 s7, {sType}, 12
s_add_u32 s7, s7, {T_ADDR*1024}
global_load_lds_dwordx4 v{T+3}, {STB}
global_load_lds_dwordx4 v{T+2}, {STB} offset:1024
global_load_lds_dwordx4 v{T+2}, {STB} offset:2048
global_load_lds_dwordx4 v{T+2}, {STB} offset:3072
v_lshl_add_u32 v{T+2}, v0, 4, s7
global_load_dwordx3 v[{vV}:{vV+2}], v{T+2}, {STB}
s_or_b32 {sFix}, s2, {sW}
""")
a(f"""
s_cmp_lg_u32 {sFix}, 0
s_cbranch_scc1 L_nodel
v_add_u32 v{T+2}, {T_DEL*1024}, v{vL16}
global_load_dwordx4 {vr(DEL)}, v{T+2}, {STB}
global_load_dwordx4 {vr(DEL+4)}, v{T+2}, {STB} offset:1024
L_nodel:
""")
a(f"""
s_sub_u32 s92, 0, {sG}
s_and_b32 s92, s92, 511
s_cmp_eq_u32 {sG}, 0
s_cselect_b32 s92, 256, s92
s_mul_i32 s92, s92, 1280
s_mul_i32 s93, {sG}, 1280
s_sub_u32 s92, s92, s93
s_sub_u32 s92, s92, {4*655360}
s_mov_b32 s10, 2621440
s_mov_b32 s11, 0x20000
s_mov_b32 s96, 0x9fb00
v_lshlrev_b32 v{vRtR}, 4, v0
""")
for i in range(3):
    a(f"""v_add_u32 v{T+12}, {256*i}, v0
v_mul_u32_u24 v{T+12}, 205, v{T+12}
v_lshrrev_b32 v{T+12}, 14, v{T+12}
v_mov_b32 v{T+13}, s92
v_cmp_le_u32 vcc, 4, v{T+12}
v_mad_u32_u24 v{T+12}, v{T+12}, s96, v{vRtR}
v_cndmask_b32 v{T+13}, 0, v{T+13}, vcc
v_add3_u32 v{vG+i}, v{T+12}, v{T+13}, s93""".replace(f'v_add_u32 v{T+12}, 0, v0\nv_mul_u32_u24 v{T+12}, 205, v{T+12}', f'v_mul_u32_u24 v{T+12}, 205, v0'))
    if i < 2: a(f's_add_u32 s93, s93, 4096')
a(f"""
""")
sst('prek')
a(f"""
s_waitcnt lgkmcnt(0)
s_lshl_b32 s7, {sW}, 10
s_add_u32 m0, s7, {L_XT}
{WSADD or 's_nop 1'}
buffer_load_dwordx4 v{vG}, {SX}, 0 offen lds
s_add_u32 m0, s7, {L_XT+4096}
s_cmp_ge_u32 {sW}, 2
buffer_load_dwordx4 v{vG+1}, {SX}, 0 offen lds
s_cbranch_scc1 L_nox2
s_add_u32 m0, s7, {L_XT+8192}
s_nop 0
buffer_load_dwordx4 v{vG+2}, {SX}, 0 offen lds
s_branch L_x2
L_nox2:
v_mov_b32 v{vG+2}, {OOB}
buffer_load_dword v254, v{vG+2}, {SX}, 0 offen
L_x2:
""")
sst('xiss')
sst('dma')
a(f"""
v_and_b32 v{n_v}, 15, v0
v_bfe_u32 v{kq_v}, v0, 4, 2
s_mul_i32 s94, {sType}, 320
v_lshrrev_b32 v{T+13}, 1, v{kq_v}
v_mul_u32_u24 v{T+14}, s94, v{T+13}
s_lshl_b32 s92, {sW}, 5
v_add3_u32 v{T+12}, v{n_v}, v{T+14}, s92
s_and_b32 s92, {sW}, 1
s_lshl_b32 s92, s92, 3
s_lshr_b32 s93, {sW}, 1
s_lshl_b32 s93, s93, 5
s_add_u32 s92, s92, s93
s_add_u32 s92, s92, 256
v_lshrrev_b32 v{T+17}, 1, v{n_v}
v_and_b32 v{T+18}, 1, v0
v_add3_u32 v{T+17}, v{T+17}, v{T+14}, s92
v_lshl_add_u32 v{T+17}, v{T+18}, 4, v{T+17}
s_xor_b32 s94, {sType}, 1
v_and_b32 v{T+13}, s94, v{T+13}
v_xor_b32 v{T+13}, v{T+13}, v{kq_v}
v_add_u32 v{T+14}, 16, v{T+12}
v_and_b32 v{T+13}, 1, v{T+13}
v_add_u32 v{T+15}, 128, v{T+12}
v_cmp_eq_u32 vcc, 1, v{T+13}
v_add_u32 v{T+16}, 144, v{T+12}
s_mul_i32 s94, s94, 320
""")
ecol = [T+12, T+14, T+15, T+16, T+17]
for kl in range(5): a(f'v_sub_u32 v{T+18+kl}, 640, v{ecol[kl]}')
for kl in range(5): a(f'v_cndmask_b32 v{vXT+kl}, v{ecol[kl]}, v{T+18+kl}, vcc')
a(f"""
v_cmp_gt_u32 vcc, 2, v{kq_v}
v_mov_b32 v{T+17}, s94
v_and_b32 v{T+13}, 1, v{kq_v}
v_cndmask_b32 v{T+17}, 0, v{T+17}, vcc
v_cmp_eq_u32 vcc, 0, v{T+12}
v_mul_u32_u24 v{T+9}, 0x1400, v{T+13}
v_add_u32 v{T+14}, {L_XT}, v{T+9}
v_cndmask_b32 v{vXT}, v{vXT}, v{T+17}, vcc
v_cmp_ne_u32 vcc, 0, v{vXT}
""")
for kl in range(5): a(f'v_lshl_add_u32 v{vXT+kl}, v{vXT+kl}, 1, v{T+14}')
a(f'v_cndmask_b32 v{vMask0}, 0, -1, vcc')
for i in range(20): a(f'v_mov_b32 v{X+i}, 0')
for i in range(4): a(f'v_mov_b32 v{vZc+i}, 0')
a(f"""
s_lshr_b32 s95, {sM}, 3
s_lshl_b32 s7, s95, 2
s_lshr_b32 s7, 0x1120, s7
s_and_b32 s7, s7, 3
s_add_u32 s96, s6, 256
s_cmp_eq_u32 {sSig}, 0
s_cselect_b32 s96, 8, s96
s_lshl_b32 s94, {sW}, 4
s_add_u32 s6, s6, s94
s_add_u32 s96, s96, s94
v_lshl_add_u32 v{T+13}, v{n_v}, 2, s7
v_lshl_add_u32 v{T+14}, v{kq_v}, 6, s6
v_lshl_add_u32 v{T+15}, v{kq_v}, 6, s96
v_add_u32 v{T+12}, 64, v{T+13}
s_mov_b32 s94, {f2u(1/2048):#x}
""")
G = T+24
for hi in range(2):
    for ch in range(2): a(f'v_mul_u32_u24 v{G+2*(2*hi+ch)}, v{T+13-hi}, v{T+14+ch}')
for k in range(4): a(f'v_and_b32 v{G+2*k}, 0x7ff, v{G+2*k}')
for k in range(4): a(f'v_cvt_f32_u32 v{G+2*k}, v{G+2*k}')
for k in range(4): a(f'v_mul_f32 v{G+2*k}, s94, v{G+2*k}')
for k in range(4): a(f'v_sin_f32 v{G+2*k+1}, v{G+2*k}\nv_cos_f32 v{G+2*k}, v{G+2*k}')
for k in range(4): a(f'v_cvt_pk_f16_f32 v{G+8+2*k}, v{G+2*k}, v{G+2*k+1}\nv_cvt_pk_f16_f32 v{G+9+2*k}, -v{G+2*k+1}, v{G+2*k}')
a(f's_cmp_lg_u32 {sSig}, 0\ns_cbranch_scc1 L_cm_done')
for hi in range(2):
    b = G+8+4*hi
    a(f'v_mov_b32 v{b+1}, 0\nv_mov_b32 v{b+3}, v{b+2}\nv_mov_b32 v{b+2}, 0')
a(f"""
v_and_b32 v{T+17}, 1, v0
v_lshlrev_b32 v{T+17}, 4, v{T+17}
v_mov_b32 v{T+18}, 0x3c00
v_lshlrev_b32 v{T+17}, v{T+17}, v{T+18}
v_cmp_gt_u32 vcc, 16, v0
v_cndmask_b32 v{G+8}, v{G+8}, v{T+17}, vcc
v_cndmask_b32 v{G+12}, v{G+12}, v{T+17}, vcc
L_cm_done:
""")
sst('cm')
a(f'''
v_lshlrev_b32 v{T+12}, 2, v{kq_v}
v_mul_u32_u24 v{T+12}, v{T+12}, v{n_v}
v_cvt_f32_u32 v{T+12}, v{T+12}
v_cvt_f32_u32 v{T+13}, v{n_v}
v_mul_f32 v{T+12}, {f2u(1/640):#x}, v{T+12}
v_mul_f32 v{T+13}, {f2u(1/640):#x}, v{T+13}
''')
for blk in range(3):
    for i in range(4):
        k = 16*blk + i
        if k == 0: src = T+12
        else:
            src = T+14
            a(f'v_fmamk_f32 v{T+14}, v{T+13}, {f2u(float(k)):#x}, v{T+12}')
        a(f'v_cos_f32 v{TWc+4*blk+i}, v{src}\nv_sin_f32 v{TWs+4*blk+i}, v{src}')
a(f"""
s_mov_b32 {sInv}, {f2u(1/640):#x}
v_mov_b32 v{vEps}, {f2u(1e-5):#x}
v_mov_b32 v{Bo+10}, 0
v_mov_b32 v{Bo+11}, 0
s_mov_b32 {sLayer}, 0
s_mov_b32 {sTag}, 1
s_mov_b32 {sFlip}, 0
s_cmp_lt_u32 {sW}, 2
s_cselect_b64 {sSlot}, 1, 0
s_cselect_b32 s7, 3200, 0
s_cselect_b32 s52, 12, 8
s_cselect_b32 s53, 0, 32
s_lshl_b32 s7, s7, {sW}
v_lshlrev_b32 v{T+12}, 4, v{kq_v}
v_mul_u32_u24 v{vVrd}, 80, v{n_v}
v_add3_u32 v{vVrd}, v{vVrd}, v{T+12}, s7
v_and_b32 v{vVrd2}, 7, v0
v_mul_u32_u24 v{vVrd2}, 80, v{vVrd2}
s_add_u32 s7, s7, 2560
v_add3_u32 v{vVrd2}, v{vVrd2}, v{T+12}, s7
s_mul_i32 s54, s52, {sW}
s_lshl_b32 s54, s54, 2
s_add_u32 s54, s54, s53
s_sub_u32 s7, s52, 1
v_min_u32 v{T+13}, s7, v{n_v}
v_lshlrev_b32 v{T+13}, 2, v{T+13}
s_movk_i32 s7, 5120
v_mad_u32_u24 v{vC1ld}, v{kq_v}, s7, v{T+13}
v_mul_u32_u24 v{vRtW}, 160, v{n_v}
s_add_u32 s7, s54, {L_RT}
v_add3_u32 v{vRtW}, v{vRtW}, v{T+12}, s7
s_lshl_b32 s7, s52, 2
v_cmp_gt_u32 vcc, s7, v{T+12}
v_add_u32 v{T+13}, {L_XT}, v{vL16}
v_cndmask_b32 v{vRtW}, v{T+13}, v{vRtW}, vcc
v_mul_u32_u24 v{T+13}, 205, v0
v_lshrrev_b32 v{T+13}, 11, v{T+13}
v_mul_u32_u24 v{T+13}, 10080, v{T+13}
v_add_u32 v{vH2st}, v{T+13}, v{vRtR}
s_lshl_b32 s7, {sW}, 4
s_add_u32 s7, s7, 256
v_add_u32 v{T+13}, s7, v{n_v}
v_lshlrev_b32 v{vRtR2}, 4, v{T+13}
v_mul_u32_u24 v{T+13}, 205, v{T+13}
v_lshrrev_b32 v{T+13}, 11, v{T+13}
v_mul_u32_u24 v{T+13}, 10080, v{T+13}
v_add_u32 v{vH2st2}, v{T+13}, v{vRtR2}
v_cmp_eq_u32 vcc, 0, v{kq_v}
v_mov_b32 v{T+13}, {OOB}
v_cndmask_b32 v{vH2st2}, v{T+13}, v{vH2st2}, vcc
v_add_u32 v{vRtR}, {L_RT}, v{vRtR}
v_add_u32 v{vRtR2}, {L_RT}, v{vRtR2}
v_lshrrev_b32 v{vH1s2}, 1, v{vL16}
v_add_u32 v{vH1s2}, {1024-128}, v{vH1s2}
v_add_u32 v{T+14}, -1, v{kq_v}
v_cmp_gt_u32 vcc, 2, v{T+14}
v_cndmask_b32 v{vH1s2}, v{T+13}, v{vH1s2}, vcc
v_and_b32 v{T+13}, 1, v{kq_v}
v_lshlrev_b32 v{T+13}, 7, v{T+13}
v_and_b32 v{T+14}, 3, v0
v_lshl_add_u32 v{vStR}, v{T+14}, 5, v{T+13}
v_add_u32 v{vStR}, {L_ST}, v{vStR}
v_bfe_u32 v{T+14}, v0, 2, 1
v_lshl_add_u32 v{T+13}, v{T+14}, 6, v{T+13}
v_bfe_u32 v{T+14}, v0, 3, 1
v_lshl_add_u32 v{T+13}, v{T+14}, 5, v{T+13}
v_bfe_u32 v{T+14}, v0, 5, 1
v_lshl_add_u32 v{T+13}, v{T+14}, 2, v{T+13}
s_lshl_b32 s7, {sW}, 3
s_add_u32 s7, s7, {L_ST}
v_add_u32 v{vStW}, s7, v{T+13}
s_and_b32 s93, {sM}, 7
s_mul_i32 s93, s93, 160
s_lshl_b32 s94, {sSig}, 7
s_add_u32 s92, s94, {sM}
s_mul_i32 s92, s92, 1280
s_mul_i32 {sH1st}, {sW}, 40960
s_add_u32 {sH1st}, {sH1st}, s92
s_add_u32 {sH1st}, {sH1st}, {H1BASE}
s_lshl_b32 s96, s95, 5
s_add_u32 s96, s96, s94
s_mul_i32 {sH1ld0}, s96, 1280
s_add_u32 {sH1ld0}, {sH1ld0}, s93
s_add_u32 s96, s54, {H1BASE}
s_add_u32 {sH1ld0}, {sH1ld0}, s96
s_add_u32 {sH1ld1}, {sH1ld0}, 20480
s_lshl_b32 s96, s95, 8
s_add_u32 s96, s96, {sSig}
s_mul_i32 {sH2st}, s96, 1280
s_add_u32 {sH2st}, {sH2st}, s93
s_add_u32 {sH2st}, {sH2st}, {H2BASE}
s_mov_b32 {sH2ld}, {H2BASE-BUF}
s_add_u32 {sCl}, {sH2st}, {2*BUF}
s_and_b32 s7, {sG}, 127
s_lshr_b32 s7, s7, 2
s_sub_u32 s94, 0, {sG}
s_and_b32 s94, s94, 127
s_lshr_b32 s94, s94, 2
s_bfe_u32 s95, {sG}, 0x10001
s_cmp_eq_u32 {sType}, 1
s_cselect_b32 s94, s7, s94
s_cselect_b32 s96, 2, s95
s_cselect_b32 s95, 3, s95
s_lshl_b32 s96, s96, 5
s_lshl_b32 s95, s95, 5
s_add_u32 s7, s7, s96
s_add_u32 s94, s94, s95
s_mul_i32 s7, s7, 10240
s_mul_i32 s94, s94, 10240
v_mov_b32 v{T+12}, s7
v_mov_b32 v{T+13}, s94
v_cmp_le_u32 vcc, 2, v{kq_v}
s_lshl_b32 s95, {sW}, 8
s_lshl_b32 s96, {sW}, 6
v_cndmask_b32 v{T+12}, v{T+12}, v{T+13}, vcc
s_add_u32 s96, s96, 1024
v_add_u32 v{T+12}, v{T+12}, v{T+9}
v_lshlrev_b32 v{T+13}, 4, v{n_v}
v_add3_u32 v{vH2ld}, v{T+12}, v{T+13}, s95
v_lshlrev_b32 v{T+13}, 2, v{n_v}
v_add3_u32 v{vH2ld5}, v{T+12}, v{T+13}, s96
v_add_u32 v{vTB}, {L_TB}, v{vL16}
s_lshl_b32 s7, {sW}, 2
v_add_u32 v{T+2}, s7, v{vTB}
""")
sst('prex')
for hi in range(2):
    for ch in range(2):
        for rio in range(2):
            a(f'ds_write_b32 v{T+2}, v{G+8+2*(2*hi+ch)+rio} offset:{L_CM-L_TB+((hi*2+rio)*2+ch)*1024}')
a('s_waitcnt vmcnt(3) lgkmcnt(0)\ns_barrier')
sst('bart')
for i in range(4): a(f'ds_read_b128 {vr(S1r+4*i)}, v{vTB} offset:{1024*i}')
for i in range(9): a(f'ds_read_b128 {vr(A2r+4*i)}, v{vTB} offset:{1024*(T_A2+i)}')
for i in range(2): a(f'ds_read_b128 {vr(B1r+4*i)}, v{vTB} offset:{1024*(T_B1+i)}')
for i in range(8): a(f'ds_read_b128 {vr(CM+4*i)}, v{vTB} offset:{L_CM-L_TB+1024*i}')
a(f'ds_read_b128 {vr(A3r)}, v{vTB} offset:{1024*T_A3L}')
for i in (2, 1, 0): a(f'v_lshrrev_b32 v{vV+2*i+1}, 16, v{vV+i}\nv_and_b32 v{vV+2*i}, 0xffff, v{vV+i}')
a(f's_cmp_eq_u32 {sW}, 3\ns_cselect_b32 s7, 0x80008000, 0\ns_waitcnt lgkmcnt(11)')
for i in range(18): a(f'v_xor_b32 v{A2r+2*i+1}, s7, v{A2r+2*i+1}')
a('s_waitcnt vmcnt(0)\ns_barrier')
sst('bar0')
for kl in range(5):
    for j in range(4): a(f'ds_read_u16_d16_hi v{X+4*kl+j}, v{vXT+kl} offset:{1280*j}')
a('s_waitcnt lgkmcnt(0)')
Sx, Qx = T, T+4
if RP: a('s_mov_b32 m0, 0')
a('L_loop:')
stamp('top', True)
for p in range(2):
    a(f'v_pk_add_f32 {v2(Sx+2*p)}, {v2(X+2*p)}, {v2(X+4+2*p)}')
    a(f'v_pk_mul_f32 {v2(Qx+2*p)}, {v2(X+2*p)}, {v2(X+2*p)}')
for kl in range(1, 5):
    for p in range(2):
        b = X+4*kl+2*p
        a(f'v_pk_fma_f32 {v2(Qx+2*p)}, {v2(b)}, {v2(b)}, {v2(Qx+2*p)}')
        if kl > 1: a(f'v_pk_add_f32 {v2(Sx+2*p)}, {v2(Sx+2*p)}, {v2(b)}')
for j in range(4): a(f'v_permlane32_swap_b32 v{Sx+j}, v{Qx+j}')
for p in range(2): a(f'v_pk_add_f32 {v2(Sx+2*p)}, {v2(Sx+2*p)}, {v2(Qx+2*p)}')
def dpp(d, s, ctl, bank): a(f'v_add_f32_dpp v{d}, v{s}, v{s} {ctl} row_mask:0xf bank_mask:{bank:#x}')
dpp(Sx, Sx, 'row_ror:8', 3); dpp(Sx, Sx+1, 'row_ror:8', 12); dpp(Sx+2, Sx+2, 'row_ror:8', 3); dpp(Sx+2, Sx+3, 'row_ror:8', 12)
dpp(Sx, Sx, 'row_shl:4', 5); dpp(Sx, Sx+2, 'row_shr:4', 10)
dpp(Sx, Sx, 'quad_perm:[1,0,3,2]', 15); dpp(Sx, Sx, 'quad_perm:[2,3,0,1]', 15)
a(f"""
ds_write_b32 v{vStW}, v{Sx}
s_waitcnt lgkmcnt(0)
s_barrier
""")
stamp('bar1', True)
P = T+8; RS = T+16; NB = T+20
a(f"""
ds_read_b128 {vr(P)}, v{vStR}
ds_read_b128 {vr(P+4)}, v{vStR} offset:16
s_waitcnt lgkmcnt(1)
v_pk_add_f32 {v2(P)}, {v2(P)}, {v2(P+2)}
s_waitcnt lgkmcnt(0)
v_pk_add_f32 {v2(P+4)}, {v2(P+4)}, {v2(P+6)}
v_pk_add_f32 {v2(P)}, {v2(P)}, {v2(P+4)}
v_mul_f32 v{P}, {sInv}, v{P}
v_fma_f32 v{P+1}, v{P+1}, {sInv}, v{vEps}
v_fma_f32 v{P+1}, -v{P}, v{P}, v{P+1}
v_max_f32 v{P+1}, v{P+1}, v{vEps}
v_rsq_f32 v{P+1}, v{P+1}
v_mul_f32 v{P}, -v{P}, v{P+1}
""")
for j in range(4): a(f'v_mov_b32_dpp v{RS+j}, v{P+1} quad_perm:[{j},{j},{j},{j}] row_mask:0xf bank_mask:0xf')
for j in range(4): a(f'v_mov_b32_dpp v{NB+j}, v{P} quad_perm:[{j},{j},{j},{j}] row_mask:0xf bank_mask:0xf')
N_ = T+24
D0, D1, DC, DE = T, T+4, T+8, T+12
def norm(kl):
    for p in range(2): a(f'v_pk_fma_f32 {v2(N_+4*(kl%2)+2*p)}, {v2(X+4*kl+2*p)}, {v2(RS+2*p)}, {v2(NB+2*p)}')
def cvtn(kl):
    for p in range(2): a(f'v_cvt_pk_f16_f32 v{Bo+2*kl+p}, v{N_+4*(kl%2)+2*p}, v{N_+4*(kl%2)+2*p+1}')
norm(0); norm(1); cvtn(0); cvtn(1); norm(2); norm(3)
mfma(D0, S1r, Bo, None); mfma(DC, S1r+4, Bo, None)
cvtn(2); cvtn(3); norm(4)
mfma(D1, S1r, Bo+4, None); mfma(DC, S1r+8, Bo+4, DC)
cvtn(4)
a(f's_cmp_lg_u32 {sFix}, 0')
W_ = T+32
a(f'v_cvt_pk_f16_f32 v{W_}, v{D0}, v{D0+1}')
mfma(DE, S1r+12, Bo+8, None)
a(f's_cbranch_scc0 L_fix\nL_nofix:')
a(f"""
v_cvt_pk_f16_f32 v{W_+1}, v{D0+2}, v{D0+3}
ds_write_b32 v{vV}, v{W_}
ds_write_b32 v{vV}, v{W_+1} offset:3200
v_cvt_pk_f16_f32 v{W_+2}, v{D1}, v{D1+1}
v_cvt_pk_f16_f32 v{W_+3}, v{D1+2}, v{D1+3}
v_cvt_pk_f16_f32 v{W_+4}, v{DC}, v{DC+1}
v_cvt_pk_f16_f32 v{W_+5}, v{DC+2}, v{DC+3}
ds_write_b32 v{vV+1}, v{W_+2}
ds_write_b32 v{vV+1}, v{W_+3} offset:3200
v_cvt_pk_f16_f32 v{W_+6}, v{DE}, v{DE+1}
v_cvt_pk_f16_f32 v{W_+7}, v{DE+2}, v{DE+3}
ds_write_b32 v{vV+2}, v{W_+4}
ds_write_b32 v{vV+3}, v{W_+5}
ds_write_b32 v{vV+4}, v{W_+6}
ds_write_b32 v{vV+5}, v{W_+7}
""")
stamp('s1w', True)
a(f's_cmp_eq_u32 {sLayer}, 0\ns_waitcnt lgkmcnt(0)\ns_barrier')
stamp('bar2', True)
Ad = T; Tr = T+12; Ti = T+24; B2 = T+36; O = T; Pt = T+48; Qt = T+52
a(f"""
ds_read_b128 {vr(Ad)}, v{vVrd}
ds_read_b128 {vr(Ad+4)}, v{vVrd} offset:1280
ds_read_b128 {vr(Ad+8)}, v{vVrd2}
s_cbranch_scc1 L_l0b
L_l0b_ret:
""")
for blk in range(3):
    a(f's_waitcnt lgkmcnt({2-blk})')
    mfma(Tr+4*blk, Ad+4*blk, B1r, None); mfma(Ti+4*blk, Ad+4*blk, B1r+4, None)
for ch in range(3):
    for p in range(2):
        r_, i_ = Tr+4*ch+2*p, Ti+4*ch+2*p; c_ = TWc+4*ch+2*p
        a(f'v_pk_mul_f32 {v2(Pt+2*p)}, {v2(r_)}, {v2(c_)}')
        a(f'v_pk_mul_f32 {v2(Qt+2*p)}, {v2(i_)}, {v2(c_)}')
    for p in range(2):
        r_, i_ = Tr+4*ch+2*p, Ti+4*ch+2*p; s_2 = TWs+4*ch+2*p
        a(f'v_pk_fma_f32 {v2(Pt+2*p)}, {v2(i_)}, {v2(s_2)}, {v2(Pt+2*p)}')
        a(f'v_pk_fma_f32 {v2(Qt+2*p)}, {v2(r_)}, {v2(s_2)}, {v2(Qt+2*p)} neg_lo:[1,0,0] neg_hi:[1,0,0]')
        if ch > 0 and p == 0: mfma(O+8, A2r+(6+ch-1)*4, B2+4*(ch-1), None if ch == 1 else O+8)
    for i in range(4): a(f'v_cvt_pk_f16_f32 v{B2+4*ch+i}, v{Pt+i}, v{Qt+i}')
    if ch == 2: a(f's_cmp_lg_u32 {sMode}, 0')
    for blk in ((0, 1) if ch < 2 else (2, 0, 1)):
        mfma(O+4*blk, A2r+(blk*3+ch)*4, B2+4*ch, None if ch == 0 else O+4*blk)
Wo = T+12
for i in (4, 5, 0, 1, 2, 3): a(f'v_cvt_pk_f16_f32 v{Wo+i}, v{O+2*i}, v{O+2*i+1}')
a(f'v_cndmask_b32 v{Wo}, v{Wo}, v{Wo+4}, {sSlot}')
for i in (4, 5, 1, 2, 3, 0): a(f'v_and_or_b32 v{Wo+i}, v{Wo+i}, -2, {sTag}')
a(f"""
s_cbranch_scc1 L_st_slow
buffer_store_dwordx4 {vr(Wo)}, v{vL16}, {SWS}, {sH1st} offen
buffer_store_dwordx2 {v2(Wo+4)}, v{vH1s2}, {SWS}, {sH1st} offen
L_cphase:
""")
stamp('h1st', True)
Ca = T+20; Dm = T+28; K_ = T+44
a(f"""
s_mov_b32 {sSpin}, {SPIN}
s_xor_b32 {sH1st}, {sH1st}, {H1STR}
s_add_u32 {sH2ld}, {sH2ld}, {BUF}
s_cmp_eq_u32 {sLayer}, 0
s_cbranch_scc1 L_l0c
L_l0c_ret:
""")
if opt('ack1'): a('s_waitcnt vmcnt(0)')
a('L_poll1:')
for ch in range(2):
    for u in range(4):
        a(f'buffer_load_dword v{Ca+4*ch+u}, v{vC1ld}, {SWS}, {sH1ld0 if ch == 0 else sH1ld1} offen offset:{1280*u} sc1')
a(f's_sub_u32 {sSpin}, {sSpin}, 1\ns_cbranch_scc1 L_poll1_to\ns_waitcnt vmcnt(0)')
tt = sum((((i >> 2 & 1) ^ (i & 1)) & ((i >> 1 & 1) ^ (i & 1))) << i for i in range(8))
for i in range(4): a(f'v_bitop3_b32 v{K_+i}, v{Ca+2*i}, v{Ca+2*i+1}, {sFlip} bitop3:{tt:#x}')
def cm(hi, ch, rio):
    d = Dm + (hi*2+rio)*4
    mfma(d, Ca+4*ch, CM+((hi*2+rio)*2+ch)*4, None if ch == 0 else d)
cm(0, 0, 0)
a(f'v_bitop3_b32 v{K_}, v{K_}, v{K_+1}, v{K_+2} bitop3:0x80')
cm(0, 0, 1)
a(f'v_bitop3_b32 v{K_}, v{K_}, v{K_+3}, 1 bitop3:0x80')
cm(0, 1, 0)
a(f'v_cmp_eq_u32 vcc, 0, v{K_}')
cm(0, 1, 1)
a('s_cbranch_vccnz L_poll1\nL_poll1_done:')
stamp('h1ok', True)
cm(1, 0, 0); cm(1, 0, 1); cm(1, 1, 0); cm(1, 1, 1)
for hi in range(2):
    for i in range(4): a(f'v_cvt_pk_f16_f32 v{K_+4*hi+i}, v{Dm+8*hi+i}, v{Dm+8*hi+4+i}')
    for i in range(4): a(f'v_or_b32 v{K_+4*hi+i}, 1, v{K_+4*hi+i}')
    a(f'ds_write_b128 v{vRtW}, {vr(K_+4*hi)} offset:{2560*hi}')
a(f"""
s_waitcnt lgkmcnt(0)
s_barrier
ds_read_b128 {vr(T)}, v{vRtR}
ds_read_b128 {vr(T+4)}, v{vRtR2}
s_waitcnt lgkmcnt(1)
buffer_store_dwordx4 {vr(T)}, v{vH2st}, {SWS}, {sH2st} offen sc1
s_waitcnt lgkmcnt(0)
buffer_store_dwordx4 {vr(T+4)}, v{vH2st2}, {SWS}, {sH2st} offen sc1
""")
stamp('h2st', True)
CLN = f's_mov_b32 {sCl}, {OOB}' if opt('h3', 1) else f's_add_u32 {sCl}, {sCl}, {BUF}'
a(f"""
buffer_store_dwordx4 {vr(vZc)}, v{vH2st}, {SWS}, {sCl} offen sc1
buffer_store_dwordx4 {vr(vZc)}, v{vH2st2}, {SWS}, {sCl} offen sc1
{CLN}
s_mov_b32 {sSpin}, {SPIN}
s_add_u32 {sLayer}, {sLayer}, 1
{f's_mov_b32 m0, {sLayer}' if RP else ''}
s_add_u32 {sH2st}, {sH2st}, {BUF}
s_xor_b32 {sH1ld0}, {sH1ld0}, {H1STR}
s_xor_b32 {sH1ld1}, {sH1ld1}, {H1STR}
s_cmp_ge_u32 {sLayer}, 2
s_cselect_b32 {sTag}, 0, 1
s_cselect_b32 {sFlip}, -1, 0
s_cmp_eq_u32 {sLayer}, 1
s_cbranch_scc1 L_l0d
L_l0d_ret:
s_waitcnt vmcnt(2)
""")
stamp('h2ack', True)
a('L_poll2:')
Lh = T+8; K2 = T+28
for u in range(4): a(f'buffer_load_dwordx4 {vr(Lh+4*u)}, v{vH2ld}, {SWS}, {sH2ld} offen offset:{1280*u} sc1')
for u in range(4): a(f'buffer_load_dword v{Lh+16+u}, v{vH2ld5}, {SWS}, {sH2ld} offen offset:{1280*u} sc1')
a(f's_sub_u32 {sSpin}, {sSpin}, 1\ns_cbranch_scc1 L_poll2_to\ns_waitcnt vmcnt(0)')
for i in range(6): a(f'v_bitop3_b32 v{K2+i}, v{Lh+3*i}, v{Lh+3*i+1}, v{Lh+3*i+2} bitop3:0x80')
a(f"""
v_bitop3_b32 v{K2}, v{K2}, v{K2+1}, v{K2+2} bitop3:0x80
v_bitop3_b32 v{K2+3}, v{K2+3}, v{K2+4}, v{K2+5} bitop3:0x80
v_bitop3_b32 v{K2+1}, v{Lh+18}, v{Lh+19}, 1 bitop3:0x80
v_bitop3_b32 v{K2}, v{K2}, v{K2+3}, v{K2+1} bitop3:0x80
v_cmp_eq_u32 vcc, 0, v{K2}
v_swap_b32 v{Lh+1}, v{Lh+4}
s_cbranch_vccnz L_poll2
L_poll2_done:
""")
stamp('h2ok', True)
mfma(X+16, A3r, Lh+16, X+16)
for kl in range(2, 4): a(f'v_swap_b32 v{Lh+kl}, v{Lh+4*kl}')
for u in range(4): a(f'v_and_b32 v{Lh+u}, v{vMask0}, v{Lh+u}')
a(f'v_swap_b32 v{Lh+6}, v{Lh+9}\nv_swap_b32 v{Lh+7}, v{Lh+13}')
mfma(X, A3r, Lh, X)
a(f'v_swap_b32 v{Lh+11}, v{Lh+14}')
mfma(X+4, A3r, Lh+4, X+4)
a(f's_cmp_lt_u32 {sLayer}, {NLAYER}')
mfma(X+8, A3r, Lh+8, X+8); mfma(X+12, A3r, Lh+12, X+12)
a('s_nop 3\ns_cbranch_scc1 L_loop')
F = T
for kl in range(5):
    for p in range(2): a(f'v_cvt_pk_bf16_f32 v{F+2*kl+p}, v{X+4*kl+2*p}, v{X+4*kl+2*p+1}')
    for p in range(2):
        a(f'ds_write_b16 v{vXT+kl}, v{F+2*kl+p} offset:{2560*p}')
        a(f'ds_write_b16_d16_hi v{vXT+kl}, v{F+2*kl+p} offset:{2560*p+1280}')
a('s_waitcnt lgkmcnt(0)\ns_barrier')
for i in range(3): a(f'ds_read_b128 {vr(T+12+4*i)}, v{vRtR} offset:{L_XT-L_RT+4096*i}')
for i in range(3): a(f's_waitcnt lgkmcnt({2-i})\nbuffer_store_dwordx4 {vr(T+12+4*i)}, v{vG+i}, {SO}, 0 offen')
def stamp_dump(hk):
    if hk: a(f's_memtime s[{60+2*nst.index("end")}:{61+2*nst.index("end")}]\ns_memrealtime s[{60+2*nst.index("rend")}:{61+2*nst.index("rend")}]\ns_waitcnt lgkmcnt(0)')
    a(f's_lshl_b32 s7, s2, 7\ns_add_u32 s7, s7, {STAMP_OFF}\nv_mov_b32 v1, 0\ns_mov_b64 exec, 1')
    for i in range(len(nst)): a(f'v_mov_b32 v2, s{60+2*i}\nbuffer_store_dword v2, v1, {SWS}, s7 offen offset:{4*i}')
if STAMPS:
    a('s_waitcnt vmcnt(0)'); stamp('end'); stamp('rend', real=True)
    a(f's_waitcnt lgkmcnt(0)\ns_cmp_lg_u32 {sW}, {opt("swave")}\ns_cbranch_scc1 L_end')
    stamp_dump(False)
if RP:
    if RP == 'end': a('s_waitcnt vmcnt(0)\ns_memrealtime s[62:63]')
    if RP == 'top': a(f's_mov_b32 s62, s{80+RPL}')
    if RP == 'h2ok': a(f's_mov_b32 s62, s{81+RPL}')
    a(f's_waitcnt lgkmcnt(0)\ns_cmp_lg_u32 {sW}, 0\ns_cbranch_scc1 L_end\ns_lshl_b32 s7, s2, 3\ns_add_u32 s7, s7, {STAMP_OFF}\nv_mov_b32 v2, s60\nv_mov_b32 v3, s62\ns_mov_b64 exec, 1\nbuffer_store_dwordx2 v[2:3], off, {SWS}, s7')
a('L_end:\ns_endpgm')
a('L_fix:\ns_nop 7')
mfma(T+40, DEL, Bo, None); mfma(T+44, DEL+4, Bo, None)
a('s_mov_b32 exec_lo, 0x00010001\ns_mov_b32 exec_hi, 0x00010001')
for p in range(2): a(f'v_pk_add_f32 {v2(D0+2*p)}, {v2(D0+2*p)}, {v2(T+40+2*p)}')
for p in range(2): a(f'v_pk_add_f32 {v2(DC+2*p)}, {v2(DC+2*p)}, {v2(T+44+2*p)}')
a(f's_mov_b64 exec, -1\nv_cvt_pk_f16_f32 v{W_}, v{D0}, v{D0+1}\ns_branch L_nofix')
a(f"""
L_l0b:
v_mov_b32 v{T+50}, {L_MODE}
ds_read_b32 v{T+50}, v{T+50}
s_waitcnt lgkmcnt(0)
v_readfirstlane_b32 {sMode}, v{T+50}
s_branch L_l0b_ret
L_l0c:
v_mov_b32 v{T+50}, {L_OWN}
v_lshrrev_b32 v{T+51}, 2, v{vL16}
v_and_b32 v{T+51}, 127, v{T+51}
ds_read_b32 v{T+50}, v{T+50}
ds_read_b32 v{T+52}, v{T+51} offset:{L_EXP}
s_lshl_b32 s7, {sSig}, 2
s_add_u32 s92, s7, {sW}
s_lshl_b32 s92, s92, 5
s_add_u32 s92, s92, {sM}
s_lshl_b32 s92, s92, 2
s_add_u32 s92, s92, {HF}
s_lshr_b32 s93, {sM}, 3
s_add_u32 s93, s93, s7
s_lshl_b32 s93, s93, 7
s_add_u32 s93, s93, {HF}
s_cmp_lg_u32 {sMode}, 0
s_mov_b64 exec, 1
s_waitcnt vmcnt(0) lgkmcnt(0)
s_cbranch_scc1 L_l0c_slow
buffer_store_dword v{T+50}, off, {SWS}, s92
s_branch L_l0c_p
L_l0c_slow:
buffer_store_dword v{T+50}, off, {SWS}, s92 sc1
L_l0c_p:
s_mov_b64 exec, -1
L_l0c_poll:
buffer_load_dword v{T+53}, v{T+51}, {SWS}, s93 offen sc1
s_sub_u32 {sSpin}, {sSpin}, 1
s_cbranch_scc1 L_l0c_ret
s_waitcnt vmcnt(0)
v_cmp_ne_u32 vcc, v{T+53}, v{T+52}
s_cbranch_vccnz L_l0c_poll
s_branch L_poll1
L_l0d:
v_mov_b32 v{T+50}, {L_GO}
L_l0d_spin:
ds_read_b32 v{T+51}, v{T+50}
s_waitcnt lgkmcnt(0)
v_cmp_eq_u32 vcc, 0, v{T+51}
s_cbranch_vccnz L_l0d_spin
s_branch L_l0d_ret
L_st_slow:
buffer_store_dwordx4 {vr(Wo)}, v{vL16}, {SWS}, {sH1st} offen sc1
buffer_store_dwordx2 {v2(Wo+4)}, v{vH1s2}, {SWS}, {sH1st} offen sc1
s_branch L_cphase
L_poll1_to:
s_waitcnt vmcnt(0)
s_branch L_poll1_done
L_poll2_to:
s_waitcnt vmcnt(0)
s_branch L_poll2_done
""")
H = 8
def fhash(dst, src): a(f'v_mul_lo_u32 v{dst}, v{src}, s50\nv_add_u32 v{dst}, s51, v{dst}')
def hs_group(lbl, x3, pre=False):
    a(f"""
s_mov_b32 exec_hi, 0
s_mov_b32 {sSpin}, {SPIN}
{'s_branch ' + lbl + '_chk' if pre else ''}
{lbl}:
buffer_load_dwordx3 v[{H}:{H+2}], v{vL16}, {SWS}, s54 offen sc1
s_sub_u32 {sSpin}, {sSpin}, 1
s_cbranch_scc1 {lbl}_to
s_waitcnt vmcnt(0)
{lbl}_chk:
""")
    fhash(H, H)
    a(f"""
v_xor_b32 v{H}, v{H}, v{H+(2 if x3 else 1)}
v_cmp_lt_u32 vcc, 15, v{H}
s_cbranch_vccnz {lbl}
s_branch {lbl}_done
{lbl}_to:
s_waitcnt vmcnt(0)
{lbl}_done:
v_lshrrev_b32 v{H+3}, 2, v{vL16}
ds_write_b32 v{H+3}, v{H+1} offset:{L_EXP}
v_and_b32 v{H+3}, 15, v{H+1}
v_cmp_ne_u32 vcc, s6, v{H+3}
s_mov_b64 exec, -1
""")
def hs_all(lbl, pre=False):
    a(f's_mov_b32 {sSpin}, {SPIN}')
    if pre: a(f's_branch {lbl}_w')
    a(f'{lbl}:')
    for i, r in enumerate(('s92', 's93', 's95', 's96')): a(f'buffer_load_dwordx2 {v2(H+8+2*i)}, v{vL16}, {SWS}, {r} offen sc1')
    a(f's_sub_u32 {sSpin}, {sSpin}, 1\ns_cbranch_scc1 {lbl}_done\n{lbl}_w:\ns_waitcnt vmcnt(0)')
    for i in range(4): fhash(H+8+2*i, H+8+2*i)
    for i in range(4): a(f'v_xor_b32 v{H+8+2*i}, v{H+8+2*i}, v{H+9+2*i}')
    a(f"""
v_or3_b32 v{H}, v{H+8}, v{H+10}, v{H+12}
v_or_b32 v{H}, v{H}, v{H+14}
v_cmp_lt_u32 vcc, 15, v{H}
s_cbranch_vccnz {lbl}
{lbl}_done:
s_waitcnt vmcnt(0)
""")
def flag_store(v, soff, off):
    a(f's_mov_b64 exec, 1\ns_waitcnt vmcnt(0)\nbuffer_store_dword v{v}, off, {SWS}, {soff} offset:{off} sc1\ns_mov_b64 exec, -1')
def hstamp(n):
    if opt('hstamp'): a(f's_memtime s[{60+2*nst.index(n)}:{61+2*nst.index(n)}]')
a('L_hk:')
if opt('prio', 1): a('s_setprio 3')
for i in range(4): a(f'v_mov_b32 v{vZ+i}, 0')
a(f"""
s_lshl_b32 {sGi}, {sSig}, 5
s_add_u32 {sGi}, {sGi}, {sM}
s_lshl_b32 s97, {sGi}, 4
s_add_u32 s97, s97, {FLAGS}
s_mul_i32 s94, {sGi}, 5120
s_add_u32 {sCl}, s94, {H2BASE+BUF}
s_add_u32 s94, s94, {H1BASE}
v_lshlrev_b32 v{H+18}, 8, v{vL16}
s_mov_b64 exec, 3
s_waitcnt lgkmcnt(0)
{WSADD}
buffer_load_dword v{H+16}, v{H+18}, {SWS}, s97 offen
s_mov_b64 exec, -1
v_lshlrev_b32 v{H+4}, 3, v{vL16}
v_min_u32 v{H+21}, 4992, v{H+4}
s_lshl_b32 s7, {sSig}, 9
s_add_u32 s7, s7, {HF}
{'' if opt('nopf') else f'buffer_load_dword v{H+27}, v{H+21}, {SWS}, s94 offen'}
v_min_u32 v{H+21}, 384, v{H+4}
buffer_load_dword v{H+28}, v{H+21}, {SWS}, s7 offen
""")
a('L_hk2:')
a(f"""
s_add_u32 s98, s94, {H1STR}
s_getreg_b32 s6, hwreg(HW_REG_XCC_ID, 0, 4)
s_mov_b32 s92, {FLAGS+0x1000}
s_mov_b32 s93, {FLAGS+0x1400}
s_mov_b32 s95, {FLAGS+0x1800}
s_mov_b32 s96, {FLAGS+0x1c00}
s_mov_b32 s50, 0x9e3779b1
s_mov_b32 s51, 0x7f4a7c15
v_mov_b32 v{H+1}, {L_MODE}
ds_write_b32 v{H+1}, v{vZ} offset:4
s_lshr_b32 s52, {sM}, 3
s_lshl_b32 s52, s52, 8
s_add_u32 s52, s52, {sSig}
s_mul_i32 s52, s52, 1280
s_and_b32 s53, {sM}, 7
s_mul_i32 s53, s53, 160
s_add_u32 s52, s52, s53
s_add_u32 s52, s52, {H2BASE}
s_movk_i32 s53, 10080
s_lshl_b32 s54, {sSig}, 9
s_add_u32 s54, s54, {FLAGS}
""")
for i in range(5):
    a(f"""v_add_u32 v{H+22+i}, {1024*i}, v{vL16}
v_mul_u32_u24 v{H+21}, 205, v{H+22+i}
v_lshrrev_b32 v{H+21}, 15, v{H+21}
v_mad_u32_u24 v{H+22+i}, v{H+21}, s53, v{H+22+i}""")
hstamp('top')
a(f's_waitcnt vmcnt({1 if opt("nopf") else 2}) lgkmcnt(0)')
fhash(H+5, H+16)
a(f'v_and_or_b32 v{H+5}, v{H+5}, -16, s6')
def flag_lane(lane, off):
    a(f's_mov_b64 exec, {1 << lane}\ns_waitcnt vmcnt(0)\nbuffer_store_dword v{H+5}, v{H+18}, {SWS}, s97 offen offset:{off} sc1\ns_mov_b64 exec, -1')
def hs_issue():
    for i, r in enumerate(('s92', 's93', 's95', 's96')): a(f'buffer_load_dwordx2 {v2(H+8+2*i)}, v{vL16}, {SWS}, {r} offen sc1')
hstamp('bar1')
a(f's_mov_b64 exec, 1\nbuffer_store_dword v{H+5}, v{H+18}, {SWS}, s97 offen offset:4 sc1\nv_mov_b32 v{H+1}, {L_OWN}\nds_write_b32 v{H+1}, v{H+5}\ns_mov_b64 exec, -1')
hstamp('s1w')
a(f'v_lshlrev_b32 v{H+19}, 17, v{vL16}\ns_lshl_b32 s7, s2, 7\ns_mov_b64 exec, 3\nbuffer_load_dword v{H+20}, v{H+19}, {SO}, s7 offen\ns_mov_b64 exec, -1')
if opt('wst', 1): a(f's_mov_b64 exec, 62\nbuffer_load_dword v{H+29}, v{H+19}, {SWS}, s7 offen\ns_mov_b64 exec, -1')
a(f"""
s_barrier
s_barrier
s_mov_b32 exec_hi, 0
buffer_load_dwordx3 v[{H}:{H+2}], v{vL16}, {SWS}, s54 offen sc1
s_mov_b64 exec, -1
""")
if opt('clate'): a('s_barrier')
for i in range(5): a(f'buffer_store_dwordx4 {vr(vZ)}, v{H+22+i}, {SWS}, s52 offen sc1')
clean5(sCl); clean5('s98', '')
a(f's_add_u32 {sCl}, {sCl}, {BUF}')
if not opt('clate'): a('s_barrier')
a('s_mov_b32 exec_hi, 0\ns_waitcnt vmcnt(15)')
hstamp('bar2')
hs_group('L_hs', False, True)
a(f's_cmp_lg_u32 vcc_lo, 0\ns_cselect_b32 {sMode}, 1, {FORCE_SLOW}')
hstamp('h1st')
a(f"""
v_mov_b32 v{H}, {sMode}
v_mov_b32 v{H+1}, {L_MODE}
ds_write_b32 v{H+1}, v{H}
s_cmp_eq_u32 {sMode}, 0
s_cbranch_scc1 L_hk_go
""")
clean5('s98')
a('L_hk_go:\ns_waitcnt lgkmcnt(0)\ns_barrier')
flag_lane(1, 4)
a('s_barrier')
hs_all('L_hs2')
a(f'v_mov_b32 v{H}, 1\nv_mov_b32 v{H+1}, {L_GO}\nds_write_b32 v{H+1}, v{H}')
hstamp('h1ok')
a('s_barrier')
if opt('h3', 1):
    a(f's_add_u32 {sCl}, {sCl}, {BUF}'); clean5(sCl)
a(f"""
v_add_u32 v{H+16}, 1, v{H+16}
s_mov_b64 exec, 3
s_barrier
s_waitcnt vmcnt(0)
s_barrier
s_barrier
buffer_store_dword v{H+16}, v{H+18}, {SWS}, s97 offen sc1
""")
if opt('hstamp'): stamp_dump(True)
a('s_endpgm\nL_codeend:')

if opt('hfront', 1):
    li = [k for k, i in enumerate(a.ins) if i.text in ('L_hk:', 'L_hk2:')]
    hk = a.ins[li[0]:li[1]]
    rest = a.ins[:li[0]] + a.ins[li[1]:]
    b = [k for k, i in enumerate(rest) if i.text == 's_cbranch_scc1 L_hk'][0]
    a.ins = rest[:b] + [Ins('s_cbranch_scc0 L_main')] + hk + [Ins('s_branch L_hk2'), Ins('L_main:')] + rest[b+1:]
if opt('nodma'): a.ins = [i for i in a.ins if not i.op.startswith('global_load_lds')]
if opt('align', 1): print('align', align_pass(a, KNAME + ':\n'))
hdr = open('interleave_layers__spectral_fnet__spectral_fnet__prompt.s.ref').read().split('; Override')[0]
out = hdr + ('; STAMPS ' + ' '.join(nst) + '\n' if STAMPS else '') + f'; @launch grid=(256,1,1) block=(320,1,1) lds={LDS_BYTES}\n'
out += f'.amdgcn_target "amdgcn-amd-amdhsa--gfx950"\n.text\n.globl {KNAME}\n.p2align 8\n.type {KNAME},@function\n{KNAME}:\n'
out += a.text()
if RP:
    out = out.replace('; @launch grid=(256,1,1) block=(320,1,1) lds=', f'; @launch kernel={KNAME} grid=(256,1,1) block=(320,1,1) lds=').replace('\n.amdgcn_target', '\n; @launch kernel=reveal_kernel grid=(1,1,1) block=(256,1,1) lds=64\n.amdgcn_target', 1)
    out += f'''.globl reveal_kernel
.p2align 8
.type reveal_kernel,@function
reveal_kernel:
  s_cmp_lg_u32 s2, 0
  s_cbranch_scc1 LR_end
  s_load_dwordx2 s[8:9], s[0:1], 96
  s_mov_b32 s10, {WS_BYTES}
  s_mov_b32 s11, 0x20000
  s_mov_b32 s3, {STAMP_OFF}
  v_lshlrev_b32 v1, 3, v0
  v_mov_b32 v4, 0
  v_mov_b32 v5, -1
  v_mov_b32 v6, {0 if opt('rpmax', 1) else -1}
  ds_write_b32 v4, v5
  ds_write_b32 v4, v6 offset:4
  s_waitcnt lgkmcnt(0)
  buffer_load_dwordx2 v[2:3], v1, s[8:11], s3 offen
  s_barrier
  s_waitcnt vmcnt(0)
  ds_min_u32 v4, v2
  ds_{'max' if opt('rpmax', 1) else 'min'}_u32 v4, v3 offset:4
  s_waitcnt lgkmcnt(0)
  s_barrier
  ds_read_b64 v[2:3], v4
  s_waitcnt lgkmcnt(0)
  v_sub_u32 v2, v3, v2
  v_min_u32 v2, 5000, v2
  v_mul_u32_u24 v2, 10, v2
  s_memrealtime s[12:13]
  v_readfirstlane_b32 s16, v2
  s_waitcnt lgkmcnt(0)
LR_spin:
  s_memrealtime s[14:15]
  s_waitcnt lgkmcnt(0)
  s_sub_u32 s17, s14, s12
  s_cmp_lt_u32 s17, s16
  s_cbranch_scc1 LR_spin
LR_end:
  s_endpgm
'''
out += f'''.section .rodata,"a"
.p2align 6
.amdhsa_kernel {KNAME}
  .amdhsa_next_free_vgpr 256
  .amdhsa_next_free_sgpr 102
  .amdhsa_accum_offset 256
  .amdhsa_group_segment_fixed_size 0
  .amdhsa_kernarg_size 104
  .amdhsa_user_sgpr_count 2
  .amdhsa_user_sgpr_kernarg_segment_ptr 1
  .amdhsa_system_sgpr_workgroup_id_x 1
.end_amdhsa_kernel
''' + '''.p2align 6
.amdhsa_kernel reveal_kernel
  .amdhsa_next_free_vgpr 16
  .amdhsa_next_free_sgpr 32
  .amdhsa_accum_offset 16
  .amdhsa_group_segment_fixed_size 0
  .amdhsa_kernarg_size 104
  .amdhsa_user_sgpr_count 2
  .amdhsa_user_sgpr_kernarg_segment_ptr 1
  .amdhsa_system_sgpr_workgroup_id_x 1
.end_amdhsa_kernel
''' * (1 if RP else 0) + '''.p2align 10
tbl:
'''
for f in blocks:
    for i in range(0, 256, 8): out += '.long ' + ','.join(f'{int(x):#x}' for x in f[i:i+8]) + '\n'
open(sys.argv[1], 'w').write(out)
print('instrs', len(a.ins), 'nops inserted', a.nops, 'table blocks', len(blocks), 'bytes', len(out))
```

```python
import sys, struct
import numpy as np
from design import *
from asmlib import Asm, align_pass, Ins

KNAME = "interleave_layers__spectral_fnet__spectral_fnet__prompt_kernel"
opts = dict(a.split('=') for a in sys.argv[2:] if '=' in a)
def opt(k, d=0): return int(opts.get(k, d))
STAMPS = opt('stamps'); FORCE_SLOW = opt('slow'); NLAYER = opt('layers', 4); SPIN = opt('spin', 200000); SLAYER = opt('slayer')
SST = opt('sstart')
def f2u(f): return struct.unpack('<I', struct.pack('<f', f))[0]
BUF = 1310720
FLAGS = 4096; H1BASE = 0x40000; H1STR = 0x200000; H2BASE = 0x400000; WS_BYTES = H2BASE + 4*BUF
STAMP_OFF = WS_BYTES
if STAMPS or opts.get('rp'): WS_BYTES += 256*128
L_V = 0; L_ST = 9600; L_MODE = 9856; L_GO = 9860; L_OWN = 9864; L_JUNK = 9872; L_EXP = 15104; HF = FLAGS + 0x2000; L_RT = 9984; L_XT = 15360; L_TB = 25600; L_CM = L_TB + 16*1024; LDS_BYTES = L_CM + 8192
OOB = 0x40000000
WSADD = f's_add_u32 s16, s16, {opt("wsoff") << 20}\ns_addc_u32 s17, s17, 0' if opt('wsoff') else ''
def vaddr(col): return (col % 40)*80 + (col//40)*4
def opA(M):
    h = M.astype(np.float16).view(np.uint16).astype(np.uint32)
    out = np.zeros((64, 4), np.uint32)
    for l in range(64):
        r = h[l % 16, 8*(l//16):8*(l//16)+8]
        out[l] = r[0::2] | (r[1::2] << 16)
    return out
def opB(N): return opA(N.T)
blocks = []
def add(b): blocks.append(np.asarray(b, np.uint32).reshape(256)); return len(blocks)-1
n_ = S1_mats(False); s_ = S1_mats(True)
def a3_idx(sig, m):
    g = unit_g(sig, m)
    if g == 0: return 9
    if g == 128: return 8
    return (g >> 7) + (0 if g % 4 == 1 else 4)
a3 = {}
for sig in range(8):
    for m in range(32):
        M = A3(sig, m)*HSCALE; i = a3_idx(sig, m)
        if i in a3: assert np.allclose(a3[i], M), (sig, m)
        a3[i] = M
for M in (n_[0], n_[1], n_[2], E_mat(False)): add(opA(M))
T_A3L = add(opA(a3[0]))
Bre, Bim = B1_mats(); T_B1 = add(opB(Bre)); add(opB(Bim))
T_A2 = len(blocks)
M = A2_mats6(0)/HSCALE; M2 = A2_mats6(20)/HSCALE
sgn = np.array([(-1.0)**((k % 8)//2) for k in range(32)])
assert np.allclose(M2, M*sgn)
for blk in range(3):
    for ch in range(3): add(opA(M[blk, ch]))
assert len(blocks) == 16
T_S1S = len(blocks)
for M in (s_[0], s_[1], s_[2], E_mat(True)): add(opA(M))
T_DEL = add(opA(s_[3])); add(opA(s_[4]))
T_A3 = len(blocks)
for i in range(10): add(opA(a3[i]))
T_ADDR = len(blocks)
at = np.zeros((2, 256, 4), np.uint32)
for ty, (sig, m) in enumerate(((2, 1), (1, 0))):
    for tid in range(256):
        w, l = divmod(tid, 64); n, mq = l % 16, l//16
        v = [vaddr(acol(sig, m, mq//2, 64*w+4*n+2*bop+(mq % 2))) for bop in range(2)]
        v += [6400 + vaddr(acol(sig, m, mq % 2, 64*w+4*n+2*(mq//2)+sub)) for sub in range(2)]
        k5 = 256 + 16*w + n
        if mq < 2: v += [vaddr(acol(sig, m, mq, k5)), 3200 + vaddr(acol(sig, m, mq, k5))]
        elif mq == 2: v += [6400 + vaddr(acol(sig, m, 0, k5)), 6400 + vaddr(acol(sig, m, 1, k5))]
        else: v += [L_JUNK + 4*n, L_JUNK + 4*n]
        at[ty, tid, :3] = [v[0] | (v[1] << 16), v[2] | (v[3] << 16), v[4] | (v[5] << 16)]
for i in range(8): add(at.reshape(-1)[256*i:256*i+256])
for i in range(640): assert (i*205) >> 14 == i//80
for i in range(320): assert (i*205) >> 11 == i//10

vL16, vH1s2, vH2ld, vH2ld5, vC1ld, vRtW, vRtR, vRtR2, vH2st, vH2st2, vStR, vStW = range(1, 13)
vVrd, vVrd2, vEps = 13, 14, 15
vV = 16
vXT = 22
vMask0 = 27; vG = 28
vTB = 31
vZc = 248
X = 32
A3r = 52; S1r = 56; B1r = 72; TWc = 80; TWs = 92; A2r = 104; CM = 140; DEL = 172
Bo = 180
T = 192
vZ = 4
def vr(b, n=4): return f'v[{b}:{b+n-1}]'
def v2(b): return f'v[{b}:{b+1}]'
sW, sSig, sM, sG, sType, sLayer, sMode = 's3', 's4', 's5', 's26', 's27', 's29', 's30'
sH1st, sH1ld0, sH1ld1, sH2st, sH2ld, sTag, sFlip, sSpin = 's31', 's32', 's33', 's34', 's35', 's36', 's37', 's38'
sCl, sGi, sInv, sFix = 's44', 's46', 's40', 's41'
sSlot = 's[42:43]'
SX, SO, SWS, STB = 's[8:11]', 's[12:15]', 's[16:19]', 's[24:25]'
HW = 4
a = Asm()
nst = []
RP = opts.get('rp'); RPL = opt('rpl')
def stamp(name, inloop=False, real=False):
    if RP:
        if name == 'start': a('s_memrealtime s[60:61]')
        if name == RP:
            if inloop: a('s_memrealtime s[90:91]\ns_waitcnt lgkmcnt(0)\ns_movreld_b32 s80, s90')
            else: a('s_memrealtime s[62:63]')
        return
    if SST and inloop and name not in ('top', 'bar1'): return
    if STAMPS:
        i = len(nst); nst.append(name)
        assert i < 16
        ins = f's_{"memrealtime" if real else "memtime"} s[{60+2*i}:{61+2*i}]'
        a(ins)
LATE = ('h2ack', 'h2ok')
def sst(name):
    if SST or RP: stamp(name)
def clean5(soff, fl=' sc1'):
    for i in range(4): a(f'buffer_store_dwordx4 {vr(vZ)}, v{vL16}, {SWS}, {soff} offen offset:{1024*i}{fl}')
    a(f's_add_u32 s7, {soff}, 4096\nbuffer_store_dwordx4 {vr(vZ)}, v{vL16}, {SWS}, s7 offen{fl}')
def mfma(d, A, B, C): a(f'v_mfma_f32_16x16x32_f16 {vr(d)}, {vr(A)}, {vr(B)}, {"0" if C is None else vr(C)}')

stamp('start'); stamp('rstart', real=True)
n_v, kq_v = T+10, T+11
a(f"""
s_load_dwordx2 s[16:17], s[0:1], 96
s_load_dwordx2 s[8:9], s[0:1], 0
s_load_dwordx2 s[12:13], s[0:1], 80
v_lshrrev_b32 v{T+1}, 6, v0
s_cmp_ge_u32 s2, 256
s_cbranch_scc1 L_end
""")
if opt('cpref', 1):
    a(f"""
s_getpc_b64 s[24:25]
v_lshlrev_b32 v{T+2}, 7, v0
v_min_u32 v{T+2}, L_codeend-{KNAME}-64, v{T+2}
global_load_dword v255, v{T+2}, s[24:25]
""")
a(f"""
v_readfirstlane_b32 {sW}, v{T+1}
v_and_b32 v{T}, 63, v0
s_and_b32 {sSig}, s2, 7
s_lshr_b32 {sM}, s2, 3
v_lshlrev_b32 v{vL16}, 4, v{T}
s_mov_b32 s18, {WS_BYTES}
s_mov_b32 s19, 0x20000
s_mov_b32 s14, 2621440
s_mov_b32 s15, 0x20000
s_cmp_eq_u32 {sW}, {HW}
s_cbranch_scc1 L_hk
s_lshl_b32 s6, {sSig}, 2
s_lshr_b32 s6, 0x9654d210, s6
s_and_b32 s6, s6, 15
s_lshl_b32 {sG}, {sM}, 4
s_add_u32 {sG}, {sG}, s6
s_cmp_eq_u32 {sSig}, 0
s_cselect_b32 s7, 248, 0
s_cmp_ge_u32 {sM}, 16
s_cselect_b32 s7, s7, 0
s_sub_u32 {sG}, {sG}, s7
s_and_b32 {sType}, {sG}, 1
""")
a(f"""
s_getpc_b64 s[24:25]
s_add_u32 s24, s24, tbl@rel32@lo+4
s_addc_u32 s25, s25, tbl@rel32@hi+12
s_lshr_b32 s7, {sG}, 7
s_lshl_b32 s94, {sType}, 2
s_sub_u32 s7, s7, s94
s_add_u32 s7, s7, {4 + T_A3}
s_cmp_eq_u32 {sG}, 128
s_cselect_b32 s7, {8 + T_A3}, s7
s_cmp_eq_u32 {sG}, 0
s_cselect_b32 s7, {9 + T_A3}, s7
s_cselect_b32 s94, {T_S1S*1024}, 0
s_lshl_b32 s7, s7, 10
s_lshl_b32 s95, {sW}, 12
s_cmp_eq_u32 {sW}, 0
s_cselect_b32 s94, s94, s95
s_cmp_eq_u32 {sW}, 1
s_cselect_b32 s7, s7, s94
s_add_u32 m0, s95, {L_TB}
v_add_u32 v{T+2}, s94, v{vL16}
v_add_u32 v{T+3}, s7, v{vL16}
s_lshl_b32 s7, {sType}, 12
s_add_u32 s7, s7, {T_ADDR*1024}
global_load_lds_dwordx4 v{T+3}, {STB}
global_load_lds_dwordx4 v{T+2}, {STB} offset:1024
global_load_lds_dwordx4 v{T+2}, {STB} offset:2048
global_load_lds_dwordx4 v{T+2}, {STB} offset:3072
v_lshl_add_u32 v{T+2}, v0, 4, s7
global_load_dwordx3 v[{vV}:{vV+2}], v{T+2}, {STB}
s_or_b32 {sFix}, s2, {sW}
""")
a(f"""
s_cmp_lg_u32 {sFix}, 0
s_cbranch_scc1 L_nodel
v_add_u32 v{T+2}, {T_DEL*1024}, v{vL16}
global_load_dwordx4 {vr(DEL)}, v{T+2}, {STB}
global_load_dwordx4 {vr(DEL+4)}, v{T+2}, {STB} offset:1024
L_nodel:
""")
a(f"""
s_sub_u32 s92, 0, {sG}
s_and_b32 s92, s92, 511
s_cmp_eq_u32 {sG}, 0
s_cselect_b32 s92, 256, s92
s_mul_i32 s92, s92, 1280
s_mul_i32 s93, {sG}, 1280
s_sub_u32 s92, s92, s93
s_sub_u32 s92, s92, {4*655360}
s_mov_b32 s10, 2621440
s_mov_b32 s11, 0x20000
s_mov_b32 s96, 0x9fb00
v_lshlrev_b32 v{vRtR}, 4, v0
""")
for i in range(3):
    a(f"""v_add_u32 v{T+12}, {256*i}, v0
v_mul_u32_u24 v{T+12}, 205, v{T+12}
v_lshrrev_b32 v{T+12}, 14, v{T+12}
v_mov_b32 v{T+13}, s92
v_cmp_le_u32 vcc, 4, v{T+12}
v_mad_u32_u24 v{T+12}, v{T+12}, s96, v{vRtR}
v_cndmask_b32 v{T+13}, 0, v{T+13}, vcc
v_add3_u32 v{vG+i}, v{T+12}, v{T+13}, s93""".replace(f'v_add_u32 v{T+12}, 0, v0\nv_mul_u32_u24 v{T+12}, 205, v{T+12}', f'v_mul_u32_u24 v{T+12}, 205, v0'))
    if i < 2: a(f's_add_u32 s93, s93, 4096')
a(f"""
""")
sst('prek')
a(f"""
s_waitcnt lgkmcnt(0)
s_lshl_b32 s7, {sW}, 10
s_add_u32 m0, s7, {L_XT}
{WSADD or 's_nop 1'}
buffer_load_dwordx4 v{vG}, {SX}, 0 offen lds
s_add_u32 m0, s7, {L_XT+4096}
s_cmp_ge_u32 {sW}, 2
buffer_load_dwordx4 v{vG+1}, {SX}, 0 offen lds
s_cbranch_scc1 L_nox2
s_add_u32 m0, s7, {L_XT+8192}
s_nop 0
buffer_load_dwordx4 v{vG+2}, {SX}, 0 offen lds
s_branch L_x2
L_nox2:
v_mov_b32 v{vG+2}, {OOB}
buffer_load_dword v254, v{vG+2}, {SX}, 0 offen
L_x2:
""")
sst('xiss')
sst('dma')
a(f"""
v_and_b32 v{n_v}, 15, v0
v_bfe_u32 v{kq_v}, v0, 4, 2
s_mul_i32 s94, {sType}, 320
v_lshrrev_b32 v{T+13}, 1, v{kq_v}
v_mul_u32_u24 v{T+14}, s94, v{T+13}
s_lshl_b32 s92, {sW}, 5
v_add3_u32 v{T+12}, v{n_v}, v{T+14}, s92
s_and_b32 s92, {sW}, 1
s_lshl_b32 s92, s92, 3
s_lshr_b32 s93, {sW}, 1
s_lshl_b32 s93, s93, 5
s_add_u32 s92, s92, s93
s_add_u32 s92, s92, 256
v_lshrrev_b32 v{T+17}, 1, v{n_v}
v_and_b32 v{T+18}, 1, v0
v_add3_u32 v{T+17}, v{T+17}, v{T+14}, s92
v_lshl_add_u32 v{T+17}, v{T+18}, 4, v{T+17}
s_xor_b32 s94, {sType}, 1
v_and_b32 v{T+13}, s94, v{T+13}
v_xor_b32 v{T+13}, v{T+13}, v{kq_v}
v_add_u32 v{T+14}, 16, v{T+12}
v_and_b32 v{T+13}, 1, v{T+13}
v_add_u32 v{T+15}, 128, v{T+12}
v_cmp_eq_u32 vcc, 1, v{T+13}
v_add_u32 v{T+16}, 144, v{T+12}
s_mul_i32 s94, s94, 320
""")
ecol = [T+12, T+14, T+15, T+16, T+17]
for kl in range(5): a(f'v_sub_u32 v{T+18+kl}, 640, v{ecol[kl]}')
for kl in range(5): a(f'v_cndmask_b32 v{vXT+kl}, v{ecol[kl]}, v{T+18+kl}, vcc')
a(f"""
v_cmp_gt_u32 vcc, 2, v{kq_v}
v_mov_b32 v{T+17}, s94
v_and_b32 v{T+13}, 1, v{kq_v}
v_cndmask_b32 v{T+17}, 0, v{T+17}, vcc
v_cmp_eq_u32 vcc, 0, v{T+12}
v_mul_u32_u24 v{T+9}, 0x1400, v{T+13}
v_add_u32 v{T+14}, {L_XT}, v{T+9}
v_cndmask_b32 v{vXT}, v{vXT}, v{T+17}, vcc
v_cmp_ne_u32 vcc, 0, v{vXT}
""")
for kl in range(5): a(f'v_lshl_add_u32 v{vXT+kl}, v{vXT+kl}, 1, v{T+14}')
a(f'v_cndmask_b32 v{vMask0}, 0, -1, vcc')
for i in range(20): a(f'v_mov_b32 v{X+i}, 0')
for i in range(4): a(f'v_mov_b32 v{vZc+i}, 0')
a(f"""
s_lshr_b32 s95, {sM}, 3
s_lshl_b32 s7, s95, 2
s_lshr_b32 s7, 0x1120, s7
s_and_b32 s7, s7, 3
s_add_u32 s96, s6, 256
s_cmp_eq_u32 {sSig}, 0
s_cselect_b32 s96, 8, s96
s_lshl_b32 s94, {sW}, 4
s_add_u32 s6, s6, s94
s_add_u32 s96, s96, s94
v_lshl_add_u32 v{T+13}, v{n_v}, 2, s7
v_lshl_add_u32 v{T+14}, v{kq_v}, 6, s6
v_lshl_add_u32 v{T+15}, v{kq_v}, 6, s96
v_add_u32 v{T+12}, 64, v{T+13}
s_mov_b32 s94, {f2u(1/2048):#x}
""")
G = T+24
for hi in range(2):
    for ch in range(2): a(f'v_mul_u32_u24 v{G+2*(2*hi+ch)}, v{T+13-hi}, v{T+14+ch}')
for k in range(4): a(f'v_and_b32 v{G+2*k}, 0x7ff, v{G+2*k}')
for k in range(4): a(f'v_cvt_f32_u32 v{G+2*k}, v{G+2*k}')
for k in range(4): a(f'v_mul_f32 v{G+2*k}, s94, v{G+2*k}')
for k in range(4): a(f'v_sin_f32 v{G+2*k+1}, v{G+2*k}\nv_cos_f32 v{G+2*k}, v{G+2*k}')
for k in range(4): a(f'v_cvt_pk_f16_f32 v{G+8+2*k}, v{G+2*k}, v{G+2*k+1}\nv_cvt_pk_f16_f32 v{G+9+2*k}, -v{G+2*k+1}, v{G+2*k}')
a(f's_cmp_lg_u32 {sSig}, 0\ns_cbranch_scc1 L_cm_done')
for hi in range(2):
    b = G+8+4*hi
    a(f'v_mov_b32 v{b+1}, 0\nv_mov_b32 v{b+3}, v{b+2}\nv_mov_b32 v{b+2}, 0')
a(f"""
v_and_b32 v{T+17}, 1, v0
v_lshlrev_b32 v{T+17}, 4, v{T+17}
v_mov_b32 v{T+18}, 0x3c00
v_lshlrev_b32 v{T+17}, v{T+17}, v{T+18}
v_cmp_gt_u32 vcc, 16, v0
v_cndmask_b32 v{G+8}, v{G+8}, v{T+17}, vcc
v_cndmask_b32 v{G+12}, v{G+12}, v{T+17}, vcc
L_cm_done:
""")
sst('cm')
a(f'''
v_lshlrev_b32 v{T+12}, 2, v{kq_v}
v_mul_u32_u24 v{T+12}, v{T+12}, v{n_v}
v_cvt_f32_u32 v{T+12}, v{T+12}
v_cvt_f32_u32 v{T+13}, v{n_v}
v_mul_f32 v{T+12}, {f2u(1/640):#x}, v{T+12}
v_mul_f32 v{T+13}, {f2u(1/640):#x}, v{T+13}
''')
for blk in range(3):
    for i in range(4):
        k = 16*blk + i
        if k == 0: src = T+12
        else:
            src = T+14
            a(f'v_fmamk_f32 v{T+14}, v{T+13}, {f2u(float(k)):#x}, v{T+12}')
        a(f'v_cos_f32 v{TWc+4*blk+i}, v{src}\nv_sin_f32 v{TWs+4*blk+i}, v{src}')
a(f"""
s_mov_b32 {sInv}, {f2u(1/640):#x}
v_mov_b32 v{vEps}, {f2u(1e-5):#x}
v_mov_b32 v{Bo+10}, 0
v_mov_b32 v{Bo+11}, 0
s_mov_b32 {sLayer}, 0
s_mov_b32 {sTag}, 1
s_mov_b32 {sFlip}, 0
s_cmp_lt_u32 {sW}, 2
s_cselect_b64 {sSlot}, 1, 0
s_cselect_b32 s7, 3200, 0
s_cselect_b32 s52, 12, 8
s_cselect_b32 s53, 0, 32
s_lshl_b32 s7, s7, {sW}
v_lshlrev_b32 v{T+12}, 4, v{kq_v}
v_mul_u32_u24 v{vVrd}, 80, v{n_v}
v_add3_u32 v{vVrd}, v{vVrd}, v{T+12}, s7
v_and_b32 v{vVrd2}, 7, v0
v_mul_u32_u24 v{vVrd2}, 80, v{vVrd2}
s_add_u32 s7, s7, 2560
v_add3_u32 v{vVrd2}, v{vVrd2}, v{T+12}, s7
s_mul_i32 s54, s52, {sW}
s_lshl_b32 s54, s54, 2
s_add_u32 s54, s54, s53
s_sub_u32 s7, s52, 1
v_min_u32 v{T+13}, s7, v{n_v}
v_lshlrev_b32 v{T+13}, 2, v{T+13}
s_movk_i32 s7, 5120
v_mad_u32_u24 v{vC1ld}, v{kq_v}, s7, v{T+13}
v_mul_u32_u24 v{vRtW}, 160, v{n_v}
s_add_u32 s7, s54, {L_RT}
v_add3_u32 v{vRtW}, v{vRtW}, v{T+12}, s7
s_lshl_b32 s7, s52, 2
v_cmp_gt_u32 vcc, s7, v{T+12}
v_add_u32 v{T+13}, {L_XT}, v{vL16}
v_cndmask_b32 v{vRtW}, v{T+13}, v{vRtW}, vcc
v_mul_u32_u24 v{T+13}, 205, v0
v_lshrrev_b32 v{T+13}, 11, v{T+13}
v_mul_u32_u24 v{T+13}, 10080, v{T+13}
v_add_u32 v{vH2st}, v{T+13}, v{vRtR}
s_lshl_b32 s7, {sW}, 4
s_add_u32 s7, s7, 256
v_add_u32 v{T+13}, s7, v{n_v}
v_lshlrev_b32 v{vRtR2}, 4, v{T+13}
v_mul_u32_u24 v{T+13}, 205, v{T+13}
v_lshrrev_b32 v{T+13}, 11, v{T+13}
v_mul_u32_u24 v{T+13}, 10080, v{T+13}
v_add_u32 v{vH2st2}, v{T+13}, v{vRtR2}
v_cmp_eq_u32 vcc, 0, v{kq_v}
v_mov_b32 v{T+13}, {OOB}
v_cndmask_b32 v{vH2st2}, v{T+13}, v{vH2st2}, vcc
v_add_u32 v{vRtR}, {L_RT}, v{vRtR}
v_add_u32 v{vRtR2}, {L_RT}, v{vRtR2}
v_lshrrev_b32 v{vH1s2}, 1, v{vL16}
v_add_u32 v{vH1s2}, {1024-128}, v{vH1s2}
v_add_u32 v{T+14}, -1, v{kq_v}
v_cmp_gt_u32 vcc, 2, v{T+14}
v_cndmask_b32 v{vH1s2}, v{T+13}, v{vH1s2}, vcc
v_and_b32 v{T+13}, 1, v{kq_v}
v_lshlrev_b32 v{T+13}, 7, v{T+13}
v_and_b32 v{T+14}, 3, v0
v_lshl_add_u32 v{vStR}, v{T+14}, 5, v{T+13}
v_add_u32 v{vStR}, {L_ST}, v{vStR}
v_bfe_u32 v{T+14}, v0, 2, 1
v_lshl_add_u32 v{T+13}, v{T+14}, 6, v{T+13}
v_bfe_u32 v{T+14}, v0, 3, 1
v_lshl_add_u32 v{T+13}, v{T+14}, 5, v{T+13}
v_bfe_u32 v{T+14}, v0, 5, 1
v_lshl_add_u32 v{T+13}, v{T+14}, 2, v{T+13}
s_lshl_b32 s7, {sW}, 3
s_add_u32 s7, s7, {L_ST}
v_add_u32 v{vStW}, s7, v{T+13}
s_and_b32 s93, {sM}, 7
s_mul_i32 s93, s93, 160
s_lshl_b32 s94, {sSig}, 7
s_add_u32 s92, s94, {sM}
s_mul_i32 s92, s92, 1280
s_mul_i32 {sH1st}, {sW}, 40960
s_add_u32 {sH1st}, {sH1st}, s92
s_add_u32 {sH1st}, {sH1st}, {H1BASE}
s_lshl_b32 s96, s95, 5
s_add_u32 s96, s96, s94
s_mul_i32 {sH1ld0}, s96, 1280
s_add_u32 {sH1ld0}, {sH1ld0}, s93
s_add_u32 s96, s54, {H1BASE}
s_add_u32 {sH1ld0}, {sH1ld0}, s96
s_add_u32 {sH1ld1}, {sH1ld0}, 20480
s_lshl_b32 s96, s95, 8
s_add_u32 s96, s96, {sSig}
s_mul_i32 {sH2st}, s96, 1280
s_add_u32 {sH2st}, {sH2st}, s93
s_add_u32 {sH2st}, {sH2st}, {H2BASE}
s_mov_b32 {sH2ld}, {H2BASE-BUF}
s_and_b32 s7, {sG}, 127
s_lshr_b32 s7, s7, 2
s_sub_u32 s94, 0, {sG}
s_and_b32 s94, s94, 127
s_lshr_b32 s94, s94, 2
s_bfe_u32 s95, {sG}, 0x10001
s_cmp_eq_u32 {sType}, 1
s_cselect_b32 s94, s7, s94
s_cselect_b32 s96, 2, s95
s_cselect_b32 s95, 3, s95
s_lshl_b32 s96, s96, 5
s_lshl_b32 s95, s95, 5
s_add_u32 s7, s7, s96
s_add_u32 s94, s94, s95
s_mul_i32 s7, s7, 10240
s_mul_i32 s94, s94, 10240
v_mov_b32 v{T+12}, s7
v_mov_b32 v{T+13}, s94
v_cmp_le_u32 vcc, 2, v{kq_v}
s_lshl_b32 s95, {sW}, 8
s_lshl_b32 s96, {sW}, 6
v_cndmask_b32 v{T+12}, v{T+12}, v{T+13}, vcc
s_add_u32 s96, s96, 1024
v_add_u32 v{T+12}, v{T+12}, v{T+9}
v_lshlrev_b32 v{T+13}, 4, v{n_v}
v_add3_u32 v{vH2ld}, v{T+12}, v{T+13}, s95
v_lshlrev_b32 v{T+13}, 2, v{n_v}
v_add3_u32 v{vH2ld5}, v{T+12}, v{T+13}, s96
v_add_u32 v{vTB}, {L_TB}, v{vL16}
s_lshl_b32 s7, {sW}, 2
v_add_u32 v{T+2}, s7, v{vTB}
""")
sst('prex')
for hi in range(2):
    for ch in range(2):
        for rio in range(2):
            a(f'ds_write_b32 v{T+2}, v{G+8+2*(2*hi+ch)+rio} offset:{L_CM-L_TB+((hi*2+rio)*2+ch)*1024}')
a('s_waitcnt vmcnt(3) lgkmcnt(0)\ns_barrier')
sst('bart')
for i in range(4): a(f'ds_read_b128 {vr(S1r+4*i)}, v{vTB} offset:{1024*i}')
for i in range(9): a(f'ds_read_b128 {vr(A2r+4*i)}, v{vTB} offset:{1024*(T_A2+i)}')
for i in range(2): a(f'ds_read_b128 {vr(B1r+4*i)}, v{vTB} offset:{1024*(T_B1+i)}')
for i in range(8): a(f'ds_read_b128 {vr(CM+4*i)}, v{vTB} offset:{L_CM-L_TB+1024*i}')
a(f'ds_read_b128 {vr(A3r)}, v{vTB} offset:{1024*T_A3L}')
for i in (2, 1, 0): a(f'v_lshrrev_b32 v{vV+2*i+1}, 16, v{vV+i}\nv_and_b32 v{vV+2*i}, 0xffff, v{vV+i}')
a(f's_cmp_eq_u32 {sW}, 3\ns_cselect_b32 s7, 0x80008000, 0\ns_waitcnt lgkmcnt(11)')
for i in range(18): a(f'v_xor_b32 v{A2r+2*i+1}, s7, v{A2r+2*i+1}')
a('s_waitcnt vmcnt(0)\ns_barrier')
sst('bar0')
for kl in range(5):
    for j in range(4): a(f'ds_read_u16_d16_hi v{X+4*kl+j}, v{vXT+kl} offset:{1280*j}')
a('s_waitcnt lgkmcnt(0)')
Sx, Qx = T, T+4
if RP: a('s_mov_b32 m0, 0')
a('L_loop:')
stamp('top', True)
for p in range(2):
    a(f'v_pk_add_f32 {v2(Sx+2*p)}, {v2(X+2*p)}, {v2(X+4+2*p)}')
    a(f'v_pk_mul_f32 {v2(Qx+2*p)}, {v2(X+2*p)}, {v2(X+2*p)}')
for kl in range(1, 5):
    for p in range(2):
        b = X+4*kl+2*p
        a(f'v_pk_fma_f32 {v2(Qx+2*p)}, {v2(b)}, {v2(b)}, {v2(Qx+2*p)}')
        if kl > 1: a(f'v_pk_add_f32 {v2(Sx+2*p)}, {v2(Sx+2*p)}, {v2(b)}')
for j in range(4): a(f'v_permlane32_swap_b32 v{Sx+j}, v{Qx+j}')
for p in range(2): a(f'v_pk_add_f32 {v2(Sx+2*p)}, {v2(Sx+2*p)}, {v2(Qx+2*p)}')
def dpp(d, s, ctl, bank): a(f'v_add_f32_dpp v{d}, v{s}, v{s} {ctl} row_mask:0xf bank_mask:{bank:#x}')
dpp(Sx, Sx, 'row_ror:8', 3); dpp(Sx, Sx+1, 'row_ror:8', 12); dpp(Sx+2, Sx+2, 'row_ror:8', 3); dpp(Sx+2, Sx+3, 'row_ror:8', 12)
dpp(Sx, Sx, 'row_shl:4', 5); dpp(Sx, Sx+2, 'row_shr:4', 10)
dpp(Sx, Sx, 'quad_perm:[1,0,3,2]', 15); dpp(Sx, Sx, 'quad_perm:[2,3,0,1]', 15)
a(f"""
ds_write_b32 v{vStW}, v{Sx}
s_waitcnt lgkmcnt(0)
s_barrier
""")
stamp('bar1', True)
P = T+8; RS = T+16; NB = T+20
a(f"""
ds_read_b128 {vr(P)}, v{vStR}
ds_read_b128 {vr(P+4)}, v{vStR} offset:16
s_waitcnt lgkmcnt(1)
v_pk_add_f32 {v2(P)}, {v2(P)}, {v2(P+2)}
s_waitcnt lgkmcnt(0)
v_pk_add_f32 {v2(P+4)}, {v2(P+4)}, {v2(P+6)}
v_pk_add_f32 {v2(P)}, {v2(P)}, {v2(P+4)}
v_mul_f32 v{P}, {sInv}, v{P}
v_fma_f32 v{P+1}, v{P+1}, {sInv}, v{vEps}
v_fma_f32 v{P+1}, -v{P}, v{P}, v{P+1}
v_max_f32 v{P+1}, v{P+1}, v{vEps}
v_rsq_f32 v{P+1}, v{P+1}
v_mul_f32 v{P}, -v{P}, v{P+1}
""")
for j in range(4): a(f'v_mov_b32_dpp v{RS+j}, v{P+1} quad_perm:[{j},{j},{j},{j}] row_mask:0xf bank_mask:0xf')
for j in range(4): a(f'v_mov_b32_dpp v{NB+j}, v{P} quad_perm:[{j},{j},{j},{j}] row_mask:0xf bank_mask:0xf')
N_ = T+24
D0, D1, DC, DE = T, T+4, T+8, T+12
def norm(kl):
    for p in range(2): a(f'v_pk_fma_f32 {v2(N_+4*(kl%2)+2*p)}, {v2(X+4*kl+2*p)}, {v2(RS+2*p)}, {v2(NB+2*p)}')
def cvtn(kl):
    for p in range(2): a(f'v_cvt_pk_f16_f32 v{Bo+2*kl+p}, v{N_+4*(kl%2)+2*p}, v{N_+4*(kl%2)+2*p+1}')
norm(0); norm(1); cvtn(0); cvtn(1); norm(2); norm(3)
mfma(D0, S1r, Bo, None); mfma(DC, S1r+4, Bo, None)
cvtn(2); cvtn(3); norm(4)
mfma(D1, S1r, Bo+4, None); mfma(DC, S1r+8, Bo+4, DC)
cvtn(4)
a(f's_cmp_lg_u32 {sFix}, 0')
W_ = T+32
a(f'v_cvt_pk_f16_f32 v{W_}, v{D0}, v{D0+1}')
mfma(DE, S1r+12, Bo+8, None)
a(f's_cbranch_scc0 L_fix\nL_nofix:')
a(f"""
v_cvt_pk_f16_f32 v{W_+1}, v{D0+2}, v{D0+3}
ds_write_b32 v{vV}, v{W_}
ds_write_b32 v{vV}, v{W_+1} offset:3200
v_cvt_pk_f16_f32 v{W_+2}, v{D1}, v{D1+1}
v_cvt_pk_f16_f32 v{W_+3}, v{D1+2}, v{D1+3}
v_cvt_pk_f16_f32 v{W_+4}, v{DC}, v{DC+1}
v_cvt_pk_f16_f32 v{W_+5}, v{DC+2}, v{DC+3}
ds_write_b32 v{vV+1}, v{W_+2}
ds_write_b32 v{vV+1}, v{W_+3} offset:3200
v_cvt_pk_f16_f32 v{W_+6}, v{DE}, v{DE+1}
v_cvt_pk_f16_f32 v{W_+7}, v{DE+2}, v{DE+3}
ds_write_b32 v{vV+2}, v{W_+4}
ds_write_b32 v{vV+3}, v{W_+5}
ds_write_b32 v{vV+4}, v{W_+6}
ds_write_b32 v{vV+5}, v{W_+7}
""")
stamp('s1w', True)
a(f's_cmp_eq_u32 {sLayer}, 0\ns_waitcnt vmcnt(0) lgkmcnt(0)\ns_barrier')
stamp('bar2', True)
Ad = T; Tr = T+12; Ti = T+24; B2 = T+36; O = T; Pt = T+48; Qt = T+52
a(f"""
ds_read_b128 {vr(Ad)}, v{vVrd}
ds_read_b128 {vr(Ad+4)}, v{vVrd} offset:1280
ds_read_b128 {vr(Ad+8)}, v{vVrd2}
s_cbranch_scc1 L_l0b
L_l0b_ret:
""")
for blk in range(3):
    a(f's_waitcnt lgkmcnt({2-blk})')
    mfma(Tr+4*blk, Ad+4*blk, B1r, None); mfma(Ti+4*blk, Ad+4*blk, B1r+4, None)
for ch in range(3):
    for p in range(2):
        r_, i_ = Tr+4*ch+2*p, Ti+4*ch+2*p; c_ = TWc+4*ch+2*p
        a(f'v_pk_mul_f32 {v2(Pt+2*p)}, {v2(r_)}, {v2(c_)}')
        a(f'v_pk_mul_f32 {v2(Qt+2*p)}, {v2(i_)}, {v2(c_)}')
    for p in range(2):
        r_, i_ = Tr+4*ch+2*p, Ti+4*ch+2*p; s_2 = TWs+4*ch+2*p
        a(f'v_pk_fma_f32 {v2(Pt+2*p)}, {v2(i_)}, {v2(s_2)}, {v2(Pt+2*p)}')
        a(f'v_pk_fma_f32 {v2(Qt+2*p)}, {v2(r_)}, {v2(s_2)}, {v2(Qt+2*p)} neg_lo:[1,0,0] neg_hi:[1,0,0]')
        if ch > 0 and p == 0: mfma(O+8, A2r+(6+ch-1)*4, B2+4*(ch-1), None if ch == 1 else O+8)
    for i in range(4): a(f'v_cvt_pk_f16_f32 v{B2+4*ch+i}, v{Pt+i}, v{Qt+i}')
    if ch == 2: a(f's_cmp_lg_u32 {sMode}, 0')
    for blk in ((0, 1) if ch < 2 else (2, 0, 1)):
        mfma(O+4*blk, A2r+(blk*3+ch)*4, B2+4*ch, None if ch == 0 else O+4*blk)
Wo = T+12
for i in (4, 5, 0, 1, 2, 3): a(f'v_cvt_pk_f16_f32 v{Wo+i}, v{O+2*i}, v{O+2*i+1}')
a(f'v_cndmask_b32 v{Wo}, v{Wo}, v{Wo+4}, {sSlot}')
for i in (4, 5, 1, 2, 3, 0): a(f'v_and_or_b32 v{Wo+i}, v{Wo+i}, -2, {sTag}')
a(f"""
s_cbranch_scc1 L_st_slow
buffer_store_dwordx4 {vr(Wo)}, v{vL16}, {SWS}, {sH1st} offen
buffer_store_dwordx2 {v2(Wo+4)}, v{vH1s2}, {SWS}, {sH1st} offen
L_cphase:
""")
stamp('h1st', True)
Ca = T+20; Dm = T+28; K_ = T+44
a(f"""
s_mov_b32 {sSpin}, {SPIN}
s_xor_b32 {sH1st}, {sH1st}, {H1STR}
s_add_u32 {sH2ld}, {sH2ld}, {BUF}
s_cmp_eq_u32 {sLayer}, 0
s_cbranch_scc1 L_l0c
L_l0c_ret:
""")
if opt('ack1'): a('s_waitcnt vmcnt(0)')
a('L_poll1:')
for ch in range(2):
    for u in range(4):
        a(f'buffer_load_dword v{Ca+4*ch+u}, v{vC1ld}, {SWS}, {sH1ld0 if ch == 0 else sH1ld1} offen offset:{1280*u} sc1')
a(f's_sub_u32 {sSpin}, {sSpin}, 1\ns_cbranch_scc1 L_poll1_to\ns_waitcnt vmcnt(0)')
tt = sum((((i >> 2 & 1) ^ (i & 1)) & ((i >> 1 & 1) ^ (i & 1))) << i for i in range(8))
for i in range(4): a(f'v_bitop3_b32 v{K_+i}, v{Ca+2*i}, v{Ca+2*i+1}, {sFlip} bitop3:{tt:#x}')
def cm(hi, ch, rio):
    d = Dm + (hi*2+rio)*4
    mfma(d, Ca+4*ch, CM+((hi*2+rio)*2+ch)*4, None if ch == 0 else d)
cm(0, 0, 0)
a(f'v_bitop3_b32 v{K_}, v{K_}, v{K_+1}, v{K_+2} bitop3:0x80')
cm(0, 0, 1)
a(f'v_bitop3_b32 v{K_}, v{K_}, v{K_+3}, 1 bitop3:0x80')
cm(0, 1, 0)
a(f'v_cmp_eq_u32 vcc, 0, v{K_}')
cm(0, 1, 1)
a('s_cbranch_vccnz L_poll1\nL_poll1_done:')
stamp('h1ok', True)
cm(1, 0, 0); cm(1, 0, 1); cm(1, 1, 0); cm(1, 1, 1)
for hi in range(2):
    for i in range(4): a(f'v_cvt_pk_f16_f32 v{K_+4*hi+i}, v{Dm+8*hi+i}, v{Dm+8*hi+4+i}')
    for i in range(4): a(f'v_or_b32 v{K_+4*hi+i}, 1, v{K_+4*hi+i}')
    a(f'ds_write_b128 v{vRtW}, {vr(K_+4*hi)} offset:{2560*hi}')
a(f"""
s_waitcnt lgkmcnt(0)
s_barrier
ds_read_b128 {vr(T)}, v{vRtR}
ds_read_b128 {vr(T+4)}, v{vRtR2}
s_waitcnt lgkmcnt(1)
buffer_store_dwordx4 {vr(T)}, v{vH2st}, {SWS}, {sH2st} offen sc1
s_waitcnt lgkmcnt(0)
buffer_store_dwordx4 {vr(T+4)}, v{vH2st2}, {SWS}, {sH2st} offen sc1
""")
stamp('h2st', True)
CLN = f's_mov_b32 {sCl}, {OOB}' if opt('h3', 1) else f's_add_u32 {sCl}, {sCl}, {BUF}'
a(f"""
s_add_u32 {sCl}, {sH2st}, {2*BUF}
s_mov_b32 {sSpin}, {SPIN}
s_add_u32 {sLayer}, {sLayer}, 1
{f's_mov_b32 m0, {sLayer}' if RP else ''}
s_add_u32 {sH2st}, {sH2st}, {BUF}
s_xor_b32 {sH1ld0}, {sH1ld0}, {H1STR}
s_xor_b32 {sH1ld1}, {sH1ld1}, {H1STR}
s_cmp_ge_u32 {sLayer}, 2
s_cselect_b32 {sTag}, 0, 1
s_cselect_b32 {sFlip}, -1, 0
s_cmp_eq_u32 {sLayer}, 1
s_cbranch_scc1 L_l0d
L_l0d_ret:
s_waitcnt vmcnt(0)
""")
stamp('h2ack', True)
a('L_poll2:')
Lh = T+8; K2 = T+28
for u in range(4): a(f'buffer_load_dwordx4 {vr(Lh+4*u)}, v{vH2ld}, {SWS}, {sH2ld} offen offset:{1280*u} sc1')
for u in range(4): a(f'buffer_load_dword v{Lh+16+u}, v{vH2ld5}, {SWS}, {sH2ld} offen offset:{1280*u} sc1')
a(f'''buffer_store_dwordx4 {vr(vZc)}, v{vH2st}, {SWS}, {sCl} offen sc1
buffer_store_dwordx4 {vr(vZc)}, v{vH2st2}, {SWS}, {sCl} offen sc1
s_mov_b32 {sCl}, {OOB}
s_sub_u32 {sSpin}, {sSpin}, 1
s_cbranch_scc1 L_poll2_to
s_waitcnt vmcnt(2)''')
for i in range(6): a(f'v_bitop3_b32 v{K2+i}, v{Lh+3*i}, v{Lh+3*i+1}, v{Lh+3*i+2} bitop3:0x80')
a(f"""
v_bitop3_b32 v{K2}, v{K2}, v{K2+1}, v{K2+2} bitop3:0x80
v_bitop3_b32 v{K2+3}, v{K2+3}, v{K2+4}, v{K2+5} bitop3:0x80
v_bitop3_b32 v{K2+1}, v{Lh+18}, v{Lh+19}, 1 bitop3:0x80
v_bitop3_b32 v{K2}, v{K2}, v{K2+3}, v{K2+1} bitop3:0x80
v_cmp_eq_u32 vcc, 0, v{K2}
v_swap_b32 v{Lh+1}, v{Lh+4}
s_cbranch_vccnz L_poll2
L_poll2_done:
""")
stamp('h2ok', True)
mfma(X+16, A3r, Lh+16, X+16)
for kl in range(2, 4): a(f'v_swap_b32 v{Lh+kl}, v{Lh+4*kl}')
for u in range(4): a(f'v_and_b32 v{Lh+u}, v{vMask0}, v{Lh+u}')
a(f'v_swap_b32 v{Lh+6}, v{Lh+9}\nv_swap_b32 v{Lh+7}, v{Lh+13}')
mfma(X, A3r, Lh, X)
a(f'v_swap_b32 v{Lh+11}, v{Lh+14}')
mfma(X+4, A3r, Lh+4, X+4)
a(f's_cmp_lt_u32 {sLayer}, {NLAYER}')
mfma(X+8, A3r, Lh+8, X+8); mfma(X+12, A3r, Lh+12, X+12)
a('s_nop 3\ns_cbranch_scc1 L_loop')
F = T
for kl in range(5):
    for p in range(2): a(f'v_cvt_pk_bf16_f32 v{F+2*kl+p}, v{X+4*kl+2*p}, v{X+4*kl+2*p+1}')
    for p in range(2):
        a(f'ds_write_b16 v{vXT+kl}, v{F+2*kl+p} offset:{2560*p}')
        a(f'ds_write_b16_d16_hi v{vXT+kl}, v{F+2*kl+p} offset:{2560*p+1280}')
a('s_waitcnt lgkmcnt(0)\ns_barrier')
for i in range(3): a(f'ds_read_b128 {vr(T+12+4*i)}, v{vRtR} offset:{L_XT-L_RT+4096*i}')
for i in range(3): a(f's_waitcnt lgkmcnt({2-i})\nbuffer_store_dwordx4 {vr(T+12+4*i)}, v{vG+i}, {SO}, 0 offen')
def stamp_dump(hk):
    if hk: a(f's_memtime s[{60+2*nst.index("end")}:{61+2*nst.index("end")}]\ns_memrealtime s[{60+2*nst.index("rend")}:{61+2*nst.index("rend")}]\ns_waitcnt lgkmcnt(0)')
    a(f's_lshl_b32 s7, s2, 7\ns_add_u32 s7, s7, {STAMP_OFF}\nv_mov_b32 v1, 0\ns_mov_b64 exec, 1')
    for i in range(len(nst)): a(f'v_mov_b32 v2, s{60+2*i}\nbuffer_store_dword v2, v1, {SWS}, s7 offen offset:{4*i}')
if STAMPS:
    a('s_waitcnt vmcnt(0)'); stamp('end'); stamp('rend', real=True)
    a(f's_waitcnt lgkmcnt(0)\ns_cmp_lg_u32 {sW}, {opt("swave")}\ns_cbranch_scc1 L_end')
    stamp_dump(False)
if RP:
    if RP == 'end': a('s_waitcnt vmcnt(0)\ns_memrealtime s[62:63]')
    if RP == 'top': a(f's_mov_b32 s62, s{80+RPL}')
    if RP == 'h2ok': a(f's_mov_b32 s62, s{81+RPL}')
    a(f's_waitcnt lgkmcnt(0)\ns_cmp_lg_u32 {sW}, 0\ns_cbranch_scc1 L_end\ns_lshl_b32 s7, s2, 3\ns_add_u32 s7, s7, {STAMP_OFF}\nv_mov_b32 v2, s60\nv_mov_b32 v3, s62\ns_mov_b64 exec, 1\nbuffer_store_dwordx2 v[2:3], off, {SWS}, s7')
a('L_end:\ns_endpgm')
a('L_fix:\ns_nop 7')
mfma(T+40, DEL, Bo, None); mfma(T+44, DEL+4, Bo, None)
a('s_mov_b32 exec_lo, 0x00010001\ns_mov_b32 exec_hi, 0x00010001')
for p in range(2): a(f'v_pk_add_f32 {v2(D0+2*p)}, {v2(D0+2*p)}, {v2(T+40+2*p)}')
for p in range(2): a(f'v_pk_add_f32 {v2(DC+2*p)}, {v2(DC+2*p)}, {v2(T+44+2*p)}')
a(f's_mov_b64 exec, -1\nv_cvt_pk_f16_f32 v{W_}, v{D0}, v{D0+1}\ns_branch L_nofix')
a(f"""
L_l0b:
v_mov_b32 v{T+50}, {L_MODE}
ds_read_b32 v{T+50}, v{T+50}
s_waitcnt lgkmcnt(0)
v_readfirstlane_b32 {sMode}, v{T+50}
s_branch L_l0b_ret
L_l0c:
v_mov_b32 v{T+50}, {L_OWN}
v_lshrrev_b32 v{T+51}, 2, v{vL16}
v_and_b32 v{T+51}, 127, v{T+51}
ds_read_b32 v{T+50}, v{T+50}
ds_read_b32 v{T+52}, v{T+51} offset:{L_EXP}
s_lshl_b32 s7, {sSig}, 2
s_add_u32 s92, s7, {sW}
s_lshl_b32 s92, s92, 5
s_add_u32 s92, s92, {sM}
s_lshl_b32 s92, s92, 2
s_add_u32 s92, s92, {HF}
s_lshr_b32 s93, {sM}, 3
s_add_u32 s93, s93, s7
s_lshl_b32 s93, s93, 7
s_add_u32 s93, s93, {HF}
s_cmp_lg_u32 {sMode}, 0
s_mov_b64 exec, 1
s_waitcnt vmcnt(0) lgkmcnt(0)
s_cbranch_scc1 L_l0c_slow
buffer_store_dword v{T+50}, off, {SWS}, s92
s_branch L_l0c_p
L_l0c_slow:
buffer_store_dword v{T+50}, off, {SWS}, s92 sc1
L_l0c_p:
s_mov_b64 exec, -1
L_l0c_poll:
buffer_load_dword v{T+53}, v{T+51}, {SWS}, s93 offen sc1
s_sub_u32 {sSpin}, {sSpin}, 1
s_cbranch_scc1 L_l0c_ret
s_waitcnt vmcnt(0)
v_cmp_ne_u32 vcc, v{T+53}, v{T+52}
s_cbranch_vccnz L_l0c_poll
s_branch L_poll1
L_l0d:
v_mov_b32 v{T+50}, {L_GO}
L_l0d_spin:
ds_read_b32 v{T+51}, v{T+50}
s_waitcnt lgkmcnt(0)
v_cmp_eq_u32 vcc, 0, v{T+51}
s_cbranch_vccnz L_l0d_spin
s_branch L_l0d_ret
L_st_slow:
buffer_store_dwordx4 {vr(Wo)}, v{vL16}, {SWS}, {sH1st} offen sc1
buffer_store_dwordx2 {v2(Wo+4)}, v{vH1s2}, {SWS}, {sH1st} offen sc1
s_branch L_cphase
L_poll1_to:
s_waitcnt vmcnt(0)
s_branch L_poll1_done
L_poll2_to:
s_waitcnt vmcnt(0)
s_branch L_poll2_done
""")
H = 8
def fhash(dst, src): a(f'v_mul_lo_u32 v{dst}, v{src}, s50\nv_add_u32 v{dst}, s51, v{dst}')
def hs_group(lbl, x3, pre=False):
    a(f"""
s_mov_b32 exec_hi, 0
s_mov_b32 {sSpin}, {SPIN}
{'s_branch ' + lbl + '_chk' if pre else ''}
{lbl}:
buffer_load_dwordx3 v[{H}:{H+2}], v{vL16}, {SWS}, s54 offen sc1
s_sub_u32 {sSpin}, {sSpin}, 1
s_cbranch_scc1 {lbl}_to
s_waitcnt vmcnt(0)
{lbl}_chk:
""")
    fhash(H, H)
    a(f"""
v_xor_b32 v{H}, v{H}, v{H+(2 if x3 else 1)}
v_cmp_lt_u32 vcc, 15, v{H}
s_cbranch_vccnz {lbl}
s_branch {lbl}_done
{lbl}_to:
s_waitcnt vmcnt(0)
{lbl}_done:
v_lshrrev_b32 v{H+3}, 2, v{vL16}
ds_write_b32 v{H+3}, v{H+1} offset:{L_EXP}
v_and_b32 v{H+3}, 15, v{H+1}
v_cmp_ne_u32 vcc, s6, v{H+3}
s_mov_b64 exec, -1
""")
def hs_all(lbl, pre=False):
    a(f's_mov_b32 {sSpin}, {SPIN}')
    if pre: a(f's_branch {lbl}_w')
    a(f'{lbl}:')
    for i, r in enumerate(('s92', 's93', 's95', 's96')): a(f'buffer_load_dwordx2 {v2(H+8+2*i)}, v{vL16}, {SWS}, {r} offen sc1')
    a(f's_sub_u32 {sSpin}, {sSpin}, 1\ns_cbranch_scc1 {lbl}_done\n{lbl}_w:\ns_waitcnt vmcnt(0)')
    for i in range(4): fhash(H+8+2*i, H+8+2*i)
    for i in range(4): a(f'v_xor_b32 v{H+8+2*i}, v{H+8+2*i}, v{H+9+2*i}')
    a(f"""
v_or3_b32 v{H}, v{H+8}, v{H+10}, v{H+12}
v_or_b32 v{H}, v{H}, v{H+14}
v_cmp_lt_u32 vcc, 15, v{H}
s_cbranch_vccnz {lbl}
{lbl}_done:
s_waitcnt vmcnt(0)
""")
def flag_store(v, soff, off):
    a(f's_mov_b64 exec, 1\ns_waitcnt vmcnt(0)\nbuffer_store_dword v{v}, off, {SWS}, {soff} offset:{off} sc1\ns_mov_b64 exec, -1')
def hstamp(n):
    if opt('hstamp'): a(f's_memtime s[{60+2*nst.index(n)}:{61+2*nst.index(n)}]')
a('L_hk:')
if opt('prio', 1): a('s_setprio 3')
for i in range(4): a(f'v_mov_b32 v{vZ+i}, 0')
a(f"""
s_lshl_b32 {sGi}, {sSig}, 5
s_add_u32 {sGi}, {sGi}, {sM}
s_lshl_b32 s97, {sGi}, 4
s_add_u32 s97, s97, {FLAGS}
s_mul_i32 s94, {sGi}, 5120
s_add_u32 {sCl}, s94, {H2BASE+BUF}
s_add_u32 s94, s94, {H1BASE}
v_lshlrev_b32 v{H+18}, 8, v{vL16}
s_mov_b64 exec, 3
s_waitcnt lgkmcnt(0)
{WSADD}
buffer_load_dword v{H+16}, v{H+18}, {SWS}, s97 offen
s_mov_b64 exec, -1
v_lshlrev_b32 v{H+4}, 3, v{vL16}
v_min_u32 v{H+21}, 4992, v{H+4}
s_lshl_b32 s7, {sSig}, 9
s_add_u32 s7, s7, {HF}
{'' if opt('nopf') else f'buffer_load_dword v{H+27}, v{H+21}, {SWS}, s94 offen'}
v_min_u32 v{H+21}, 384, v{H+4}
buffer_load_dword v{H+28}, v{H+21}, {SWS}, s7 offen
""")
a('L_hk2:')
a(f"""
s_add_u32 s98, s94, {H1STR}
s_getreg_b32 s6, hwreg(HW_REG_XCC_ID, 0, 4)
s_mov_b32 s92, {FLAGS+0x1000}
s_mov_b32 s93, {FLAGS+0x1400}
s_mov_b32 s95, {FLAGS+0x1800}
s_mov_b32 s96, {FLAGS+0x1c00}
s_mov_b32 s50, 0x9e3779b1
s_mov_b32 s51, 0x7f4a7c15
v_mov_b32 v{H+1}, {L_MODE}
ds_write_b32 v{H+1}, v{vZ} offset:4
s_lshr_b32 s52, {sM}, 3
s_lshl_b32 s52, s52, 8
s_add_u32 s52, s52, {sSig}
s_mul_i32 s52, s52, 1280
s_and_b32 s53, {sM}, 7
s_mul_i32 s53, s53, 160
s_add_u32 s52, s52, s53
s_add_u32 s52, s52, {H2BASE}
s_movk_i32 s53, 10080
s_lshl_b32 s54, {sSig}, 9
s_add_u32 s54, s54, {FLAGS}
""")
for i in range(5):
    a(f"""v_add_u32 v{H+22+i}, {1024*i}, v{vL16}
v_mul_u32_u24 v{H+21}, 205, v{H+22+i}
v_lshrrev_b32 v{H+21}, 15, v{H+21}
v_mad_u32_u24 v{H+22+i}, v{H+21}, s53, v{H+22+i}""")
hstamp('top')
a(f's_waitcnt vmcnt({1 if opt("nopf") else 2}) lgkmcnt(0)')
fhash(H+5, H+16)
a(f'v_and_or_b32 v{H+5}, v{H+5}, -16, s6')
def flag_lane(lane, off):
    a(f's_mov_b64 exec, {1 << lane}\ns_waitcnt vmcnt(0)\nbuffer_store_dword v{H+5}, v{H+18}, {SWS}, s97 offen offset:{off} sc1\ns_mov_b64 exec, -1')
def hs_issue():
    for i, r in enumerate(('s92', 's93', 's95', 's96')): a(f'buffer_load_dwordx2 {v2(H+8+2*i)}, v{vL16}, {SWS}, {r} offen sc1')
hstamp('bar1')
a(f's_mov_b64 exec, 1\nbuffer_store_dword v{H+5}, v{H+18}, {SWS}, s97 offen offset:4 sc1\nv_mov_b32 v{H+1}, {L_OWN}\nds_write_b32 v{H+1}, v{H+5}\ns_mov_b64 exec, -1')
hstamp('s1w')
a(f'v_lshlrev_b32 v{H+19}, 17, v{vL16}\ns_lshl_b32 s7, s2, 7\ns_mov_b64 exec, 3\nbuffer_load_dword v{H+20}, v{H+19}, {SO}, s7 offen\ns_mov_b64 exec, -1')
a(f"""
s_barrier
s_barrier
s_mov_b32 exec_hi, 0
buffer_load_dwordx3 v[{H}:{H+2}], v{vL16}, {SWS}, s54 offen sc1
s_mov_b64 exec, -1
""")
if opt('clate'): a('s_barrier')
for i in range(5): a(f'buffer_store_dwordx4 {vr(vZ)}, v{H+22+i}, {SWS}, s52 offen sc1')
clean5(sCl); clean5('s98', '')
a(f's_add_u32 {sCl}, {sCl}, {BUF}')
if not opt('clate'): a('s_barrier')
a('s_mov_b32 exec_hi, 0\ns_waitcnt vmcnt(15)')
hstamp('bar2')
hs_group('L_hs', False, True)
a(f's_cmp_lg_u32 vcc_lo, 0\ns_cselect_b32 {sMode}, 1, {FORCE_SLOW}')
hstamp('h1st')
a(f"""
v_mov_b32 v{H}, {sMode}
v_mov_b32 v{H+1}, {L_MODE}
ds_write_b32 v{H+1}, v{H}
s_cmp_eq_u32 {sMode}, 0
s_cbranch_scc1 L_hk_go
""")
clean5('s98')
a('L_hk_go:\ns_waitcnt lgkmcnt(0)\ns_barrier')
flag_lane(1, 4)
a('s_barrier')
hs_all('L_hs2')
a(f'v_mov_b32 v{H}, 1\nv_mov_b32 v{H+1}, {L_GO}\nds_write_b32 v{H+1}, v{H}')
hstamp('h1ok')
a('s_barrier')
a(f"""
v_add_u32 v{H+16}, 1, v{H+16}
s_mov_b64 exec, 3
s_barrier
s_waitcnt vmcnt(0)
s_barrier
s_barrier
buffer_store_dword v{H+16}, v{H+18}, {SWS}, s97 offen sc1
""")
if opt('hstamp'): stamp_dump(True)
a('s_endpgm\nL_codeend:')

if opt('hfront', 1):
    li = [k for k, i in enumerate(a.ins) if i.text in ('L_hk:', 'L_hk2:')]
    hk = a.ins[li[0]:li[1]]
    rest = a.ins[:li[0]] + a.ins[li[1]:]
    b = [k for k, i in enumerate(rest) if i.text == 's_cbranch_scc1 L_hk'][0]
    a.ins = rest[:b] + [Ins('s_cbranch_scc0 L_main')] + hk + [Ins('s_branch L_hk2'), Ins('L_main:')] + rest[b+1:]
if opt('nodma'): a.ins = [i for i in a.ins if not i.op.startswith('global_load_lds')]
if opt('align', 1): print('align', align_pass(a, KNAME + ':\n'))
hdr = open('interleave_layers__spectral_fnet__spectral_fnet__prompt.s.ref').read().split('; Override')[0]
out = hdr + ('; STAMPS ' + ' '.join(nst) + '\n' if STAMPS else '') + f'; @launch grid=(256,1,1) block=(320,1,1) lds={LDS_BYTES}\n'
out += f'.amdgcn_target "amdgcn-amd-amdhsa--gfx950"\n.text\n.globl {KNAME}\n.p2align 8\n.type {KNAME},@function\n{KNAME}:\n'
out += a.text()
if RP:
    out = out.replace('; @launch grid=(256,1,1) block=(320,1,1) lds=', f'; @launch kernel={KNAME} grid=(256,1,1) block=(320,1,1) lds=').replace('\n.amdgcn_target', '\n; @launch kernel=reveal_kernel grid=(1,1,1) block=(256,1,1) lds=64\n.amdgcn_target', 1)
    out += f'''.globl reveal_kernel
.p2align 8
.type reveal_kernel,@function
reveal_kernel:
  s_cmp_lg_u32 s2, 0
  s_cbranch_scc1 LR_end
  s_load_dwordx2 s[8:9], s[0:1], 96
  s_mov_b32 s10, {WS_BYTES}
  s_mov_b32 s11, 0x20000
  s_mov_b32 s3, {STAMP_OFF}
  v_lshlrev_b32 v1, 3, v0
  v_mov_b32 v4, 0
  v_mov_b32 v5, -1
  v_mov_b32 v6, {0 if opt('rpmax', 1) else -1}
  ds_write_b32 v4, v5
  ds_write_b32 v4, v6 offset:4
  s_waitcnt lgkmcnt(0)
  buffer_load_dwordx2 v[2:3], v1, s[8:11], s3 offen
  s_barrier
  s_waitcnt vmcnt(0)
  ds_min_u32 v4, v2
  ds_{'max' if opt('rpmax', 1) else 'min'}_u32 v4, v3 offset:4
  s_waitcnt lgkmcnt(0)
  s_barrier
  ds_read_b64 v[2:3], v4
  s_waitcnt lgkmcnt(0)
  v_sub_u32 v2, v3, v2
  v_min_u32 v2, 5000, v2
  v_mul_u32_u24 v2, 10, v2
  s_memrealtime s[12:13]
  v_readfirstlane_b32 s16, v2
  s_waitcnt lgkmcnt(0)
LR_spin:
  s_memrealtime s[14:15]
  s_waitcnt lgkmcnt(0)
  s_sub_u32 s17, s14, s12
  s_cmp_lt_u32 s17, s16
  s_cbranch_scc1 LR_spin
LR_end:
  s_endpgm
'''
out += f'''.section .rodata,"a"
.p2align 6
.amdhsa_kernel {KNAME}
  .amdhsa_next_free_vgpr 256
  .amdhsa_next_free_sgpr 102
  .amdhsa_accum_offset 256
  .amdhsa_group_segment_fixed_size 0
  .amdhsa_kernarg_size 104
  .amdhsa_user_sgpr_count 2
  .amdhsa_user_sgpr_kernarg_segment_ptr 1
  .amdhsa_system_sgpr_workgroup_id_x 1
.end_amdhsa_kernel
''' + '''.p2align 6
.amdhsa_kernel reveal_kernel
  .amdhsa_next_free_vgpr 16
  .amdhsa_next_free_sgpr 32
  .amdhsa_accum_offset 16
  .amdhsa_group_segment_fixed_size 0
  .amdhsa_kernarg_size 104
  .amdhsa_user_sgpr_count 2
  .amdhsa_user_sgpr_kernarg_segment_ptr 1
  .amdhsa_system_sgpr_workgroup_id_x 1
.end_amdhsa_kernel
''' * (1 if RP else 0) + '''.p2align 10
tbl:
'''
for f in blocks:
    for i in range(0, 256, 8): out += '.long ' + ','.join(f'{int(x):#x}' for x in f[i:i+8]) + '\n'
open(sys.argv[1], 'w').write(out)
print('instrs', len(a.ins), 'nops inserted', a.nops, 'table blocks', len(blocks), 'bytes', len(out))
```

```python
import sys, struct
import numpy as np
from design import *
from asmlib import Asm, align_pass, Ins

KNAME = "interleave_layers__spectral_fnet__spectral_fnet__prompt_kernel"
opts = dict(a.split('=') for a in sys.argv[2:] if '=' in a)
def opt(k, d=0): return int(opts.get(k, d))
STAMPS = opt('stamps'); FORCE_SLOW = opt('slow'); NLAYER = opt('layers', 4); SPIN = opt('spin', 200000); SLAYER = opt('slayer')
SST = opt('sstart')
def f2u(f): return struct.unpack('<I', struct.pack('<f', f))[0]
BUF = 1310720
FLAGS = 4096; H1BASE = 0x40000; H1STR = 0x200000; H2BASE = 0x400000; WS_BYTES = H2BASE + 4*BUF
STAMP_OFF = WS_BYTES
if STAMPS: WS_BYTES += 256*128
L_V = 0; L_ST = 9600; L_MODE = 9856; L_GO = 9860; L_OWN = 9864; L_JUNK = 9872; L_EXP = 15104; HF = FLAGS + 0x2000; L_RT = 9984; L_XT = 15360; L_TB = 25600; L_CM = L_TB + 16*1024; LDS_BYTES = L_CM + 8192
OOB = 0x40000000
def vaddr(col): return (col % 40)*80 + (col//40)*4
def opA(M):
    h = M.astype(np.float16).view(np.uint16).astype(np.uint32)
    out = np.zeros((64, 4), np.uint32)
    for l in range(64):
        r = h[l % 16, 8*(l//16):8*(l//16)+8]
        out[l] = r[0::2] | (r[1::2] << 16)
    return out
def opB(N): return opA(N.T)
blocks = []
def add(b): blocks.append(np.asarray(b, np.uint32).reshape(256)); return len(blocks)-1
n_ = S1_mats(False); s_ = S1_mats(True)
def a3_idx(sig, m):
    g = unit_g(sig, m)
    if g == 0: return 9
    if g == 128: return 8
    return (g >> 7) + (0 if g % 4 == 1 else 4)
a3 = {}
for sig in range(8):
    for m in range(32):
        M = A3(sig, m)*HSCALE; i = a3_idx(sig, m)
        if i in a3: assert np.allclose(a3[i], M), (sig, m)
        a3[i] = M
for M in (n_[0], n_[1], n_[2], E_mat(False)): add(opA(M))
T_A3L = add(opA(a3[0]))
Bre, Bim = B1_mats(); T_B1 = add(opB(Bre)); add(opB(Bim))
T_A2 = len(blocks)
M = A2_mats6(0)/HSCALE; M2 = A2_mats6(20)/HSCALE
sgn = np.array([(-1.0)**((k % 8)//2) for k in range(32)])
assert np.allclose(M2, M*sgn)
for blk in range(3):
    for ch in range(3): add(opA(M[blk, ch]))
assert len(blocks) == 16
T_S1S = len(blocks)
for M in (s_[0], s_[1], s_[2], E_mat(True)): add(opA(M))
T_DEL = add(opA(s_[3])); add(opA(s_[4]))
T_A3 = len(blocks)
for i in range(10): add(opA(a3[i]))
T_ADDR = len(blocks)
at = np.zeros((2, 256, 4), np.uint32)
for ty, (sig, m) in enumerate(((2, 1), (1, 0))):
    for tid in range(256):
        w, l = divmod(tid, 64); n, mq = l % 16, l//16
        v = [vaddr(acol(sig, m, mq//2, 64*w+4*n+2*bop+(mq % 2))) for bop in range(2)]
        v += [6400 + vaddr(acol(sig, m, mq % 2, 64*w+4*n+2*(mq//2)+sub)) for sub in range(2)]
        k5 = 256 + 16*w + n
        if mq < 2: v += [vaddr(acol(sig, m, mq, k5)), 3200 + vaddr(acol(sig, m, mq, k5))]
        elif mq == 2: v += [6400 + vaddr(acol(sig, m, 0, k5)), 6400 + vaddr(acol(sig, m, 1, k5))]
        else: v += [L_JUNK + 4*n, L_JUNK + 4*n]
        at[ty, tid, :3] = [v[0] | (v[1] << 16), v[2] | (v[3] << 16), v[4] | (v[5] << 16)]
for i in range(8): add(at.reshape(-1)[256*i:256*i+256])
for i in range(640): assert (i*205) >> 14 == i//80
for i in range(320): assert (i*205) >> 11 == i//10

vL16, vH1s2, vH2ld, vH2ld5, vC1ld, vRtW, vRtR, vRtR2, vH2st, vH2st2, vStR, vStW = range(1, 13)
vVrd, vVrd2, vEps = 13, 14, 15
vV = 16
vXT = 22
vMask0 = 27; vG = 28
vTB = 31
vZc = 252
X = 32
A3r = 52; S1r = 56; B1r = 72; TWc = 80; TWs = 92; A2r = 104; CM = 140; DEL = 172
Bo = 180
T = 192
vZ = 4
def vr(b, n=4): return f'v[{b}:{b+n-1}]'
def v2(b): return f'v[{b}:{b+1}]'
sW, sSig, sM, sG, sType, sLayer, sMode = 's3', 's4', 's5', 's26', 's27', 's29', 's30'
sH1st, sH1ld0, sH1ld1, sH2st, sH2ld, sTag, sFlip, sSpin = 's31', 's32', 's33', 's34', 's35', 's36', 's37', 's38'
sCl, sGi, sInv, sFix = 's44', 's46', 's40', 's41'
sSlot = 's[42:43]'
SX, SO, SWS, STB = 's[8:11]', 's[12:15]', 's[16:19]', 's[24:25]'
HW = 4
a = Asm()
nst = []
def stamp(name, inloop=False, real=False):
    if SST and inloop and name not in ('top', 'bar1'): return
    if STAMPS:
        i = len(nst); nst.append(name)
        assert i < 16
        ins = f's_{"memrealtime" if real else "memtime"} s[{60+2*i}:{61+2*i}]'
        a(ins)
LATE = ('h2ack', 'h2ok')
def sst(name):
    if SST: stamp(name)
def clean5(soff, fl=' sc1'):
    for i in range(4): a(f'buffer_store_dwordx4 {vr(vZ)}, v{vL16}, {SWS}, {soff} offen offset:{1024*i}{fl}')
    a(f's_add_u32 s7, {soff}, 4096\nbuffer_store_dwordx4 {vr(vZ)}, v{vL16}, {SWS}, s7 offen{fl}')
def mfma(d, A, B, C): a(f'v_mfma_f32_16x16x32_f16 {vr(d)}, {vr(A)}, {vr(B)}, {"0" if C is None else vr(C)}')

stamp('start'); stamp('rstart', real=True)
n_v, kq_v = T+10, T+11
a(f"""
s_load_dwordx2 s[16:17], s[0:1], 96
s_load_dwordx2 s[8:9], s[0:1], 0
s_load_dwordx2 s[12:13], s[0:1], 80
v_lshrrev_b32 v{T+1}, 6, v0
s_cmp_ge_u32 s2, 256
s_cbranch_scc1 L_end
""")
if opt('cpref', 1):
    a(f"""
s_getpc_b64 s[24:25]
v_lshlrev_b32 v{T+2}, 7, v0
v_min_u32 v{T+2}, L_codeend-{KNAME}-64, v{T+2}
global_load_dword v{T+57}, v{T+2}, s[24:25]
""")
a(f"""
v_readfirstlane_b32 {sW}, v{T+1}
v_and_b32 v{T}, 63, v0
s_and_b32 {sSig}, s2, 7
s_lshr_b32 {sM}, s2, 3
v_lshlrev_b32 v{vL16}, 4, v{T}
s_mov_b32 s18, {WS_BYTES}
s_mov_b32 s19, 0x20000
s_mov_b32 s14, 2621440
s_mov_b32 s15, 0x20000
s_cmp_eq_u32 {sW}, {HW}
s_cbranch_scc1 L_hk
s_lshl_b32 s6, {sSig}, 2
s_lshr_b32 s6, 0x9654d210, s6
s_and_b32 s6, s6, 15
s_lshl_b32 {sG}, {sM}, 4
s_add_u32 {sG}, {sG}, s6
s_cmp_eq_u32 {sSig}, 0
s_cselect_b32 s7, 248, 0
s_cmp_ge_u32 {sM}, 16
s_cselect_b32 s7, s7, 0
s_sub_u32 {sG}, {sG}, s7
s_and_b32 {sType}, {sG}, 1
""")
a(f"""
s_getpc_b64 s[24:25]
s_add_u32 s24, s24, tbl@rel32@lo+4
s_addc_u32 s25, s25, tbl@rel32@hi+12
s_lshr_b32 s7, {sG}, 7
s_lshl_b32 s94, {sType}, 2
s_sub_u32 s7, s7, s94
s_add_u32 s7, s7, {4 + T_A3}
s_cmp_eq_u32 {sG}, 128
s_cselect_b32 s7, {8 + T_A3}, s7
s_cmp_eq_u32 {sG}, 0
s_cselect_b32 s7, {9 + T_A3}, s7
s_cselect_b32 s94, {T_S1S*1024}, 0
s_lshl_b32 s7, s7, 10
s_lshl_b32 s95, {sW}, 12
s_cmp_eq_u32 {sW}, 0
s_cselect_b32 s94, s94, s95
s_cmp_eq_u32 {sW}, 1
s_cselect_b32 s7, s7, s94
s_add_u32 m0, s95, {L_TB}
v_add_u32 v{T+2}, s94, v{vL16}
v_add_u32 v{T+3}, s7, v{vL16}
s_lshl_b32 s7, {sType}, 12
s_add_u32 s7, s7, {T_ADDR*1024}
global_load_lds_dwordx4 v{T+3}, {STB}
global_load_lds_dwordx4 v{T+2}, {STB} offset:1024
global_load_lds_dwordx4 v{T+2}, {STB} offset:2048
global_load_lds_dwordx4 v{T+2}, {STB} offset:3072
v_lshl_add_u32 v{T+2}, v0, 4, s7
global_load_dwordx3 v[{vV}:{vV+2}], v{T+2}, {STB}
s_or_b32 {sFix}, s2, {sW}
""")
a(f"""
s_cmp_lg_u32 {sFix}, 0
s_cbranch_scc1 L_nodel
v_add_u32 v{T+2}, {T_DEL*1024}, v{vL16}
global_load_dwordx4 {vr(DEL)}, v{T+2}, {STB}
global_load_dwordx4 {vr(DEL+4)}, v{T+2}, {STB} offset:1024
L_nodel:
""")
a(f"""
s_sub_u32 s92, 0, {sG}
s_and_b32 s92, s92, 511
s_cmp_eq_u32 {sG}, 0
s_cselect_b32 s92, 256, s92
s_mul_i32 s92, s92, 1280
s_mul_i32 s93, {sG}, 1280
s_sub_u32 s92, s92, s93
s_sub_u32 s92, s92, {4*655360}
s_mov_b32 s10, 2621440
s_mov_b32 s11, 0x20000
s_mov_b32 s96, 0x9fb00
v_lshlrev_b32 v{vRtR}, 4, v0
""")
for i in range(3):
    a(f"""v_add_u32 v{T+12}, {256*i}, v0
v_mul_u32_u24 v{T+12}, 205, v{T+12}
v_lshrrev_b32 v{T+12}, 14, v{T+12}
v_mov_b32 v{T+13}, s92
v_cmp_le_u32 vcc, 4, v{T+12}
v_mad_u32_u24 v{T+12}, v{T+12}, s96, v{vRtR}
v_cndmask_b32 v{T+13}, 0, v{T+13}, vcc
v_add3_u32 v{vG+i}, v{T+12}, v{T+13}, s93""".replace(f'v_add_u32 v{T+12}, 0, v0\nv_mul_u32_u24 v{T+12}, 205, v{T+12}', f'v_mul_u32_u24 v{T+12}, 205, v0'))
    if i < 2: a(f's_add_u32 s93, s93, 4096')
a(f"""
""")
sst('prek')
a(f"""
s_waitcnt lgkmcnt(0)
s_lshl_b32 s7, {sW}, 10
s_add_u32 m0, s7, {L_XT}
s_nop 1
buffer_load_dwordx4 v{vG}, {SX}, 0 offen lds
s_add_u32 m0, s7, {L_XT+4096}
s_cmp_ge_u32 {sW}, 2
buffer_load_dwordx4 v{vG+1}, {SX}, 0 offen lds
s_cbranch_scc1 L_nox2
s_add_u32 m0, s7, {L_XT+8192}
s_nop 0
buffer_load_dwordx4 v{vG+2}, {SX}, 0 offen lds
s_branch L_x2
L_nox2:
v_mov_b32 v{vG+2}, {OOB}
buffer_load_dword v{T+58}, v{vG+2}, {SX}, 0 offen
L_x2:
""")
sst('xiss')
sst('dma')
a(f"""
v_and_b32 v{n_v}, 15, v0
v_bfe_u32 v{kq_v}, v0, 4, 2
s_mul_i32 s94, {sType}, 320
v_lshrrev_b32 v{T+13}, 1, v{kq_v}
v_mul_u32_u24 v{T+14}, s94, v{T+13}
s_lshl_b32 s92, {sW}, 5
v_add3_u32 v{T+12}, v{n_v}, v{T+14}, s92
s_and_b32 s92, {sW}, 1
s_lshl_b32 s92, s92, 3
s_lshr_b32 s93, {sW}, 1
s_lshl_b32 s93, s93, 5
s_add_u32 s92, s92, s93
s_add_u32 s92, s92, 256
v_lshrrev_b32 v{T+17}, 1, v{n_v}
v_and_b32 v{T+18}, 1, v0
v_add3_u32 v{T+17}, v{T+17}, v{T+14}, s92
v_lshl_add_u32 v{T+17}, v{T+18}, 4, v{T+17}
s_xor_b32 s94, {sType}, 1
v_and_b32 v{T+13}, s94, v{T+13}
v_xor_b32 v{T+13}, v{T+13}, v{kq_v}
v_add_u32 v{T+14}, 16, v{T+12}
v_and_b32 v{T+13}, 1, v{T+13}
v_add_u32 v{T+15}, 128, v{T+12}
v_cmp_eq_u32 vcc, 1, v{T+13}
v_add_u32 v{T+16}, 144, v{T+12}
s_mul_i32 s94, s94, 320
""")
ecol = [T+12, T+14, T+15, T+16, T+17]
for kl in range(5): a(f'v_sub_u32 v{T+18+kl}, 640, v{ecol[kl]}')
for kl in range(5): a(f'v_cndmask_b32 v{vXT+kl}, v{ecol[kl]}, v{T+18+kl}, vcc')
a(f"""
v_cmp_gt_u32 vcc, 2, v{kq_v}
v_mov_b32 v{T+17}, s94
v_and_b32 v{T+13}, 1, v{kq_v}
v_cndmask_b32 v{T+17}, 0, v{T+17}, vcc
v_cmp_eq_u32 vcc, 0, v{T+12}
v_mul_u32_u24 v{T+9}, 0x1400, v{T+13}
v_add_u32 v{T+14}, {L_XT}, v{T+9}
v_cndmask_b32 v{vXT}, v{vXT}, v{T+17}, vcc
v_cmp_ne_u32 vcc, 0, v{vXT}
""")
for kl in range(5): a(f'v_lshl_add_u32 v{vXT+kl}, v{vXT+kl}, 1, v{T+14}')
a(f'v_cndmask_b32 v{vMask0}, 0, -1, vcc')
for i in range(20): a(f'v_mov_b32 v{X+i}, 0')
a(f"""
s_lshr_b32 s95, {sM}, 3
s_lshl_b32 s7, s95, 2
s_lshr_b32 s7, 0x1120, s7
s_and_b32 s7, s7, 3
s_add_u32 s96, s6, 256
s_cmp_eq_u32 {sSig}, 0
s_cselect_b32 s96, 8, s96
s_lshl_b32 s94, {sW}, 4
s_add_u32 s6, s6, s94
s_add_u32 s96, s96, s94
v_lshl_add_u32 v{T+13}, v{n_v}, 2, s7
v_lshl_add_u32 v{T+14}, v{kq_v}, 6, s6
v_lshl_add_u32 v{T+15}, v{kq_v}, 6, s96
v_add_u32 v{T+12}, 64, v{T+13}
s_mov_b32 s94, {f2u(1/2048):#x}
""")
G = T+24
for hi in range(2):
    for ch in range(2): a(f'v_mul_u32_u24 v{G+2*(2*hi+ch)}, v{T+13-hi}, v{T+14+ch}')
for k in range(4): a(f'v_and_b32 v{G+2*k}, 0x7ff, v{G+2*k}')
for k in range(4): a(f'v_cvt_f32_u32 v{G+2*k}, v{G+2*k}')
for k in range(4): a(f'v_mul_f32 v{G+2*k}, s94, v{G+2*k}')
for k in range(4): a(f'v_sin_f32 v{G+2*k+1}, v{G+2*k}\nv_cos_f32 v{G+2*k}, v{G+2*k}')
for k in range(4): a(f'v_cvt_pk_f16_f32 v{G+8+2*k}, v{G+2*k}, v{G+2*k+1}\nv_cvt_pk_f16_f32 v{G+9+2*k}, -v{G+2*k+1}, v{G+2*k}')
a(f's_cmp_lg_u32 {sSig}, 0\ns_cbranch_scc1 L_cm_done')
for hi in range(2):
    b = G+8+4*hi
    a(f'v_mov_b32 v{b+1}, 0\nv_mov_b32 v{b+3}, v{b+2}\nv_mov_b32 v{b+2}, 0')
a(f"""
v_and_b32 v{T+17}, 1, v0
v_lshlrev_b32 v{T+17}, 4, v{T+17}
v_mov_b32 v{T+18}, 0x3c00
v_lshlrev_b32 v{T+17}, v{T+17}, v{T+18}
v_cmp_gt_u32 vcc, 16, v0
v_cndmask_b32 v{G+8}, v{G+8}, v{T+17}, vcc
v_cndmask_b32 v{G+12}, v{G+12}, v{T+17}, vcc
L_cm_done:
""")
sst('cm')
a(f'''
v_lshlrev_b32 v{T+12}, 2, v{kq_v}
v_mul_u32_u24 v{T+12}, v{T+12}, v{n_v}
v_cvt_f32_u32 v{T+12}, v{T+12}
v_cvt_f32_u32 v{T+13}, v{n_v}
v_mul_f32 v{T+12}, {f2u(1/640):#x}, v{T+12}
v_mul_f32 v{T+13}, {f2u(1/640):#x}, v{T+13}
''')
for blk in range(3):
    for i in range(4):
        k = 16*blk + i
        if k == 0: src = T+12
        else:
            src = T+14
            a(f'v_fmamk_f32 v{T+14}, v{T+13}, {f2u(float(k)):#x}, v{T+12}')
        a(f'v_cos_f32 v{TWc+4*blk+i}, v{src}\nv_sin_f32 v{TWs+4*blk+i}, v{src}')
a(f"""
s_mov_b32 {sInv}, {f2u(1/640):#x}
v_mov_b32 v{vEps}, {f2u(1e-5):#x}
v_mov_b32 v{Bo+10}, 0
v_mov_b32 v{Bo+11}, 0
s_mov_b32 {sLayer}, 0
s_mov_b32 {sTag}, 1
s_mov_b32 {sFlip}, 0
s_cmp_lt_u32 {sW}, 2
s_cselect_b64 {sSlot}, 1, 0
s_cselect_b32 s7, 3200, 0
s_cselect_b32 s52, 12, 8
s_cselect_b32 s53, 0, 32
s_lshl_b32 s7, s7, {sW}
v_lshlrev_b32 v{T+12}, 4, v{kq_v}
v_mul_u32_u24 v{vVrd}, 80, v{n_v}
v_add3_u32 v{vVrd}, v{vVrd}, v{T+12}, s7
v_and_b32 v{vVrd2}, 7, v0
v_mul_u32_u24 v{vVrd2}, 80, v{vVrd2}
s_add_u32 s7, s7, 2560
v_add3_u32 v{vVrd2}, v{vVrd2}, v{T+12}, s7
s_mul_i32 s54, s52, {sW}
s_lshl_b32 s54, s54, 2
s_add_u32 s54, s54, s53
s_sub_u32 s7, s52, 1
v_min_u32 v{T+13}, s7, v{n_v}
v_lshlrev_b32 v{T+13}, 2, v{T+13}
s_movk_i32 s7, 5120
v_mad_u32_u24 v{vC1ld}, v{kq_v}, s7, v{T+13}
v_mul_u32_u24 v{vRtW}, 160, v{n_v}
s_add_u32 s7, s54, {L_RT}
v_add3_u32 v{vRtW}, v{vRtW}, v{T+12}, s7
s_lshl_b32 s7, s52, 2
v_cmp_gt_u32 vcc, s7, v{T+12}
v_add_u32 v{T+13}, {L_XT}, v{vL16}
v_cndmask_b32 v{vRtW}, v{T+13}, v{vRtW}, vcc
v_mul_u32_u24 v{T+13}, 205, v0
v_lshrrev_b32 v{T+13}, 11, v{T+13}
v_mul_u32_u24 v{T+13}, 10080, v{T+13}
v_add_u32 v{vH2st}, v{T+13}, v{vRtR}
s_lshl_b32 s7, {sW}, 4
s_add_u32 s7, s7, 256
v_add_u32 v{T+13}, s7, v{n_v}
v_lshlrev_b32 v{vRtR2}, 4, v{T+13}
v_mul_u32_u24 v{T+13}, 205, v{T+13}
v_lshrrev_b32 v{T+13}, 11, v{T+13}
v_mul_u32_u24 v{T+13}, 10080, v{T+13}
v_add_u32 v{vH2st2}, v{T+13}, v{vRtR2}
v_cmp_eq_u32 vcc, 0, v{kq_v}
v_mov_b32 v{T+13}, {OOB}
v_cndmask_b32 v{vH2st2}, v{T+13}, v{vH2st2}, vcc
v_add_u32 v{vRtR}, {L_RT}, v{vRtR}
v_add_u32 v{vRtR2}, {L_RT}, v{vRtR2}
v_lshrrev_b32 v{vH1s2}, 1, v{vL16}
v_add_u32 v{vH1s2}, {1024-128}, v{vH1s2}
v_add_u32 v{T+14}, -1, v{kq_v}
v_cmp_gt_u32 vcc, 2, v{T+14}
v_cndmask_b32 v{vH1s2}, v{T+13}, v{vH1s2}, vcc
v_and_b32 v{T+13}, 1, v{kq_v}
v_lshlrev_b32 v{T+13}, 7, v{T+13}
v_and_b32 v{T+14}, 3, v0
v_lshl_add_u32 v{vStR}, v{T+14}, 5, v{T+13}
v_add_u32 v{vStR}, {L_ST}, v{vStR}
v_bfe_u32 v{T+14}, v0, 2, 1
v_lshl_add_u32 v{T+13}, v{T+14}, 6, v{T+13}
v_bfe_u32 v{T+14}, v0, 3, 1
v_lshl_add_u32 v{T+13}, v{T+14}, 5, v{T+13}
v_bfe_u32 v{T+14}, v0, 5, 1
v_lshl_add_u32 v{T+13}, v{T+14}, 2, v{T+13}
s_lshl_b32 s7, {sW}, 3
s_add_u32 s7, s7, {L_ST}
v_add_u32 v{vStW}, s7, v{T+13}
s_and_b32 s93, {sM}, 7
s_mul_i32 s93, s93, 160
s_lshl_b32 s94, {sSig}, 7
s_add_u32 s92, s94, {sM}
s_mul_i32 s92, s92, 1280
s_mul_i32 {sH1st}, {sW}, 40960
s_add_u32 {sH1st}, {sH1st}, s92
s_add_u32 {sH1st}, {sH1st}, {H1BASE}
s_lshl_b32 s96, s95, 5
s_add_u32 s96, s96, s94
s_mul_i32 {sH1ld0}, s96, 1280
s_add_u32 {sH1ld0}, {sH1ld0}, s93
s_add_u32 s96, s54, {H1BASE}
s_add_u32 {sH1ld0}, {sH1ld0}, s96
s_add_u32 {sH1ld1}, {sH1ld0}, 20480
s_lshl_b32 s96, s95, 8
s_add_u32 s96, s96, {sSig}
s_mul_i32 {sH2st}, s96, 1280
s_add_u32 {sH2st}, {sH2st}, s93
s_add_u32 {sH2st}, {sH2st}, {H2BASE}
s_mov_b32 {sH2ld}, {H2BASE-BUF}
s_lshl_b32 s7, {sSig}, 2
s_add_u32 s55, s7, {sW}
s_lshl_b32 s55, s55, 5
s_add_u32 s55, s55, {sM}
s_lshl_b32 s55, s55, 2
s_add_u32 s55, s55, {HF}
s_add_u32 s56, s95, s7
s_lshl_b32 s56, s56, 7
s_add_u32 s56, s56, {HF}
s_and_b32 s7, {sG}, 127
s_lshr_b32 s7, s7, 2
s_sub_u32 s94, 0, {sG}
s_and_b32 s94, s94, 127
s_lshr_b32 s94, s94, 2
s_bfe_u32 s95, {sG}, 0x10001
s_cmp_eq_u32 {sType}, 1
s_cselect_b32 s94, s7, s94
s_cselect_b32 s96, 2, s95
s_cselect_b32 s95, 3, s95
s_lshl_b32 s96, s96, 5
s_lshl_b32 s95, s95, 5
s_add_u32 s7, s7, s96
s_add_u32 s94, s94, s95
s_mul_i32 s7, s7, 10240
s_mul_i32 s94, s94, 10240
v_mov_b32 v{T+12}, s7
v_mov_b32 v{T+13}, s94
v_cmp_le_u32 vcc, 2, v{kq_v}
s_lshl_b32 s95, {sW}, 8
s_lshl_b32 s96, {sW}, 6
v_cndmask_b32 v{T+12}, v{T+12}, v{T+13}, vcc
s_add_u32 s96, s96, 1024
v_add_u32 v{T+12}, v{T+12}, v{T+9}
v_lshlrev_b32 v{T+13}, 4, v{n_v}
v_add3_u32 v{vH2ld}, v{T+12}, v{T+13}, s95
v_lshlrev_b32 v{T+13}, 2, v{n_v}
v_add3_u32 v{vH2ld5}, v{T+12}, v{T+13}, s96
v_add_u32 v{vTB}, {L_TB}, v{vL16}
v_lshrrev_b32 v{T+59}, 2, v{vL16}
v_and_b32 v{T+59}, 127, v{T+59}
s_lshl_b32 s7, {sW}, 2
v_add_u32 v{T+2}, s7, v{vTB}
""")
sst('prex')
for hi in range(2):
    for ch in range(2):
        for rio in range(2):
            a(f'ds_write_b32 v{T+2}, v{G+8+2*(2*hi+ch)+rio} offset:{L_CM-L_TB+((hi*2+rio)*2+ch)*1024}')
a('s_waitcnt vmcnt(3) lgkmcnt(0)\ns_barrier')
sst('bart')
for i in range(4): a(f'ds_read_b128 {vr(S1r+4*i)}, v{vTB} offset:{1024*i}')
for i in range(9): a(f'ds_read_b128 {vr(A2r+4*i)}, v{vTB} offset:{1024*(T_A2+i)}')
for i in range(2): a(f'ds_read_b128 {vr(B1r+4*i)}, v{vTB} offset:{1024*(T_B1+i)}')
for i in range(8): a(f'ds_read_b128 {vr(CM+4*i)}, v{vTB} offset:{L_CM-L_TB+1024*i}')
a(f'ds_read_b128 {vr(A3r)}, v{vTB} offset:{1024*T_A3L}')
for i in (2, 1, 0): a(f'v_lshrrev_b32 v{vV+2*i+1}, 16, v{vV+i}\nv_and_b32 v{vV+2*i}, 0xffff, v{vV+i}')
a(f's_cmp_eq_u32 {sW}, 3\ns_cselect_b32 s7, 0x80008000, 0\ns_waitcnt lgkmcnt(11)')
for i in range(18): a(f'v_xor_b32 v{A2r+2*i+1}, s7, v{A2r+2*i+1}')
a('s_waitcnt vmcnt(0)\ns_barrier')
sst('bar0')
for kl in range(5):
    for j in range(4): a(f'ds_read_u16_d16_hi v{X+4*kl+j}, v{vXT+kl} offset:{1280*j}')
a('s_waitcnt lgkmcnt(0)')
Sx, Qx = T, T+4
a('L_loop:')
stamp('top', True)
for p in range(2): a(f'v_pk_mul_f32 {v2(Qx+2*p)}, {v2(X+16+2*p)}, {v2(X+16+2*p)}')
for kl in range(4):
    for p in range(2):
        b = X+4*kl+2*p
        a(f'v_pk_add_f32 {v2(Sx+2*p)}, {v2(X+16+2*p) if kl == 0 else v2(Sx+2*p)}, {v2(b)}')
        a(f'v_pk_fma_f32 {v2(Qx+2*p)}, {v2(b)}, {v2(b)}, {v2(Qx+2*p)}')
for j in range(4): a(f'v_permlane32_swap_b32 v{Sx+j}, v{Qx+j}')
for p in range(2): a(f'v_pk_add_f32 {v2(Sx+2*p)}, {v2(Sx+2*p)}, {v2(Qx+2*p)}')
def dpp(d, s, ctl, bank): a(f'v_add_f32_dpp v{d}, v{s}, v{s} {ctl} row_mask:0xf bank_mask:{bank:#x}')
dpp(Sx, Sx, 'row_ror:8', 3); dpp(Sx, Sx+1, 'row_ror:8', 12); dpp(Sx+2, Sx+2, 'row_ror:8', 3); dpp(Sx+2, Sx+3, 'row_ror:8', 12)
dpp(Sx, Sx, 'row_shl:4', 5); dpp(Sx, Sx+2, 'row_shr:4', 10)
dpp(Sx, Sx, 'quad_perm:[1,0,3,2]', 15); dpp(Sx, Sx, 'quad_perm:[2,3,0,1]', 15)
a(f"""
ds_write_b32 v{vStW}, v{Sx}
s_waitcnt lgkmcnt(0)
s_barrier
""")
stamp('bar1', True)
P = T+8; RS = T+16; NB = T+20
a(f"""
ds_read_b128 {vr(P)}, v{vStR}
ds_read_b128 {vr(P+4)}, v{vStR} offset:16
s_waitcnt lgkmcnt(1)
v_pk_add_f32 {v2(P)}, {v2(P)}, {v2(P+2)}
s_waitcnt lgkmcnt(0)
v_pk_add_f32 {v2(P+4)}, {v2(P+4)}, {v2(P+6)}
v_pk_add_f32 {v2(P)}, {v2(P)}, {v2(P+4)}
v_mul_f32 v{P}, {sInv}, v{P}
v_fma_f32 v{P+1}, v{P+1}, {sInv}, v{vEps}
v_fma_f32 v{P+1}, -v{P}, v{P}, v{P+1}
v_max_f32 v{P+1}, v{P+1}, v{vEps}
v_rsq_f32 v{P+1}, v{P+1}
v_mul_f32 v{P}, -v{P}, v{P+1}
""")
for j in range(4): a(f'v_mov_b32_dpp v{RS+j}, v{P+1} quad_perm:[{j},{j},{j},{j}] row_mask:0xf bank_mask:0xf')
for j in range(4): a(f'v_mov_b32_dpp v{NB+j}, v{P} quad_perm:[{j},{j},{j},{j}] row_mask:0xf bank_mask:0xf')
N_ = T+24
D0, D1, DC, DE = T, T+4, T+8, T+12
def norm(kl):
    for p in range(2): a(f'v_pk_fma_f32 {v2(N_+4*(kl%2)+2*p)}, {v2(X+4*kl+2*p)}, {v2(RS+2*p)}, {v2(NB+2*p)}')
def cvtn(kl):
    for p in range(2): a(f'v_cvt_pk_f16_f32 v{Bo+2*kl+p}, v{N_+4*(kl%2)+2*p}, v{N_+4*(kl%2)+2*p+1}')
norm(0); norm(1); cvtn(0); cvtn(1); norm(2); norm(3)
mfma(D0, S1r, Bo, None); mfma(DC, S1r+4, Bo, None)
cvtn(2); cvtn(3); norm(4)
mfma(D1, S1r, Bo+4, None); mfma(DC, S1r+8, Bo+4, DC)
cvtn(4)
a(f's_cmp_lg_u32 {sFix}, 0')
W_ = T+32
a(f'v_cvt_pk_f16_f32 v{W_}, v{D0}, v{D0+1}')
mfma(DE, S1r+12, Bo+8, None)
a(f's_cbranch_scc0 L_fix\nL_nofix:')
a(f"""
v_cvt_pk_f16_f32 v{W_+1}, v{D0+2}, v{D0+3}
ds_write_b32 v{vV}, v{W_}
ds_write_b32 v{vV}, v{W_+1} offset:3200
v_cvt_pk_f16_f32 v{W_+2}, v{D1}, v{D1+1}
v_cvt_pk_f16_f32 v{W_+3}, v{D1+2}, v{D1+3}
v_cvt_pk_f16_f32 v{W_+4}, v{DC}, v{DC+1}
v_cvt_pk_f16_f32 v{W_+5}, v{DC+2}, v{DC+3}
ds_write_b32 v{vV+1}, v{W_+2}
ds_write_b32 v{vV+1}, v{W_+3} offset:3200
v_cvt_pk_f16_f32 v{W_+6}, v{DE}, v{DE+1}
v_cvt_pk_f16_f32 v{W_+7}, v{DE+2}, v{DE+3}
ds_write_b32 v{vV+2}, v{W_+4}
ds_write_b32 v{vV+3}, v{W_+5}
ds_write_b32 v{vV+4}, v{W_+6}
ds_write_b32 v{vV+5}, v{W_+7}
""")
stamp('s1w', True)
a(f's_cmp_eq_u32 {sLayer}, 0\ns_waitcnt lgkmcnt(0)\ns_barrier')
stamp('bar2', True)
Ad = T; Tr = T+12; Ti = T+24; B2 = T+36; O = T; Pt = T+48; Qt = T+52
a(f"""
ds_read_b128 {vr(Ad)}, v{vVrd}
ds_read_b128 {vr(Ad+4)}, v{vVrd} offset:1280
ds_read_b128 {vr(Ad+8)}, v{vVrd2}
s_cbranch_scc1 L_l0b
L_l0b_ret:
""")
for blk in range(3):
    a(f's_waitcnt lgkmcnt({2-blk})')
    mfma(Tr+4*blk, Ad+4*blk, B1r, None); mfma(Ti+4*blk, Ad+4*blk, B1r+4, None)
for ch in range(3):
    for p in range(2):
        r_, i_ = Tr+4*ch+2*p, Ti+4*ch+2*p; c_ = TWc+4*ch+2*p
        a(f'v_pk_mul_f32 {v2(Pt+2*p)}, {v2(r_)}, {v2(c_)}')
        a(f'v_pk_mul_f32 {v2(Qt+2*p)}, {v2(i_)}, {v2(c_)}')
    for p in range(2):
        r_, i_ = Tr+4*ch+2*p, Ti+4*ch+2*p; s_2 = TWs+4*ch+2*p
        a(f'v_pk_fma_f32 {v2(Pt+2*p)}, {v2(i_)}, {v2(s_2)}, {v2(Pt+2*p)}')
        a(f'v_pk_fma_f32 {v2(Qt+2*p)}, {v2(r_)}, {v2(s_2)}, {v2(Qt+2*p)} neg_lo:[1,0,0] neg_hi:[1,0,0]')
        if ch > 0 and p == 0: mfma(O+8, A2r+(6+ch-1)*4, B2+4*(ch-1), None if ch == 1 else O+8)
    for i in range(4): a(f'v_cvt_pk_f16_f32 v{B2+4*ch+i}, v{Pt+i}, v{Qt+i}')
    if ch == 2: a(f's_cmp_lg_u32 {sMode}, 0')
    for blk in ((0, 1) if ch < 2 else (2, 0, 1)):
        mfma(O+4*blk, A2r+(blk*3+ch)*4, B2+4*ch, None if ch == 0 else O+4*blk)
Wo = T+12
for i in (4, 5, 0, 1, 2, 3): a(f'v_cvt_pk_f16_f32 v{Wo+i}, v{O+2*i}, v{O+2*i+1}')
a(f'v_cndmask_b32 v{Wo}, v{Wo}, v{Wo+4}, {sSlot}')
for i in (4, 5, 1, 2, 3, 0): a(f'v_and_or_b32 v{Wo+i}, v{Wo+i}, -2, {sTag}')
a(f"""
s_cbranch_scc1 L_st_slow
buffer_store_dwordx4 {vr(Wo)}, v{vL16}, {SWS}, {sH1st} offen
buffer_store_dwordx2 {v2(Wo+4)}, v{vH1s2}, {SWS}, {sH1st} offen
L_cphase:
""")
stamp('h1st', True)
Ca = T+20; Dm = T+28; K_ = T+44
a(f"""
s_mov_b32 {sSpin}, {SPIN}
s_xor_b32 {sH1st}, {sH1st}, {H1STR}
s_add_u32 {sH2ld}, {sH2ld}, {BUF}
s_cmp_eq_u32 {sLayer}, 0
s_cbranch_scc1 L_l0c
L_l0c_ret:
""")
if opt('ack1'): a('s_waitcnt vmcnt(0)')
a('L_poll1:')
for ch in range(2):
    for u in range(4):
        a(f'buffer_load_dword v{Ca+4*ch+u}, v{vC1ld}, {SWS}, {sH1ld0 if ch == 0 else sH1ld1} offen offset:{1280*u} sc1')
a(f's_sub_u32 {sSpin}, {sSpin}, 1\ns_cbranch_scc1 L_poll1_to\ns_waitcnt vmcnt(0)')
tt = sum((((i >> 2 & 1) ^ (i & 1)) & ((i >> 1 & 1) ^ (i & 1))) << i for i in range(8))
for i in range(4): a(f'v_bitop3_b32 v{K_+i}, v{Ca+2*i}, v{Ca+2*i+1}, {sFlip} bitop3:{tt:#x}')
def cm(hi, ch, rio):
    d = Dm + (hi*2+rio)*4
    mfma(d, Ca+4*ch, CM+((hi*2+rio)*2+ch)*4, None if ch == 0 else d)
cm(0, 0, 0)
a(f'v_bitop3_b32 v{K_}, v{K_}, v{K_+1}, v{K_+2} bitop3:0x80')
cm(0, 0, 1)
a(f'v_bitop3_b32 v{K_}, v{K_}, v{K_+3}, 1 bitop3:0x80')
cm(0, 1, 0)
a(f'v_cmp_eq_u32 vcc, 0, v{K_}')
cm(0, 1, 1)
a('s_cbranch_vccnz L_poll1\nL_poll1_done:')
stamp('h1ok', True)
cm(1, 0, 0); cm(1, 0, 1); cm(1, 1, 0); cm(1, 1, 1)
for hi in range(2):
    for i in range(4): a(f'v_cvt_pk_f16_f32 v{K_+4*hi+i}, v{Dm+8*hi+i}, v{Dm+8*hi+4+i}')
    for i in range(4): a(f'v_or_b32 v{K_+4*hi+i}, 1, v{K_+4*hi+i}')
    a(f'ds_write_b128 v{vRtW}, {vr(K_+4*hi)} offset:{2560*hi}')
a(f"""
s_waitcnt lgkmcnt(0)
s_barrier
ds_read_b128 {vr(T)}, v{vRtR}
ds_read_b128 {vr(T+4)}, v{vRtR2}
s_waitcnt lgkmcnt(1)
buffer_store_dwordx4 {vr(T)}, v{vH2st}, {SWS}, {sH2st} offen sc1
s_waitcnt lgkmcnt(0)
buffer_store_dwordx4 {vr(T+4)}, v{vH2st2}, {SWS}, {sH2st} offen sc1
""")
stamp('h2st', True)
CLNX = f's_mov_b32 {sCl}, {OOB}' if opt('h3', 1) else f's_add_u32 {sCl}, {sCl}, {BUF}'
a(f"""
s_mov_b32 {sSpin}, {SPIN}
s_add_u32 {sLayer}, {sLayer}, 1
s_add_u32 {sH2st}, {sH2st}, {BUF}
s_xor_b32 {sH1ld0}, {sH1ld0}, {H1STR}
s_xor_b32 {sH1ld1}, {sH1ld1}, {H1STR}
s_cmp_ge_u32 {sLayer}, 2
s_cselect_b32 {sTag}, 0, 1
s_cselect_b32 {sFlip}, -1, 0
s_cmp_eq_u32 {sLayer}, 1
s_cbranch_scc1 L_l0d
L_l0d_ret:
s_waitcnt vmcnt(0)
""")
stamp('h2ack', True)
a('L_poll2:')
Lh = T+8; K2 = T+28
for u in range(4): a(f'buffer_load_dwordx4 {vr(Lh+4*u)}, v{vH2ld}, {SWS}, {sH2ld} offen offset:{1280*u} sc1')
for u in range(4): a(f'buffer_load_dword v{Lh+16+u}, v{vH2ld5}, {SWS}, {sH2ld} offen offset:{1280*u} sc1')
a(f's_sub_u32 {sSpin}, {sSpin}, 1\ns_cbranch_scc1 L_poll2_to\ns_waitcnt vmcnt(0)')
for i in range(6): a(f'v_bitop3_b32 v{K2+i}, v{Lh+3*i}, v{Lh+3*i+1}, v{Lh+3*i+2} bitop3:0x80')
a(f"""
v_bitop3_b32 v{K2}, v{K2}, v{K2+1}, v{K2+2} bitop3:0x80
v_bitop3_b32 v{K2+3}, v{K2+3}, v{K2+4}, v{K2+5} bitop3:0x80
v_bitop3_b32 v{K2+1}, v{Lh+18}, v{Lh+19}, 1 bitop3:0x80
v_bitop3_b32 v{K2}, v{K2}, v{K2+3}, v{K2+1} bitop3:0x80
v_cmp_eq_u32 vcc, 0, v{K2}
v_swap_b32 v{Lh+1}, v{Lh+4}
s_cbranch_vccnz L_poll2
L_poll2_done:
""")
stamp('h2ok', True)
mfma(X+16, A3r, Lh+16, X+16)
for kl in range(2, 4): a(f'v_swap_b32 v{Lh+kl}, v{Lh+4*kl}')
for u in range(4): a(f'v_and_b32 v{Lh+u}, v{vMask0}, v{Lh+u}')
a(f'v_swap_b32 v{Lh+6}, v{Lh+9}\nv_swap_b32 v{Lh+7}, v{Lh+13}')
mfma(X, A3r, Lh, X)
a(f'v_swap_b32 v{Lh+11}, v{Lh+14}')
mfma(X+4, A3r, Lh+4, X+4)
a(f's_cmp_lt_u32 {sLayer}, {NLAYER}')
mfma(X+8, A3r, Lh+8, X+8); mfma(X+12, A3r, Lh+12, X+12)
a('s_nop 0\ns_cbranch_scc1 L_loop')
F = T
for kl in range(5):
    for p in range(2): a(f'v_cvt_pk_bf16_f32 v{F+2*kl+p}, v{X+4*kl+2*p}, v{X+4*kl+2*p+1}')
    for p in range(2):
        a(f'ds_write_b16 v{vXT+kl}, v{F+2*kl+p} offset:{2560*p}')
        a(f'ds_write_b16_d16_hi v{vXT+kl}, v{F+2*kl+p} offset:{2560*p+1280}')
a('s_waitcnt lgkmcnt(0)\ns_barrier')
for i in range(3): a(f'ds_read_b128 {vr(T+12+4*i)}, v{vRtR} offset:{L_XT-L_RT+4096*i}')
for i in range(3): a(f's_waitcnt lgkmcnt({2-i})\nbuffer_store_dwordx4 {vr(T+12+4*i)}, v{vG+i}, {SO}, 0 offen')
def stamp_dump(hk):
    if hk: a(f's_memtime s[{60+2*nst.index("end")}:{61+2*nst.index("end")}]\ns_memrealtime s[{60+2*nst.index("rend")}:{61+2*nst.index("rend")}]\ns_waitcnt lgkmcnt(0)')
    a(f's_lshl_b32 s7, s2, 7\ns_add_u32 s7, s7, {STAMP_OFF}\nv_mov_b32 v1, 0\ns_mov_b64 exec, 1')
    for i in range(len(nst)): a(f'v_mov_b32 v2, s{60+2*i}\nbuffer_store_dword v2, v1, {SWS}, s7 offen offset:{4*i}')
if STAMPS:
    a('s_waitcnt vmcnt(0)'); stamp('end'); stamp('rend', real=True)
    a(f's_waitcnt lgkmcnt(0)\ns_cmp_lg_u32 {sW}, {opt("swave")}\ns_cbranch_scc1 L_end')
    stamp_dump(False)
a('L_end:\ns_endpgm')
a('L_fix:\ns_nop 7')
mfma(T+40, DEL, Bo, None); mfma(T+44, DEL+4, Bo, None)
a('s_mov_b32 exec_lo, 0x00010001\ns_mov_b32 exec_hi, 0x00010001')
for p in range(2): a(f'v_pk_add_f32 {v2(D0+2*p)}, {v2(D0+2*p)}, {v2(T+40+2*p)}')
for p in range(2): a(f'v_pk_add_f32 {v2(DC+2*p)}, {v2(DC+2*p)}, {v2(T+44+2*p)}')
a(f's_mov_b64 exec, -1\nv_cvt_pk_f16_f32 v{W_}, v{D0}, v{D0+1}\ns_branch L_nofix')
a(f"""
L_l0b:
v_mov_b32 v{T+56}, {L_MODE}
ds_read_b32 v{T+57}, v{T+56} offset:{L_OWN-L_MODE}
ds_read_b32 v{T+58}, v{T+59} offset:{L_EXP}
ds_read_b32 v{T+56}, v{T+56}
s_waitcnt lgkmcnt(0)
v_readfirstlane_b32 {sMode}, v{T+56}
s_branch L_l0b_ret
L_l0c:
s_cmp_lg_u32 {sMode}, 0
s_mov_b64 exec, 1
s_waitcnt vmcnt(0)
s_cbranch_scc1 L_l0c_slow
buffer_store_dword v{T+57}, off, {SWS}, s55
L_l0c_p:
s_mov_b64 exec, -1
L_l0c_poll:
buffer_load_dword v{T+56}, v{T+59}, {SWS}, s56 offen sc1
s_sub_u32 {sSpin}, {sSpin}, 1
s_cbranch_scc1 L_l0c_ret
s_waitcnt vmcnt(0)
v_cmp_ne_u32 vcc, v{T+56}, v{T+58}
s_cbranch_vccnz L_l0c_poll
s_branch L_poll1
L_l0c_slow:
buffer_store_dword v{T+57}, off, {SWS}, s55 sc1
s_branch L_l0c_p
L_l0d:
v_mov_b32 v{T+50}, {L_GO}
L_l0d_spin:
ds_read_b32 v{T+51}, v{T+50}
s_waitcnt lgkmcnt(0)
v_cmp_eq_u32 vcc, 0, v{T+51}
s_cbranch_vccnz L_l0d_spin
s_branch L_l0d_ret
L_st_slow:
buffer_store_dwordx4 {vr(Wo)}, v{vL16}, {SWS}, {sH1st} offen sc1
buffer_store_dwordx2 {v2(Wo+4)}, v{vH1s2}, {SWS}, {sH1st} offen sc1
s_branch L_cphase
L_poll1_to:
s_waitcnt vmcnt(0)
s_branch L_poll1_done
L_poll2_to:
s_waitcnt vmcnt(0)
s_branch L_poll2_done
""")
H = 8
def fhash(dst, src): a(f'v_mul_lo_u32 v{dst}, v{src}, s50\nv_add_u32 v{dst}, s51, v{dst}')
def hs_group(lbl, x3, pre=False):
    a(f"""
s_mov_b32 exec_hi, 0
s_mov_b32 {sSpin}, {SPIN}
{'s_branch ' + lbl + '_chk' if pre else ''}
{lbl}:
buffer_load_dwordx3 v[{H}:{H+2}], v{vL16}, {SWS}, s54 offen sc1
s_sub_u32 {sSpin}, {sSpin}, 1
s_cbranch_scc1 {lbl}_to
s_waitcnt vmcnt(0)
{lbl}_chk:
""")
    fhash(H, H)
    a(f"""
v_xor_b32 v{H}, v{H}, v{H+(2 if x3 else 1)}
v_cmp_lt_u32 vcc, 15, v{H}
s_cbranch_vccnz {lbl}
s_branch {lbl}_done
{lbl}_to:
s_waitcnt vmcnt(0)
{lbl}_done:
v_lshrrev_b32 v{H+3}, 2, v{vL16}
ds_write_b32 v{H+3}, v{H+1} offset:{L_EXP}
v_and_b32 v{H+3}, 15, v{H+1}
v_cmp_ne_u32 vcc, s6, v{H+3}
s_mov_b64 exec, -1
""")
def hs_all(lbl, pre=False):
    a(f's_mov_b32 {sSpin}, {SPIN}')
    if pre: a(f's_branch {lbl}_w')
    a(f'{lbl}:')
    for i, r in enumerate(('s92', 's93', 's95', 's96')): a(f'buffer_load_dwordx2 {v2(H+8+2*i)}, v{vL16}, {SWS}, {r} offen sc1')
    a(f's_sub_u32 {sSpin}, {sSpin}, 1\ns_cbranch_scc1 {lbl}_done\n{lbl}_w:\ns_waitcnt vmcnt(0)')
    for i in range(4): fhash(H+8+2*i, H+8+2*i)
    for i in range(4): a(f'v_xor_b32 v{H+8+2*i}, v{H+8+2*i}, v{H+9+2*i}')
    a(f"""
v_or3_b32 v{H}, v{H+8}, v{H+10}, v{H+12}
v_or_b32 v{H}, v{H}, v{H+14}
v_cmp_lt_u32 vcc, 15, v{H}
s_cbranch_vccnz {lbl}
{lbl}_done:
s_waitcnt vmcnt(0)
""")
def flag_store(v, soff, off):
    a(f's_mov_b64 exec, 1\ns_waitcnt vmcnt(0)\nbuffer_store_dword v{v}, off, {SWS}, {soff} offset:{off} sc1\ns_mov_b64 exec, -1')
def hstamp(n):
    if opt('hstamp'): a(f's_memtime s[{60+2*nst.index(n)}:{61+2*nst.index(n)}]')
a('L_hk:')
if opt('prio', 1): a('s_setprio 3')
for i in range(4): a(f'v_mov_b32 v{vZ+i}, 0')
a(f"""
s_lshl_b32 {sGi}, {sSig}, 5
s_add_u32 {sGi}, {sGi}, {sM}
s_lshl_b32 s97, {sGi}, 4
s_add_u32 s97, s97, {FLAGS}
s_mul_i32 s94, {sGi}, 5120
s_add_u32 {sCl}, s94, {H2BASE+BUF}
s_add_u32 s94, s94, {H1BASE}
v_lshlrev_b32 v{H+18}, 8, v{vL16}
s_mov_b64 exec, 3
s_waitcnt lgkmcnt(0)
buffer_load_dword v{H+16}, v{H+18}, {SWS}, s97 offen
s_mov_b64 exec, -1
v_lshlrev_b32 v{H+4}, 3, v{vL16}
v_min_u32 v{H+21}, 4992, v{H+4}
s_lshl_b32 s7, {sSig}, 9
s_add_u32 s7, s7, {HF}
{'' if opt('nopf') else f'buffer_load_dword v{H+27}, v{H+21}, {SWS}, s94 offen'}
v_min_u32 v{H+21}, 384, v{H+4}
buffer_load_dword v{H+28}, v{H+21}, {SWS}, s7 offen
""")
a('L_hk2:')
a(f"""
s_add_u32 s98, s94, {H1STR}
s_getreg_b32 s6, hwreg(HW_REG_XCC_ID, 0, 4)
s_mov_b32 s92, {FLAGS+0x1000}
s_mov_b32 s93, {FLAGS+0x1400}
s_mov_b32 s95, {FLAGS+0x1800}
s_mov_b32 s96, {FLAGS+0x1c00}
s_mov_b32 s50, 0x9e3779b1
s_mov_b32 s51, 0x7f4a7c15
v_mov_b32 v{H+1}, {L_MODE}
ds_write_b32 v{H+1}, v{vZ} offset:4
s_lshr_b32 s52, {sM}, 3
s_lshl_b32 s52, s52, 8
s_add_u32 s52, s52, {sSig}
s_mul_i32 s52, s52, 1280
s_and_b32 s53, {sM}, 7
s_mul_i32 s53, s53, 160
s_add_u32 s52, s52, s53
s_add_u32 s52, s52, {H2BASE}
s_movk_i32 s53, 10080
s_lshl_b32 s54, {sSig}, 9
s_add_u32 s54, s54, {FLAGS}
""")
for i in range(5):
    a(f"""v_add_u32 v{H+22+i}, {1024*i}, v{vL16}
v_mul_u32_u24 v{H+21}, 205, v{H+22+i}
v_lshrrev_b32 v{H+21}, 15, v{H+21}
v_mad_u32_u24 v{H+22+i}, v{H+21}, s53, v{H+22+i}""")
hstamp('top')
a(f's_waitcnt vmcnt({1 if opt("nopf") else 2}) lgkmcnt(0)')
fhash(H+5, H+16)
a(f'v_and_or_b32 v{H+5}, v{H+5}, -16, s6')
def flag_lane(lane, off):
    a(f's_mov_b64 exec, {1 << lane}\ns_waitcnt vmcnt(0)\nbuffer_store_dword v{H+5}, v{H+18}, {SWS}, s97 offen offset:{off} sc1\ns_mov_b64 exec, -1')
def hs_issue():
    for i, r in enumerate(('s92', 's93', 's95', 's96')): a(f'buffer_load_dwordx2 {v2(H+8+2*i)}, v{vL16}, {SWS}, {r} offen sc1')
hstamp('bar1')
a(f's_mov_b64 exec, 1\nbuffer_store_dword v{H+5}, v{H+18}, {SWS}, s97 offen offset:4 sc1\nv_mov_b32 v{H+1}, {L_OWN}\nds_write_b32 v{H+1}, v{H+5}\ns_mov_b64 exec, -1')
hstamp('s1w')
a(f'v_lshlrev_b32 v{H+19}, 17, v{vL16}\ns_lshl_b32 s7, s2, 7\ns_mov_b64 exec, 3\nbuffer_load_dword v{H+20}, v{H+19}, {SO}, s7 offen\ns_mov_b64 exec, -1')
NE = opt('early', 5)
def cl(k):
    if k == 0:
        for i in range(5): a(f'buffer_store_dwordx4 {vr(vZ)}, v{H+22+i}, {SWS}, s52 offen sc1')
    elif k == 1: clean5('s98', '')
    else: clean5(sCl); a(f's_add_u32 {sCl}, {sCl}, {BUF}')
for k in range(NE): cl(k)
a(f"""
s_barrier
s_barrier
s_mov_b32 exec_hi, 0
buffer_load_dwordx3 v[{H}:{H+2}], v{vL16}, {SWS}, s54 offen sc1
s_mov_b64 exec, -1
""")
for k in range(NE, 5): cl(k)
a(f's_barrier\ns_mov_b32 exec_hi, 0\ns_waitcnt vmcnt({5*(5-NE)})')
hstamp('bar2')
hs_group('L_hs', False, True)
a(f's_cmp_lg_u32 vcc_lo, 0\ns_cselect_b32 {sMode}, 1, {FORCE_SLOW}')
hstamp('h1st')
a(f"""
v_mov_b32 v{H}, {sMode}
v_mov_b32 v{H+1}, {L_MODE}
ds_write_b32 v{H+1}, v{H}
s_cmp_eq_u32 {sMode}, 0
s_cbranch_scc1 L_hk_go
""")
clean5('s98')
a('L_hk_go:\ns_waitcnt lgkmcnt(0)\ns_barrier')
flag_lane(1, 4)
a('s_barrier')
hs_all('L_hs2')
a(f'v_mov_b32 v{H}, 1\nv_mov_b32 v{H+1}, {L_GO}\nds_write_b32 v{H+1}, v{H}')
hstamp('h1ok')
a('s_barrier')
a(f"""
v_add_u32 v{H+16}, 1, v{H+16}
s_mov_b64 exec, 3
s_barrier
s_waitcnt vmcnt(0)
s_barrier
s_barrier
buffer_store_dword v{H+16}, v{H+18}, {SWS}, s97 offen sc1
""")
if opt('hstamp'): stamp_dump(True)
a('s_endpgm\nL_codeend:')

if opt('hfront', 1):
    li = [k for k, i in enumerate(a.ins) if i.text in ('L_hk:', 'L_hk2:')]
    hk = a.ins[li[0]:li[1]]
    rest = a.ins[:li[0]] + a.ins[li[1]:]
    b = [k for k, i in enumerate(rest) if i.text == 's_cbranch_scc1 L_hk'][0]
    a.ins = rest[:b] + [Ins('s_cbranch_scc0 L_main')] + hk + [Ins('s_branch L_hk2'), Ins('L_main:')] + rest[b+1:]
if opt('nodma'): a.ins = [i for i in a.ins if not i.op.startswith('global_load_lds')]
if opt('align', 1): print('align', align_pass(a, KNAME + ':\n'))
hdr = open('interleave_layers__spectral_fnet__spectral_fnet__prompt.s.ref').read().split('; Override')[0]
out = hdr + ('; STAMPS ' + ' '.join(nst) + '\n' if STAMPS else '') + f'; @launch grid=(256,1,1) block=(320,1,1) lds={LDS_BYTES}\n'
out += f'.amdgcn_target "amdgcn-amd-amdhsa--gfx950"\n.text\n.globl {KNAME}\n.p2align 8\n.type {KNAME},@function\n{KNAME}:\n'
out += a.text()
out += f'''.section .rodata,"a"
.p2align 6
.amdhsa_kernel {KNAME}
  .amdhsa_next_free_vgpr 256
  .amdhsa_next_free_sgpr 102
  .amdhsa_accum_offset 256
  .amdhsa_group_segment_fixed_size 0
  .amdhsa_kernarg_size 104
  .amdhsa_user_sgpr_count 2
  .amdhsa_user_sgpr_kernarg_segment_ptr 1
  .amdhsa_system_sgpr_workgroup_id_x 1
.end_amdhsa_kernel
.p2align 10
tbl:
'''
for f in blocks:
    for i in range(0, 256, 8): out += '.long ' + ','.join(f'{int(x):#x}' for x in f[i:i+8]) + '\n'
open(sys.argv[1], 'w').write(out)
print('instrs', len(a.ins), 'nops inserted', a.nops, 'table blocks', len(blocks), 'bytes', len(out))
```

```python
import re
REG = re.compile(r'^(-|\|)?([vsa])(\d+)$')
RNG = re.compile(r'^(-)?([vsa])\[(\d+):(\d+)\]$')
TRANS = ('v_exp_f32','v_log_f32','v_rcp_f32','v_rsq_f32','v_sqrt_f32','v_sin_f32','v_cos_f32')
def regs_of(tok):
    tok = tok.strip()
    m = REG.match(tok)
    if m: return {(m.group(2), int(m.group(3)))}
    m = RNG.match(tok)
    if m: return {(m.group(2), i) for i in range(int(m.group(3)), int(m.group(4))+1)}
    if tok == 'vcc': return {('s', 106), ('s', 107)}
    if tok == 'vcc_lo': return {('s', 106)}
    if tok == 'vcc_hi': return {('s', 107)}
    if tok == 'exec': return {('s', 126), ('s', 127)}
    if tok == 'exec_lo': return {('s', 126)}
    if tok == 'exec_hi': return {('s', 127)}
    if tok == 'm0': return {('s', 124)}
    return set()
class Ins:
    def __init__(self, text):
        self.text = text
        t = text.split(';')[0].strip()
        self.label = t.endswith(':')
        self.op = t.split()[0] if t and not self.label else ''
        rest = t[len(self.op):].strip()
        toks = [x.strip() for x in re.split(r',(?![^\[]*\])', rest)] if rest else []
        if toks:
            last = toks[-1].split()
            toks[-1] = last[0] if last else ''
            self.mods = ' '.join(last[1:])
        else: self.mods = ''
        self.toks = toks
        op = self.op
        self.w = set(); self.r = set(); self.srcc = set(); self.ab = set()
        self.mfma = op.startswith('v_mfma')
        self.valu = op.startswith('v_') and not self.mfma
        self.trans = op.replace('_e32','').replace('_e64','') in TRANS
        self.perm = op.startswith('v_permlane')
        self.dpp = op.endswith('_dpp') or 'row_' in self.mods or 'quad_perm' in self.mods
        self.rdlane = op.startswith('v_readlane') or op.startswith('v_readfirstlane')
        self.vmem = op.startswith('buffer_') or op.startswith('global_')
        self.ds = op.startswith('ds_')
        self.salu = op.startswith('s_')
        self.widestore = self.vmem and 'store' in op and ('x3' in op or 'x4' in op)
        R = [regs_of(x) for x in toks]
        if self.mfma:
            self.w = R[0]; self.ab = R[1] | R[2]; self.srcc = R[3]; self.r = self.ab | self.srcc
        elif self.valu:
            if op.startswith('v_swap') or self.perm:
                self.w = R[0] | R[1]; self.r = R[0] | R[1]
            else:
                self.w = set(R[0]);
                for x in R[1:]: self.r |= x
                if op.startswith('v_fmac') or op.startswith('v_writelane') or op.startswith('v_pk_fmac'): self.r |= R[0]
                if op.startswith('v_cndmask') and len(toks) == 3: self.r |= regs_of('vcc')
        elif self.ds:
            if 'read' in op:
                self.w = R[0]; self.r = R[1] | (R[0] if 'd16' in op else set())
            else:
                for x in R: self.r |= x
        elif self.vmem:
            if '_lds_' in op or self.mods.endswith('lds') or ' lds' in (' '+self.mods):
                for x in R: self.r |= x
                self.r |= regs_of('m0')
            elif 'load' in op:
                self.w = R[0]
                for x in R[1:]: self.r |= x
            else:
                for x in R: self.r |= x
            self.sdata = (R[0] if R else set()) if op.startswith('buffer_') else (R[1] if len(R) > 1 else set())
        elif self.salu:
            if op in ('s_nop','s_waitcnt','s_barrier','s_endpgm','s_sleep','s_setprio') or op.startswith('s_cbranch') or op == 's_branch':
                pass
            elif op.startswith('s_cmp') or op.startswith('s_bitcmp'):
                for x in R: self.r |= x
            else:
                self.w = set(R[0])
                for x in R[1:]: self.r |= x
    def states(self):
        if self.label or not self.op: return 0
        if self.op == 's_nop': return int(self.toks[0], 0) + 1
        return 1
def vg(s): return {x for x in s if x[0] in 'va'}
def sg(s): return {x for x in s if x[0] == 's'}
def need(p, c):
    n = 0
    cv_r, cv_w = vg(c.r), vg(c.w)
    if p.valu:
        pw = vg(p.w); ps = sg(p.w)
        if c.mfma and pw & cv_r: n = max(n, 2)
        if c.perm and pw & cv_r: n = max(n, 2)
        if c.dpp and pw & cv_r: n = max(n, 2)
        if c.rdlane and pw & cv_r: n = max(n, 1)
        if p.trans and c.valu and not c.trans and pw & cv_r: n = max(n, 1)
        if p.trans and c.mfma and pw & cv_r: n = max(n, 2)
        if ps:
            if c.vmem and ps & sg(c.r): n = max(n, 5)
            if c.valu and ps & sg(c.r): n = max(n, 4 if (c.op.startswith('v_writelane') or c.op.startswith('v_readlane')) else 2)
            if c.salu and ps & sg(c.r): n = max(n, 1)
            if c.op.startswith('s_cbranch_vcc') and ps & regs_of('vcc'): n = max(n, 1)
    if p.mfma:
        if c.mfma:
            if p.w & c.ab: n = max(n, 8)
            if p.w & c.srcc and p.w != c.srcc: n = max(n, 6)
            if p.w & c.w and not (p.w == c.srcc and c.w == p.w): n = max(n, 6)
        else:
            if (c.valu or c.vmem or c.ds) and (p.w & (cv_r | cv_w)): n = max(n, 8)
            if c.valu and (p.srcc & cv_w): n = max(n, 3)
    if p.salu and c.vmem and ('_lds_' in c.op or ' lds' in (' '+c.mods)) and (p.w & regs_of('m0')): n = max(n, 1)
    if p.widestore and (c.valu or c.mfma) and (p.sdata & cv_w): n = max(n, 2)
    if p.widestore and (c.vmem or c.ds) and (p.sdata & cv_w): n = max(n, 1)
    if p.ds and 'write' in p.op and ('b128' in p.op or 'b96' in p.op) and c.valu and (vg(p.r) & cv_w): n = max(n, 0)
    return n
class Asm:
    def __init__(self):
        self.ins = []
        self.nops = 0
    def __call__(self, text):
        for line in text.split('\n'):
            line = line.strip()
            if not line or line.startswith(';'): continue
            c = Ins(line)
            if not c.label and c.op:
                req = 0; dist = 0
                for p in reversed(self.ins):
                    if dist >= 12: break
                    if p.op and not p.label:
                        k = need(p, c)
                        if k - dist > req: req = k - dist
                    dist += p.states()
                if req > 0:
                    self.ins.append(Ins(f's_nop {req-1}')); self.nops += 1
            self.ins.append(c)
    def text(self):
        return '\n'.join(('' if i.label else '  ') + i.text for i in self.ins) + '\n'

import subprocess, tempfile, os
def sizes_of(asm_obj, extra=''):
    src = '.amdgcn_target "amdgcn-amd-amdhsa--gfx950"\n.text\n' + extra + asm_obj.text() + '.section .rodata\ntbl:\n.long 0\n'
    with tempfile.TemporaryDirectory() as d:
        open(d+'/a.s', 'w').write(src)
        r = subprocess.run(['clang', '-x', 'assembler', '-target', 'amdgcn-amd-amdhsa', '-mcpu=gfx950', '-c', d+'/a.s', '-o', d+'/a.o'], capture_output=True, text=True)
        assert r.returncode == 0, r.stderr
        o = subprocess.run(['llvm-objdump', '-d', '--mcpu=gfx950', d+'/a.o'], capture_output=True, text=True).stdout
    sz = []
    for line in o.split('\n'):
        m = re.search(r'// [0-9A-F]{12}: ((?:[0-9A-F]{8} ?)+)', line)
        if m: sz.append(4*len(m.group(1).split()))
    real = [i for i in asm_obj.ins if not i.label]
    assert len(sz) == len(real), (len(sz), len(real))
    return sz
PROMOTABLE = ('v_mul_f32', 'v_max_f32', 'v_add_f32', 'v_or_b32', 'v_and_b32', 'v_xor_b32', 'v_mov_b32', 'v_rsq_f32', 'v_add_u32', 'v_sub_u32',
              'v_lshlrev_b32', 'v_lshrrev_b32', 'v_cmp_eq_u32', 'v_cmp_lt_u32', 'v_cmp_ne_u32', 'v_cvt_f32_u32', 'v_sin_f32', 'v_cos_f32', 'v_min_u32', 'v_mul_u32_u24',
              'v_permlane32_swap_b32', 'v_cndmask_b32', 'v_cmp_le_u32', 'v_cmp_gt_u32')
def align_pass(asm_obj, extra='', minrun=3):
    sz = sizes_of(asm_obj, extra)
    items = []; k = 0
    for i in asm_obj.ins:
        if i.label: items.append([i, 0])
        else: items.append([i, sz[k]]); k += 1
    out = []; addr = 0; promoted = padded = 0
    for idx, (ins, s) in enumerate(items):
        if s == 8 and addr % 8 == 4:
            run = 0
            for j in range(idx, len(items)):
                if items[j][1] == 8: run += 1
                elif items[j][1] == 4: break
            cand = None
            for j in range(len(out)-1, -1, -1):
                p, ps = out[j]
                if ps == 0: continue
                if ps == 8: break
                if p.op in PROMOTABLE: cand = j; break
            if cand is not None:
                p = out[cand][0]
                out[cand] = [Ins(p.text.replace(p.op, p.op + '_e64', 1)), 8]; addr += 4; promoted += 1
            elif run >= minrun:
                pos = len(out); done = False; best = None
                for j in range(len(out)-1, -1, -1):
                    p, ps = out[j]
                    if ps == 8: break
                    if p.op in ('s_branch', 's_endpgm'): best = j+1; break
                    if p.op in ('s_waitcnt', 's_barrier'): best = j
                    elif ps == 0 and best is None: pos = j
                    elif p.op == 's_nop' and int(p.toks[0]) >= 1 and best is None and pos == len(out):
                        out[j] = [Ins(f's_nop {int(p.toks[0])-1}'), 4]; pos = j; break
                if best is not None: pos = best
                out.insert(pos, [Ins('s_nop 0'), 4]); addr += 4; padded += 1
        out.append([ins, s]); addr += s
    asm_obj.ins = [x[0] for x in out]
    return promoted, padded
```

```python
import sys, struct
import numpy as np
from design import *
from asmlib import Asm, align_pass, Ins

KNAME = "interleave_layers__spectral_fnet__spectral_fnet__prompt_kernel"
opts = dict(a.split('=') for a in sys.argv[2:] if '=' in a)
def opt(k, d=0): return int(opts.get(k, d))
STAMPS = opt('stamps'); FORCE_SLOW = opt('slow'); NLAYER = opt('layers', 4); SPIN = opt('spin', 200000); SLAYER = opt('slayer')
SST = opt('sstart')
def f2u(f): return struct.unpack('<I', struct.pack('<f', f))[0]
BUF = 0x200000 if opt('wst', 0) else 1310720
FLAGS = 4096; H1BASE = 0x40000; H1STR = 0x200000; H2BASE = 0x410000; WS_BYTES = H2BASE + 3*BUF + 1310720
STAMP_OFF = WS_BYTES
if STAMPS or opts.get('rp'): WS_BYTES += 256*128
L_V = 0; L_ST = 9600; L_MODE = 9856; L_GO = 9860; L_OWN = 9864; L_JUNK = 9872; L_EXP = 15104; HF = FLAGS + 0x2000; L_RT = 9984; L_XT = 15360; L_TB = 25600; L_CM = L_TB + 16*1024; LDS_BYTES = L_CM + 8192
OOB = 0x40000000
WSADD = f's_add_u32 s16, s16, {opt("wsoff") << 20}\ns_addc_u32 s17, s17, 0' if opt('wsoff') else ''
def vaddr(col): return (col % 40)*80 + (col//40)*4
def opA(M):
    h = M.astype(np.float16).view(np.uint16).astype(np.uint32)
    out = np.zeros((64, 4), np.uint32)
    for l in range(64):
        r = h[l % 16, 8*(l//16):8*(l//16)+8]
        out[l] = r[0::2] | (r[1::2] << 16)
    return out
def opB(N): return opA(N.T)
blocks = []
def add(b): blocks.append(np.asarray(b, np.uint32).reshape(256)); return len(blocks)-1
n_ = S1_mats(False); s_ = S1_mats(True)
def a3_idx(sig, m):
    g = unit_g(sig, m)
    if g == 0: return 9
    if g == 128: return 8
    return (g >> 7) + (0 if g % 4 == 1 else 4)
a3 = {}
for sig in range(8):
    for m in range(32):
        M = A3(sig, m)*HSCALE; i = a3_idx(sig, m)
        if i in a3: assert np.allclose(a3[i], M), (sig, m)
        a3[i] = M
for M in (n_[0], n_[1], n_[2], E_mat(False)): add(opA(M))
T_A3L = add(opA(a3[0]))
Bre, Bim = B1_mats(); T_B1 = add(opB(Bre)); add(opB(Bim))
T_A2 = len(blocks)
M = A2_mats6(0)/HSCALE; M2 = A2_mats6(20)/HSCALE
sgn = np.array([(-1.0)**((k % 8)//2) for k in range(32)])
assert np.allclose(M2, M*sgn)
for blk in range(3):
    for ch in range(3): add(opA(M[blk, ch]))
assert len(blocks) == 16
T_S1S = len(blocks)
for M in (s_[0], s_[1], s_[2], E_mat(True)): add(opA(M))
T_DEL = add(opA(s_[3])); add(opA(s_[4]))
T_A3 = len(blocks)
for i in range(10): add(opA(a3[i]))
T_ADDR = len(blocks)
at = np.zeros((2, 256, 4), np.uint32)
for ty, (sig, m) in enumerate(((2, 1), (1, 0))):
    for tid in range(256):
        w, l = divmod(tid, 64); n, mq = l % 16, l//16
        v = [vaddr(acol(sig, m, mq//2, 64*w+4*n+2*bop+(mq % 2))) for bop in range(2)]
        v += [6400 + vaddr(acol(sig, m, mq % 2, 64*w+4*n+2*(mq//2)+sub)) for sub in range(2)]
        k5 = 256 + 16*w + n
        if mq < 2: v += [vaddr(acol(sig, m, mq, k5)), 3200 + vaddr(acol(sig, m, mq, k5))]
        elif mq == 2: v += [6400 + vaddr(acol(sig, m, 0, k5)), 6400 + vaddr(acol(sig, m, 1, k5))]
        else: v += [L_JUNK + 4*n, L_JUNK + 4*n]
        at[ty, tid, :3] = [v[0] | (v[1] << 16), v[2] | (v[3] << 16), v[4] | (v[5] << 16)]
for i in range(8): add(at.reshape(-1)[256*i:256*i+256])
for i in range(640): assert (i*205) >> 14 == i//80
for i in range(320): assert (i*205) >> 11 == i//10

vL16, vH1s2, vH2ld, vH2ld5, vC1ld, vRtW, vRtR, vRtR2, vH2st, vH2st2, vStR, vStW = range(1, 13)
vVrd, vVrd2, vEps = 13, 14, 15
vV = 16
vXT = 22
vMask0 = 27; vG = 28
vTB = 31
vZc = 248
X = 32
A3r = 52; S1r = 56; B1r = 72; TWc = 80; TWs = 92; A2r = 104; CM = 140; DEL = 172
Bo = 180
T = 192
vZ = 4
def vr(b, n=4): return f'v[{b}:{b+n-1}]'
def v2(b): return f'v[{b}:{b+1}]'
sW, sSig, sM, sG, sType, sLayer, sMode = 's3', 's4', 's5', 's26', 's27', 's29', 's30'
sH1st, sH1ld0, sH1ld1, sH2st, sH2ld, sTag, sFlip, sSpin = 's31', 's32', 's33', 's34', 's35', 's36', 's37', 's38'
sCl, sGi, sInv, sFix = 's44', 's46', 's40', 's41'
sSlot = 's[42:43]'
SX, SO, SWS, STB = 's[8:11]', 's[12:15]', 's[16:19]', 's[24:25]'
HW = 4
a = Asm()
nst = []
RP = opts.get('rp'); RPL = opt('rpl')
def stamp(name, inloop=False, real=False):
    if RP:
        if name == 'start': a('s_memrealtime s[60:61]')
        if name == RP:
            if inloop: a('s_memrealtime s[90:91]\ns_waitcnt lgkmcnt(0)\ns_movreld_b32 s80, s90')
            else: a('s_memrealtime s[62:63]')
        return
    if SST and inloop and name not in ('top', 'bar1'): return
    if STAMPS:
        i = len(nst); nst.append(name)
        assert i < 16
        ins = f's_{"memrealtime" if real else "memtime"} s[{60+2*i}:{61+2*i}]'
        a(ins)
LATE = ('h2ack', 'h2ok')
def sst(name):
    if SST or RP: stamp(name)
def clean5(soff, fl=' sc1'):
    for i in range(4): a(f'buffer_store_dwordx4 {vr(vZ)}, v{vL16}, {SWS}, {soff} offen offset:{1024*i}{fl}')
    a(f's_add_u32 s7, {soff}, 4096\nbuffer_store_dwordx4 {vr(vZ)}, v{vL16}, {SWS}, s7 offen{fl}')
def mfma(d, A, B, C): a(f'v_mfma_f32_16x16x32_f16 {vr(d)}, {vr(A)}, {vr(B)}, {"0" if C is None else vr(C)}')

stamp('start'); stamp('rstart', real=True)
n_v, kq_v = T+10, T+11
a(f"""
s_load_dwordx2 s[16:17], s[0:1], 96
s_load_dwordx2 s[8:9], s[0:1], 0
s_load_dwordx2 s[12:13], s[0:1], 80
v_lshrrev_b32 v{T+1}, 6, v0
s_cmp_ge_u32 s2, 256
s_cbranch_scc1 L_end
""")
if opt('cpref', 1):
    a(f"""
s_getpc_b64 s[24:25]
v_lshlrev_b32 v{T+2}, 7, v0
v_min_u32 v{T+2}, L_codeend-{KNAME}-64, v{T+2}
global_load_dword v255, v{T+2}, s[24:25]
""")
a(f"""
v_readfirstlane_b32 {sW}, v{T+1}
v_and_b32 v{T}, 63, v0
s_and_b32 {sSig}, s2, 7
s_lshr_b32 {sM}, s2, 3
v_lshlrev_b32 v{vL16}, 4, v{T}
s_mov_b32 s18, {WS_BYTES}
s_mov_b32 s19, 0x20000
s_mov_b32 s14, 2621440
s_mov_b32 s15, 0x20000
s_cmp_eq_u32 {sW}, {HW}
s_cbranch_scc1 L_hk
s_lshl_b32 s6, {sSig}, 2
s_lshr_b32 s6, 0x9654d210, s6
s_and_b32 s6, s6, 15
s_lshl_b32 {sG}, {sM}, 4
s_add_u32 {sG}, {sG}, s6
s_cmp_eq_u32 {sSig}, 0
s_cselect_b32 s7, 248, 0
s_cmp_ge_u32 {sM}, 16
s_cselect_b32 s7, s7, 0
s_sub_u32 {sG}, {sG}, s7
s_and_b32 {sType}, {sG}, 1
""")
a(f"""
s_getpc_b64 s[24:25]
s_add_u32 s24, s24, tbl@rel32@lo+4
s_addc_u32 s25, s25, tbl@rel32@hi+12
s_lshr_b32 s7, {sG}, 7
s_lshl_b32 s94, {sType}, 2
s_sub_u32 s7, s7, s94
s_add_u32 s7, s7, {4 + T_A3}
s_cmp_eq_u32 {sG}, 128
s_cselect_b32 s7, {8 + T_A3}, s7
s_cmp_eq_u32 {sG}, 0
s_cselect_b32 s7, {9 + T_A3}, s7
s_cselect_b32 s94, {T_S1S*1024}, 0
s_lshl_b32 s7, s7, 10
s_lshl_b32 s95, {sW}, 12
s_cmp_eq_u32 {sW}, 0
s_cselect_b32 s94, s94, s95
s_cmp_eq_u32 {sW}, 1
s_cselect_b32 s7, s7, s94
s_add_u32 m0, s95, {L_TB}
v_add_u32 v{T+2}, s94, v{vL16}
v_add_u32 v{T+3}, s7, v{vL16}
s_lshl_b32 s7, {sType}, 12
s_add_u32 s7, s7, {T_ADDR*1024}
global_load_lds_dwordx4 v{T+3}, {STB}
global_load_lds_dwordx4 v{T+2}, {STB} offset:1024
global_load_lds_dwordx4 v{T+2}, {STB} offset:2048
global_load_lds_dwordx4 v{T+2}, {STB} offset:3072
v_lshl_add_u32 v{T+2}, v0, 4, s7
global_load_dwordx3 v[{vV}:{vV+2}], v{T+2}, {STB}
s_or_b32 {sFix}, s2, {sW}
""")
a(f"""
s_cmp_lg_u32 {sFix}, 0
s_cbranch_scc1 L_nodel
v_add_u32 v{T+2}, {T_DEL*1024}, v{vL16}
global_load_dwordx4 {vr(DEL)}, v{T+2}, {STB}
global_load_dwordx4 {vr(DEL+4)}, v{T+2}, {STB} offset:1024
L_nodel:
""")
a(f"""
s_sub_u32 s92, 0, {sG}
s_and_b32 s92, s92, 511
s_cmp_eq_u32 {sG}, 0
s_cselect_b32 s92, 256, s92
s_mul_i32 s92, s92, 1280
s_mul_i32 s93, {sG}, 1280
s_sub_u32 s92, s92, s93
s_sub_u32 s92, s92, {4*655360}
s_mov_b32 s10, 2621440
s_mov_b32 s11, 0x20000
s_mov_b32 s96, 0x9fb00
v_lshlrev_b32 v{vRtR}, 4, v0
""")
for i in range(3):
    a(f"""v_add_u32 v{T+12}, {256*i}, v0
v_mul_u32_u24 v{T+12}, 205, v{T+12}
v_lshrrev_b32 v{T+12}, 14, v{T+12}
v_mov_b32 v{T+13}, s92
v_cmp_le_u32 vcc, 4, v{T+12}
v_mad_u32_u24 v{T+12}, v{T+12}, s96, v{vRtR}
v_cndmask_b32 v{T+13}, 0, v{T+13}, vcc
v_add3_u32 v{vG+i}, v{T+12}, v{T+13}, s93""".replace(f'v_add_u32 v{T+12}, 0, v0\nv_mul_u32_u24 v{T+12}, 205, v{T+12}', f'v_mul_u32_u24 v{T+12}, 205, v0'))
    if i < 2: a(f's_add_u32 s93, s93, 4096')
a(f"""
""")
sst('prek')
a(f"""
s_waitcnt lgkmcnt(0)
s_lshl_b32 s7, {sW}, 10
s_add_u32 m0, s7, {L_XT}
{WSADD or 's_nop 1'}
buffer_load_dwordx4 v{vG}, {SX}, 0 offen lds
s_add_u32 m0, s7, {L_XT+4096}
s_cmp_ge_u32 {sW}, 2
buffer_load_dwordx4 v{vG+1}, {SX}, 0 offen lds
s_cbranch_scc1 L_nox2
s_add_u32 m0, s7, {L_XT+8192}
s_nop 0
buffer_load_dwordx4 v{vG+2}, {SX}, 0 offen lds
s_branch L_x2
L_nox2:
v_mov_b32 v{vG+2}, {OOB}
buffer_load_dword v254, v{vG+2}, {SX}, 0 offen
L_x2:
""")
sst('xiss')
sst('dma')
a(f"""
v_and_b32 v{n_v}, 15, v0
v_bfe_u32 v{kq_v}, v0, 4, 2
s_mul_i32 s94, {sType}, 320
v_lshrrev_b32 v{T+13}, 1, v{kq_v}
v_mul_u32_u24 v{T+14}, s94, v{T+13}
s_lshl_b32 s92, {sW}, 5
v_add3_u32 v{T+12}, v{n_v}, v{T+14}, s92
s_and_b32 s92, {sW}, 1
s_lshl_b32 s92, s92, 3
s_lshr_b32 s93, {sW}, 1
s_lshl_b32 s93, s93, 5
s_add_u32 s92, s92, s93
s_add_u32 s92, s92, 256
v_lshrrev_b32 v{T+17}, 1, v{n_v}
v_and_b32 v{T+18}, 1, v0
v_add3_u32 v{T+17}, v{T+17}, v{T+14}, s92
v_lshl_add_u32 v{T+17}, v{T+18}, 4, v{T+17}
s_xor_b32 s94, {sType}, 1
v_and_b32 v{T+13}, s94, v{T+13}
v_xor_b32 v{T+13}, v{T+13}, v{kq_v}
v_add_u32 v{T+14}, 16, v{T+12}
v_and_b32 v{T+13}, 1, v{T+13}
v_add_u32 v{T+15}, 128, v{T+12}
v_cmp_eq_u32 vcc, 1, v{T+13}
v_add_u32 v{T+16}, 144, v{T+12}
s_mul_i32 s94, s94, 320
""")
ecol = [T+12, T+14, T+15, T+16, T+17]
for kl in range(5): a(f'v_sub_u32 v{T+18+kl}, 640, v{ecol[kl]}')
for kl in range(5): a(f'v_cndmask_b32 v{vXT+kl}, v{ecol[kl]}, v{T+18+kl}, vcc')
a(f"""
v_cmp_gt_u32 vcc, 2, v{kq_v}
v_mov_b32 v{T+17}, s94
v_and_b32 v{T+13}, 1, v{kq_v}
v_cndmask_b32 v{T+17}, 0, v{T+17}, vcc
v_cmp_eq_u32 vcc, 0, v{T+12}
v_mul_u32_u24 v{T+9}, 0x1400, v{T+13}
v_add_u32 v{T+14}, {L_XT}, v{T+9}
v_cndmask_b32 v{vXT}, v{vXT}, v{T+17}, vcc
v_cmp_ne_u32 vcc, 0, v{vXT}
""")
for kl in range(5): a(f'v_lshl_add_u32 v{vXT+kl}, v{vXT+kl}, 1, v{T+14}')
a(f'v_cndmask_b32 v{vMask0}, 0, -1, vcc')
for i in range(20): a(f'v_mov_b32 v{X+i}, 0')
for i in range(4): a(f'v_mov_b32 v{vZc+i}, 0')
a(f"""
s_lshr_b32 s95, {sM}, 3
s_lshl_b32 s7, s95, 2
s_lshr_b32 s7, 0x1120, s7
s_and_b32 s7, s7, 3
s_add_u32 s96, s6, 256
s_cmp_eq_u32 {sSig}, 0
s_cselect_b32 s96, 8, s96
s_lshl_b32 s94, {sW}, 4
s_add_u32 s6, s6, s94
s_add_u32 s96, s96, s94
v_lshl_add_u32 v{T+13}, v{n_v}, 2, s7
v_lshl_add_u32 v{T+14}, v{kq_v}, 6, s6
v_lshl_add_u32 v{T+15}, v{kq_v}, 6, s96
v_add_u32 v{T+12}, 64, v{T+13}
s_mov_b32 s94, {f2u(1/2048):#x}
""")
G = T+24
for hi in range(2):
    for ch in range(2): a(f'v_mul_u32_u24 v{G+2*(2*hi+ch)}, v{T+13-hi}, v{T+14+ch}')
for k in range(4): a(f'v_and_b32 v{G+2*k}, 0x7ff, v{G+2*k}')
for k in range(4): a(f'v_cvt_f32_u32 v{G+2*k}, v{G+2*k}')
for k in range(4): a(f'v_mul_f32 v{G+2*k}, s94, v{G+2*k}')
for k in range(4): a(f'v_sin_f32 v{G+2*k+1}, v{G+2*k}\nv_cos_f32 v{G+2*k}, v{G+2*k}')
for k in range(4): a(f'v_cvt_pk_f16_f32 v{G+8+2*k}, v{G+2*k}, v{G+2*k+1}\nv_cvt_pk_f16_f32 v{G+9+2*k}, -v{G+2*k+1}, v{G+2*k}')
a(f's_cmp_lg_u32 {sSig}, 0\ns_cbranch_scc1 L_cm_done')
for hi in range(2):
    b = G+8+4*hi
    a(f'v_mov_b32 v{b+1}, 0\nv_mov_b32 v{b+3}, v{b+2}\nv_mov_b32 v{b+2}, 0')
a(f"""
v_and_b32 v{T+17}, 1, v0
v_lshlrev_b32 v{T+17}, 4, v{T+17}
v_mov_b32 v{T+18}, 0x3c00
v_lshlrev_b32 v{T+17}, v{T+17}, v{T+18}
v_cmp_gt_u32 vcc, 16, v0
v_cndmask_b32 v{G+8}, v{G+8}, v{T+17}, vcc
v_cndmask_b32 v{G+12}, v{G+12}, v{T+17}, vcc
L_cm_done:
""")
sst('cm')
a(f'''
v_lshlrev_b32 v{T+12}, 2, v{kq_v}
v_mul_u32_u24 v{T+12}, v{T+12}, v{n_v}
v_cvt_f32_u32 v{T+12}, v{T+12}
v_cvt_f32_u32 v{T+13}, v{n_v}
v_mul_f32 v{T+12}, {f2u(1/640):#x}, v{T+12}
v_mul_f32 v{T+13}, {f2u(1/640):#x}, v{T+13}
''')
for blk in range(3):
    for i in range(4):
        k = 16*blk + i
        if k == 0: src = T+12
        else:
            src = T+14
            a(f'v_fmamk_f32 v{T+14}, v{T+13}, {f2u(float(k)):#x}, v{T+12}')
        a(f'v_cos_f32 v{TWc+4*blk+i}, v{src}\nv_sin_f32 v{TWs+4*blk+i}, v{src}')
a(f"""
s_mov_b32 {sInv}, {f2u(1/640):#x}
v_mov_b32 v{vEps}, {f2u(1e-5):#x}
v_mov_b32 v{Bo+10}, 0
v_mov_b32 v{Bo+11}, 0
s_mov_b32 {sLayer}, 0
s_mov_b32 {sTag}, 1
s_mov_b32 {sFlip}, 0
s_cmp_lt_u32 {sW}, 2
s_cselect_b64 {sSlot}, 1, 0
s_cselect_b32 s7, 3200, 0
s_cselect_b32 s52, 12, 8
s_cselect_b32 s53, 0, 32
s_lshl_b32 s7, s7, {sW}
v_lshlrev_b32 v{T+12}, 4, v{kq_v}
v_mul_u32_u24 v{vVrd}, 80, v{n_v}
v_add3_u32 v{vVrd}, v{vVrd}, v{T+12}, s7
v_and_b32 v{vVrd2}, 7, v0
v_mul_u32_u24 v{vVrd2}, 80, v{vVrd2}
s_add_u32 s7, s7, 2560
v_add3_u32 v{vVrd2}, v{vVrd2}, v{T+12}, s7
s_mul_i32 s54, s52, {sW}
s_lshl_b32 s54, s54, 2
s_add_u32 s54, s54, s53
s_sub_u32 s7, s52, 1
v_min_u32 v{T+13}, s7, v{n_v}
v_lshlrev_b32 v{T+13}, 2, v{T+13}
s_movk_i32 s7, 5120
v_mad_u32_u24 v{vC1ld}, v{kq_v}, s7, v{T+13}
v_mul_u32_u24 v{vRtW}, 160, v{n_v}
s_add_u32 s7, s54, {L_RT}
v_add3_u32 v{vRtW}, v{vRtW}, v{T+12}, s7
s_lshl_b32 s7, s52, 2
v_cmp_gt_u32 vcc, s7, v{T+12}
v_add_u32 v{T+13}, {L_XT}, v{vL16}
v_cndmask_b32 v{vRtW}, v{T+13}, v{vRtW}, vcc
v_mul_u32_u24 v{T+13}, 205, v0
v_lshrrev_b32 v{T+13}, 11, v{T+13}
v_mul_u32_u24 v{T+13}, 10080, v{T+13}
v_add_u32 v{vH2st}, v{T+13}, v{vRtR}
s_lshl_b32 s7, {sW}, 4
s_add_u32 s7, s7, 256
v_add_u32 v{T+13}, s7, v{n_v}
v_lshlrev_b32 v{vRtR2}, 4, v{T+13}
v_mul_u32_u24 v{T+13}, 205, v{T+13}
v_lshrrev_b32 v{T+13}, 11, v{T+13}
v_mul_u32_u24 v{T+13}, 10080, v{T+13}
v_add_u32 v{vH2st2}, v{T+13}, v{vRtR2}
v_cmp_eq_u32 vcc, 0, v{kq_v}
v_mov_b32 v{T+13}, {OOB}
v_cndmask_b32 v{vH2st2}, v{T+13}, v{vH2st2}, vcc
v_add_u32 v{vRtR}, {L_RT}, v{vRtR}
v_add_u32 v{vRtR2}, {L_RT}, v{vRtR2}
v_lshrrev_b32 v{vH1s2}, 1, v{vL16}
v_add_u32 v{vH1s2}, {1024-128}, v{vH1s2}
v_add_u32 v{T+14}, -1, v{kq_v}
v_cmp_gt_u32 vcc, 2, v{T+14}
v_cndmask_b32 v{vH1s2}, v{T+13}, v{vH1s2}, vcc
v_and_b32 v{T+13}, 1, v{kq_v}
v_lshlrev_b32 v{T+13}, 7, v{T+13}
v_and_b32 v{T+14}, 3, v0
v_lshl_add_u32 v{vStR}, v{T+14}, 5, v{T+13}
v_add_u32 v{vStR}, {L_ST}, v{vStR}
v_bfe_u32 v{T+14}, v0, 2, 1
v_lshl_add_u32 v{T+13}, v{T+14}, 6, v{T+13}
v_bfe_u32 v{T+14}, v0, 3, 1
v_lshl_add_u32 v{T+13}, v{T+14}, 5, v{T+13}
v_bfe_u32 v{T+14}, v0, 5, 1
v_lshl_add_u32 v{T+13}, v{T+14}, 2, v{T+13}
s_lshl_b32 s7, {sW}, 3
s_add_u32 s7, s7, {L_ST}
v_add_u32 v{vStW}, s7, v{T+13}
s_and_b32 s93, {sM}, 7
s_mul_i32 s93, s93, 160
s_lshl_b32 s94, {sSig}, 7
s_add_u32 s92, s94, {sM}
s_mul_i32 s92, s92, 1280
s_mul_i32 {sH1st}, {sW}, 40960
s_add_u32 {sH1st}, {sH1st}, s92
s_add_u32 {sH1st}, {sH1st}, {H1BASE}
s_lshl_b32 s96, s95, 5
s_add_u32 s96, s96, s94
s_mul_i32 {sH1ld0}, s96, 1280
s_add_u32 {sH1ld0}, {sH1ld0}, s93
s_add_u32 s96, s54, {H1BASE}
s_add_u32 {sH1ld0}, {sH1ld0}, s96
s_add_u32 {sH1ld1}, {sH1ld0}, 20480
s_lshl_b32 s96, s95, 8
s_add_u32 s96, s96, {sSig}
s_mul_i32 {sH2st}, s96, 1280
s_add_u32 {sH2st}, {sH2st}, s93
s_add_u32 {sH2st}, {sH2st}, {H2BASE}
s_mov_b32 {sH2ld}, {H2BASE-BUF}
s_add_u32 {sCl}, {sH2st}, {2*BUF}
s_and_b32 s7, {sG}, 127
s_lshr_b32 s7, s7, 2
s_sub_u32 s94, 0, {sG}
s_and_b32 s94, s94, 127
s_lshr_b32 s94, s94, 2
s_bfe_u32 s95, {sG}, 0x10001
s_cmp_eq_u32 {sType}, 1
s_cselect_b32 s94, s7, s94
s_cselect_b32 s96, 2, s95
s_cselect_b32 s95, 3, s95
s_lshl_b32 s96, s96, 5
s_lshl_b32 s95, s95, 5
s_add_u32 s7, s7, s96
s_add_u32 s94, s94, s95
s_mul_i32 s7, s7, 10240
s_mul_i32 s94, s94, 10240
v_mov_b32 v{T+12}, s7
v_mov_b32 v{T+13}, s94
v_cmp_le_u32 vcc, 2, v{kq_v}
s_lshl_b32 s95, {sW}, 8
s_lshl_b32 s96, {sW}, 6
v_cndmask_b32 v{T+12}, v{T+12}, v{T+13}, vcc
s_add_u32 s96, s96, 1024
v_add_u32 v{T+12}, v{T+12}, v{T+9}
v_lshlrev_b32 v{T+13}, 4, v{n_v}
v_add3_u32 v{vH2ld}, v{T+12}, v{T+13}, s95
v_lshlrev_b32 v{T+13}, 2, v{n_v}
v_add3_u32 v{vH2ld5}, v{T+12}, v{T+13}, s96
v_add_u32 v{vTB}, {L_TB}, v{vL16}
s_lshl_b32 s7, {sW}, 2
v_add_u32 v{T+2}, s7, v{vTB}
""")
sst('prex')
for hi in range(2):
    for ch in range(2):
        for rio in range(2):
            a(f'ds_write_b32 v{T+2}, v{G+8+2*(2*hi+ch)+rio} offset:{L_CM-L_TB+((hi*2+rio)*2+ch)*1024}')
a('s_waitcnt vmcnt(3) lgkmcnt(0)\ns_barrier')
sst('bart')
for i in range(4): a(f'ds_read_b128 {vr(S1r+4*i)}, v{vTB} offset:{1024*i}')
for i in range(9): a(f'ds_read_b128 {vr(A2r+4*i)}, v{vTB} offset:{1024*(T_A2+i)}')
for i in range(2): a(f'ds_read_b128 {vr(B1r+4*i)}, v{vTB} offset:{1024*(T_B1+i)}')
for i in range(8): a(f'ds_read_b128 {vr(CM+4*i)}, v{vTB} offset:{L_CM-L_TB+1024*i}')
a(f'ds_read_b128 {vr(A3r)}, v{vTB} offset:{1024*T_A3L}')
for i in (2, 1, 0): a(f'v_lshrrev_b32 v{vV+2*i+1}, 16, v{vV+i}\nv_and_b32 v{vV+2*i}, 0xffff, v{vV+i}')
a(f's_cmp_eq_u32 {sW}, 3\ns_cselect_b32 s7, 0x80008000, 0\ns_waitcnt lgkmcnt(11)')
for i in range(18): a(f'v_xor_b32 v{A2r+2*i+1}, s7, v{A2r+2*i+1}')
a('s_waitcnt vmcnt(0)\ns_barrier')
sst('bar0')
for kl in range(5):
    for j in range(4): a(f'ds_read_u16_d16_hi v{X+4*kl+j}, v{vXT+kl} offset:{1280*j}')
a('s_waitcnt lgkmcnt(0)')
Sx, Qx = T, T+4
if RP: a('s_mov_b32 m0, 0')
a('L_loop:')
stamp('top', True)
if opt('sca', 1):
    for j in range(4): a(f'v_mul_f32 v{Qx+j}, v{X+16+j}, v{X+16+j}')
    for j in range(4): a(f'v_add_f32 v{Sx+j}, v{X+16+j}, v{X+j}')
    for j in range(4): a(f'v_fmac_f32 v{Qx+j}, v{X+j}, v{X+j}')
else:
    for p in range(2): a(f'v_pk_mul_f32 {v2(Qx+2*p)}, {v2(X+16+2*p)}, {v2(X+16+2*p)}')
for kl in range(1 if opt('sca', 1) else 0, 4):
    for p in range(2):
        b = X+4*kl+2*p
        a(f'v_pk_add_f32 {v2(Sx+2*p)}, {v2(X+16+2*p) if kl == 0 else v2(Sx+2*p)}, {v2(b)}')
        a(f'v_pk_fma_f32 {v2(Qx+2*p)}, {v2(b)}, {v2(b)}, {v2(Qx+2*p)}')
for j in range(4): a(f'v_permlane32_swap_b32 v{Sx+j}, v{Qx+j}')
for p in range(2): a(f'v_pk_add_f32 {v2(Sx+2*p)}, {v2(Sx+2*p)}, {v2(Qx+2*p)}')
def dpp(d, s, ctl, bank): a(f'v_add_f32_dpp v{d}, v{s}, v{s} {ctl} row_mask:0xf bank_mask:{bank:#x}')
dpp(Sx, Sx, 'row_ror:8', 3); dpp(Sx, Sx+1, 'row_ror:8', 12); dpp(Sx+2, Sx+2, 'row_ror:8', 3); dpp(Sx+2, Sx+3, 'row_ror:8', 12)
dpp(Sx, Sx, 'row_shl:4', 5); dpp(Sx, Sx+2, 'row_shr:4', 10)
dpp(Sx, Sx, 'quad_perm:[1,0,3,2]', 15); dpp(Sx, Sx, 'quad_perm:[2,3,0,1]', 15)
a(f"""
ds_write_b32 v{vStW}, v{Sx}
s_waitcnt lgkmcnt(0)
s_barrier
""")
stamp('bar1', True)
P = T+8; RS = T+16; NB = T+20
a(f"""
ds_read_b128 {vr(P)}, v{vStR}
ds_read_b128 {vr(P+4)}, v{vStR} offset:16
s_waitcnt lgkmcnt(1)
v_pk_add_f32 {v2(P)}, {v2(P)}, {v2(P+2)}
s_waitcnt lgkmcnt(0)
v_pk_add_f32 {v2(P+4)}, {v2(P+4)}, {v2(P+6)}
v_pk_add_f32 {v2(P)}, {v2(P)}, {v2(P+4)}
v_mul_f32 v{P}, {sInv}, v{P}
v_fma_f32 v{P+1}, v{P+1}, {sInv}, v{vEps}
v_fma_f32 v{P+1}, -v{P}, v{P}, v{P+1}
v_max_f32 v{P+1}, v{P+1}, v{vEps}
v_rsq_f32 v{P+1}, v{P+1}
v_mul_f32 v{P}, -v{P}, v{P+1}
""")
for j in range(4): a(f'v_mov_b32_dpp v{RS+j}, v{P+1} quad_perm:[{j},{j},{j},{j}] row_mask:0xf bank_mask:0xf')
for j in range(4): a(f'v_mov_b32_dpp v{NB+j}, v{P} quad_perm:[{j},{j},{j},{j}] row_mask:0xf bank_mask:0xf')
N_ = T+24
D0, D1, DC, DE = T, T+4, T+8, T+12
for kl in range(5):
    for p in range(2): a(f'v_pk_fma_f32 {v2(N_+4*kl+2*p)}, {v2(X+4*kl+2*p)}, {v2(RS+2*p)}, {v2(NB+2*p)}')
def cvtn(kl):
    for p in range(2): a(f'v_cvt_pk_f16_f32 v{Bo+2*kl+p}, v{N_+4*kl+2*p}, v{N_+4*kl+2*p+1}')
cvtn(0); cvtn(1); cvtn(2)
mfma(D0, S1r, Bo, None); cvtn(3); mfma(DC, S1r+4, Bo, None); cvtn(4)
mfma(D1, S1r, Bo+4, None); mfma(DC, S1r+8, Bo+4, DC)
a(f's_cmp_lg_u32 {sFix}, 0')
W_ = T+44
mfma(DE, S1r+12, Bo+8, None)
a(f'v_cvt_pk_f16_f32 v{W_}, v{D0}, v{D0+1}')
a(f's_cbranch_scc0 L_fix\nL_nofix:')
a(f"""
v_cvt_pk_f16_f32 v{W_+1}, v{D0+2}, v{D0+3}
ds_write_b32 v{vV}, v{W_}
ds_write_b32 v{vV}, v{W_+1} offset:3200
v_cvt_pk_f16_f32 v{W_+2}, v{D1}, v{D1+1}
v_cvt_pk_f16_f32 v{W_+3}, v{D1+2}, v{D1+3}
v_cvt_pk_f16_f32 v{W_+4}, v{DC}, v{DC+1}
v_cvt_pk_f16_f32 v{W_+5}, v{DC+2}, v{DC+3}
ds_write_b32 v{vV+1}, v{W_+2}
ds_write_b32 v{vV+1}, v{W_+3} offset:3200
v_cvt_pk_f16_f32 v{W_+6}, v{DE}, v{DE+1}
v_cvt_pk_f16_f32 v{W_+7}, v{DE+2}, v{DE+3}
ds_write_b32 v{vV+2}, v{W_+4}
ds_write_b32 v{vV+3}, v{W_+5}
ds_write_b32 v{vV+4}, v{W_+6}
ds_write_b32 v{vV+5}, v{W_+7}
""")
stamp('s1w', True)
a(f's_cmp_eq_u32 {sLayer}, 0\ns_waitcnt lgkmcnt(0)\ns_barrier')
stamp('bar2', True)
Ad = T; Tr = T+12; Ti = T+24; B2 = Tr; O = T; Pt = T+36
a(f"""
ds_read_b128 {vr(Ad)}, v{vVrd}
ds_read_b128 {vr(Ad+4)}, v{vVrd} offset:1280
ds_read_b128 {vr(Ad+8)}, v{vVrd2}
s_cbranch_scc1 L_l0b
L_l0b_ret:
""")
for blk in range(3):
    a(f's_waitcnt lgkmcnt({2-blk})')
    mfma(Tr+4*blk, Ad+4*blk, B1r, None); mfma(Ti+4*blk, Ad+4*blk, B1r+4, None)
for ch in range(3):
    for p in range(2): a(f'v_pk_mul_f32 {v2(Pt+4*ch+2*p)}, {v2(Tr+4*ch+2*p)}, {v2(TWc+4*ch+2*p)}')
    for p in range(2): a(f'v_pk_fma_f32 {v2(Pt+4*ch+2*p)}, {v2(Ti+4*ch+2*p)}, {v2(TWs+4*ch+2*p)}, {v2(Pt+4*ch+2*p)}')
    for p in range(2): a(f'v_pk_mul_f32 {v2(Ti+4*ch+2*p)}, {v2(Ti+4*ch+2*p)}, {v2(TWc+4*ch+2*p)}')
    for p in range(2): a(f'v_pk_fma_f32 {v2(Ti+4*ch+2*p)}, {v2(Tr+4*ch+2*p)}, {v2(TWs+4*ch+2*p)}, {v2(Ti+4*ch+2*p)} neg_lo:[1,0,0] neg_hi:[1,0,0]')
def cv2(ch, i): a(f'v_cvt_pk_f16_f32 v{B2+4*ch+i}, v{Pt+4*ch+i}, v{Ti+4*ch+i}')
def st2(blk, ch): mfma(O+4*blk, A2r+(blk*3+ch)*4, B2+4*ch, None if ch == 0 else O+4*blk)
for i in range(4): cv2(0, i)
cv2(1, 0); cv2(1, 1)
st2(2, 0); cv2(1, 2); cv2(1, 3); st2(0, 0); cv2(2, 0); cv2(2, 1); st2(1, 0); cv2(2, 2); cv2(2, 3)
st2(2, 1); st2(0, 1); st2(2, 2); st2(0, 2); st2(1, 1); st2(1, 2)
a(f's_mov_b32 {sSpin}, {SPIN}\ns_add_u32 {sH2ld}, {sH2ld}, {BUF}\ns_cmp_lg_u32 {sMode}, 0')
Wo = T+48
def cvo(i): a(f'v_cvt_pk_f16_f32 v{Wo+i}, v{O+2*i}, v{O+2*i+1}')
def tg(i): a(f'v_and_or_b32 v{Wo+i}, v{Wo+i}, -2, {sTag}')
cvo(4); cvo(5); tg(5); cvo(0); cvo(1)
a(f'v_cndmask_b32 v{Wo}, v{Wo}, v{Wo+4}, {sSlot}')
tg(4); tg(1); tg(0); cvo(2); cvo(3); tg(2); tg(3)
a(f"""
s_cbranch_scc1 L_st_slow
buffer_store_dwordx2 {v2(Wo+4)}, v{vH1s2}, {SWS}, {sH1st} offen
buffer_store_dwordx4 {vr(Wo)}, v{vL16}, {SWS}, {sH1st} offen
L_cphase:
""")
stamp('h1st', True)
Ca = T+12; Dm = T+20; K_ = T+36
a(f"""
s_xor_b32 {sH1st}, {sH1st}, {H1STR}
s_cmp_eq_u32 {sLayer}, 0
s_cbranch_scc1 L_l0c
L_l0c_ret:
""")
if opt('ack1', 1): a('s_waitcnt vmcnt(0)')
a('L_poll1:')
for ch in range(2):
    for u in range(4):
        a(f'buffer_load_dword v{Ca+4*ch+u}, v{vC1ld}, {SWS}, {sH1ld0 if ch == 0 else sH1ld1} offen offset:{1280*u} sc1')
a(f's_sub_u32 {sSpin}, {sSpin}, 1\ns_cbranch_scc1 L_poll1_to\ns_waitcnt vmcnt(4)')
tt = sum((((i >> 2 & 1) ^ (i & 1)) & ((i >> 1 & 1) ^ (i & 1))) << i for i in range(8))
def cm(hi, ch, rio):
    d = Dm + (hi*2+rio)*4
    mfma(d, Ca+4*ch, CM+((hi*2+rio)*2+ch)*4, None if ch == 0 else d)
def xa(i): a(f'v_bitop3_b32 v{K_+i}, v{Ca+2*i}, v{Ca+2*i+1}, {sFlip} bitop3:{tt:#x}')
cm(0, 0, 0); xa(0); cm(0, 0, 1); xa(1); cm(1, 0, 0)
a(f'v_bitop3_b32 v{K_}, v{K_}, v{K_+1}, 1 bitop3:0x80')
cm(1, 0, 1)
a('s_waitcnt vmcnt(0)')
cm(0, 1, 0); xa(2); cm(0, 1, 1); xa(3)
cm(1, 1, 0)
a(f'v_bitop3_b32 v{K_}, v{K_}, v{K_+2}, v{K_+3} bitop3:0x80')
a(f'v_cmp_eq_u32 vcc, 0, v{K_}')
cm(1, 1, 1)
a('s_cbranch_vccnz L_poll1\nL_poll1_done:')
stamp('h1ok', True)
for hi in range(2):
    for i in range(4): a(f'v_cvt_pk_f16_f32 v{K_+4*hi+i}, v{Dm+8*hi+i}, v{Dm+8*hi+4+i}')
    for i in range(4): a(f'v_or_b32 v{K_+4*hi+i}, 1, v{K_+4*hi+i}')
    a(f'ds_write_b128 v{vRtW}, {vr(K_+4*hi)} offset:{2560*hi}')
a(f"""
s_waitcnt lgkmcnt(0)
s_barrier
ds_read_b128 {vr(T)}, v{vRtR}
ds_read_b128 {vr(T+4)}, v{vRtR2}
s_waitcnt lgkmcnt(1)
buffer_store_dwordx4 {vr(T)}, v{vH2st}, {SWS}, {sH2st} offen sc1
s_waitcnt lgkmcnt(0)
buffer_store_dwordx4 {vr(T+4)}, v{vH2st2}, {SWS}, {sH2st} offen sc1
""")
stamp('h2st', True)
CLN = f's_mov_b32 {sCl}, {OOB}' if opt('h3', 1) else f's_add_u32 {sCl}, {sCl}, {BUF}'
a(f"""
buffer_store_dwordx4 {vr(vZc)}, v{vH2st}, {SWS}, {sCl} offen sc1
buffer_store_dwordx4 {vr(vZc)}, v{vH2st2}, {SWS}, {sCl} offen sc1
{CLN}
s_mov_b32 {sSpin}, {SPIN}
s_add_u32 {sLayer}, {sLayer}, 1
{f's_mov_b32 m0, {sLayer}' if RP else ''}
s_add_u32 {sH2st}, {sH2st}, {BUF}
s_xor_b32 {sH1ld0}, {sH1ld0}, {H1STR}
s_xor_b32 {sH1ld1}, {sH1ld1}, {H1STR}
s_cmp_ge_u32 {sLayer}, 2
s_cselect_b32 {sTag}, 0, 1
s_cselect_b32 {sFlip}, -1, 0
s_cmp_eq_u32 {sLayer}, 1
s_cbranch_scc1 L_l0d
L_l0d_ret:
s_waitcnt vmcnt(2)
""")
stamp('h2ack', True)
a('L_poll2:')
Lh = T+8; K2 = T+28
for u in range(4): a(f'buffer_load_dword v{Lh+16+u}, v{vH2ld5}, {SWS}, {sH2ld} offen offset:{1280*u} sc1')
for u in range(4): a(f'buffer_load_dwordx4 {vr(Lh+4*u)}, v{vH2ld}, {SWS}, {sH2ld} offen offset:{1280*u} sc1')
def and3(d, x, y, z): a(f'v_bitop3_b32 v{d}, v{x}, v{y}, {z if isinstance(z, str) else "v%d" % z} bitop3:0x80')
a(f's_sub_u32 {sSpin}, {sSpin}, 1\ns_cbranch_scc1 L_poll2_to\ns_waitcnt vmcnt(3)')
and3(K2, Lh+16, Lh+17, '1'); and3(K2+1, Lh+18, Lh+19, Lh); and3(K2, K2, Lh+1, Lh+2); and3(K2, K2, K2+1, Lh+3)
a(f'v_and_b32 v{Lh}, v{vMask0}, v{Lh}\ns_waitcnt vmcnt(2)')
and3(K2, K2, Lh+4, Lh+5); and3(K2, K2, Lh+6, Lh+7)
a(f'v_and_b32 v{Lh+4}, v{vMask0}, v{Lh+4}\nv_swap_b32 v{Lh+1}, v{Lh+4}\ns_waitcnt vmcnt(1)')
and3(K2, K2, Lh+8, Lh+9); and3(K2, K2, Lh+10, Lh+11)
a(f'v_and_b32 v{Lh+8}, v{vMask0}, v{Lh+8}\nv_swap_b32 v{Lh+2}, v{Lh+8}\nv_swap_b32 v{Lh+6}, v{Lh+9}\ns_waitcnt vmcnt(0)')
and3(K2, K2, Lh+12, Lh+13); and3(K2, K2, Lh+14, Lh+15)
a(f"""
v_and_b32 v{Lh+12}, v{vMask0}, v{Lh+12}
v_cmp_eq_u32 vcc, 0, v{K2}
v_swap_b32 v{Lh+3}, v{Lh+12}
s_cbranch_vccnz L_poll2
L_poll2_done:
""")
stamp('h2ok', True)
mfma(X+16, A3r, Lh+16, X+16)
a(f'v_swap_b32 v{Lh+7}, v{Lh+13}')
mfma(X, A3r, Lh, X)
a(f'v_swap_b32 v{Lh+11}, v{Lh+14}')
mfma(X+4, A3r, Lh+4, X+4)
a(f's_cmp_lt_u32 {sLayer}, {NLAYER}')
mfma(X+8, A3r, Lh+8, X+8); mfma(X+12, A3r, Lh+12, X+12)
a('s_cbranch_scc1 L_loop')
F = T
for kl in (4, 0, 1, 2, 3):
    for p in range(2): a(f'v_cvt_pk_bf16_f32 v{F+2*kl+p}, v{X+4*kl+2*p}, v{X+4*kl+2*p+1}')
    for p in range(2):
        a(f'ds_write_b16 v{vXT+kl}, v{F+2*kl+p} offset:{2560*p}')
        a(f'ds_write_b16_d16_hi v{vXT+kl}, v{F+2*kl+p} offset:{2560*p+1280}')
a('s_waitcnt lgkmcnt(0)\ns_barrier')
for i in range(3): a(f'ds_read_b128 {vr(T+12+4*i)}, v{vRtR} offset:{L_XT-L_RT+4096*i}')
for i in range(3): a(f's_waitcnt lgkmcnt({2-i})\nbuffer_store_dwordx4 {vr(T+12+4*i)}, v{vG+i}, {SO}, 0 offen')
def stamp_dump(hk):
    if hk: a(f's_memtime s[{60+2*nst.index("end")}:{61+2*nst.index("end")}]\ns_memrealtime s[{60+2*nst.index("rend")}:{61+2*nst.index("rend")}]\ns_waitcnt lgkmcnt(0)')
    a(f's_lshl_b32 s7, s2, 7\ns_add_u32 s7, s7, {STAMP_OFF}\nv_mov_b32 v1, 0\ns_mov_b64 exec, 1')
    for i in range(len(nst)): a(f'v_mov_b32 v2, s{60+2*i}\nbuffer_store_dword v2, v1, {SWS}, s7 offen offset:{4*i}')
if STAMPS:
    a('s_waitcnt vmcnt(0)'); stamp('end'); stamp('rend', real=True)
    a(f's_waitcnt lgkmcnt(0)\ns_cmp_lg_u32 {sW}, {opt("swave")}\ns_cbranch_scc1 L_end')
    stamp_dump(False)
if RP:
    if RP == 'end': a('s_waitcnt vmcnt(0)\ns_memrealtime s[62:63]')
    if RP == 'top': a(f's_mov_b32 s62, s{80+RPL}')
    if RP == 'h2ok': a(f's_mov_b32 s62, s{81+RPL}')
    a(f's_waitcnt lgkmcnt(0)\ns_cmp_lg_u32 {sW}, 0\ns_cbranch_scc1 L_end\ns_lshl_b32 s7, s2, 3\ns_add_u32 s7, s7, {STAMP_OFF}\nv_mov_b32 v2, s60\nv_mov_b32 v3, s62\ns_mov_b64 exec, 1\nbuffer_store_dwordx2 v[2:3], off, {SWS}, s7')
a('L_end:\ns_endpgm')
a('L_fix:\ns_nop 7')
mfma(T+24, DEL, Bo, None); mfma(T+28, DEL+4, Bo, None)
a('s_mov_b32 exec_lo, 0x00010001\ns_mov_b32 exec_hi, 0x00010001')
for p in range(2): a(f'v_pk_add_f32 {v2(D0+2*p)}, {v2(D0+2*p)}, {v2(T+24+2*p)}')
for p in range(2): a(f'v_pk_add_f32 {v2(DC+2*p)}, {v2(DC+2*p)}, {v2(T+28+2*p)}')
a(f's_mov_b64 exec, -1\nv_cvt_pk_f16_f32 v{W_}, v{D0}, v{D0+1}\ns_branch L_nofix')
a(f"""
L_l0b:
v_mov_b32 v{T+50}, {L_MODE}
ds_read_b32 v{T+50}, v{T+50}
s_waitcnt lgkmcnt(0)
v_readfirstlane_b32 {sMode}, v{T+50}
s_branch L_l0b_ret
L_l0c:
v_mov_b32 v{T+50}, {L_OWN}
v_lshrrev_b32 v{T+51}, 2, v{vL16}
v_and_b32 v{T+51}, 127, v{T+51}
ds_read_b32 v{T+50}, v{T+50}
ds_read_b32 v{T+52}, v{T+51} offset:{L_EXP}
s_lshl_b32 s7, {sSig}, 2
s_add_u32 s92, s7, {sW}
s_lshl_b32 s92, s92, 5
s_add_u32 s92, s92, {sM}
s_lshl_b32 s92, s92, 2
s_add_u32 s92, s92, {HF}
s_lshr_b32 s93, {sM}, 3
s_add_u32 s93, s93, s7
s_lshl_b32 s93, s93, 7
s_add_u32 s93, s93, {HF}
s_cmp_lg_u32 {sMode}, 0
s_mov_b64 exec, 1
s_waitcnt vmcnt(0) lgkmcnt(0)
s_cbranch_scc1 L_l0c_slow
buffer_store_dword v{T+50}, off, {SWS}, s92
s_branch L_l0c_p
L_l0c_slow:
buffer_store_dword v{T+50}, off, {SWS}, s92 sc1
L_l0c_p:
s_mov_b64 exec, -1
L_l0c_poll:
buffer_load_dword v{T+53}, v{T+51}, {SWS}, s93 offen sc1
s_sub_u32 {sSpin}, {sSpin}, 1
s_cbranch_scc1 L_l0c_ret
s_waitcnt vmcnt(0)
v_cmp_ne_u32 vcc, v{T+53}, v{T+52}
s_cbranch_vccnz L_l0c_poll
s_branch L_poll1
L_l0d:
v_mov_b32 v{T+50}, {L_GO}
L_l0d_spin:
ds_read_b32 v{T+51}, v{T+50}
s_waitcnt lgkmcnt(0)
v_cmp_eq_u32 vcc, 0, v{T+51}
s_cbranch_vccnz L_l0d_spin
s_branch L_l0d_ret
L_st_slow:
buffer_store_dwordx4 {vr(Wo)}, v{vL16}, {SWS}, {sH1st} offen sc1
buffer_store_dwordx2 {v2(Wo+4)}, v{vH1s2}, {SWS}, {sH1st} offen sc1
s_branch L_cphase
L_poll1_to:
s_waitcnt vmcnt(0)
s_branch L_poll1_done
L_poll2_to:
s_waitcnt vmcnt(0)
s_branch L_poll2_done
""")
H = 8
def fhash(dst, src): a(f'v_mul_lo_u32 v{dst}, v{src}, s50\nv_add_u32 v{dst}, s51, v{dst}')
def hs_group(lbl, x3, pre=False):
    a(f"""
s_mov_b32 exec_hi, 0
s_mov_b32 {sSpin}, {SPIN}
{'s_branch ' + lbl + '_chk' if pre else ''}
{lbl}:
buffer_load_dwordx3 v[{H}:{H+2}], v{vL16}, {SWS}, s54 offen sc1
s_sub_u32 {sSpin}, {sSpin}, 1
s_cbranch_scc1 {lbl}_to
s_waitcnt vmcnt(0)
{lbl}_chk:
""")
    fhash(H, H)
    a(f"""
v_xor_b32 v{H}, v{H}, v{H+(2 if x3 else 1)}
v_cmp_lt_u32 vcc, 15, v{H}
s_cbranch_vccnz {lbl}
s_branch {lbl}_done
{lbl}_to:
s_waitcnt vmcnt(0)
{lbl}_done:
v_lshrrev_b32 v{H+3}, 2, v{vL16}
ds_write_b32 v{H+3}, v{H+1} offset:{L_EXP}
v_and_b32 v{H+3}, 15, v{H+1}
v_cmp_ne_u32 vcc, s6, v{H+3}
s_mov_b64 exec, -1
""")
def hs_all(lbl, pre=False):
    a(f's_mov_b32 {sSpin}, {SPIN}')
    if pre: a(f's_branch {lbl}_w')
    a(f'{lbl}:')
    for i, r in enumerate(('s92', 's93', 's95', 's96')): a(f'buffer_load_dwordx2 {v2(H+8+2*i)}, v{vL16}, {SWS}, {r} offen sc1')
    a(f's_sub_u32 {sSpin}, {sSpin}, 1\ns_cbranch_scc1 {lbl}_done\n{lbl}_w:\ns_waitcnt vmcnt(0)')
    for i in range(4): fhash(H+8+2*i, H+8+2*i)
    for i in range(4): a(f'v_xor_b32 v{H+8+2*i}, v{H+8+2*i}, v{H+9+2*i}')
    a(f"""
v_or3_b32 v{H}, v{H+8}, v{H+10}, v{H+12}
v_or_b32 v{H}, v{H}, v{H+14}
v_cmp_lt_u32 vcc, 15, v{H}
s_cbranch_vccnz {lbl}
{lbl}_done:
s_waitcnt vmcnt(0)
""")
def flag_store(v, soff, off):
    a(f's_mov_b64 exec, 1\ns_waitcnt vmcnt(0)\nbuffer_store_dword v{v}, off, {SWS}, {soff} offset:{off} sc1\ns_mov_b64 exec, -1')
def hstamp(n):
    if opt('hstamp'): a(f's_memtime s[{60+2*nst.index(n)}:{61+2*nst.index(n)}]')
PFO = f'''s_mov_b32 exec_lo, -1
s_mov_b32 exec_hi, 0xff
buffer_load_dword v{H+10}, v{H+8}, {SO}, s93 offen
buffer_load_dword v{H+11}, v{H+8}, {SO}, s92 offen'''
a('L_hk:')
if opt('prio', 1): a('s_setprio 3')
for i in range(4): a(f'v_mov_b32 v{vZ+i}, 0')
a(f"""
s_lshl_b32 {sGi}, {sSig}, 5
s_add_u32 {sGi}, {sGi}, {sM}
s_lshl_b32 s97, {sGi}, 4
s_add_u32 s97, s97, {FLAGS}
s_mul_i32 s94, {sGi}, 5120
s_add_u32 {sCl}, s94, {H2BASE+BUF}
s_add_u32 s94, s94, {H1BASE}
v_lshlrev_b32 v{H+18}, 8, v{vL16}
s_mov_b64 exec, 3
s_waitcnt lgkmcnt(0)
{WSADD}
buffer_load_dword v{H+16}, v{H+18}, {SWS}, s97 offen
s_mov_b64 exec, -1
v_lshlrev_b32 v{H+4}, 3, v{vL16}
v_min_u32 v{H+21}, 4992, v{H+4}
s_lshl_b32 s7, {sSig}, 9
s_add_u32 s7, s7, {HF}
{'' if opt('nopf') else f'buffer_load_dword v{H+27}, v{H+21}, {SWS}, s94 offen'}
v_min_u32 v{H+21}, 384, v{H+4}
buffer_load_dword v{H+28}, v{H+21}, {SWS}, s7 offen
""")
a('L_hk2:')
a(f"""
s_add_u32 s98, s94, {H1STR}
s_getreg_b32 s6, hwreg(HW_REG_XCC_ID, 0, 4)
s_mov_b32 s92, {FLAGS+0x1000}
s_mov_b32 s93, {FLAGS+0x1400}
s_mov_b32 s95, {FLAGS+0x1800}
s_mov_b32 s96, {FLAGS+0x1c00}
s_mov_b32 s50, 0x9e3779b1
s_mov_b32 s51, 0x7f4a7c15
v_mov_b32 v{H+1}, {L_MODE}
ds_write_b32 v{H+1}, v{vZ} offset:4
s_lshr_b32 s52, {sM}, 3
s_lshl_b32 s52, s52, 8
s_add_u32 s52, s52, {sSig}
s_mul_i32 s52, s52, 1280
s_and_b32 s53, {sM}, 7
s_mul_i32 s53, s53, 160
s_add_u32 s52, s52, s53
s_add_u32 s52, s52, {H2BASE}
s_movk_i32 s53, 10080
s_lshl_b32 s54, {sSig}, 9
s_add_u32 s54, s54, {FLAGS}
""")
for i in range(5):
    a(f"""v_add_u32 v{H+22+i}, {1024*i}, v{vL16}
v_mul_u32_u24 v{H+21}, 205, v{H+22+i}
v_lshrrev_b32 v{H+21}, 15, v{H+21}
v_mad_u32_u24 v{H+22+i}, v{H+21}, s53, v{H+22+i}""")
hstamp('top')
a(f's_waitcnt vmcnt({1 if opt("nopf") else 2}) lgkmcnt(0)')
fhash(H+5, H+16)
a(f'v_and_or_b32 v{H+5}, v{H+5}, -16, s6')
def flag_lane(lane, off):
    a(f's_mov_b64 exec, {1 << lane}\ns_waitcnt vmcnt(0)\nbuffer_store_dword v{H+5}, v{H+18}, {SWS}, s97 offen offset:{off} sc1\ns_mov_b64 exec, -1')
def hs_issue():
    for i, r in enumerate(('s92', 's93', 's95', 's96')): a(f'buffer_load_dwordx2 {v2(H+8+2*i)}, v{vL16}, {SWS}, {r} offen sc1')
hstamp('bar1')
a(f's_mov_b64 exec, 1\nbuffer_store_dword v{H+5}, v{H+18}, {SWS}, s97 offen offset:4 sc1\nv_mov_b32 v{H+1}, {L_OWN}\nds_write_b32 v{H+1}, v{H+5}\ns_mov_b64 exec, -1')
hstamp('s1w')
a(f'v_lshlrev_b32 v{H+19}, 17, v{vL16}\ns_lshl_b32 s7, s2, 7\ns_mov_b64 exec, 3\nbuffer_load_dword v{H+20}, v{H+19}, {SO}, s7 offen\ns_mov_b64 exec, -1')
if opt('wst', 0): a(f's_mov_b64 exec, 62\nbuffer_load_dword v{H+29}, v{H+19}, {SWS}, s7 offen\ns_mov_b64 exec, -1')
a(f"""
s_barrier
s_barrier
s_mov_b32 exec_hi, 0
buffer_load_dwordx3 v[{H}:{H+2}], v{vL16}, {SWS}, s54 offen sc1
s_mov_b64 exec, -1
""")
if opt('clate'): a('s_barrier')
for i in range(5): a(f'buffer_store_dwordx4 {vr(vZ)}, v{H+22+i}, {SWS}, s52 offen sc1')
clean5(sCl); clean5('s98', '')
a(f's_add_u32 {sCl}, {sCl}, {BUF}')
if not opt('clate'): a('s_barrier')
a('s_mov_b32 exec_hi, 0\ns_waitcnt vmcnt(15)')
hstamp('bar2')
hs_group('L_hs', False, True)
a(f's_cmp_lg_u32 vcc_lo, 0\ns_cselect_b32 {sMode}, 1, {FORCE_SLOW}')
hstamp('h1st')
a(f"""
v_mov_b32 v{H}, {sMode}
v_mov_b32 v{H+1}, {L_MODE}
ds_write_b32 v{H+1}, v{H}
s_cmp_eq_u32 {sMode}, 0
s_cbranch_scc1 L_hk_go
""")
clean5('s98')
a('L_hk_go:\ns_waitcnt lgkmcnt(0)\ns_barrier')
flag_lane(1, 4)
a('s_barrier')
hs_all('L_hs2')
a(f'v_mov_b32 v{H}, 1\nv_mov_b32 v{H+1}, {L_GO}\nds_write_b32 v{H+1}, v{H}')
hstamp('h1ok')
a('s_barrier')
if opt('h3', 1):
    a(f's_add_u32 {sCl}, {sCl}, {BUF}'); clean5(sCl)
a(f"""
v_add_u32 v{H+16}, 1, v{H+16}
s_lshl_b32 s6, {sSig}, 2
s_lshr_b32 s6, 0x9654d210, s6
s_and_b32 s6, s6, 15
s_lshl_b32 {sG}, {sM}, 4
s_add_u32 {sG}, {sG}, s6
s_cmp_eq_u32 {sSig}, 0
s_cselect_b32 s7, 248, 0
s_cmp_ge_u32 {sM}, 16
s_cselect_b32 s7, s7, 0
s_sub_u32 {sG}, {sG}, s7
s_sub_u32 s92, 0, {sG}
s_and_b32 s92, s92, 511
s_cmp_eq_u32 {sG}, 0
s_cselect_b32 s92, 256, s92
s_mul_i32 s92, s92, 1280
s_mul_i32 s93, {sG}, 1280
s_mov_b32 s96, {655360-1280}
v_mul_u32_u24 v{H+8}, 205, v{vL16}
v_lshrrev_b32 v{H+8}, 15, v{H+8}
v_lshlrev_b32 v{H+9}, 3, v{vL16}
v_mad_u32_u24 v{H+8}, v{H+8}, s96, v{H+9}
s_barrier
s_waitcnt vmcnt(0)
s_barrier
s_barrier
{PFO if opt('pfo') == 2 else ''}
s_mov_b64 exec, 3
buffer_store_dword v{H+16}, v{H+18}, {SWS}, s97 offen sc1
{'s_barrier' + chr(10) + 's_barrier' + chr(10) + 's_barrier' + chr(10) + PFO if opt('pfo') == 3 else ''}
""")
if opt('hstamp'): stamp_dump(True)
a('s_endpgm\nL_codeend:')

if opt('hfront', 1):
    li = [k for k, i in enumerate(a.ins) if i.text in ('L_hk:', 'L_hk2:')]
    hk = a.ins[li[0]:li[1]]
    rest = a.ins[:li[0]] + a.ins[li[1]:]
    b = [k for k, i in enumerate(rest) if i.text == 's_cbranch_scc1 L_hk'][0]
    a.ins = rest[:b] + [Ins('s_cbranch_scc0 L_main')] + hk + [Ins('s_branch L_hk2'), Ins('L_main:')] + rest[b+1:]
if opt('nodma'): a.ins = [i for i in a.ins if not i.op.startswith('global_load_lds')]
if opt('align', 1): print('align', align_pass(a, KNAME + ':\n'))
hdr = open('interleave_layers__spectral_fnet__spectral_fnet__prompt.s.ref').read().split('; Override')[0]
out = hdr + ('; STAMPS ' + ' '.join(nst) + '\n' if STAMPS else '') + f'; @launch grid=(256,1,1) block=(320,1,1) lds={LDS_BYTES}\n'
out += f'.amdgcn_target "amdgcn-amd-amdhsa--gfx950"\n.text\n.globl {KNAME}\n.p2align 8\n.type {KNAME},@function\n{KNAME}:\n'
out += a.text()
if RP:
    out = out.replace('; @launch grid=(256,1,1) block=(320,1,1) lds=', f'; @launch kernel={KNAME} grid=(256,1,1) block=(320,1,1) lds=').replace('\n.amdgcn_target', '\n; @launch kernel=reveal_kernel grid=(1,1,1) block=(256,1,1) lds=64\n.amdgcn_target', 1)
    out += f'''.globl reveal_kernel
.p2align 8
.type reveal_kernel,@function
reveal_kernel:
  s_cmp_lg_u32 s2, 0
  s_cbranch_scc1 LR_end
  s_load_dwordx2 s[8:9], s[0:1], 96
  s_mov_b32 s10, {WS_BYTES}
  s_mov_b32 s11, 0x20000
  s_mov_b32 s3, {STAMP_OFF}
  v_lshlrev_b32 v1, 3, v0
  v_mov_b32 v4, 0
  v_mov_b32 v5, -1
  v_mov_b32 v6, {0 if opt('rpmax', 1) else -1}
  ds_write_b32 v4, v5
  ds_write_b32 v4, v6 offset:4
  s_waitcnt lgkmcnt(0)
  buffer_load_dwordx2 v[2:3], v1, s[8:11], s3 offen
  s_barrier
  s_waitcnt vmcnt(0)
  ds_min_u32 v4, v2
  ds_{'max' if opt('rpmax', 1) else 'min'}_u32 v4, v3 offset:4
  s_waitcnt lgkmcnt(0)
  s_barrier
  ds_read_b64 v[2:3], v4
  s_waitcnt lgkmcnt(0)
  v_sub_u32 v2, v3, v2
  v_min_u32 v2, 5000, v2
  v_mul_u32_u24 v2, 10, v2
  s_memrealtime s[12:13]
  v_readfirstlane_b32 s16, v2
  s_waitcnt lgkmcnt(0)
LR_spin:
  s_memrealtime s[14:15]
  s_waitcnt lgkmcnt(0)
  s_sub_u32 s17, s14, s12
  s_cmp_lt_u32 s17, s16
  s_cbranch_scc1 LR_spin
LR_end:
  s_endpgm
'''
out += f'''.section .rodata,"a"
.p2align 6
.amdhsa_kernel {KNAME}
  .amdhsa_next_free_vgpr 256
  .amdhsa_next_free_sgpr 102
  .amdhsa_accum_offset 256
  .amdhsa_group_segment_fixed_size 0
  .amdhsa_kernarg_size 104
  .amdhsa_user_sgpr_count 2
  .amdhsa_user_sgpr_kernarg_segment_ptr 1
  .amdhsa_system_sgpr_workgroup_id_x 1
.end_amdhsa_kernel
''' + '''.p2align 6
.amdhsa_kernel reveal_kernel
  .amdhsa_next_free_vgpr 16
  .amdhsa_next_free_sgpr 32
  .amdhsa_accum_offset 16
  .amdhsa_group_segment_fixed_size 0
  .amdhsa_kernarg_size 104
  .amdhsa_user_sgpr_count 2
  .amdhsa_user_sgpr_kernarg_segment_ptr 1
  .amdhsa_system_sgpr_workgroup_id_x 1
.end_amdhsa_kernel
''' * (1 if RP else 0) + '''.p2align 10
tbl:
'''
for f in blocks:
    for i in range(0, 256, 8): out += '.long ' + ','.join(f'{int(x):#x}' for x in f[i:i+8]) + '\n'
open(sys.argv[1], 'w').write(out)
print('instrs', len(a.ins), 'nops inserted', a.nops, 'table blocks', len(blocks), 'bytes', len(out))
```

```python
import sys, struct
import numpy as np
from design import *
from asmlib import Asm, align_pass, Ins

KNAME = "interleave_layers__spectral_fnet__spectral_fnet__prompt_kernel"
opts = dict(a.split('=') for a in sys.argv[2:] if '=' in a)
def opt(k, d=0): return int(opts.get(k, d))
STAMPS = opt('stamps'); FORCE_SLOW = opt('slow'); NLAYER = opt('layers', 4); SPIN = opt('spin', 200000); SLAYER = opt('slayer')
SST = opt('sstart')
def f2u(f): return struct.unpack('<I', struct.pack('<f', f))[0]
BUF = 0x200000 if opt('wst', 0) else 1310720
FLAGS = 4096; H1BASE = 0x40000; H1STR = 0x200000; H2BASE = 0x410000; WS_BYTES = H2BASE + 3*BUF + 1310720
STAMP_OFF = WS_BYTES
if STAMPS or opts.get('rp'): WS_BYTES += 256*128
L_V = 0; L_ST = 9600; L_MODE = 9856; L_GO = 9860; L_OWN = 9864; L_JUNK = 9872; L_EXP = 15104; HF = FLAGS + 0x2000; L_RT = 9984; L_XT = 15360; L_TB = 25600; L_CM = L_TB + 16*1024; LDS_BYTES = L_CM + 8192
OOB = 0x40000000
XF = ' ' + opts.get('xf', 'nt').replace('+', ' ')
OF = ' ' + opts['of'].replace('+', ' ') if 'of' in opts else ''
WSADD = f's_add_u32 s16, s16, {opt("wsoff") << 20}\ns_addc_u32 s17, s17, 0' if opt('wsoff') else ''
def vaddr(col): return (col % 40)*80 + (col//40)*4
def opA(M):
    h = M.astype(np.float16).view(np.uint16).astype(np.uint32)
    out = np.zeros((64, 4), np.uint32)
    for l in range(64):
        r = h[l % 16, 8*(l//16):8*(l//16)+8]
        out[l] = r[0::2] | (r[1::2] << 16)
    return out
def opB(N): return opA(N.T)
blocks = []
def add(b): blocks.append(np.asarray(b, np.uint32).reshape(256)); return len(blocks)-1
n_ = S1_mats(False); s_ = S1_mats(True)
def a3_idx(sig, m):
    g = unit_g(sig, m)
    if g == 0: return 9
    if g == 128: return 8
    return (g >> 7) + (0 if g % 4 == 1 else 4)
a3 = {}
for sig in range(8):
    for m in range(32):
        M = A3(sig, m)*HSCALE; i = a3_idx(sig, m)
        if i in a3: assert np.allclose(a3[i], M), (sig, m)
        a3[i] = M
for M in (n_[0], n_[1], n_[2], E_mat(False)): add(opA(M))
T_A3L = add(opA(a3[0]))
Bre, Bim = B1_mats(); T_B1 = add(opB(Bre)); add(opB(Bim))
T_A2 = len(blocks)
M = A2_mats6(0)/HSCALE; M2 = A2_mats6(20)/HSCALE
sgn = np.array([(-1.0)**((k % 8)//2) for k in range(32)])
assert np.allclose(M2, M*sgn)
for blk in range(3):
    for ch in range(3): add(opA(M[blk, ch]))
assert len(blocks) == 16
T_S1S = len(blocks)
for M in (s_[0], s_[1], s_[2], E_mat(True)): add(opA(M))
T_DEL = add(opA(s_[3])); add(opA(s_[4]))
T_A3 = len(blocks)
for i in range(10): add(opA(a3[i]))
T_ADDR = len(blocks)
at = np.zeros((2, 256, 4), np.uint32)
for ty, (sig, m) in enumerate(((2, 1), (1, 0))):
    for tid in range(256):
        w, l = divmod(tid, 64); n, mq = l % 16, l//16
        v = [vaddr(acol(sig, m, mq//2, 64*w+4*n+2*bop+(mq % 2))) for bop in range(2)]
        v += [6400 + vaddr(acol(sig, m, mq % 2, 64*w+4*n+2*(mq//2)+sub)) for sub in range(2)]
        k5 = 256 + 16*w + n
        if mq < 2: v += [vaddr(acol(sig, m, mq, k5)), 3200 + vaddr(acol(sig, m, mq, k5))]
        elif mq == 2: v += [6400 + vaddr(acol(sig, m, 0, k5)), 6400 + vaddr(acol(sig, m, 1, k5))]
        else: v += [L_JUNK + 4*n, L_JUNK + 4*n]
        at[ty, tid, :3] = [v[0] | (v[1] << 16), v[2] | (v[3] << 16), v[4] | (v[5] << 16)]
for i in range(8): add(at.reshape(-1)[256*i:256*i+256])
for i in range(640): assert (i*205) >> 14 == i//80
for i in range(320): assert (i*205) >> 11 == i//10

vL16, vH1s2, vH2ld, vH2ld5, vC1ld, vRtW, vRtR, vRtR2, vH2st, vH2st2, vStR, vStW = range(1, 13)
vVrd, vVrd2, vEps = 13, 14, 15
vV = 16
vXT = 22
vMask0 = 27; vG = 28
vTB = 31
vZc = 248
X = 32
A3r = 52; S1r = 56; B1r = 72; TWc = 80; TWs = 92; A2r = 104; CM = 140; DEL = 172
Bo = 180
T = 192
vZ = 4
def vr(b, n=4): return f'v[{b}:{b+n-1}]'
def v2(b): return f'v[{b}:{b+1}]'
sW, sSig, sM, sG, sType, sLayer, sMode = 's3', 's4', 's5', 's26', 's27', 's29', 's30'
sH1st, sH1ld0, sH1ld1, sH2st, sH2ld, sTag, sFlip, sSpin = 's31', 's32', 's33', 's34', 's35', 's36', 's37', 's38'
sCl, sGi, sInv, sFix = 's44', 's46', 's40', 's41'
sSlot = 's[42:43]'
SX, SO, SWS, STB = 's[8:11]', 's[12:15]', 's[16:19]', 's[24:25]'
HW = 4
a = Asm()
nst = []
RP = opts.get('rp'); RPL = opt('rpl')
def stamp(name, inloop=False, real=False):
    if RP:
        if name == 'start': a('s_memrealtime s[60:61]')
        if name == RP:
            if inloop: a('s_memrealtime s[90:91]\ns_waitcnt lgkmcnt(0)\ns_movreld_b32 s80, s90')
            else: a('s_memrealtime s[62:63]')
        return
    if SST and inloop and name not in ('top', 'bar1'): return
    if opt('span') and name not in ('start', 'rstart', 'end', 'rend'): return
    if STAMPS:
        i = len(nst); nst.append(name)
        assert i < 16
        ins = f's_{"memrealtime" if real else "memtime"} s[{60+2*i}:{61+2*i}]'
        a(ins)
LATE = ('h2ack', 'h2ok')
def sst(name):
    if SST or RP: stamp(name)
def clean5(soff, fl=' sc1'):
    for i in range(4): a(f'buffer_store_dwordx4 {vr(vZ)}, v{vL16}, {SWS}, {soff} offen offset:{1024*i}{fl}')
    a(f's_add_u32 s7, {soff}, 4096\nbuffer_store_dwordx4 {vr(vZ)}, v{vL16}, {SWS}, s7 offen{fl}')
def mfma(d, A, B, C): a(f'v_mfma_f32_16x16x32_f16 {vr(d)}, {vr(A)}, {vr(B)}, {"0" if C is None else vr(C)}')

stamp('start'); stamp('rstart', real=True)
n_v, kq_v = T+10, T+11
a(f"""
s_load_dwordx2 s[16:17], s[0:1], 96
s_load_dwordx2 s[8:9], s[0:1], 0
s_load_dwordx2 s[12:13], s[0:1], 80
v_lshrrev_b32 v{T+1}, 6, v0
s_cmp_ge_u32 s2, 256
s_cbranch_scc1 L_end
""")
if opt('cpref', 1):
    a(f"""
s_getpc_b64 s[24:25]
v_lshlrev_b32 v{T+2}, 7, v0
v_min_u32 v{T+2}, L_codeend-{KNAME}-64, v{T+2}
global_load_dword v255, v{T+2}, s[24:25]
""")
a(f"""
v_readfirstlane_b32 {sW}, v{T+1}
v_and_b32 v{T}, 63, v0
s_and_b32 {sSig}, s2, 7
s_lshr_b32 {sM}, s2, 3
v_lshlrev_b32 v{vL16}, 4, v{T}
s_mov_b32 s18, {WS_BYTES}
s_mov_b32 s19, 0x20000
s_mov_b32 s14, 2621440
s_mov_b32 s15, 0x20000
s_cmp_eq_u32 {sW}, {HW}
s_cbranch_scc1 L_hk
s_lshl_b32 s6, {sSig}, 2
s_lshr_b32 s6, 0x9654d210, s6
s_and_b32 s6, s6, 15
s_lshl_b32 {sG}, {sM}, 4
s_add_u32 {sG}, {sG}, s6
s_cmp_eq_u32 {sSig}, 0
s_cselect_b32 s7, 248, 0
s_cmp_ge_u32 {sM}, 16
s_cselect_b32 s7, s7, 0
s_sub_u32 {sG}, {sG}, s7
s_and_b32 {sType}, {sG}, 1
""")
a(f"""
s_getpc_b64 s[24:25]
s_add_u32 s24, s24, tbl@rel32@lo+4
s_addc_u32 s25, s25, tbl@rel32@hi+12
s_lshr_b32 s7, {sG}, 7
s_lshl_b32 s94, {sType}, 2
s_sub_u32 s7, s7, s94
s_add_u32 s7, s7, {4 + T_A3}
s_cmp_eq_u32 {sG}, 128
s_cselect_b32 s7, {8 + T_A3}, s7
s_cmp_eq_u32 {sG}, 0
s_cselect_b32 s7, {9 + T_A3}, s7
s_cselect_b32 s94, {T_S1S*1024}, 0
s_lshl_b32 s7, s7, 10
s_lshl_b32 s95, {sW}, 12
s_cmp_eq_u32 {sW}, 0
s_cselect_b32 s94, s94, s95
s_cmp_eq_u32 {sW}, 1
s_cselect_b32 s7, s7, s94
s_add_u32 m0, s95, {L_TB}
v_add_u32 v{T+2}, s94, v{vL16}
v_add_u32 v{T+3}, s7, v{vL16}
s_lshl_b32 s7, {sType}, 12
s_add_u32 s7, s7, {T_ADDR*1024}
global_load_lds_dwordx4 v{T+3}, {STB}
global_load_lds_dwordx4 v{T+2}, {STB} offset:1024
global_load_lds_dwordx4 v{T+2}, {STB} offset:2048
global_load_lds_dwordx4 v{T+2}, {STB} offset:3072
v_lshl_add_u32 v{T+2}, v0, 4, s7
global_load_dwordx3 v[{vV}:{vV+2}], v{T+2}, {STB}
s_or_b32 {sFix}, s2, {sW}
""")
a(f"""
s_cmp_lg_u32 {sFix}, 0
s_cbranch_scc1 L_nodel
v_add_u32 v{T+2}, {T_DEL*1024}, v{vL16}
global_load_dwordx4 {vr(DEL)}, v{T+2}, {STB}
global_load_dwordx4 {vr(DEL+4)}, v{T+2}, {STB} offset:1024
L_nodel:
""")
a(f"""
s_sub_u32 s92, 0, {sG}
s_and_b32 s92, s92, 511
s_cmp_eq_u32 {sG}, 0
s_cselect_b32 s92, 256, s92
s_mul_i32 s92, s92, 1280
s_mul_i32 s93, {sG}, 1280
s_sub_u32 s92, s92, s93
s_sub_u32 s92, s92, {4*655360}
s_mov_b32 s10, 2621440
s_mov_b32 s11, 0x20000
s_mov_b32 s96, 0x9fb00
v_lshlrev_b32 v{vRtR}, 4, v0
""")
for i in range(3):
    a(f"""v_add_u32 v{T+12}, {256*i}, v0
v_mul_u32_u24 v{T+12}, 205, v{T+12}
v_lshrrev_b32 v{T+12}, 14, v{T+12}
v_mov_b32 v{T+13}, s92
v_cmp_le_u32 vcc, 4, v{T+12}
v_mad_u32_u24 v{T+12}, v{T+12}, s96, v{vRtR}
v_cndmask_b32 v{T+13}, 0, v{T+13}, vcc
v_add3_u32 v{vG+i}, v{T+12}, v{T+13}, s93""".replace(f'v_add_u32 v{T+12}, 0, v0\nv_mul_u32_u24 v{T+12}, 205, v{T+12}', f'v_mul_u32_u24 v{T+12}, 205, v0'))
    if i < 2: a(f's_add_u32 s93, s93, 4096')
a(f"""
""")
sst('prek')
a(f"""
s_waitcnt lgkmcnt(0)
s_lshl_b32 s7, {sW}, 10
s_add_u32 m0, s7, {L_XT}
{WSADD or 's_nop 1'}
buffer_load_dwordx4 v{vG}, {SX}, 0 offen{XF} lds
s_add_u32 m0, s7, {L_XT+4096}
s_cmp_ge_u32 {sW}, 2
buffer_load_dwordx4 v{vG+1}, {SX}, 0 offen{XF} lds
s_cbranch_scc1 L_nox2
s_add_u32 m0, s7, {L_XT+8192}
s_nop 0
buffer_load_dwordx4 v{vG+2}, {SX}, 0 offen{XF} lds
s_branch L_x2
L_nox2:
v_mov_b32 v{vG+2}, {OOB}
buffer_load_dword v254, v{vG+2}, {SX}, 0 offen
L_x2:
""")
sst('xiss')
sst('dma')
a(f"""
v_and_b32 v{n_v}, 15, v0
v_bfe_u32 v{kq_v}, v0, 4, 2
s_mul_i32 s94, {sType}, 320
v_lshrrev_b32 v{T+13}, 1, v{kq_v}
v_mul_u32_u24 v{T+14}, s94, v{T+13}
s_lshl_b32 s92, {sW}, 5
v_add3_u32 v{T+12}, v{n_v}, v{T+14}, s92
s_and_b32 s92, {sW}, 1
s_lshl_b32 s92, s92, 3
s_lshr_b32 s93, {sW}, 1
s_lshl_b32 s93, s93, 5
s_add_u32 s92, s92, s93
s_add_u32 s92, s92, 256
v_lshrrev_b32 v{T+17}, 1, v{n_v}
v_and_b32 v{T+18}, 1, v0
v_add3_u32 v{T+17}, v{T+17}, v{T+14}, s92
v_lshl_add_u32 v{T+17}, v{T+18}, 4, v{T+17}
s_xor_b32 s94, {sType}, 1
v_and_b32 v{T+13}, s94, v{T+13}
v_xor_b32 v{T+13}, v{T+13}, v{kq_v}
v_add_u32 v{T+14}, 16, v{T+12}
v_and_b32 v{T+13}, 1, v{T+13}
v_add_u32 v{T+15}, 128, v{T+12}
v_cmp_eq_u32 vcc, 1, v{T+13}
v_add_u32 v{T+16}, 144, v{T+12}
s_mul_i32 s94, s94, 320
""")
ecol = [T+12, T+14, T+15, T+16, T+17]
for kl in range(5): a(f'v_sub_u32 v{T+18+kl}, 640, v{ecol[kl]}')
for kl in range(5): a(f'v_cndmask_b32 v{vXT+kl}, v{ecol[kl]}, v{T+18+kl}, vcc')
a(f"""
v_cmp_gt_u32 vcc, 2, v{kq_v}
v_mov_b32 v{T+17}, s94
v_and_b32 v{T+13}, 1, v{kq_v}
v_cndmask_b32 v{T+17}, 0, v{T+17}, vcc
v_cmp_eq_u32 vcc, 0, v{T+12}
v_mul_u32_u24 v{T+9}, 0x1400, v{T+13}
v_add_u32 v{T+14}, {L_XT}, v{T+9}
v_cndmask_b32 v{vXT}, v{vXT}, v{T+17}, vcc
v_cmp_ne_u32 vcc, 0, v{vXT}
""")
for kl in range(5): a(f'v_lshl_add_u32 v{vXT+kl}, v{vXT+kl}, 1, v{T+14}')
a(f'v_cndmask_b32 v{vMask0}, 0, -1, vcc')
for i in range(20): a(f'v_mov_b32 v{X+i}, 0')
for i in range(4): a(f'v_mov_b32 v{vZc+i}, 0')
a(f"""
s_lshr_b32 s95, {sM}, 3
s_lshl_b32 s7, s95, 2
s_lshr_b32 s7, 0x1120, s7
s_and_b32 s7, s7, 3
s_add_u32 s96, s6, 256
s_cmp_eq_u32 {sSig}, 0
s_cselect_b32 s96, 8, s96
s_lshl_b32 s94, {sW}, 4
s_add_u32 s6, s6, s94
s_add_u32 s96, s96, s94
v_lshl_add_u32 v{T+13}, v{n_v}, 2, s7
v_lshl_add_u32 v{T+14}, v{kq_v}, 6, s6
v_lshl_add_u32 v{T+15}, v{kq_v}, 6, s96
v_add_u32 v{T+12}, 64, v{T+13}
s_mov_b32 s94, {f2u(1/2048):#x}
""")
G = T+24
for hi in range(2):
    for ch in range(2): a(f'v_mul_u32_u24 v{G+2*(2*hi+ch)}, v{T+13-hi}, v{T+14+ch}')
for k in range(4): a(f'v_and_b32 v{G+2*k}, 0x7ff, v{G+2*k}')
for k in range(4): a(f'v_cvt_f32_u32 v{G+2*k}, v{G+2*k}')
for k in range(4): a(f'v_mul_f32 v{G+2*k}, s94, v{G+2*k}')
for k in range(4): a(f'v_sin_f32 v{G+2*k+1}, v{G+2*k}\nv_cos_f32 v{G+2*k}, v{G+2*k}')
for k in range(4): a(f'v_cvt_pk_f16_f32 v{G+8+2*k}, v{G+2*k}, v{G+2*k+1}\nv_cvt_pk_f16_f32 v{G+9+2*k}, -v{G+2*k+1}, v{G+2*k}')
a(f's_cmp_lg_u32 {sSig}, 0\ns_cbranch_scc1 L_cm_done')
for hi in range(2):
    b = G+8+4*hi
    a(f'v_mov_b32 v{b+1}, 0\nv_mov_b32 v{b+3}, v{b+2}\nv_mov_b32 v{b+2}, 0')
a(f"""
v_and_b32 v{T+17}, 1, v0
v_lshlrev_b32 v{T+17}, 4, v{T+17}
v_mov_b32 v{T+18}, 0x3c00
v_lshlrev_b32 v{T+17}, v{T+17}, v{T+18}
v_cmp_gt_u32 vcc, 16, v0
v_cndmask_b32 v{G+8}, v{G+8}, v{T+17}, vcc
v_cndmask_b32 v{G+12}, v{G+12}, v{T+17}, vcc
L_cm_done:
""")
sst('cm')
a(f'''
v_lshlrev_b32 v{T+12}, 2, v{kq_v}
v_mul_u32_u24 v{T+12}, v{T+12}, v{n_v}
v_cvt_f32_u32 v{T+12}, v{T+12}
v_cvt_f32_u32 v{T+13}, v{n_v}
v_mul_f32 v{T+12}, {f2u(1/640):#x}, v{T+12}
v_mul_f32 v{T+13}, {f2u(1/640):#x}, v{T+13}
''')
for blk in range(3):
    for i in range(4):
        k = 16*blk + i
        if k == 0: src = T+12
        else:
            src = T+14
            a(f'v_fmamk_f32 v{T+14}, v{T+13}, {f2u(float(k)):#x}, v{T+12}')
        a(f'v_cos_f32 v{TWc+4*blk+i}, v{src}\nv_sin_f32 v{TWs+4*blk+i}, v{src}')
a(f"""
s_mov_b32 {sInv}, {f2u(1/640):#x}
v_mov_b32 v{vEps}, {f2u(1e-5):#x}
v_mov_b32 v{Bo+10}, 0
v_mov_b32 v{Bo+11}, 0
s_mov_b32 {sLayer}, 0
s_mov_b32 {sTag}, 1
s_mov_b32 {sFlip}, 0
s_cmp_lt_u32 {sW}, 2
s_cselect_b64 {sSlot}, 1, 0
s_cselect_b32 s7, 3200, 0
s_cselect_b32 s52, 12, 8
s_cselect_b32 s53, 0, 32
s_lshl_b32 s7, s7, {sW}
v_lshlrev_b32 v{T+12}, 4, v{kq_v}
v_mul_u32_u24 v{vVrd}, 80, v{n_v}
v_add3_u32 v{vVrd}, v{vVrd}, v{T+12}, s7
v_and_b32 v{vVrd2}, 7, v0
v_mul_u32_u24 v{vVrd2}, 80, v{vVrd2}
s_add_u32 s7, s7, 2560
v_add3_u32 v{vVrd2}, v{vVrd2}, v{T+12}, s7
s_mul_i32 s54, s52, {sW}
s_lshl_b32 s54, s54, 2
s_add_u32 s54, s54, s53
s_sub_u32 s7, s52, 1
v_min_u32 v{T+13}, s7, v{n_v}
v_lshlrev_b32 v{T+13}, 2, v{T+13}
s_movk_i32 s7, 5120
v_mad_u32_u24 v{vC1ld}, v{kq_v}, s7, v{T+13}
v_mul_u32_u24 v{vRtW}, 160, v{n_v}
s_add_u32 s7, s54, {L_RT}
v_add3_u32 v{vRtW}, v{vRtW}, v{T+12}, s7
s_lshl_b32 s7, s52, 2
v_cmp_gt_u32 vcc, s7, v{T+12}
v_add_u32 v{T+13}, {L_XT}, v{vL16}
v_cndmask_b32 v{vRtW}, v{T+13}, v{vRtW}, vcc
v_mul_u32_u24 v{T+13}, 205, v0
v_lshrrev_b32 v{T+13}, 11, v{T+13}
v_mul_u32_u24 v{T+13}, 10080, v{T+13}
v_add_u32 v{vH2st}, v{T+13}, v{vRtR}
s_lshl_b32 s7, {sW}, 4
s_add_u32 s7, s7, 256
v_add_u32 v{T+13}, s7, v{n_v}
v_lshlrev_b32 v{vRtR2}, 4, v{T+13}
v_mul_u32_u24 v{T+13}, 205, v{T+13}
v_lshrrev_b32 v{T+13}, 11, v{T+13}
v_mul_u32_u24 v{T+13}, 10080, v{T+13}
v_add_u32 v{vH2st2}, v{T+13}, v{vRtR2}
v_cmp_eq_u32 vcc, 0, v{kq_v}
v_mov_b32 v{T+13}, {OOB}
v_cndmask_b32 v{vH2st2}, v{T+13}, v{vH2st2}, vcc
v_add_u32 v{vRtR}, {L_RT}, v{vRtR}
v_add_u32 v{vRtR2}, {L_RT}, v{vRtR2}
v_lshrrev_b32 v{vH1s2}, 1, v{vL16}
v_add_u32 v{vH1s2}, {1024-128}, v{vH1s2}
v_add_u32 v{T+14}, -1, v{kq_v}
v_cmp_gt_u32 vcc, 2, v{T+14}
v_cndmask_b32 v{vH1s2}, v{T+13}, v{vH1s2}, vcc
v_and_b32 v{T+13}, 1, v{kq_v}
v_lshlrev_b32 v{T+13}, 7, v{T+13}
v_and_b32 v{T+14}, 3, v0
v_lshl_add_u32 v{vStR}, v{T+14}, 5, v{T+13}
v_add_u32 v{vStR}, {L_ST}, v{vStR}
v_bfe_u32 v{T+14}, v0, 2, 1
v_lshl_add_u32 v{T+13}, v{T+14}, 6, v{T+13}
v_bfe_u32 v{T+14}, v0, 3, 1
v_lshl_add_u32 v{T+13}, v{T+14}, 5, v{T+13}
v_bfe_u32 v{T+14}, v0, 5, 1
v_lshl_add_u32 v{T+13}, v{T+14}, 2, v{T+13}
s_lshl_b32 s7, {sW}, 3
s_add_u32 s7, s7, {L_ST}
v_add_u32 v{vStW}, s7, v{T+13}
s_and_b32 s93, {sM}, 7
s_mul_i32 s93, s93, 160
s_lshl_b32 s94, {sSig}, 7
s_add_u32 s92, s94, {sM}
s_mul_i32 s92, s92, 1280
s_mul_i32 {sH1st}, {sW}, 40960
s_add_u32 {sH1st}, {sH1st}, s92
s_add_u32 {sH1st}, {sH1st}, {H1BASE}
s_lshl_b32 s96, s95, 5
s_add_u32 s96, s96, s94
s_mul_i32 {sH1ld0}, s96, 1280
s_add_u32 {sH1ld0}, {sH1ld0}, s93
s_add_u32 s96, s54, {H1BASE}
s_add_u32 {sH1ld0}, {sH1ld0}, s96
s_add_u32 {sH1ld1}, {sH1ld0}, 20480
s_lshl_b32 s96, s95, 8
s_add_u32 s96, s96, {sSig}
s_mul_i32 {sH2st}, s96, 1280
s_add_u32 {sH2st}, {sH2st}, s93
s_add_u32 {sH2st}, {sH2st}, {H2BASE}
s_mov_b32 {sH2ld}, {H2BASE-BUF}
s_lshl_b32 s7, {sSig}, 2
s_add_u32 s55, s7, {sW}
s_lshl_b32 s55, s55, 5
s_add_u32 s55, s55, {sM}
s_lshl_b32 s55, s55, 2
s_add_u32 s55, s55, {HF}
s_add_u32 s56, s95, s7
s_lshl_b32 s56, s56, 7
s_add_u32 s56, s56, {HF}
s_add_u32 {sCl}, {sH2st}, {2*BUF}
s_and_b32 s7, {sG}, 127
s_lshr_b32 s7, s7, 2
s_sub_u32 s94, 0, {sG}
s_and_b32 s94, s94, 127
s_lshr_b32 s94, s94, 2
s_bfe_u32 s95, {sG}, 0x10001
s_cmp_eq_u32 {sType}, 1
s_cselect_b32 s94, s7, s94
s_cselect_b32 s96, 2, s95
s_cselect_b32 s95, 3, s95
s_lshl_b32 s96, s96, 5
s_lshl_b32 s95, s95, 5
s_add_u32 s7, s7, s96
s_add_u32 s94, s94, s95
s_mul_i32 s7, s7, 10240
s_mul_i32 s94, s94, 10240
v_mov_b32 v{T+12}, s7
v_mov_b32 v{T+13}, s94
v_cmp_le_u32 vcc, 2, v{kq_v}
s_lshl_b32 s95, {sW}, 8
s_lshl_b32 s96, {sW}, 6
v_cndmask_b32 v{T+12}, v{T+12}, v{T+13}, vcc
s_add_u32 s96, s96, 1024
v_add_u32 v{T+12}, v{T+12}, v{T+9}
v_lshlrev_b32 v{T+13}, 4, v{n_v}
v_add3_u32 v{vH2ld}, v{T+12}, v{T+13}, s95
v_lshlrev_b32 v{T+13}, 2, v{n_v}
v_add3_u32 v{vH2ld5}, v{T+12}, v{T+13}, s96
v_add_u32 v{vTB}, {L_TB}, v{vL16}
v_lshrrev_b32 v252, 2, v{vL16}
v_and_b32 v252, 127, v252
s_lshl_b32 s7, {sW}, 2
v_add_u32 v{T+2}, s7, v{vTB}
""")
sst('prex')
for hi in range(2):
    for ch in range(2):
        for rio in range(2):
            a(f'ds_write_b32 v{T+2}, v{G+8+2*(2*hi+ch)+rio} offset:{L_CM-L_TB+((hi*2+rio)*2+ch)*1024}')
a('s_waitcnt vmcnt(3) lgkmcnt(0)\ns_barrier')
sst('bart')
for i in range(4): a(f'ds_read_b128 {vr(S1r+4*i)}, v{vTB} offset:{1024*i}')
for i in range(9): a(f'ds_read_b128 {vr(A2r+4*i)}, v{vTB} offset:{1024*(T_A2+i)}')
for i in range(2): a(f'ds_read_b128 {vr(B1r+4*i)}, v{vTB} offset:{1024*(T_B1+i)}')
for i in range(8): a(f'ds_read_b128 {vr(CM+4*i)}, v{vTB} offset:{L_CM-L_TB+1024*i}')
a(f'ds_read_b128 {vr(A3r)}, v{vTB} offset:{1024*T_A3L}')
for i in (2, 1, 0): a(f'v_lshrrev_b32 v{vV+2*i+1}, 16, v{vV+i}\nv_and_b32 v{vV+2*i}, 0xffff, v{vV+i}')
a(f's_cmp_eq_u32 {sW}, 3\ns_cselect_b32 s7, 0x80008000, 0\ns_waitcnt lgkmcnt(11)')
for i in range(18): a(f'v_xor_b32 v{A2r+2*i+1}, s7, v{A2r+2*i+1}')
a('s_waitcnt vmcnt(0)\ns_barrier')
sst('bar0')
for kl in range(5):
    for j in range(4): a(f'ds_read_u16_d16_hi v{X+4*kl+j}, v{vXT+kl} offset:{1280*j}')
a('s_waitcnt lgkmcnt(0)')
Sx, Qx = T, T+4
if RP: a('s_mov_b32 m0, 0')
a('L_loop:')
stamp('top', True)
if opt('sca', 0):
    for j in range(4): a(f'v_mul_f32 v{Qx+j}, v{X+16+j}, v{X+16+j}')
    for j in range(4): a(f'v_add_f32 v{Sx+j}, v{X+16+j}, v{X+j}')
    for j in range(4): a(f'v_fmac_f32 v{Qx+j}, v{X+j}, v{X+j}')
else:
    for p in range(2): a(f'v_pk_mul_f32 {v2(Qx+2*p)}, {v2(X+16+2*p)}, {v2(X+16+2*p)}')
for kl in range(1 if opt('sca', 0) else 0, 4):
    for p in range(2):
        b = X+4*kl+2*p
        a(f'v_pk_add_f32 {v2(Sx+2*p)}, {v2(X+16+2*p) if kl == 0 else v2(Sx+2*p)}, {v2(b)}')
        a(f'v_pk_fma_f32 {v2(Qx+2*p)}, {v2(b)}, {v2(b)}, {v2(Qx+2*p)}')
for j in range(4): a(f'v_permlane32_swap_b32 v{Sx+j}, v{Qx+j}')
for p in range(2): a(f'v_pk_add_f32 {v2(Sx+2*p)}, {v2(Sx+2*p)}, {v2(Qx+2*p)}')
def dpp(d, s, ctl, bank): a(f'v_add_f32_dpp v{d}, v{s}, v{s} {ctl} row_mask:0xf bank_mask:{bank:#x}')
dpp(Sx, Sx, 'row_ror:8', 3); dpp(Sx, Sx+1, 'row_ror:8', 12); dpp(Sx+2, Sx+2, 'row_ror:8', 3); dpp(Sx+2, Sx+3, 'row_ror:8', 12)
dpp(Sx, Sx, 'row_shl:4', 5); dpp(Sx, Sx+2, 'row_shr:4', 10)
dpp(Sx, Sx, 'quad_perm:[1,0,3,2]', 15); dpp(Sx, Sx, 'quad_perm:[2,3,0,1]', 15)
a(f"""
ds_write_b32 v{vStW}, v{Sx}
s_waitcnt lgkmcnt(0)
s_barrier
""")
stamp('bar1', True)
P = T+8; RS = T+16; NB = T+20
a(f"""
ds_read_b128 {vr(P)}, v{vStR}
ds_read_b128 {vr(P+4)}, v{vStR} offset:16
s_waitcnt lgkmcnt(1)
v_pk_add_f32 {v2(P)}, {v2(P)}, {v2(P+2)}
s_waitcnt lgkmcnt(0)
v_pk_add_f32 {v2(P+4)}, {v2(P+4)}, {v2(P+6)}
v_pk_add_f32 {v2(P)}, {v2(P)}, {v2(P+4)}
v_mul_f32 v{P}, {sInv}, v{P}
v_fma_f32 v{P+1}, v{P+1}, {sInv}, v{vEps}
v_fma_f32 v{P+1}, -v{P}, v{P}, v{P+1}
v_max_f32 v{P+1}, v{P+1}, v{vEps}
v_rsq_f32 v{P+1}, v{P+1}
v_mul_f32 v{P}, -v{P}, v{P+1}
""")
for j in range(4): a(f'v_mov_b32_dpp v{RS+j}, v{P+1} quad_perm:[{j},{j},{j},{j}] row_mask:0xf bank_mask:0xf')
for j in range(4): a(f'v_mov_b32_dpp v{NB+j}, v{P} quad_perm:[{j},{j},{j},{j}] row_mask:0xf bank_mask:0xf')
N_ = T+24
D0, D1, DC, DE = T, T+4, T+8, T+12
for kl in range(5):
    for p in range(2): a(f'v_pk_fma_f32 {v2(N_+4*kl+2*p)}, {v2(X+4*kl+2*p)}, {v2(RS+2*p)}, {v2(NB+2*p)}')
def cvtn(kl):
    for p in range(2): a(f'v_cvt_pk_f16_f32 v{Bo+2*kl+p}, v{N_+4*kl+2*p}, v{N_+4*kl+2*p+1}')
cvtn(0); cvtn(1); cvtn(2)
mfma(D0, S1r, Bo, None); cvtn(3); mfma(DC, S1r+4, Bo, None); cvtn(4)
mfma(D1, S1r, Bo+4, None); mfma(DC, S1r+8, Bo+4, DC)
a(f's_cmp_lg_u32 {sFix}, 0')
W_ = T+44
mfma(DE, S1r+12, Bo+8, None)
a(f'v_cvt_pk_f16_f32 v{W_}, v{D0}, v{D0+1}')
a(f's_cbranch_scc0 L_fix\nL_nofix:')
a(f"""
v_cvt_pk_f16_f32 v{W_+1}, v{D0+2}, v{D0+3}
ds_write_b32 v{vV}, v{W_}
ds_write_b32 v{vV}, v{W_+1} offset:3200
v_cvt_pk_f16_f32 v{W_+2}, v{D1}, v{D1+1}
v_cvt_pk_f16_f32 v{W_+3}, v{D1+2}, v{D1+3}
v_cvt_pk_f16_f32 v{W_+4}, v{DC}, v{DC+1}
v_cvt_pk_f16_f32 v{W_+5}, v{DC+2}, v{DC+3}
ds_write_b32 v{vV+1}, v{W_+2}
ds_write_b32 v{vV+1}, v{W_+3} offset:3200
v_cvt_pk_f16_f32 v{W_+6}, v{DE}, v{DE+1}
v_cvt_pk_f16_f32 v{W_+7}, v{DE+2}, v{DE+3}
ds_write_b32 v{vV+2}, v{W_+4}
ds_write_b32 v{vV+3}, v{W_+5}
ds_write_b32 v{vV+4}, v{W_+6}
ds_write_b32 v{vV+5}, v{W_+7}
""")
stamp('s1w', True)
a(f's_cmp_eq_u32 {sLayer}, 0\ns_waitcnt lgkmcnt(0)\ns_barrier')
stamp('bar2', True)
Ad = T; Tr = T+12; Ti = T+24; B2 = Tr; O = T; Pt = T+36
a(f"""
ds_read_b128 {vr(Ad)}, v{vVrd}
ds_read_b128 {vr(Ad+4)}, v{vVrd} offset:1280
ds_read_b128 {vr(Ad+8)}, v{vVrd2}
s_cbranch_scc1 L_l0b
L_l0b_ret:
""")
for blk in range(3):
    a(f's_waitcnt lgkmcnt({2-blk})')
    mfma(Tr+4*blk, Ad+4*blk, B1r, None); mfma(Ti+4*blk, Ad+4*blk, B1r+4, None)
for ch in range(3):
    for p in range(2): a(f'v_pk_mul_f32 {v2(Pt+4*ch+2*p)}, {v2(Tr+4*ch+2*p)}, {v2(TWc+4*ch+2*p)}')
    for p in range(2): a(f'v_pk_fma_f32 {v2(Pt+4*ch+2*p)}, {v2(Ti+4*ch+2*p)}, {v2(TWs+4*ch+2*p)}, {v2(Pt+4*ch+2*p)}')
    for p in range(2): a(f'v_pk_mul_f32 {v2(Ti+4*ch+2*p)}, {v2(Ti+4*ch+2*p)}, {v2(TWc+4*ch+2*p)}')
    for p in range(2): a(f'v_pk_fma_f32 {v2(Ti+4*ch+2*p)}, {v2(Tr+4*ch+2*p)}, {v2(TWs+4*ch+2*p)}, {v2(Ti+4*ch+2*p)} neg_lo:[1,0,0] neg_hi:[1,0,0]')
def cv2(ch, i): a(f'v_cvt_pk_f16_f32 v{B2+4*ch+i}, v{Pt+4*ch+i}, v{Ti+4*ch+i}')
def st2(blk, ch): mfma(O+4*blk, A2r+(blk*3+ch)*4, B2+4*ch, None if ch == 0 else O+4*blk)
for i in range(4): cv2(0, i)
cv2(1, 0); cv2(1, 1)
st2(2, 0); cv2(1, 2); cv2(1, 3); st2(0, 0); cv2(2, 0); cv2(2, 1); st2(1, 0); cv2(2, 2); cv2(2, 3)
st2(2, 1); st2(0, 1); st2(2, 2); st2(0, 2); st2(1, 1); st2(1, 2)
a(f's_mov_b32 {sSpin}, {SPIN}\ns_add_u32 {sH2ld}, {sH2ld}, {BUF}\ns_cmp_lg_u32 {sMode}, 0')
Wo = T+48
def cvo(i): a(f'v_cvt_pk_f16_f32 v{Wo+i}, v{O+2*i}, v{O+2*i+1}')
def tg(i): a(f'v_and_or_b32 v{Wo+i}, v{Wo+i}, -2, {sTag}')
cvo(4); cvo(5); tg(5); cvo(0); cvo(1)
a(f'v_cndmask_b32 v{Wo}, v{Wo}, v{Wo+4}, {sSlot}')
tg(4); tg(1); tg(0); cvo(2); cvo(3); tg(2); tg(3)
a(f"""
s_cbranch_scc1 L_st_slow
buffer_store_dwordx2 {v2(Wo+4)}, v{vH1s2}, {SWS}, {sH1st} offen
buffer_store_dwordx4 {vr(Wo)}, v{vL16}, {SWS}, {sH1st} offen
L_cphase:
""")
stamp('h1st', True)
Ca = T+12; Dm = T+20; K_ = T+36
a(f"""
s_xor_b32 {sH1st}, {sH1st}, {H1STR}
s_cmp_eq_u32 {sLayer}, 0
s_cbranch_scc1 L_l0c
L_l0c_ret:
""")
if opt('ack1', 1): a('s_waitcnt vmcnt(0)')
a('L_poll1:')
for ch in range(2):
    for u in range(4):
        a(f'buffer_load_dword v{Ca+4*ch+u}, v{vC1ld}, {SWS}, {sH1ld0 if ch == 0 else sH1ld1} offen offset:{1280*u} sc1')
a(f's_sub_u32 {sSpin}, {sSpin}, 1\ns_cbranch_scc1 L_poll1_to\ns_waitcnt vmcnt(4)')
tt = sum((((i >> 2 & 1) ^ (i & 1)) & ((i >> 1 & 1) ^ (i & 1))) << i for i in range(8))
def cm(hi, ch, rio):
    d = Dm + (hi*2+rio)*4
    mfma(d, Ca+4*ch, CM+((hi*2+rio)*2+ch)*4, None if ch == 0 else d)
def xa(i): a(f'v_bitop3_b32 v{K_+i}, v{Ca+2*i}, v{Ca+2*i+1}, {sFlip} bitop3:{tt:#x}')
cm(0, 0, 0); xa(0); cm(0, 0, 1); xa(1); cm(1, 0, 0)
a(f'v_bitop3_b32 v{K_}, v{K_}, v{K_+1}, 1 bitop3:0x80')
cm(1, 0, 1)
a('s_waitcnt vmcnt(0)')
cm(0, 1, 0); xa(2); cm(0, 1, 1); xa(3)
cm(1, 1, 0)
a(f'v_bitop3_b32 v{K_}, v{K_}, v{K_+2}, v{K_+3} bitop3:0x80')
a(f'v_cmp_eq_u32 vcc, 0, v{K_}')
cm(1, 1, 1)
a('s_cbranch_vccnz L_poll1\nL_poll1_done:')
stamp('h1ok', True)
for hi in range(2):
    for i in range(4): a(f'v_cvt_pk_f16_f32 v{K_+4*hi+i}, v{Dm+8*hi+i}, v{Dm+8*hi+4+i}')
    for i in range(4): a(f'v_or_b32 v{K_+4*hi+i}, 1, v{K_+4*hi+i}')
    a(f'ds_write_b128 v{vRtW}, {vr(K_+4*hi)} offset:{2560*hi}')
a(f"""
s_waitcnt lgkmcnt(0)
s_barrier
ds_read_b128 {vr(T)}, v{vRtR}
ds_read_b128 {vr(T+4)}, v{vRtR2}
s_waitcnt lgkmcnt(1)
buffer_store_dwordx4 {vr(T)}, v{vH2st}, {SWS}, {sH2st} offen sc1
s_waitcnt lgkmcnt(0)
buffer_store_dwordx4 {vr(T+4)}, v{vH2st2}, {SWS}, {sH2st} offen sc1
""")
stamp('h2st', True)
CLN = f's_mov_b32 {sCl}, {OOB}' if opt('h3', 1) else f's_add_u32 {sCl}, {sCl}, {BUF}'
a(f"""
buffer_store_dwordx4 {vr(vZc)}, v{vH2st}, {SWS}, {sCl} offen sc1
buffer_store_dwordx4 {vr(vZc)}, v{vH2st2}, {SWS}, {sCl} offen sc1
{CLN}
s_mov_b32 {sSpin}, {SPIN}
s_add_u32 {sLayer}, {sLayer}, 1
{f's_mov_b32 m0, {sLayer}' if RP else ''}
s_add_u32 {sH2st}, {sH2st}, {BUF}
s_xor_b32 {sH1ld0}, {sH1ld0}, {H1STR}
s_xor_b32 {sH1ld1}, {sH1ld1}, {H1STR}
s_cmp_ge_u32 {sLayer}, 2
s_cselect_b32 {sTag}, 0, 1
s_cselect_b32 {sFlip}, -1, 0
s_cmp_eq_u32 {sLayer}, 1
s_cbranch_scc1 L_l0d
L_l0d_ret:
s_waitcnt vmcnt(2)
""")
stamp('h2ack', True)
a('L_poll2:')
Lh = T+8; K2 = T+28
for u in range(4): a(f'buffer_load_dword v{Lh+16+u}, v{vH2ld5}, {SWS}, {sH2ld} offen offset:{1280*u} sc1')
for u in range(4): a(f'buffer_load_dwordx4 {vr(Lh+4*u)}, v{vH2ld}, {SWS}, {sH2ld} offen offset:{1280*u} sc1')
def and3(d, x, y, z): a(f'v_bitop3_b32 v{d}, v{x}, v{y}, {z if isinstance(z, str) else "v%d" % z} bitop3:0x80')
a(f's_sub_u32 {sSpin}, {sSpin}, 1\ns_cbranch_scc1 L_poll2_to\ns_waitcnt vmcnt(3)')
and3(K2, Lh+16, Lh+17, '1'); and3(K2+1, Lh+18, Lh+19, Lh); and3(K2, K2, Lh+1, Lh+2); and3(K2, K2, K2+1, Lh+3)
a(f'v_and_b32 v{Lh}, v{vMask0}, v{Lh}\ns_waitcnt vmcnt(2)')
and3(K2, K2, Lh+4, Lh+5); and3(K2, K2, Lh+6, Lh+7)
a(f'v_and_b32 v{Lh+4}, v{vMask0}, v{Lh+4}\nv_swap_b32 v{Lh+1}, v{Lh+4}\ns_waitcnt vmcnt(1)')
and3(K2, K2, Lh+8, Lh+9); and3(K2, K2, Lh+10, Lh+11)
a(f'v_and_b32 v{Lh+8}, v{vMask0}, v{Lh+8}\nv_swap_b32 v{Lh+2}, v{Lh+8}\nv_swap_b32 v{Lh+6}, v{Lh+9}\ns_waitcnt vmcnt(0)')
and3(K2, K2, Lh+12, Lh+13); and3(K2, K2, Lh+14, Lh+15)
a(f"""
v_and_b32 v{Lh+12}, v{vMask0}, v{Lh+12}
v_cmp_eq_u32 vcc, 0, v{K2}
v_swap_b32 v{Lh+3}, v{Lh+12}
s_cbranch_vccnz L_poll2
L_poll2_done:
""")
stamp('h2ok', True)
mfma(X+16, A3r, Lh+16, X+16)
a(f'v_swap_b32 v{Lh+7}, v{Lh+13}')
mfma(X, A3r, Lh, X)
a(f'v_swap_b32 v{Lh+11}, v{Lh+14}')
mfma(X+4, A3r, Lh+4, X+4)
a(f's_cmp_lt_u32 {sLayer}, {NLAYER}')
mfma(X+8, A3r, Lh+8, X+8); mfma(X+12, A3r, Lh+12, X+12)
a('s_cbranch_scc1 L_loop')
F = T
for kl in (4, 0, 1, 2, 3):
    for p in range(2): a(f'v_cvt_pk_bf16_f32 v{F+2*kl+p}, v{X+4*kl+2*p}, v{X+4*kl+2*p+1}')
    for p in range(2):
        a(f'ds_write_b16 v{vXT+kl}, v{F+2*kl+p} offset:{2560*p}')
        a(f'ds_write_b16_d16_hi v{vXT+kl}, v{F+2*kl+p} offset:{2560*p+1280}')
a('s_waitcnt lgkmcnt(0)\ns_barrier')
for i in range(3): a(f'ds_read_b128 {vr(T+12+4*i)}, v{vRtR} offset:{L_XT-L_RT+4096*i}')
for i in range(3): a(f's_waitcnt lgkmcnt({2-i})\nbuffer_store_dwordx4 {vr(T+12+4*i)}, v{vG+i}, {SO}, 0 offen{OF}')
def stamp_dump(hk):
    if hk: a(f's_memtime s[{60+2*nst.index("end")}:{61+2*nst.index("end")}]\ns_memrealtime s[{60+2*nst.index("rend")}:{61+2*nst.index("rend")}]\ns_waitcnt lgkmcnt(0)')
    a(f's_lshl_b32 s7, s2, 7\ns_add_u32 s7, s7, {STAMP_OFF}\nv_mov_b32 v1, 0\ns_mov_b64 exec, 1')
    for i in range(len(nst)): a(f'v_mov_b32 v2, s{60+2*i}\nbuffer_store_dword v2, v1, {SWS}, s7 offen offset:{4*i}')
if STAMPS:
    a('s_waitcnt vmcnt(0)'); stamp('end'); stamp('rend', real=True)
    a(f's_waitcnt lgkmcnt(0)\ns_cmp_lg_u32 {sW}, {opt("swave")}\ns_cbranch_scc1 L_end')
    stamp_dump(False)
if RP:
    if RP == 'end': a('s_waitcnt vmcnt(0)\ns_memrealtime s[62:63]')
    if RP == 'top': a(f's_mov_b32 s62, s{80+RPL}')
    if RP == 'h2ok': a(f's_mov_b32 s62, s{81+RPL}')
    a(f's_waitcnt lgkmcnt(0)\ns_cmp_lg_u32 {sW}, 0\ns_cbranch_scc1 L_end\ns_lshl_b32 s7, s2, 3\ns_add_u32 s7, s7, {STAMP_OFF}\nv_mov_b32 v2, s60\nv_mov_b32 v3, s62\ns_mov_b64 exec, 1\nbuffer_store_dwordx2 v[2:3], off, {SWS}, s7')
a('L_end:\ns_endpgm')
a('L_fix:\ns_nop 7')
mfma(T+24, DEL, Bo, None); mfma(T+28, DEL+4, Bo, None)
a('s_mov_b32 exec_lo, 0x00010001\ns_mov_b32 exec_hi, 0x00010001')
for p in range(2): a(f'v_pk_add_f32 {v2(D0+2*p)}, {v2(D0+2*p)}, {v2(T+24+2*p)}')
for p in range(2): a(f'v_pk_add_f32 {v2(DC+2*p)}, {v2(DC+2*p)}, {v2(T+28+2*p)}')
a(f's_mov_b64 exec, -1\nv_cvt_pk_f16_f32 v{W_}, v{D0}, v{D0+1}\ns_branch L_nofix')
a(f"""
L_l0b:
v_mov_b32 v{T+54}, {L_MODE}
ds_read_b32 v{T+55}, v{T+54} offset:{L_OWN-L_MODE}
ds_read_b32 v253, v252 offset:{L_EXP}
ds_read_b32 v{T+54}, v{T+54}
s_waitcnt lgkmcnt(0)
v_readfirstlane_b32 {sMode}, v{T+54}
s_branch L_l0b_ret
L_l0c:
s_cmp_lg_u32 {sMode}, 0
s_mov_b64 exec, 1
s_waitcnt vmcnt(0)
s_cbranch_scc1 L_l0c_slow
buffer_store_dword v{T+55}, off, {SWS}, s55
L_l0c_p:
s_mov_b64 exec, -1
L_l0c_poll:
buffer_load_dword v{T+54}, v252, {SWS}, s56 offen sc1
s_sub_u32 {sSpin}, {sSpin}, 1
s_cbranch_scc1 L_l0c_ret
s_waitcnt vmcnt(0)
v_cmp_ne_u32 vcc, v{T+54}, v253
s_cbranch_vccnz L_l0c_poll
s_branch L_poll1
L_l0c_slow:
buffer_store_dword v{T+55}, off, {SWS}, s55 sc1
s_branch L_l0c_p
L_l0d:
v_mov_b32 v{T+50}, {L_GO}
L_l0d_spin:
ds_read_b32 v{T+51}, v{T+50}
s_waitcnt lgkmcnt(0)
v_cmp_eq_u32 vcc, 0, v{T+51}
s_cbranch_vccnz L_l0d_spin
s_branch L_l0d_ret
L_st_slow:
buffer_store_dwordx4 {vr(Wo)}, v{vL16}, {SWS}, {sH1st} offen sc1
buffer_store_dwordx2 {v2(Wo+4)}, v{vH1s2}, {SWS}, {sH1st} offen sc1
s_branch L_cphase
L_poll1_to:
s_waitcnt vmcnt(0)
s_branch L_poll1_done
L_poll2_to:
s_waitcnt vmcnt(0)
s_branch L_poll2_done
""")
H = 8
def fhash(dst, src): a(f'v_mul_lo_u32 v{dst}, v{src}, s50\nv_add_u32 v{dst}, s51, v{dst}')
def hs_group(lbl, x3, pre=False):
    a(f"""
s_mov_b32 exec_hi, 0
s_mov_b32 {sSpin}, {SPIN}
{'s_branch ' + lbl + '_chk' if pre else ''}
{lbl}:
buffer_load_dwordx3 v[{H}:{H+2}], v{vL16}, {SWS}, s54 offen sc1
s_sub_u32 {sSpin}, {sSpin}, 1
s_cbranch_scc1 {lbl}_to
s_waitcnt vmcnt(0)
{lbl}_chk:
""")
    fhash(H, H)
    a(f"""
v_xor_b32 v{H}, v{H}, v{H+(2 if x3 else 1)}
v_cmp_lt_u32 vcc, 15, v{H}
s_cbranch_vccnz {lbl}
s_branch {lbl}_done
{lbl}_to:
s_waitcnt vmcnt(0)
{lbl}_done:
v_lshrrev_b32 v{H+3}, 2, v{vL16}
ds_write_b32 v{H+3}, v{H+1} offset:{L_EXP}
v_and_b32 v{H+3}, 15, v{H+1}
v_cmp_ne_u32 vcc, s6, v{H+3}
s_mov_b64 exec, -1
""")
def hs_all(lbl, pre=False):
    a(f's_mov_b32 {sSpin}, {SPIN}')
    if pre: a(f's_branch {lbl}_w')
    a(f'{lbl}:')
    for i, r in enumerate(('s92', 's93', 's95', 's96')): a(f'buffer_load_dwordx2 {v2(H+8+2*i)}, v{vL16}, {SWS}, {r} offen sc1')
    a(f's_sub_u32 {sSpin}, {sSpin}, 1\ns_cbranch_scc1 {lbl}_done\n{lbl}_w:\ns_waitcnt vmcnt(0)')
    for i in range(4): fhash(H+8+2*i, H+8+2*i)
    for i in range(4): a(f'v_xor_b32 v{H+8+2*i}, v{H+8+2*i}, v{H+9+2*i}')
    a(f"""
v_or3_b32 v{H}, v{H+8}, v{H+10}, v{H+12}
v_or_b32 v{H}, v{H}, v{H+14}
v_cmp_lt_u32 vcc, 15, v{H}
s_cbranch_vccnz {lbl}
{lbl}_done:
s_waitcnt vmcnt(0)
""")
def flag_store(v, soff, off):
    a(f's_mov_b64 exec, 1\ns_waitcnt vmcnt(0)\nbuffer_store_dword v{v}, off, {SWS}, {soff} offset:{off} sc1\ns_mov_b64 exec, -1')
def hstamp(n):
    if opt('hstamp'): a(f's_memtime s[{60+2*nst.index(n)}:{61+2*nst.index(n)}]')
a('L_hk:')
if opt('prio', 1): a('s_setprio 3')
for i in range(4): a(f'v_mov_b32 v{vZ+i}, 0')
a(f"""
s_lshl_b32 {sGi}, {sSig}, 5
s_add_u32 {sGi}, {sGi}, {sM}
s_lshl_b32 s97, {sGi}, 4
s_add_u32 s97, s97, {FLAGS}
s_mul_i32 s94, {sGi}, 5120
s_add_u32 {sCl}, s94, {H2BASE+BUF}
s_add_u32 s94, s94, {H1BASE}
v_lshlrev_b32 v{H+18}, 8, v{vL16}
s_mov_b64 exec, 3
s_waitcnt lgkmcnt(0)
{WSADD}
buffer_load_dword v{H+16}, v{H+18}, {SWS}, s97 offen
s_mov_b64 exec, -1
v_lshlrev_b32 v{H+4}, 3, v{vL16}
v_min_u32 v{H+21}, 4992, v{H+4}
s_lshl_b32 s7, {sSig}, 9
s_add_u32 s7, s7, {HF}
{'' if opt('nopf') else f'buffer_load_dword v{H+27}, v{H+21}, {SWS}, s94 offen'}
v_min_u32 v{H+21}, 384, v{H+4}
buffer_load_dword v{H+28}, v{H+21}, {SWS}, s7 offen
""")
a('L_hk2:')
a(f"""
s_add_u32 s98, s94, {H1STR}
s_getreg_b32 s6, hwreg(HW_REG_XCC_ID, 0, 4)
s_mov_b32 s92, {FLAGS+0x1000}
s_mov_b32 s93, {FLAGS+0x1400}
s_mov_b32 s95, {FLAGS+0x1800}
s_mov_b32 s96, {FLAGS+0x1c00}
s_mov_b32 s50, 0x9e3779b1
s_mov_b32 s51, 0x7f4a7c15
v_mov_b32 v{H+1}, {L_MODE}
ds_write_b32 v{H+1}, v{vZ} offset:4
s_lshr_b32 s52, {sM}, 3
s_lshl_b32 s52, s52, 8
s_add_u32 s52, s52, {sSig}
s_mul_i32 s52, s52, 1280
s_and_b32 s53, {sM}, 7
s_mul_i32 s53, s53, 160
s_add_u32 s52, s52, s53
s_add_u32 s52, s52, {H2BASE}
s_movk_i32 s53, 10080
s_lshl_b32 s54, {sSig}, 9
s_add_u32 s54, s54, {FLAGS}
""")
for i in range(5):
    a(f"""v_add_u32 v{H+22+i}, {1024*i}, v{vL16}
v_mul_u32_u24 v{H+21}, 205, v{H+22+i}
v_lshrrev_b32 v{H+21}, 15, v{H+21}
v_mad_u32_u24 v{H+22+i}, v{H+21}, s53, v{H+22+i}""")
hstamp('top')
a(f's_waitcnt vmcnt({1 if opt("nopf") else 2}) lgkmcnt(0)')
fhash(H+5, H+16)
a(f'v_and_or_b32 v{H+5}, v{H+5}, -16, s6')
def flag_lane(lane, off):
    a(f's_mov_b64 exec, {1 << lane}\ns_waitcnt vmcnt(0)\nbuffer_store_dword v{H+5}, v{H+18}, {SWS}, s97 offen offset:{off} sc1\ns_mov_b64 exec, -1')
def hs_issue():
    for i, r in enumerate(('s92', 's93', 's95', 's96')): a(f'buffer_load_dwordx2 {v2(H+8+2*i)}, v{vL16}, {SWS}, {r} offen sc1')
hstamp('bar1')
a(f's_mov_b64 exec, 1\nbuffer_store_dword v{H+5}, v{H+18}, {SWS}, s97 offen offset:4 sc1\nv_mov_b32 v{H+1}, {L_OWN}\nds_write_b32 v{H+1}, v{H+5}\ns_mov_b64 exec, -1')
hstamp('s1w')
a(f'v_lshlrev_b32 v{H+19}, 17, v{vL16}\ns_lshl_b32 s7, s2, 7\ns_mov_b64 exec, 3\nbuffer_load_dword v{H+20}, v{H+19}, {SO}, s7 offen\ns_mov_b64 exec, -1')
if opt('wst', 0): a(f's_mov_b64 exec, 62\nbuffer_load_dword v{H+29}, v{H+19}, {SWS}, s7 offen\ns_mov_b64 exec, -1')
a(f"""
s_barrier
s_barrier
s_mov_b32 exec_hi, 0
buffer_load_dwordx3 v[{H}:{H+2}], v{vL16}, {SWS}, s54 offen sc1
s_mov_b64 exec, -1
""")
if opt('clate'): a('s_barrier')
for i in range(5): a(f'buffer_store_dwordx4 {vr(vZ)}, v{H+22+i}, {SWS}, s52 offen sc1')
clean5(sCl); clean5('s98', '')
a(f's_add_u32 {sCl}, {sCl}, {BUF}')
if not opt('clate'): a('s_barrier')
a('s_mov_b32 exec_hi, 0\ns_waitcnt vmcnt(15)')
hstamp('bar2')
hs_group('L_hs', False, True)
a(f's_cmp_lg_u32 vcc_lo, 0\ns_cselect_b32 {sMode}, 1, {FORCE_SLOW}')
hstamp('h1st')
a(f"""
v_mov_b32 v{H}, {sMode}
v_mov_b32 v{H+1}, {L_MODE}
ds_write_b32 v{H+1}, v{H}
s_cmp_eq_u32 {sMode}, 0
s_cbranch_scc1 L_hk_go
""")
clean5('s98')
a('L_hk_go:\ns_waitcnt lgkmcnt(0)\ns_barrier')
flag_lane(1, 4)
a('s_barrier')
hs_all('L_hs2')
a(f'v_mov_b32 v{H}, 1\nv_mov_b32 v{H+1}, {L_GO}\nds_write_b32 v{H+1}, v{H}')
hstamp('h1ok')
a('s_barrier')
if opt('h3', 1):
    a(f's_add_u32 {sCl}, {sCl}, {BUF}'); clean5(sCl)
a(f"""
v_add_u32 v{H+16}, 1, v{H+16}
s_mov_b64 exec, 3
s_barrier
s_waitcnt vmcnt(0)
s_barrier
s_barrier
buffer_store_dword v{H+16}, v{H+18}, {SWS}, s97 offen{' sc1' if opt('bsc1', 1) else ''}
s_barrier
s_barrier
""")
if opt('hstamp'): stamp_dump(True)
a('s_endpgm\nL_codeend:')

if opt('hfront', 1):
    li = [k for k, i in enumerate(a.ins) if i.text in ('L_hk:', 'L_hk2:')]
    hk = a.ins[li[0]:li[1]]
    rest = a.ins[:li[0]] + a.ins[li[1]:]
    b = [k for k, i in enumerate(rest) if i.text == 's_cbranch_scc1 L_hk'][0]
    a.ins = rest[:b] + [Ins('s_cbranch_scc0 L_main')] + hk + [Ins('s_branch L_hk2'), Ins('L_main:')] + rest[b+1:]
if opt('nodma'): a.ins = [i for i in a.ins if not i.op.startswith('global_load_lds')]
NT = opts.get('nt', '')
def addnt(pred):
    for k, i in enumerate(a.ins):
        if pred(i): a.ins[k] = Ins(i.text + ' nt')
if 't' in NT: addnt(lambda i: i.op.startswith('global_load_lds') or i.op in ('global_load_dwordx3', 'global_load_dwordx4'))
if 'c' in NT: addnt(lambda i: i.op == 'global_load_dword')
if 'p' in NT: addnt(lambda i: i.op == 'buffer_load_dword' and i.toks[0] in (f'v{H+27}', f'v{H+28}'))
if 'e' in NT: addnt(lambda i: i.op == 'buffer_load_dword' and i.toks[0] in (f'v{H+16}', f'v{H+20}'))
if 'z' in NT: addnt(lambda i: i.op == 'buffer_store_dwordx4' and i.toks[0] in (vr(vZ), vr(vZc)) and 'sc1' in i.text)
if opt('align', 1): print('align', align_pass(a, KNAME + ':\n'))
hdr = open('interleave_layers__spectral_fnet__spectral_fnet__prompt.s.ref').read().split('; Override')[0]
out = hdr + ('; STAMPS ' + ' '.join(nst) + '\n' if STAMPS else '') + f'; @launch grid=(256,1,1) block=(320,1,1) lds={LDS_BYTES}\n'
out += f'.amdgcn_target "amdgcn-amd-amdhsa--gfx950"\n.text\n.globl {KNAME}\n.p2align 8\n.type {KNAME},@function\n{KNAME}:\n'
out += a.text()
if RP:
    out = out.replace('; @launch grid=(256,1,1) block=(320,1,1) lds=', f'; @launch kernel={KNAME} grid=(256,1,1) block=(320,1,1) lds=').replace('\n.amdgcn_target', '\n; @launch kernel=reveal_kernel grid=(1,1,1) block=(256,1,1) lds=64\n.amdgcn_target', 1)
    out += f'''.globl reveal_kernel
.p2align 8
.type reveal_kernel,@function
reveal_kernel:
  s_cmp_lg_u32 s2, 0
  s_cbranch_scc1 LR_end
  s_load_dwordx2 s[8:9], s[0:1], 96
  s_mov_b32 s10, {WS_BYTES}
  s_mov_b32 s11, 0x20000
  s_mov_b32 s3, {STAMP_OFF}
  v_lshlrev_b32 v1, 3, v0
  v_mov_b32 v4, 0
  v_mov_b32 v5, -1
  v_mov_b32 v6, {0 if opt('rpmax', 1) else -1}
  ds_write_b32 v4, v5
  ds_write_b32 v4, v6 offset:4
  s_waitcnt lgkmcnt(0)
  buffer_load_dwordx2 v[2:3], v1, s[8:11], s3 offen
  s_barrier
  s_waitcnt vmcnt(0)
  ds_min_u32 v4, v2
  ds_{'max' if opt('rpmax', 1) else 'min'}_u32 v4, v3 offset:4
  s_waitcnt lgkmcnt(0)
  s_barrier
  ds_read_b64 v[2:3], v4
  s_waitcnt lgkmcnt(0)
  v_sub_u32 v2, v3, v2
  v_min_u32 v2, 5000, v2
  v_mul_u32_u24 v2, 10, v2
  s_memrealtime s[12:13]
  v_readfirstlane_b32 s16, v2
  s_waitcnt lgkmcnt(0)
LR_spin:
  s_memrealtime s[14:15]
  s_waitcnt lgkmcnt(0)
  s_sub_u32 s17, s14, s12
  s_cmp_lt_u32 s17, s16
  s_cbranch_scc1 LR_spin
LR_end:
  s_endpgm
'''
out += f'''.section .rodata,"a"
.p2align 6
.amdhsa_kernel {KNAME}
  .amdhsa_next_free_vgpr 256
  .amdhsa_next_free_sgpr 102
  .amdhsa_accum_offset 256
  .amdhsa_group_segment_fixed_size 0
  .amdhsa_kernarg_size 104
  .amdhsa_user_sgpr_count 2
  .amdhsa_user_sgpr_kernarg_segment_ptr 1
  .amdhsa_system_sgpr_workgroup_id_x 1
.end_amdhsa_kernel
''' + '''.p2align 6
.amdhsa_kernel reveal_kernel
  .amdhsa_next_free_vgpr 16
  .amdhsa_next_free_sgpr 32
  .amdhsa_accum_offset 16
  .amdhsa_group_segment_fixed_size 0
  .amdhsa_kernarg_size 104
  .amdhsa_user_sgpr_count 2
  .amdhsa_user_sgpr_kernarg_segment_ptr 1
  .amdhsa_system_sgpr_workgroup_id_x 1
.end_amdhsa_kernel
''' * (1 if RP else 0) + '''.p2align 10
tbl:
'''
for f in blocks:
    for i in range(0, 256, 8): out += '.long ' + ','.join(f'{int(x):#x}' for x in f[i:i+8]) + '\n'
open(sys.argv[1], 'w').write(out)
print('instrs', len(a.ins), 'nops inserted', a.nops, 'table blocks', len(blocks), 'bytes', len(out))
```

```python
import sys, struct
import numpy as np
from design import *
from asmlib import Asm, align_pass, Ins

KNAME = "interleave_layers__spectral_fnet__spectral_fnet__prompt_kernel"
opts = dict(a.split('=') for a in sys.argv[2:] if '=' in a)
def opt(k, d=0): return int(opts.get(k, d))
STAMPS = opt('stamps'); FORCE_SLOW = opt('slow'); NLAYER = opt('layers', 4); SPIN = opt('spin', 50000); BK = opt('bk', 1); SLAYER = opt('slayer')
SST = opt('sstart')
def f2u(f): return struct.unpack('<I', struct.pack('<f', f))[0]
BUF = 0x200000 if opt('wst', 0) else 1310720
FLAGS = 4096; H1BASE = 0x40000; H1STR = 0x200000; H2BASE = 0x410000; WS_BYTES = H2BASE + 3*BUF + 1310720
STAMP_OFF = WS_BYTES
if STAMPS or opts.get('rp'): WS_BYTES += 256*128
L_V = 0; L_ST = 9600; L_MODE = 9856; L_GO = 9860; L_OWN = 9864; L_JUNK = 9872; L_EXP = 15104; HF = FLAGS + 0x2000; L_RT = 9984; L_XT = 15360; L_TB = 25600; L_CM = L_TB + 16*1024; LDS_BYTES = L_CM + 8192
OOB = 0x40000000
XF = ' ' + opts.get('xf', 'nt').replace('+', ' ')
OF = ' ' + opts['of'].replace('+', ' ') if 'of' in opts else ''
WSADD = f's_add_u32 s16, s16, {opt("wsoff") << 20}\ns_addc_u32 s17, s17, 0' if opt('wsoff') else ''
def vaddr(col): return (col % 40)*80 + (col//40)*4
def opA(M):
    h = M.astype(np.float16).view(np.uint16).astype(np.uint32)
    out = np.zeros((64, 4), np.uint32)
    for l in range(64):
        r = h[l % 16, 8*(l//16):8*(l//16)+8]
        out[l] = r[0::2] | (r[1::2] << 16)
    return out
def opB(N): return opA(N.T)
blocks = []
def add(b): blocks.append(np.asarray(b, np.uint32).reshape(256)); return len(blocks)-1
n_ = S1_mats(False); s_ = S1_mats(True)
def a3_idx(sig, m):
    g = unit_g(sig, m)
    if g == 0: return 9
    if g == 128: return 8
    return (g >> 7) + (0 if g % 4 == 1 else 4)
a3 = {}
for sig in range(8):
    for m in range(32):
        M = A3(sig, m)*HSCALE; i = a3_idx(sig, m)
        if i in a3: assert np.allclose(a3[i], M), (sig, m)
        a3[i] = M
for M in (n_[0], n_[1], n_[2], E_mat(False)): add(opA(M))
T_A3L = add(opA(a3[0]))
Bre, Bim = B1_mats(); T_B1 = add(opB(Bre)); add(opB(Bim))
T_A2 = len(blocks)
M = A2_mats6(0)/HSCALE; M2 = A2_mats6(20)/HSCALE
sgn = np.array([(-1.0)**((k % 8)//2) for k in range(32)])
assert np.allclose(M2, M*sgn)
for blk in range(3):
    for ch in range(3): add(opA(M[blk, ch]))
assert len(blocks) == 16
T_S1S = len(blocks)
for M in (s_[0], s_[1], s_[2], E_mat(True)): add(opA(M))
T_DEL = add(opA(s_[3])); add(opA(s_[4]))
T_A3 = len(blocks)
for i in range(10): add(opA(a3[i]))
T_ADDR = len(blocks)
at = np.zeros((2, 256, 4), np.uint32)
for ty, (sig, m) in enumerate(((2, 1), (1, 0))):
    for tid in range(256):
        w, l = divmod(tid, 64); n, mq = l % 16, l//16
        v = [vaddr(acol(sig, m, mq//2, 64*w+4*n+2*bop+(mq % 2))) for bop in range(2)]
        v += [6400 + vaddr(acol(sig, m, mq % 2, 64*w+4*n+2*(mq//2)+sub)) for sub in range(2)]
        k5 = 256 + 16*w + n
        if mq < 2: v += [vaddr(acol(sig, m, mq, k5)), 3200 + vaddr(acol(sig, m, mq, k5))]
        elif mq == 2: v += [6400 + vaddr(acol(sig, m, 0, k5)), 6400 + vaddr(acol(sig, m, 1, k5))]
        else: v += [L_JUNK + 4*n, L_JUNK + 4*n]
        at[ty, tid, :3] = [v[0] | (v[1] << 16), v[2] | (v[3] << 16), v[4] | (v[5] << 16)]
for i in range(8): add(at.reshape(-1)[256*i:256*i+256])
for i in range(640): assert (i*205) >> 14 == i//80
for i in range(320): assert (i*205) >> 11 == i//10

vL16, vH1s2, vH2ld, vH2ld5, vC1ld, vRtW, vRtR, vRtR2, vH2st, vH2st2, vStR, vStW = range(1, 13)
vVrd, vVrd2, vEps = 13, 14, 15
vV = 16
vXT = 22
vMask0 = 27; vG = 28
vTB = 31
vZc = 248
X = 32
A3r = 52; S1r = 56; B1r = 72; TWc = 80; TWs = 92; A2r = 104; CM = 140; DEL = 172
Bo = 180
T = 192
vZ = 4
def vr(b, n=4): return f'v[{b}:{b+n-1}]'
def v2(b): return f'v[{b}:{b+1}]'
sW, sSig, sM, sG, sType, sLayer, sMode = 's3', 's4', 's5', 's26', 's27', 's29', 's30'
sH1st, sH1ld0, sH1ld1, sH2st, sH2ld, sTag, sFlip, sSpin = 's31', 's32', 's33', 's34', 's35', 's36', 's37', 's38'
sCl, sGi, sInv, sFix = 's44', 's46', 's40', 's41'
sSlot = 's[42:43]'
SX, SO, SWS, STB = 's[8:11]', 's[12:15]', 's[16:19]', 's[24:25]'
HW = 4
a = Asm()
nst = []
RP = opts.get('rp'); RPL = opt('rpl')
def stamp(name, inloop=False, real=False):
    if RP:
        if name == 'start': a('s_memrealtime s[60:61]')
        if name == RP:
            if inloop: a('s_memrealtime s[90:91]\ns_waitcnt lgkmcnt(0)\ns_movreld_b32 s80, s90')
            else: a('s_memrealtime s[62:63]')
        return
    if SST and inloop and name not in ('top', 'bar1'): return
    if opt('span') and name not in ('start', 'rstart', 'end', 'rend'): return
    if STAMPS:
        i = len(nst); nst.append(name)
        assert i < 16
        ins = f's_{"memrealtime" if real else "memtime"} s[{60+2*i}:{61+2*i}]'
        a(ins)
LATE = ('h2ack', 'h2ok')
def sst(name):
    if SST or RP: stamp(name)
def clean5(soff, fl=' sc1'):
    for i in range(4): a(f'buffer_store_dwordx4 {vr(vZ)}, v{vL16}, {SWS}, {soff} offen offset:{1024*i}{fl}')
    a(f's_add_u32 s7, {soff}, 4096\nbuffer_store_dwordx4 {vr(vZ)}, v{vL16}, {SWS}, s7 offen{fl}')
def mfma(d, A, B, C): a(f'v_mfma_f32_16x16x32_f16 {vr(d)}, {vr(A)}, {vr(B)}, {"0" if C is None else vr(C)}')

stamp('start'); stamp('rstart', real=True)
n_v, kq_v = T+10, T+11
a(f"""
s_load_dwordx2 s[16:17], s[0:1], 96
s_load_dwordx2 s[8:9], s[0:1], 0
s_load_dwordx2 s[12:13], s[0:1], 80
v_lshrrev_b32 v{T+1}, 6, v0
s_cmp_ge_u32 s2, 256
s_cbranch_scc1 L_end
""")
if opt('cpref', 1):
    a(f"""
s_getpc_b64 s[24:25]
v_lshlrev_b32 v{T+2}, 7, v0
v_min_u32 v{T+2}, L_codeend-{KNAME}-64, v{T+2}
global_load_dword v255, v{T+2}, s[24:25]
""")
a(f"""
v_readfirstlane_b32 {sW}, v{T+1}
v_and_b32 v{T}, 63, v0
s_and_b32 {sSig}, s2, 7
s_lshr_b32 {sM}, s2, 3
v_lshlrev_b32 v{vL16}, 4, v{T}
s_mov_b32 s18, {WS_BYTES}
s_mov_b32 s19, 0x20000
s_mov_b32 s14, 2621440
s_mov_b32 s15, 0x20000
s_cmp_eq_u32 {sW}, {HW}
s_cbranch_scc1 L_hk
s_lshl_b32 s6, {sSig}, 2
s_lshr_b32 s6, 0x9654d210, s6
s_and_b32 s6, s6, 15
s_lshl_b32 {sG}, {sM}, 4
s_add_u32 {sG}, {sG}, s6
s_cmp_eq_u32 {sSig}, 0
s_cselect_b32 s7, 248, 0
s_cmp_ge_u32 {sM}, 16
s_cselect_b32 s7, s7, 0
s_sub_u32 {sG}, {sG}, s7
s_and_b32 {sType}, {sG}, 1
""")
a(f"""
s_getpc_b64 s[24:25]
s_add_u32 s24, s24, tbl@rel32@lo+4
s_addc_u32 s25, s25, tbl@rel32@hi+12
s_lshr_b32 s7, {sG}, 7
s_lshl_b32 s94, {sType}, 2
s_sub_u32 s7, s7, s94
s_add_u32 s7, s7, {4 + T_A3}
s_cmp_eq_u32 {sG}, 128
s_cselect_b32 s7, {8 + T_A3}, s7
s_cmp_eq_u32 {sG}, 0
s_cselect_b32 s7, {9 + T_A3}, s7
s_cselect_b32 s94, {T_S1S*1024}, 0
s_lshl_b32 s7, s7, 10
s_lshl_b32 s95, {sW}, 12
s_cmp_eq_u32 {sW}, 0
s_cselect_b32 s94, s94, s95
s_cmp_eq_u32 {sW}, 1
s_cselect_b32 s7, s7, s94
s_add_u32 m0, s95, {L_TB}
v_add_u32 v{T+2}, s94, v{vL16}
v_add_u32 v{T+3}, s7, v{vL16}
s_lshl_b32 s7, {sType}, 12
s_add_u32 s7, s7, {T_ADDR*1024}
global_load_lds_dwordx4 v{T+3}, {STB}
global_load_lds_dwordx4 v{T+2}, {STB} offset:1024
global_load_lds_dwordx4 v{T+2}, {STB} offset:2048
global_load_lds_dwordx4 v{T+2}, {STB} offset:3072
v_lshl_add_u32 v{T+2}, v0, 4, s7
global_load_dwordx3 v[{vV}:{vV+2}], v{T+2}, {STB}
s_or_b32 {sFix}, s2, {sW}
""")
a(f"""
s_cmp_lg_u32 {sFix}, 0
s_cbranch_scc1 L_nodel
v_add_u32 v{T+2}, {T_DEL*1024}, v{vL16}
global_load_dwordx4 {vr(DEL)}, v{T+2}, {STB}
global_load_dwordx4 {vr(DEL+4)}, v{T+2}, {STB} offset:1024
L_nodel:
""")
a(f"""
s_sub_u32 s92, 0, {sG}
s_and_b32 s92, s92, 511
s_cmp_eq_u32 {sG}, 0
s_cselect_b32 s92, 256, s92
s_mul_i32 s92, s92, 1280
s_mul_i32 s93, {sG}, 1280
s_sub_u32 s92, s92, s93
s_sub_u32 s92, s92, {4*655360}
s_mov_b32 s10, 2621440
s_mov_b32 s11, 0x20000
s_mov_b32 s96, 0x9fb00
v_lshlrev_b32 v{vRtR}, 4, v0
""")
for i in range(3):
    a(f"""v_add_u32 v{T+12}, {256*i}, v0
v_mul_u32_u24 v{T+12}, 205, v{T+12}
v_lshrrev_b32 v{T+12}, 14, v{T+12}
v_mov_b32 v{T+13}, s92
v_cmp_le_u32 vcc, 4, v{T+12}
v_mad_u32_u24 v{T+12}, v{T+12}, s96, v{vRtR}
v_cndmask_b32 v{T+13}, 0, v{T+13}, vcc
v_add3_u32 v{vG+i}, v{T+12}, v{T+13}, s93""".replace(f'v_add_u32 v{T+12}, 0, v0\nv_mul_u32_u24 v{T+12}, 205, v{T+12}', f'v_mul_u32_u24 v{T+12}, 205, v0'))
    if i < 2: a(f's_add_u32 s93, s93, 4096')
a(f"""
""")
sst('prek')
a(f"""
s_waitcnt lgkmcnt(0)
s_lshl_b32 s7, {sW}, 10
s_add_u32 m0, s7, {L_XT}
{WSADD or 's_nop 1'}
buffer_load_dwordx4 v{vG}, {SX}, 0 offen{XF} lds
s_add_u32 m0, s7, {L_XT+4096}
s_cmp_ge_u32 {sW}, 2
buffer_load_dwordx4 v{vG+1}, {SX}, 0 offen{XF} lds
s_cbranch_scc1 L_nox2
s_add_u32 m0, s7, {L_XT+8192}
s_nop 0
buffer_load_dwordx4 v{vG+2}, {SX}, 0 offen{XF} lds
s_branch L_x2
L_nox2:
v_mov_b32 v{vG+2}, {OOB}
buffer_load_dword v254, v{vG+2}, {SX}, 0 offen
L_x2:
""")
sst('xiss')
sst('dma')
a(f"""
v_and_b32 v{n_v}, 15, v0
v_bfe_u32 v{kq_v}, v0, 4, 2
s_mul_i32 s94, {sType}, 320
v_lshrrev_b32 v{T+13}, 1, v{kq_v}
v_mul_u32_u24 v{T+14}, s94, v{T+13}
s_lshl_b32 s92, {sW}, 5
v_add3_u32 v{T+12}, v{n_v}, v{T+14}, s92
s_and_b32 s92, {sW}, 1
s_lshl_b32 s92, s92, 3
s_lshr_b32 s93, {sW}, 1
s_lshl_b32 s93, s93, 5
s_add_u32 s92, s92, s93
s_add_u32 s92, s92, 256
v_lshrrev_b32 v{T+17}, 1, v{n_v}
v_and_b32 v{T+18}, 1, v0
v_add3_u32 v{T+17}, v{T+17}, v{T+14}, s92
v_lshl_add_u32 v{T+17}, v{T+18}, 4, v{T+17}
s_xor_b32 s94, {sType}, 1
v_and_b32 v{T+13}, s94, v{T+13}
v_xor_b32 v{T+13}, v{T+13}, v{kq_v}
v_add_u32 v{T+14}, 16, v{T+12}
v_and_b32 v{T+13}, 1, v{T+13}
v_add_u32 v{T+15}, 128, v{T+12}
v_cmp_eq_u32 vcc, 1, v{T+13}
v_add_u32 v{T+16}, 144, v{T+12}
s_mul_i32 s94, s94, 320
""")
ecol = [T+12, T+14, T+15, T+16, T+17]
for kl in range(5): a(f'v_sub_u32 v{T+18+kl}, 640, v{ecol[kl]}')
for kl in range(5): a(f'v_cndmask_b32 v{vXT+kl}, v{ecol[kl]}, v{T+18+kl}, vcc')
a(f"""
v_cmp_gt_u32 vcc, 2, v{kq_v}
v_mov_b32 v{T+17}, s94
v_and_b32 v{T+13}, 1, v{kq_v}
v_cndmask_b32 v{T+17}, 0, v{T+17}, vcc
v_cmp_eq_u32 vcc, 0, v{T+12}
v_mul_u32_u24 v{T+9}, 0x1400, v{T+13}
v_add_u32 v{T+14}, {L_XT}, v{T+9}
v_cndmask_b32 v{vXT}, v{vXT}, v{T+17}, vcc
v_cmp_ne_u32 vcc, 0, v{vXT}
""")
for kl in range(5): a(f'v_lshl_add_u32 v{vXT+kl}, v{vXT+kl}, 1, v{T+14}')
a(f'v_cndmask_b32 v{vMask0}, 0, -1, vcc')
for i in range(20): a(f'v_mov_b32 v{X+i}, 0')
for i in range(4): a(f'v_mov_b32 v{vZc+i}, 0')
a(f"""
s_lshr_b32 s95, {sM}, 3
s_lshl_b32 s7, s95, 2
s_lshr_b32 s7, 0x1120, s7
s_and_b32 s7, s7, 3
s_add_u32 s96, s6, 256
s_cmp_eq_u32 {sSig}, 0
s_cselect_b32 s96, 8, s96
s_lshl_b32 s94, {sW}, 4
s_add_u32 s6, s6, s94
s_add_u32 s96, s96, s94
v_lshl_add_u32 v{T+13}, v{n_v}, 2, s7
v_lshl_add_u32 v{T+14}, v{kq_v}, 6, s6
v_lshl_add_u32 v{T+15}, v{kq_v}, 6, s96
v_add_u32 v{T+12}, 64, v{T+13}
s_mov_b32 s94, {f2u(1/2048):#x}
""")
G = T+24
for hi in range(2):
    for ch in range(2): a(f'v_mul_u32_u24 v{G+2*(2*hi+ch)}, v{T+13-hi}, v{T+14+ch}')
for k in range(4): a(f'v_and_b32 v{G+2*k}, 0x7ff, v{G+2*k}')
for k in range(4): a(f'v_cvt_f32_u32 v{G+2*k}, v{G+2*k}')
for k in range(4): a(f'v_mul_f32 v{G+2*k}, s94, v{G+2*k}')
for k in range(4): a(f'v_sin_f32 v{G+2*k+1}, v{G+2*k}\nv_cos_f32 v{G+2*k}, v{G+2*k}')
for k in range(4): a(f'v_cvt_pk_f16_f32 v{G+8+2*k}, v{G+2*k}, v{G+2*k+1}\nv_cvt_pk_f16_f32 v{G+9+2*k}, -v{G+2*k+1}, v{G+2*k}')
a(f's_cmp_lg_u32 {sSig}, 0\ns_cbranch_scc1 L_cm_done')
for hi in range(2):
    b = G+8+4*hi
    a(f'v_mov_b32 v{b+1}, 0\nv_mov_b32 v{b+3}, v{b+2}\nv_mov_b32 v{b+2}, 0')
a(f"""
v_and_b32 v{T+17}, 1, v0
v_lshlrev_b32 v{T+17}, 4, v{T+17}
v_mov_b32 v{T+18}, 0x3c00
v_lshlrev_b32 v{T+17}, v{T+17}, v{T+18}
v_cmp_gt_u32 vcc, 16, v0
v_cndmask_b32 v{G+8}, v{G+8}, v{T+17}, vcc
v_cndmask_b32 v{G+12}, v{G+12}, v{T+17}, vcc
L_cm_done:
""")
sst('cm')
a(f'''
v_lshlrev_b32 v{T+12}, 2, v{kq_v}
v_mul_u32_u24 v{T+12}, v{T+12}, v{n_v}
v_cvt_f32_u32 v{T+12}, v{T+12}
v_cvt_f32_u32 v{T+13}, v{n_v}
v_mul_f32 v{T+12}, {f2u(1/640):#x}, v{T+12}
v_mul_f32 v{T+13}, {f2u(1/640):#x}, v{T+13}
''')
for blk in range(3):
    for i in range(4):
        k = 16*blk + i
        if k == 0: src = T+12
        else:
            src = T+14
            a(f'v_fmamk_f32 v{T+14}, v{T+13}, {f2u(float(k)):#x}, v{T+12}')
        a(f'v_cos_f32 v{TWc+4*blk+i}, v{src}\nv_sin_f32 v{TWs+4*blk+i}, v{src}')
a(f"""
s_mov_b32 {sInv}, {f2u(1/640):#x}
v_mov_b32 v{vEps}, {f2u(1e-5):#x}
v_mov_b32 v{Bo+10}, 0
v_mov_b32 v{Bo+11}, 0
s_mov_b32 {sLayer}, 0
s_mov_b32 {sTag}, 1
s_mov_b32 {sFlip}, 0
s_cmp_lt_u32 {sW}, 2
s_cselect_b64 {sSlot}, 1, 0
s_cselect_b32 s7, 3200, 0
s_cselect_b32 s52, 12, 8
s_cselect_b32 s53, 0, 32
s_lshl_b32 s7, s7, {sW}
v_lshlrev_b32 v{T+12}, 4, v{kq_v}
v_mul_u32_u24 v{vVrd}, 80, v{n_v}
v_add3_u32 v{vVrd}, v{vVrd}, v{T+12}, s7
v_and_b32 v{vVrd2}, 7, v0
v_mul_u32_u24 v{vVrd2}, 80, v{vVrd2}
s_add_u32 s7, s7, 2560
v_add3_u32 v{vVrd2}, v{vVrd2}, v{T+12}, s7
s_mul_i32 s54, s52, {sW}
s_lshl_b32 s54, s54, 2
s_add_u32 s54, s54, s53
s_sub_u32 s7, s52, 1
v_min_u32 v{T+13}, s7, v{n_v}
v_lshlrev_b32 v{T+13}, 2, v{T+13}
s_movk_i32 s7, 5120
v_mad_u32_u24 v{vC1ld}, v{kq_v}, s7, v{T+13}
v_mul_u32_u24 v{vRtW}, 160, v{n_v}
s_add_u32 s7, s54, {L_RT}
v_add3_u32 v{vRtW}, v{vRtW}, v{T+12}, s7
s_lshl_b32 s7, s52, 2
v_cmp_gt_u32 vcc, s7, v{T+12}
v_add_u32 v{T+13}, {L_XT}, v{vL16}
v_cndmask_b32 v{vRtW}, v{T+13}, v{vRtW}, vcc
v_mul_u32_u24 v{T+13}, 205, v0
v_lshrrev_b32 v{T+13}, 11, v{T+13}
v_mul_u32_u24 v{T+13}, 10080, v{T+13}
v_add_u32 v{vH2st}, v{T+13}, v{vRtR}
s_lshl_b32 s7, {sW}, 4
s_add_u32 s7, s7, 256
v_add_u32 v{T+13}, s7, v{n_v}
v_lshlrev_b32 v{vRtR2}, 4, v{T+13}
v_mul_u32_u24 v{T+13}, 205, v{T+13}
v_lshrrev_b32 v{T+13}, 11, v{T+13}
v_mul_u32_u24 v{T+13}, 10080, v{T+13}
v_add_u32 v{vH2st2}, v{T+13}, v{vRtR2}
v_cmp_eq_u32 vcc, 0, v{kq_v}
v_mov_b32 v{T+13}, {OOB}
v_cndmask_b32 v{vH2st2}, v{T+13}, v{vH2st2}, vcc
v_add_u32 v{vRtR}, {L_RT}, v{vRtR}
v_add_u32 v{vRtR2}, {L_RT}, v{vRtR2}
v_lshrrev_b32 v{vH1s2}, 1, v{vL16}
v_add_u32 v{vH1s2}, {1024-128}, v{vH1s2}
v_add_u32 v{T+14}, -1, v{kq_v}
v_cmp_gt_u32 vcc, 2, v{T+14}
v_cndmask_b32 v{vH1s2}, v{T+13}, v{vH1s2}, vcc
v_and_b32 v{T+13}, 1, v{kq_v}
v_lshlrev_b32 v{T+13}, 7, v{T+13}
v_and_b32 v{T+14}, 3, v0
v_lshl_add_u32 v{vStR}, v{T+14}, 5, v{T+13}
v_add_u32 v{vStR}, {L_ST}, v{vStR}
v_bfe_u32 v{T+14}, v0, 2, 1
v_lshl_add_u32 v{T+13}, v{T+14}, 6, v{T+13}
v_bfe_u32 v{T+14}, v0, 3, 1
v_lshl_add_u32 v{T+13}, v{T+14}, 5, v{T+13}
v_bfe_u32 v{T+14}, v0, 5, 1
v_lshl_add_u32 v{T+13}, v{T+14}, 2, v{T+13}
s_lshl_b32 s7, {sW}, 3
s_add_u32 s7, s7, {L_ST}
v_add_u32 v{vStW}, s7, v{T+13}
s_and_b32 s93, {sM}, 7
s_mul_i32 s93, s93, 160
s_lshl_b32 s94, {sSig}, 7
s_add_u32 s92, s94, {sM}
s_mul_i32 s92, s92, 1280
s_mul_i32 {sH1st}, {sW}, 40960
s_add_u32 {sH1st}, {sH1st}, s92
s_add_u32 {sH1st}, {sH1st}, {H1BASE}
s_lshl_b32 s96, s95, 5
s_add_u32 s96, s96, s94
s_mul_i32 {sH1ld0}, s96, 1280
s_add_u32 {sH1ld0}, {sH1ld0}, s93
s_add_u32 s96, s54, {H1BASE}
s_add_u32 {sH1ld0}, {sH1ld0}, s96
s_add_u32 {sH1ld1}, {sH1ld0}, 20480
s_lshl_b32 s96, s95, 8
s_add_u32 s96, s96, {sSig}
s_mul_i32 {sH2st}, s96, 1280
s_add_u32 {sH2st}, {sH2st}, s93
s_add_u32 {sH2st}, {sH2st}, {H2BASE}
s_mov_b32 {sH2ld}, {H2BASE-BUF}
s_lshl_b32 s7, {sSig}, 2
s_add_u32 s55, s7, {sW}
s_lshl_b32 s55, s55, 5
s_add_u32 s55, s55, {sM}
s_lshl_b32 s55, s55, 2
s_add_u32 s55, s55, {HF}
s_add_u32 s56, s95, s7
s_lshl_b32 s56, s56, 7
s_add_u32 s56, s56, {HF}
s_add_u32 {sCl}, {sH2st}, {2*BUF}
s_and_b32 s7, {sG}, 127
s_lshr_b32 s7, s7, 2
s_sub_u32 s94, 0, {sG}
s_and_b32 s94, s94, 127
s_lshr_b32 s94, s94, 2
s_bfe_u32 s95, {sG}, 0x10001
s_cmp_eq_u32 {sType}, 1
s_cselect_b32 s94, s7, s94
s_cselect_b32 s96, 2, s95
s_cselect_b32 s95, 3, s95
s_lshl_b32 s96, s96, 5
s_lshl_b32 s95, s95, 5
s_add_u32 s7, s7, s96
s_add_u32 s94, s94, s95
s_mul_i32 s7, s7, 10240
s_mul_i32 s94, s94, 10240
v_mov_b32 v{T+12}, s7
v_mov_b32 v{T+13}, s94
v_cmp_le_u32 vcc, 2, v{kq_v}
s_lshl_b32 s95, {sW}, 8
s_lshl_b32 s96, {sW}, 6
v_cndmask_b32 v{T+12}, v{T+12}, v{T+13}, vcc
s_add_u32 s96, s96, 1024
v_add_u32 v{T+12}, v{T+12}, v{T+9}
v_lshlrev_b32 v{T+13}, 4, v{n_v}
v_add3_u32 v{vH2ld}, v{T+12}, v{T+13}, s95
v_lshlrev_b32 v{T+13}, 2, v{n_v}
v_add3_u32 v{vH2ld5}, v{T+12}, v{T+13}, s96
v_add_u32 v{vTB}, {L_TB}, v{vL16}
v_lshrrev_b32 v252, 2, v{vL16}
v_and_b32 v252, 127, v252
s_lshl_b32 s7, {sW}, 2
v_add_u32 v{T+2}, s7, v{vTB}
""")
sst('prex')
for hi in range(2):
    for ch in range(2):
        for rio in range(2):
            a(f'ds_write_b32 v{T+2}, v{G+8+2*(2*hi+ch)+rio} offset:{L_CM-L_TB+((hi*2+rio)*2+ch)*1024}')
a('s_waitcnt vmcnt(3) lgkmcnt(0)\ns_barrier')
sst('bart')
for i in range(4): a(f'ds_read_b128 {vr(S1r+4*i)}, v{vTB} offset:{1024*i}')
for i in range(9): a(f'ds_read_b128 {vr(A2r+4*i)}, v{vTB} offset:{1024*(T_A2+i)}')
for i in range(2): a(f'ds_read_b128 {vr(B1r+4*i)}, v{vTB} offset:{1024*(T_B1+i)}')
for i in range(8): a(f'ds_read_b128 {vr(CM+4*i)}, v{vTB} offset:{L_CM-L_TB+1024*i}')
a(f'ds_read_b128 {vr(A3r)}, v{vTB} offset:{1024*T_A3L}')
for i in (2, 1, 0): a(f'v_lshrrev_b32 v{vV+2*i+1}, 16, v{vV+i}\nv_and_b32 v{vV+2*i}, 0xffff, v{vV+i}')
a(f's_cmp_eq_u32 {sW}, 3\ns_cselect_b32 s7, 0x80008000, 0\ns_waitcnt lgkmcnt(11)')
for i in range(18): a(f'v_xor_b32 v{A2r+2*i+1}, s7, v{A2r+2*i+1}')
a('s_waitcnt vmcnt(0)\ns_barrier')
sst('bar0')
for kl in range(5):
    for j in range(4): a(f'ds_read_u16_d16_hi v{X+4*kl+j}, v{vXT+kl} offset:{1280*j}')
a('s_waitcnt lgkmcnt(0)')
Sx, Qx = T, T+4
if RP: a('s_mov_b32 m0, 0')
a('L_loop:')
stamp('top', True)
if opt('sca', 0):
    for j in range(4): a(f'v_mul_f32 v{Qx+j}, v{X+16+j}, v{X+16+j}')
    for j in range(4): a(f'v_add_f32 v{Sx+j}, v{X+16+j}, v{X+j}')
    for j in range(4): a(f'v_fmac_f32 v{Qx+j}, v{X+j}, v{X+j}')
else:
    for p in range(2): a(f'v_pk_mul_f32 {v2(Qx+2*p)}, {v2(X+16+2*p)}, {v2(X+16+2*p)}')
for kl in range(1 if opt('sca', 0) else 0, 4):
    for p in range(2):
        b = X+4*kl+2*p
        a(f'v_pk_add_f32 {v2(Sx+2*p)}, {v2(X+16+2*p) if kl == 0 else v2(Sx+2*p)}, {v2(b)}')
        a(f'v_pk_fma_f32 {v2(Qx+2*p)}, {v2(b)}, {v2(b)}, {v2(Qx+2*p)}')
for j in range(4): a(f'v_permlane32_swap_b32 v{Sx+j}, v{Qx+j}')
for p in range(2): a(f'v_pk_add_f32 {v2(Sx+2*p)}, {v2(Sx+2*p)}, {v2(Qx+2*p)}')
def dpp(d, s, ctl, bank): a(f'v_add_f32_dpp v{d}, v{s}, v{s} {ctl} row_mask:0xf bank_mask:{bank:#x}')
dpp(Sx, Sx, 'row_ror:8', 3); dpp(Sx, Sx+1, 'row_ror:8', 12); dpp(Sx+2, Sx+2, 'row_ror:8', 3); dpp(Sx+2, Sx+3, 'row_ror:8', 12)
dpp(Sx, Sx, 'row_shl:4', 5); dpp(Sx, Sx+2, 'row_shr:4', 10)
dpp(Sx, Sx, 'quad_perm:[1,0,3,2]', 15); dpp(Sx, Sx, 'quad_perm:[2,3,0,1]', 15)
a(f"""
ds_write_b32 v{vStW}, v{Sx}
s_waitcnt lgkmcnt(0)
s_barrier
""")
stamp('bar1', True)
P = T+8; RS = T+16; NB = T+20
a(f"""
ds_read_b128 {vr(P)}, v{vStR}
ds_read_b128 {vr(P+4)}, v{vStR} offset:16
s_waitcnt lgkmcnt(1)
v_pk_add_f32 {v2(P)}, {v2(P)}, {v2(P+2)}
s_waitcnt lgkmcnt(0)
v_pk_add_f32 {v2(P+4)}, {v2(P+4)}, {v2(P+6)}
v_pk_add_f32 {v2(P)}, {v2(P)}, {v2(P+4)}
v_mul_f32 v{P}, {sInv}, v{P}
v_fma_f32 v{P+1}, v{P+1}, {sInv}, v{vEps}
v_fma_f32 v{P+1}, -v{P}, v{P}, v{P+1}
v_max_f32 v{P+1}, v{P+1}, v{vEps}
v_rsq_f32 v{P+1}, v{P+1}
v_mul_f32 v{P}, -v{P}, v{P+1}
""")
for j in range(4): a(f'v_mov_b32_dpp v{RS+j}, v{P+1} quad_perm:[{j},{j},{j},{j}] row_mask:0xf bank_mask:0xf')
for j in range(4): a(f'v_mov_b32_dpp v{NB+j}, v{P} quad_perm:[{j},{j},{j},{j}] row_mask:0xf bank_mask:0xf')
N_ = T+24
D0, D1, DC, DE = T, T+4, T+8, T+12
for kl in range(5):
    for p in range(2): a(f'v_pk_fma_f32 {v2(N_+4*kl+2*p)}, {v2(X+4*kl+2*p)}, {v2(RS+2*p)}, {v2(NB+2*p)}')
def cvtn(kl):
    for p in range(2): a(f'v_cvt_pk_f16_f32 v{Bo+2*kl+p}, v{N_+4*kl+2*p}, v{N_+4*kl+2*p+1}')
cvtn(0); cvtn(1); cvtn(2)
mfma(D0, S1r, Bo, None); cvtn(3); mfma(DC, S1r+4, Bo, None); cvtn(4)
mfma(D1, S1r, Bo+4, None); mfma(DC, S1r+8, Bo+4, DC)
a(f's_cmp_lg_u32 {sFix}, 0')
W_ = T+44
mfma(DE, S1r+12, Bo+8, None)
a(f'v_cvt_pk_f16_f32 v{W_}, v{D0}, v{D0+1}')
a(f's_cbranch_scc0 L_fix\nL_nofix:')
a(f"""
v_cvt_pk_f16_f32 v{W_+1}, v{D0+2}, v{D0+3}
ds_write_b32 v{vV}, v{W_}
ds_write_b32 v{vV}, v{W_+1} offset:3200
v_cvt_pk_f16_f32 v{W_+2}, v{D1}, v{D1+1}
v_cvt_pk_f16_f32 v{W_+3}, v{D1+2}, v{D1+3}
v_cvt_pk_f16_f32 v{W_+4}, v{DC}, v{DC+1}
v_cvt_pk_f16_f32 v{W_+5}, v{DC+2}, v{DC+3}
ds_write_b32 v{vV+1}, v{W_+2}
ds_write_b32 v{vV+1}, v{W_+3} offset:3200
v_cvt_pk_f16_f32 v{W_+6}, v{DE}, v{DE+1}
v_cvt_pk_f16_f32 v{W_+7}, v{DE+2}, v{DE+3}
ds_write_b32 v{vV+2}, v{W_+4}
ds_write_b32 v{vV+3}, v{W_+5}
ds_write_b32 v{vV+4}, v{W_+6}
ds_write_b32 v{vV+5}, v{W_+7}
""")
stamp('s1w', True)
a(f's_cmp_eq_u32 {sLayer}, 0\ns_waitcnt lgkmcnt(0)\ns_barrier')
stamp('bar2', True)
Ad = T; Tr = T+12; Ti = T+24; B2 = Tr; O = T; Pt = T+36
a(f"""
ds_read_b128 {vr(Ad)}, v{vVrd}
ds_read_b128 {vr(Ad+4)}, v{vVrd} offset:1280
ds_read_b128 {vr(Ad+8)}, v{vVrd2}
s_cbranch_scc1 L_l0b
L_l0b_ret:
""")
for blk in range(3):
    a(f's_waitcnt lgkmcnt({2-blk})')
    mfma(Tr+4*blk, Ad+4*blk, B1r, None); mfma(Ti+4*blk, Ad+4*blk, B1r+4, None)
for ch in range(3):
    for p in range(2): a(f'v_pk_mul_f32 {v2(Pt+4*ch+2*p)}, {v2(Tr+4*ch+2*p)}, {v2(TWc+4*ch+2*p)}')
    for p in range(2): a(f'v_pk_fma_f32 {v2(Pt+4*ch+2*p)}, {v2(Ti+4*ch+2*p)}, {v2(TWs+4*ch+2*p)}, {v2(Pt+4*ch+2*p)}')
    for p in range(2): a(f'v_pk_mul_f32 {v2(Ti+4*ch+2*p)}, {v2(Ti+4*ch+2*p)}, {v2(TWc+4*ch+2*p)}')
    for p in range(2): a(f'v_pk_fma_f32 {v2(Ti+4*ch+2*p)}, {v2(Tr+4*ch+2*p)}, {v2(TWs+4*ch+2*p)}, {v2(Ti+4*ch+2*p)} neg_lo:[1,0,0] neg_hi:[1,0,0]')
def cv2(ch, i): a(f'v_cvt_pk_f16_f32 v{B2+4*ch+i}, v{Pt+4*ch+i}, v{Ti+4*ch+i}')
def st2(blk, ch): mfma(O+4*blk, A2r+(blk*3+ch)*4, B2+4*ch, None if ch == 0 else O+4*blk)
for i in range(4): cv2(0, i)
cv2(1, 0); cv2(1, 1)
st2(2, 0); cv2(1, 2); cv2(1, 3); st2(0, 0); cv2(2, 0); cv2(2, 1); st2(1, 0); cv2(2, 2); cv2(2, 3)
st2(2, 1); st2(0, 1); st2(2, 2); st2(0, 2); st2(1, 1); st2(1, 2)
a(f's_mov_b32 {sSpin}, {SPIN}\ns_add_u32 {sH2ld}, {sH2ld}, {BUF}\ns_cmp_lg_u32 {sMode}, 0')
Wo = T+48
def cvo(i): a(f'v_cvt_pk_f16_f32 v{Wo+i}, v{O+2*i}, v{O+2*i+1}')
def tg(i): a(f'v_and_or_b32 v{Wo+i}, v{Wo+i}, -2, {sTag}')
cvo(4); cvo(5); tg(5); cvo(0); cvo(1)
a(f'v_cndmask_b32 v{Wo}, v{Wo}, v{Wo+4}, {sSlot}')
tg(4); tg(1); tg(0); cvo(2); cvo(3); tg(2); tg(3)
a(f"""
s_cbranch_scc1 L_st_slow
buffer_store_dwordx2 {v2(Wo+4)}, v{vH1s2}, {SWS}, {sH1st} offen
buffer_store_dwordx4 {vr(Wo)}, v{vL16}, {SWS}, {sH1st} offen
L_cphase:
""")
stamp('h1st', True)
Ca = T+12; Dm = T+20; K_ = T+36
a(f"""
s_xor_b32 {sH1st}, {sH1st}, {H1STR}
s_cmp_eq_u32 {sLayer}, 0
s_cbranch_scc1 L_l0c
L_l0c_ret:
""")
if opt('ack1', 1): a('s_waitcnt vmcnt(0)')
a('L_poll1:')
for ch in range(2):
    for u in range(4):
        a(f'buffer_load_dword v{Ca+4*ch+u}, v{vC1ld}, {SWS}, {sH1ld0 if ch == 0 else sH1ld1} offen offset:{1280*u} sc1')
a(f's_sub_u32 {sSpin}, {sSpin}, 1\ns_cbranch_scc1 L_poll1_to\ns_waitcnt vmcnt(4)')
tt = sum((((i >> 2 & 1) ^ (i & 1)) & ((i >> 1 & 1) ^ (i & 1))) << i for i in range(8))
def cm(hi, ch, rio):
    d = Dm + (hi*2+rio)*4
    mfma(d, Ca+4*ch, CM+((hi*2+rio)*2+ch)*4, None if ch == 0 else d)
def xa(i): a(f'v_bitop3_b32 v{K_+i}, v{Ca+2*i}, v{Ca+2*i+1}, {sFlip} bitop3:{tt:#x}')
cm(0, 0, 0); xa(0); cm(0, 0, 1); xa(1); cm(1, 0, 0)
a(f'v_bitop3_b32 v{K_}, v{K_}, v{K_+1}, 1 bitop3:0x80')
cm(1, 0, 1)
a('s_waitcnt vmcnt(0)')
cm(0, 1, 0); xa(2); cm(0, 1, 1); xa(3)
cm(1, 1, 0)
a(f'v_bitop3_b32 v{K_}, v{K_}, v{K_+2}, v{K_+3} bitop3:0x80')
a(f'v_cmp_eq_u32 vcc, 0, v{K_}')
cm(1, 1, 1)
a('s_cbranch_vccnz L_poll1_re\nL_poll1_done:')
stamp('h1ok', True)
for hi in range(2):
    for i in range(4): a(f'v_cvt_pk_f16_f32 v{K_+4*hi+i}, v{Dm+8*hi+i}, v{Dm+8*hi+4+i}')
    for i in range(4): a(f'v_or_b32 v{K_+4*hi+i}, 1, v{K_+4*hi+i}')
    a(f'ds_write_b128 v{vRtW}, {vr(K_+4*hi)} offset:{2560*hi}')
a(f"""
s_waitcnt lgkmcnt(0)
s_barrier
ds_read_b128 {vr(T)}, v{vRtR}
ds_read_b128 {vr(T+4)}, v{vRtR2}
s_waitcnt lgkmcnt(1)
buffer_store_dwordx4 {vr(T)}, v{vH2st}, {SWS}, {sH2st} offen sc1
s_waitcnt lgkmcnt(0)
buffer_store_dwordx4 {vr(T+4)}, v{vH2st2}, {SWS}, {sH2st} offen sc1
""")
stamp('h2st', True)
CLN = f's_mov_b32 {sCl}, {OOB}' if opt('h3', 1) else f's_add_u32 {sCl}, {sCl}, {BUF}'
a(f"""
buffer_store_dwordx4 {vr(vZc)}, v{vH2st}, {SWS}, {sCl} offen sc1
buffer_store_dwordx4 {vr(vZc)}, v{vH2st2}, {SWS}, {sCl} offen sc1
{CLN}
s_mov_b32 {sSpin}, {SPIN}
s_add_u32 {sLayer}, {sLayer}, 1
{f's_mov_b32 m0, {sLayer}' if RP else ''}
s_add_u32 {sH2st}, {sH2st}, {BUF}
s_xor_b32 {sH1ld0}, {sH1ld0}, {H1STR}
s_xor_b32 {sH1ld1}, {sH1ld1}, {H1STR}
s_cmp_ge_u32 {sLayer}, 2
s_cselect_b32 {sTag}, 0, 1
s_cselect_b32 {sFlip}, -1, 0
s_cmp_eq_u32 {sLayer}, 1
s_cbranch_scc1 L_l0d
L_l0d_ret:
s_waitcnt vmcnt(2)
""")
stamp('h2ack', True)
a('L_poll2:')
Lh = T+8; K2 = T+28
for u in range(4): a(f'buffer_load_dword v{Lh+16+u}, v{vH2ld5}, {SWS}, {sH2ld} offen offset:{1280*u} sc1')
for u in range(4): a(f'buffer_load_dwordx4 {vr(Lh+4*u)}, v{vH2ld}, {SWS}, {sH2ld} offen offset:{1280*u} sc1')
def and3(d, x, y, z): a(f'v_bitop3_b32 v{d}, v{x}, v{y}, {z if isinstance(z, str) else "v%d" % z} bitop3:0x80')
a(f's_sub_u32 {sSpin}, {sSpin}, 1\ns_cbranch_scc1 L_poll2_to\ns_waitcnt vmcnt(3)')
and3(K2, Lh+16, Lh+17, '1'); and3(K2+1, Lh+18, Lh+19, Lh); and3(K2, K2, Lh+1, Lh+2); and3(K2, K2, K2+1, Lh+3)
a(f'v_and_b32 v{Lh}, v{vMask0}, v{Lh}\ns_waitcnt vmcnt(2)')
and3(K2, K2, Lh+4, Lh+5); and3(K2, K2, Lh+6, Lh+7)
a(f'v_and_b32 v{Lh+4}, v{vMask0}, v{Lh+4}\nv_swap_b32 v{Lh+1}, v{Lh+4}\ns_waitcnt vmcnt(1)')
and3(K2, K2, Lh+8, Lh+9); and3(K2, K2, Lh+10, Lh+11)
a(f'v_and_b32 v{Lh+8}, v{vMask0}, v{Lh+8}\nv_swap_b32 v{Lh+2}, v{Lh+8}\nv_swap_b32 v{Lh+6}, v{Lh+9}\ns_waitcnt vmcnt(0)')
and3(K2, K2, Lh+12, Lh+13); and3(K2, K2, Lh+14, Lh+15)
a(f"""
v_and_b32 v{Lh+12}, v{vMask0}, v{Lh+12}
v_cmp_eq_u32 vcc, 0, v{K2}
v_swap_b32 v{Lh+3}, v{Lh+12}
s_cbranch_vccnz L_poll2_re
L_poll2_done:
""")
stamp('h2ok', True)
mfma(X+16, A3r, Lh+16, X+16)
a(f'v_swap_b32 v{Lh+7}, v{Lh+13}')
mfma(X, A3r, Lh, X)
a(f'v_swap_b32 v{Lh+11}, v{Lh+14}')
mfma(X+4, A3r, Lh+4, X+4)
a(f's_cmp_lt_u32 {sLayer}, {NLAYER}')
mfma(X+8, A3r, Lh+8, X+8); mfma(X+12, A3r, Lh+12, X+12)
a('s_cbranch_scc1 L_loop')
F = T
for kl in (4, 0, 1, 2, 3):
    for p in range(2): a(f'v_cvt_pk_bf16_f32 v{F+2*kl+p}, v{X+4*kl+2*p}, v{X+4*kl+2*p+1}')
    for p in range(2):
        a(f'ds_write_b16 v{vXT+kl}, v{F+2*kl+p} offset:{2560*p}')
        a(f'ds_write_b16_d16_hi v{vXT+kl}, v{F+2*kl+p} offset:{2560*p+1280}')
a('s_waitcnt lgkmcnt(0)\ns_barrier')
for i in range(3): a(f'ds_read_b128 {vr(T+12+4*i)}, v{vRtR} offset:{L_XT-L_RT+4096*i}')
for i in range(3): a(f's_waitcnt lgkmcnt({2-i})\nbuffer_store_dwordx4 {vr(T+12+4*i)}, v{vG+i}, {SO}, 0 offen{OF}')
def stamp_dump(hk):
    if hk: a(f's_memtime s[{60+2*nst.index("end")}:{61+2*nst.index("end")}]\ns_memrealtime s[{60+2*nst.index("rend")}:{61+2*nst.index("rend")}]\ns_waitcnt lgkmcnt(0)')
    a(f's_lshl_b32 s7, s2, 7\ns_add_u32 s7, s7, {STAMP_OFF}\nv_mov_b32 v1, 0\ns_mov_b64 exec, 1')
    for i in range(len(nst)): a(f'v_mov_b32 v2, s{60+2*i}\nbuffer_store_dword v2, v1, {SWS}, s7 offen offset:{4*i}')
if STAMPS:
    a('s_waitcnt vmcnt(0)'); stamp('end'); stamp('rend', real=True)
    a(f's_waitcnt lgkmcnt(0)\ns_cmp_lg_u32 {sW}, {opt("swave")}\ns_cbranch_scc1 L_end')
    stamp_dump(False)
if RP:
    if RP == 'end': a('s_waitcnt vmcnt(0)\ns_memrealtime s[62:63]')
    if RP == 'top': a(f's_mov_b32 s62, s{80+RPL}')
    if RP == 'h2ok': a(f's_mov_b32 s62, s{81+RPL}')
    a(f's_waitcnt lgkmcnt(0)\ns_cmp_lg_u32 {sW}, 0\ns_cbranch_scc1 L_end\ns_lshl_b32 s7, s2, 3\ns_add_u32 s7, s7, {STAMP_OFF}\nv_mov_b32 v2, s60\nv_mov_b32 v3, s62\ns_mov_b64 exec, 1\nbuffer_store_dwordx2 v[2:3], off, {SWS}, s7')
a('L_end:\ns_endpgm')
a('L_fix:\ns_nop 7')
mfma(T+24, DEL, Bo, None); mfma(T+28, DEL+4, Bo, None)
a('s_mov_b32 exec_lo, 0x00010001\ns_mov_b32 exec_hi, 0x00010001')
for p in range(2): a(f'v_pk_add_f32 {v2(D0+2*p)}, {v2(D0+2*p)}, {v2(T+24+2*p)}')
for p in range(2): a(f'v_pk_add_f32 {v2(DC+2*p)}, {v2(DC+2*p)}, {v2(T+28+2*p)}')
a(f's_mov_b64 exec, -1\nv_cvt_pk_f16_f32 v{W_}, v{D0}, v{D0+1}\ns_branch L_nofix')
a(f"""
L_l0b:
v_mov_b32 v{T+54}, {L_MODE}
ds_read_b32 v{T+55}, v{T+54} offset:{L_OWN-L_MODE}
ds_read_b32 v253, v252 offset:{L_EXP}
ds_read_b32 v{T+54}, v{T+54}
s_waitcnt lgkmcnt(0)
v_readfirstlane_b32 {sMode}, v{T+54}
s_branch L_l0b_ret
L_l0c:
s_cmp_lg_u32 {sMode}, 0
s_mov_b64 exec, 1
s_waitcnt vmcnt(0)
s_cbranch_scc1 L_l0c_slow
buffer_store_dword v{T+55}, off, {SWS}, s55
L_l0c_p:
s_mov_b64 exec, -1
L_l0c_poll:
buffer_load_dword v{T+54}, v252, {SWS}, s56 offen sc1
s_sub_u32 {sSpin}, {sSpin}, 1
s_cbranch_scc1 L_poll1_to
s_waitcnt vmcnt(0)
v_cmp_ne_u32 vcc, v{T+54}, v253
s_cbranch_vccz L_poll1
s_sleep {BK}
s_branch L_l0c_poll
L_l0c_slow:
buffer_store_dword v{T+55}, off, {SWS}, s55 sc1
s_branch L_l0c_p
L_l0d:
v_mov_b32 v{T+50}, {L_GO}
L_l0d_spin:
ds_read_b32 v{T+51}, v{T+50}
s_waitcnt lgkmcnt(0)
v_cmp_eq_u32 vcc, 0, v{T+51}
s_cbranch_vccnz L_l0d_spin
s_branch L_l0d_ret
L_st_slow:
buffer_store_dwordx4 {vr(Wo)}, v{vL16}, {SWS}, {sH1st} offen sc1
buffer_store_dwordx2 {v2(Wo+4)}, v{vH1s2}, {SWS}, {sH1st} offen sc1
s_branch L_cphase
L_poll1_re:
s_sleep {BK}
s_branch L_poll1
L_poll2_re:
s_sleep {BK}
s_branch L_poll2
L_poll1_to:
s_waitcnt vmcnt(0)
s_branch L_poll1_done
L_poll2_to:
s_waitcnt vmcnt(0)
s_branch L_poll2_done
""")
H = 8
def fhash(dst, src): a(f'v_mul_lo_u32 v{dst}, v{src}, s50\nv_add_u32 v{dst}, s51, v{dst}')
def hs_group(lbl, x3, pre=False):
    a(f"""
s_mov_b32 exec_hi, 0
s_mov_b32 {sSpin}, {SPIN}
{'s_branch ' + lbl + '_chk' if pre else ''}
{lbl}:
s_sleep {BK}
buffer_load_dwordx3 v[{H}:{H+2}], v{vL16}, {SWS}, s54 offen sc1
s_sub_u32 {sSpin}, {sSpin}, 1
s_cbranch_scc1 {lbl}_to
s_waitcnt vmcnt(0)
{lbl}_chk:
""")
    fhash(H, H)
    a(f"""
v_xor_b32 v{H}, v{H}, v{H+(2 if x3 else 1)}
v_cmp_lt_u32 vcc, 15, v{H}
s_cbranch_vccnz {lbl}
s_branch {lbl}_done
{lbl}_to:
s_waitcnt vmcnt(0)
{lbl}_done:
v_lshrrev_b32 v{H+3}, 2, v{vL16}
ds_write_b32 v{H+3}, v{H+1} offset:{L_EXP}
v_and_b32 v{H+3}, 15, v{H+1}
v_cmp_ne_u32 vcc, s6, v{H+3}
s_mov_b64 exec, -1
""")
def hs_all(lbl, pre=False):
    a(f's_mov_b32 {sSpin}, {SPIN}')
    if pre: a(f's_branch {lbl}_w')
    a(f'{lbl}:')
    for i, r in enumerate(('s92', 's93', 's95', 's96')): a(f'buffer_load_dwordx2 {v2(H+8+2*i)}, v{vL16}, {SWS}, {r} offen sc1')
    a(f's_sub_u32 {sSpin}, {sSpin}, 1\ns_cbranch_scc1 {lbl}_done\n{lbl}_w:\ns_waitcnt vmcnt(0)')
    for i in range(4): fhash(H+8+2*i, H+8+2*i)
    for i in range(4): a(f'v_xor_b32 v{H+8+2*i}, v{H+8+2*i}, v{H+9+2*i}')
    a(f"""
v_or3_b32 v{H}, v{H+8}, v{H+10}, v{H+12}
v_or_b32 v{H}, v{H}, v{H+14}
v_cmp_lt_u32 vcc, 15, v{H}
s_cbranch_vccz {lbl}_done
s_sleep {BK}
s_branch {lbl}
{lbl}_done:
s_waitcnt vmcnt(0)
""")
def flag_store(v, soff, off):
    a(f's_mov_b64 exec, 1\ns_waitcnt vmcnt(0)\nbuffer_store_dword v{v}, off, {SWS}, {soff} offset:{off} sc1\ns_mov_b64 exec, -1')
def hstamp(n):
    if opt('hstamp'): a(f's_memtime s[{60+2*nst.index(n)}:{61+2*nst.index(n)}]')
a('L_hk:')
if opt('prio', 1): a('s_setprio 3')
for i in range(4): a(f'v_mov_b32 v{vZ+i}, 0')
a(f"""
s_lshl_b32 {sGi}, {sSig}, 5
s_add_u32 {sGi}, {sGi}, {sM}
s_lshl_b32 s97, {sGi}, 4
s_add_u32 s97, s97, {FLAGS}
s_mul_i32 s94, {sGi}, 5120
s_add_u32 {sCl}, s94, {H2BASE+BUF}
s_add_u32 s94, s94, {H1BASE}
v_lshlrev_b32 v{H+18}, 8, v{vL16}
s_mov_b64 exec, 3
s_waitcnt lgkmcnt(0)
{WSADD}
buffer_load_dword v{H+16}, v{H+18}, {SWS}, s97 offen
s_mov_b64 exec, -1
v_lshlrev_b32 v{H+4}, 3, v{vL16}
v_min_u32 v{H+21}, 4992, v{H+4}
s_lshl_b32 s7, {sSig}, 9
s_add_u32 s7, s7, {HF}
{'' if opt('nopf') else f'buffer_load_dword v{H+27}, v{H+21}, {SWS}, s94 offen'}
v_min_u32 v{H+21}, 384, v{H+4}
buffer_load_dword v{H+28}, v{H+21}, {SWS}, s7 offen
""")
a('L_hk2:')
a(f"""
s_add_u32 s98, s94, {H1STR}
s_getreg_b32 s6, hwreg(HW_REG_XCC_ID, 0, 4)
s_mov_b32 s92, {FLAGS+0x1000}
s_mov_b32 s93, {FLAGS+0x1400}
s_mov_b32 s95, {FLAGS+0x1800}
s_mov_b32 s96, {FLAGS+0x1c00}
s_mov_b32 s50, 0x9e3779b1
s_mov_b32 s51, 0x7f4a7c15
v_mov_b32 v{H+1}, {L_MODE}
ds_write_b32 v{H+1}, v{vZ} offset:4
s_lshr_b32 s52, {sM}, 3
s_lshl_b32 s52, s52, 8
s_add_u32 s52, s52, {sSig}
s_mul_i32 s52, s52, 1280
s_and_b32 s53, {sM}, 7
s_mul_i32 s53, s53, 160
s_add_u32 s52, s52, s53
s_add_u32 s52, s52, {H2BASE}
s_movk_i32 s53, 10080
s_lshl_b32 s54, {sSig}, 9
s_add_u32 s54, s54, {FLAGS}
""")
for i in range(5):
    a(f"""v_add_u32 v{H+22+i}, {1024*i}, v{vL16}
v_mul_u32_u24 v{H+21}, 205, v{H+22+i}
v_lshrrev_b32 v{H+21}, 15, v{H+21}
v_mad_u32_u24 v{H+22+i}, v{H+21}, s53, v{H+22+i}""")
hstamp('top')
a(f's_waitcnt vmcnt({1 if opt("nopf") else 2}) lgkmcnt(0)')
fhash(H+5, H+16)
a(f'v_and_or_b32 v{H+5}, v{H+5}, -16, s6')
def flag_lane(lane, off):
    a(f's_mov_b64 exec, {1 << lane}\ns_waitcnt vmcnt(0)\nbuffer_store_dword v{H+5}, v{H+18}, {SWS}, s97 offen offset:{off} sc1\ns_mov_b64 exec, -1')
def hs_issue():
    for i, r in enumerate(('s92', 's93', 's95', 's96')): a(f'buffer_load_dwordx2 {v2(H+8+2*i)}, v{vL16}, {SWS}, {r} offen sc1')
hstamp('bar1')
a(f's_mov_b64 exec, 1\nbuffer_store_dword v{H+5}, v{H+18}, {SWS}, s97 offen offset:4 sc1\nv_mov_b32 v{H+1}, {L_OWN}\nds_write_b32 v{H+1}, v{H+5}\ns_mov_b64 exec, -1')
hstamp('s1w')
a(f'v_lshlrev_b32 v{H+19}, 17, v{vL16}\ns_lshl_b32 s7, s2, 7\ns_mov_b64 exec, 3\nbuffer_load_dword v{H+20}, v{H+19}, {SO}, s7 offen\ns_mov_b64 exec, -1')
if opt('wst', 0): a(f's_mov_b64 exec, 62\nbuffer_load_dword v{H+29}, v{H+19}, {SWS}, s7 offen\ns_mov_b64 exec, -1')
a(f"""
s_barrier
s_barrier
s_mov_b32 exec_hi, 0
buffer_load_dwordx3 v[{H}:{H+2}], v{vL16}, {SWS}, s54 offen sc1
s_mov_b64 exec, -1
""")
if opt('clate'): a('s_barrier')
for i in range(5): a(f'buffer_store_dwordx4 {vr(vZ)}, v{H+22+i}, {SWS}, s52 offen sc1')
clean5(sCl); clean5('s98', '')
a(f's_add_u32 {sCl}, {sCl}, {BUF}')
if not opt('clate'): a('s_barrier')
a('s_mov_b32 exec_hi, 0\ns_waitcnt vmcnt(15)')
hstamp('bar2')
hs_group('L_hs', False, True)
a(f's_cmp_lg_u32 vcc_lo, 0\ns_cselect_b32 {sMode}, 1, {FORCE_SLOW}')
hstamp('h1st')
a(f"""
v_mov_b32 v{H}, {sMode}
v_mov_b32 v{H+1}, {L_MODE}
ds_write_b32 v{H+1}, v{H}
s_cmp_eq_u32 {sMode}, 0
s_cbranch_scc1 L_hk_go
""")
clean5('s98')
a('L_hk_go:\ns_waitcnt lgkmcnt(0)\ns_barrier')
flag_lane(1, 4)
a('s_barrier')
hs_all('L_hs2')
a(f'v_mov_b32 v{H}, 1\nv_mov_b32 v{H+1}, {L_GO}\nds_write_b32 v{H+1}, v{H}')
hstamp('h1ok')
a('s_barrier')
if opt('h3', 1):
    a(f's_add_u32 {sCl}, {sCl}, {BUF}'); clean5(sCl)
a(f"""
v_add_u32 v{H+16}, 1, v{H+16}
s_mov_b64 exec, 3
s_barrier
s_waitcnt vmcnt(0)
s_barrier
s_barrier
buffer_store_dword v{H+16}, v{H+18}, {SWS}, s97 offen{' sc1' if opt('bsc1', 1) else ''}
s_barrier
s_barrier
""")
if opt('hstamp'): stamp_dump(True)
a('s_endpgm\nL_codeend:')

if opt('hfront', 1):
    li = [k for k, i in enumerate(a.ins) if i.text in ('L_hk:', 'L_hk2:')]
    hk = a.ins[li[0]:li[1]]
    rest = a.ins[:li[0]] + a.ins[li[1]:]
    b = [k for k, i in enumerate(rest) if i.text == 's_cbranch_scc1 L_hk'][0]
    a.ins = rest[:b] + [Ins('s_cbranch_scc0 L_main')] + hk + [Ins('s_branch L_hk2'), Ins('L_main:')] + rest[b+1:]
if opt('nodma'): a.ins = [i for i in a.ins if not i.op.startswith('global_load_lds')]
NT = opts.get('nt', '')
def addnt(pred):
    for k, i in enumerate(a.ins):
        if pred(i): a.ins[k] = Ins(i.text + ' nt')
if 't' in NT: addnt(lambda i: i.op.startswith('global_load_lds') or i.op in ('global_load_dwordx3', 'global_load_dwordx4'))
if 'c' in NT: addnt(lambda i: i.op == 'global_load_dword')
if 'p' in NT: addnt(lambda i: i.op == 'buffer_load_dword' and i.toks[0] in (f'v{H+27}', f'v{H+28}'))
if 'e' in NT: addnt(lambda i: i.op == 'buffer_load_dword' and i.toks[0] in (f'v{H+16}', f'v{H+20}'))
if 'z' in NT: addnt(lambda i: i.op == 'buffer_store_dwordx4' and i.toks[0] in (vr(vZ), vr(vZc)) and 'sc1' in i.text)
if opt('align', 1): print('align', align_pass(a, KNAME + ':\n'))
hdr = open('interleave_layers__spectral_fnet__spectral_fnet__prompt.s.ref').read().split('; Override')[0]
out = hdr + ('; STAMPS ' + ' '.join(nst) + '\n' if STAMPS else '') + f'; @launch grid=(256,1,1) block=(320,1,1) lds={LDS_BYTES}\n'
out += f'.amdgcn_target "amdgcn-amd-amdhsa--gfx950"\n.text\n.globl {KNAME}\n.p2align 8\n.type {KNAME},@function\n{KNAME}:\n'
out += a.text()
if RP:
    out = out.replace('; @launch grid=(256,1,1) block=(320,1,1) lds=', f'; @launch kernel={KNAME} grid=(256,1,1) block=(320,1,1) lds=').replace('\n.amdgcn_target', '\n; @launch kernel=reveal_kernel grid=(1,1,1) block=(256,1,1) lds=64\n.amdgcn_target', 1)
    out += f'''.globl reveal_kernel
.p2align 8
.type reveal_kernel,@function
reveal_kernel:
  s_cmp_lg_u32 s2, 0
  s_cbranch_scc1 LR_end
  s_load_dwordx2 s[8:9], s[0:1], 96
  s_mov_b32 s10, {WS_BYTES}
  s_mov_b32 s11, 0x20000
  s_mov_b32 s3, {STAMP_OFF}
  v_lshlrev_b32 v1, 3, v0
  v_mov_b32 v4, 0
  v_mov_b32 v5, -1
  v_mov_b32 v6, {0 if opt('rpmax', 1) else -1}
  ds_write_b32 v4, v5
  ds_write_b32 v4, v6 offset:4
  s_waitcnt lgkmcnt(0)
  buffer_load_dwordx2 v[2:3], v1, s[8:11], s3 offen
  s_barrier
  s_waitcnt vmcnt(0)
  ds_min_u32 v4, v2
  ds_{'max' if opt('rpmax', 1) else 'min'}_u32 v4, v3 offset:4
  s_waitcnt lgkmcnt(0)
  s_barrier
  ds_read_b64 v[2:3], v4
  s_waitcnt lgkmcnt(0)
  v_sub_u32 v2, v3, v2
  v_min_u32 v2, 5000, v2
  v_mul_u32_u24 v2, 10, v2
  s_memrealtime s[12:13]
  v_readfirstlane_b32 s16, v2
  s_waitcnt lgkmcnt(0)
LR_spin:
  s_memrealtime s[14:15]
  s_waitcnt lgkmcnt(0)
  s_sub_u32 s17, s14, s12
  s_cmp_lt_u32 s17, s16
  s_cbranch_scc1 LR_spin
LR_end:
  s_endpgm
'''
out += f'''.section .rodata,"a"
.p2align 6
.amdhsa_kernel {KNAME}
  .amdhsa_next_free_vgpr 256
  .amdhsa_next_free_sgpr 102
  .amdhsa_accum_offset 256
  .amdhsa_group_segment_fixed_size 0
  .amdhsa_kernarg_size 104
  .amdhsa_user_sgpr_count 2
  .amdhsa_user_sgpr_kernarg_segment_ptr 1
  .amdhsa_system_sgpr_workgroup_id_x 1
.end_amdhsa_kernel
''' + '''.p2align 6
.amdhsa_kernel reveal_kernel
  .amdhsa_next_free_vgpr 16
  .amdhsa_next_free_sgpr 32
  .amdhsa_accum_offset 16
  .amdhsa_group_segment_fixed_size 0
  .amdhsa_kernarg_size 104
  .amdhsa_user_sgpr_count 2
  .amdhsa_user_sgpr_kernarg_segment_ptr 1
  .amdhsa_system_sgpr_workgroup_id_x 1
.end_amdhsa_kernel
''' * (1 if RP else 0) + '''.p2align 10
tbl:
'''
for f in blocks:
    for i in range(0, 256, 8): out += '.long ' + ','.join(f'{int(x):#x}' for x in f[i:i+8]) + '\n'
open(sys.argv[1], 'w').write(out)
print('instrs', len(a.ins), 'nops inserted', a.nops, 'table blocks', len(blocks), 'bytes', len(out))
```

```python
import numpy as np
S, D = 2048, 640
HSCALE = 8.0

def s0_of(sig):
    return [0, 1, 2, 13, 4, 5, 6, 9][sig]

def unit_g(sig, m):
    if sig == 0:
        return 16*m if m < 16 else 8 + 16*(m-16)
    return s0_of(sig) + 16*m

def is_special(sig, m): return sig == 0 and m == 0

def rows_of(sig, m):
    g = unit_g(sig, m)
    a = [g + 512*j for j in range(4)]
    if is_special(sig, m):
        b = [256 + 512*j for j in range(4)]
    else:
        b = [((-g) % 512) + 512*j for j in range(4)]
    return [a, b]

def slot_cr(kappa):
    if kappa < 256:
        l, j = divmod(kappa, 4)
        c, mq = l % 16, l // 16
        r = 2*mq + j if j < 2 else 8 + 2*mq + (j-2)
    else:
        l, j = divmod(kappa-256, 2)
        c, mq = l % 16, l // 16
        r = 16 + 2*mq + j
    return c, r

def seg_e(q, kappa):
    c, r = slot_cr(kappa)
    if q == 3: return c + 16*(r+20)
    if q < 2 and kappa == 0: return 320
    return c + 16*r

def seg_t2(q): return [0, 2, 1, 1][q]

def src_of(sig, m):
    g = unit_g(sig, m); tp = g % 128; t2 = tp % 4
    if t2 == 1:
        return [(2, tp//4), (3, tp//4)]
    q = 0 if t2 == 0 else 1
    return [(q, tp//4), (q, ((-g) % 128)//4)]

def acol(sig, m, h, kappa):
    g = unit_g(sig, m)
    (q, _t1) = src_of(sig, m)[h]
    e = seg_e(q, kappa)
    if g % 4 == 1: return e
    if h == 0: return e
    if kappa == 0: return 0
    return (-e) % D

def t0_of(sig, m, h, st, j):
    g = unit_g(sig, m); rows = rows_of(sig, m)
    row = rows[st][j]
    direct = (g % 4 == 1) or h == 0
    if st == 1: direct = not direct
    t = row if direct else (-row) % S
    (q, t1) = src_of(sig, m)[h]
    assert t % 128 == seg_t2(q) + 4*t1, (sig, m, h, st, j, t)
    return t // 128

def A3(sig, m):
    A = np.zeros((16, 32))
    for mq in range(4):
        h, st = divmod(mq, 2)
        for j in range(4):
            t0 = t0_of(sig, m, h, st, j)
            for sg in range(8):
                k = 16*h + 2*sg
                if sg == 0:
                    A[4*mq+j, k] = 1.0; A[4*mq+j, k+1] = (-1.0)**t0
                else:
                    th = 2*np.pi*((t0*s0_of(sg)) % 16)/16
                    A[4*mq+j, k] = np.cos(th); A[4*mq+j, k+1] = np.sin(th)
    return A

def s1_coef(special):
    co = np.zeros((2, 6, 2, 2, 4)); de = np.zeros((2, 6, 2, 2, 4))
    if not special:
        base = np.array([[1,0,-1,0],[0,-1,0,1],[1,1,1,1],[0,0,0,0],[1,-1,1,-1],[0,0,0,0]], float)
        for h in range(2):
            for st in range(2):
                co[h, :, h, st, :] = base if st == 0 else base[:, ::-1]
        return co, de
    for oi, t2 in enumerate([1, 0, 2]):
        for st in range(2):
            for j in range(4):
                jp = 2*j + st
                cA = 0.5*(np.exp(-2j*np.pi*t2*jp/8) + 1j*np.exp(-2j*np.pi*(t2+4)*jp/8))
                cB = 0.5*(np.exp(2j*np.pi*t2*jp/8) + 1j*np.exp(2j*np.pi*(t2+4)*jp/8))
                for h in range(2):
                    h_same = h if st == 0 else h ^ 1
                    h_mirr = h_same ^ 1
                    co[h, 2*oi, h_same, st, j] += cA.real; co[h, 2*oi+1, h_same, st, j] += cA.imag
                    co[h, 2*oi, h_mirr, st, j] += cB.real; co[h, 2*oi+1, h_mirr, st, j] += cB.imag
                    want = np.zeros((2, 2)); have = np.zeros((2, 2))
                    want[h] = [(cA+cB).real, (cA+cB).imag]
                    have[h_same] += [cA.real, cA.imag]; have[h_mirr] += [cB.real, cB.imag]
                    for hi in range(2):
                        de[h, 2*oi, hi, st, j] = want[hi, 0]-have[hi, 0]
                        de[h, 2*oi+1, hi, st, j] = want[hi, 1]-have[hi, 1]
    return co, de

def S1_mats(special):
    co, de = s1_coef(special)
    def build(cf):
        AB = np.zeros((16, 32)); C = [np.zeros((16, 32)), np.zeros((16, 32))]
        for ho in range(2):
            for sub in range(2):
                for hi in range(2):
                    for st in range(2):
                        for j in range(4):
                            k = 8*(2*hi+st) + 4*sub + j
                            for o in range(4):
                                AB[4*(2*ho+sub)+o, k] = cf[ho, o, hi, st, j]
                            for bop in range(2):
                                for ri in range(2):
                                    C[bop][4*(2*bop+ho) + 2*sub + ri, k] = cf[ho, 4+ri, hi, st, j]
        return AB, C[0], C[1]
    AB, C0, C1 = build(co)
    dAB, dC0, _ = build(de)
    for ho in range(2):
        dAB[4*(2*ho+1):4*(2*ho+1)+4, :] = 0
        dC0[4*ho+2:4*ho+4, :] = 0
    return AB, C0, C1, dAB, dC0

def B1_mats():
    Bre = np.zeros((32, 16)); Bim = np.zeros((32, 16))
    for b in range(16):
        for c in range(16):
            th = 2*np.pi*((b*c) % 16)/16
            Bre[2*b, c] = np.cos(th); Bre[2*b+1, c] = np.sin(th)
            Bim[2*b, c] = -np.sin(th); Bim[2*b+1, c] = np.cos(th)
    return Bre, Bim

def twiddles():
    co = np.zeros((3, 64, 4)); si = np.zeros((3, 64, 4))
    for blk in range(3):
        for l in range(64):
            c, mq = l % 16, l//16
            for i in range(4):
                a = 16*blk + 4*mq + i
                if a < 40:
                    th = 2*np.pi*((a*c) % 640)/640
                    co[blk, l, i] = np.cos(th); si[blk, l, i] = np.sin(th)
    return co, si

def A2_mats(r0):
    out = np.zeros((3, 3, 16, 32))
    for blk in range(3):
        for ch in range(3):
            for mm in range(16):
                mq, rr, rio = mm//4, (mm % 4)//2, mm % 2
                r = r0 + 8*blk + 2*mq + rr
                for kq in range(4):
                    for i in range(4):
                        a = 16*ch + 4*kq + i
                        if a >= 40: continue
                        th = 2*np.pi*((r*a) % 40)/40
                        k = 8*kq + 2*i
                        if rio == 0:
                            out[blk, ch, mm, k] = np.cos(th); out[blk, ch, mm, k+1] = np.sin(th)
                        else:
                            out[blk, ch, mm, k] = -np.sin(th); out[blk, ch, mm, k+1] = np.cos(th)
    return out

def C_mats(sig, q):
    t2 = seg_t2(q)
    out = np.zeros((2, 2, 2, 32, 16))
    for hi in range(2):
        for n in range(16):
            t1 = 16*hi + n; tp = t2 + 4*t1
            for p in range(32):
                ch, k = p//16, 2*(p % 16)
                g = unit_g(sig, p)
                th = 2*np.pi*((tp*g) % S)/S
                c_, s_ = np.cos(th), np.sin(th)
                if sig != 0:
                    out[hi, 0, ch, k, n] = c_; out[hi, 0, ch, k+1, n] = s_
                    out[hi, 1, ch, k, n] = -s_; out[hi, 1, ch, k+1, n] = c_
                elif p == 0:
                    out[hi, 0, ch, k + (t1 & 1), n] = 1.0
                else:
                    rio = 0 if p < 16 else 1
                    out[hi, rio, ch, k, n] = c_; out[hi, rio, ch, k+1, n] = s_
    return out / HSCALE

def E_mat(special):
    co, _ = s1_coef(special)
    E = np.zeros((16, 32))
    for hi in range(2):
        for st in range(2):
            for j in range(4):
                k = 8*(2*hi+st) + j
                for ho in range(2):
                    for o in range(4): E[4*ho+o, k] = co[ho, o, hi, st, j]
                    for ri in range(2): E[8+2*ho+ri, k] = co[ho, 4+ri, hi, st, j]
    return E

def A2_mats6(r0):
    out = A2_mats(r0)
    b2 = out[2].copy()
    for mq, src in enumerate([2, 0, 1, 3]):
        out[2, :, 4*mq:4*mq+4, :] = b2[:, 4*src:4*src+4, :]
    return out

def S1_mats2(special):
    co, de = s1_coef(special)
    def build(cf):
        AB = np.zeros((16, 32)); C = [np.zeros((16, 32)), np.zeros((16, 32))]; E = np.zeros((16, 32))
        for ho in range(2):
            for hi in range(2):
                for st in range(2):
                    for j in range(4):
                        for sub in range(2):
                            k = 8*(2*hi+st) + 4*sub + j
                            for o in range(4): AB[4*(2*ho+sub)+o, k] = cf[ho, o, hi, st, j]
                            for bop in range(2):
                                for ri in range(2): C[bop][4*(2*ho+sub) + 2*bop + ri, k] = cf[ho, 4+ri, hi, st, j]
                        k = 8*(2*hi+st) + j
                        for o in range(4): E[4*ho+o, k] = cf[ho, o, hi, st, j]
                        for ri in range(2): E[8+4*ho+ri, k] = cf[ho, 4+ri, hi, st, j]
        return AB, C[0], C[1], E
    AB, C0, C1, E = build(co)
    dAB, dC0, _, _ = build(de)
    for k in range(32):
        if (k % 8) >= 4: dAB[:, k] = 0; dC0[:, k] = 0
    return AB, C0, C1, E, dAB, dC0
```

```python
import sys, struct
import numpy as np
from design import *
from asmlib import Asm, align_pass, Ins

KNAME = "interleave_layers__spectral_fnet__spectral_fnet__prompt_kernel"
opts = dict(a.split('=') for a in sys.argv[2:] if '=' in a)
def opt(k, d=0): return int(opts.get(k, d))
STAMPS = opt('stamps'); FORCE_SLOW = opt('slow'); NLAYER = opt('layers', 4); SPIN = opt('spin', 50000); BK = opt('bk', 1); SLAYER = opt('slayer')
SST = opt('sstart')
def f2u(f): return struct.unpack('<I', struct.pack('<f', f))[0]
BUF = 0x200000 if opt('wst', 0) else 1310720
FLAGS = 4096; H1BASE = 0x40000; H1STR = 0x200000; H2BASE = 0x410000; WS_BYTES = H2BASE + 3*BUF + 1310720
STAMP_OFF = WS_BYTES
if STAMPS or opts.get('rp'): WS_BYTES += 256*128
L_V = 0; L_ST = 9600; L_MODE = 9856; L_GO = 9860; L_OWN = 9864; L_JUNK = 9872; L_EXP = 15104; HF = FLAGS + 0x2000; L_RT = 9984; L_XT = 15360; L_TB = 25600; L_CM = L_TB + 16*1024; LDS_BYTES = L_CM + 8192
OOB = 0x40000000
CNT1 = 's_lshl_b32 s7, s29, 3\ns_lshl_b32 s7, 1, s7\ns_add_u32 s86, s86, s7' if opt('cnt') else ''
CNT2 = 's_lshl_b32 s7, s29, 3\ns_sub_u32 s7, s7, 8\ns_lshl_b32 s7, 1, s7\ns_add_u32 s88, s88, s7' if opt('cnt') else ''
XF = ' ' + opts.get('xf', 'nt').replace('+', ' ')
OF = ' ' + opts.get('of', 'nt').replace('+', ' ')
H1F = ' ' + opts['h1f'] if 'h1f' in opts else ''
WSADD = f's_add_u32 s16, s16, {opt("wsoff") << 20}\ns_addc_u32 s17, s17, 0' if opt('wsoff') else ''
def vaddr(col): return (col % 40)*80 + (col//40)*4
def opA(M):
    h = M.astype(np.float16).view(np.uint16).astype(np.uint32)
    out = np.zeros((64, 4), np.uint32)
    for l in range(64):
        r = h[l % 16, 8*(l//16):8*(l//16)+8]
        out[l] = r[0::2] | (r[1::2] << 16)
    return out
def opB(N): return opA(N.T)
blocks = []
def add(b): blocks.append(np.asarray(b, np.uint32).reshape(256)); return len(blocks)-1
n_ = S1_mats(False); s_ = S1_mats(True)
def a3_idx(sig, m):
    g = unit_g(sig, m)
    if g == 0: return 9
    if g == 128: return 8
    return (g >> 7) + (0 if g % 4 == 1 else 4)
a3 = {}
for sig in range(8):
    for m in range(32):
        M = A3(sig, m)*HSCALE; i = a3_idx(sig, m)
        if i in a3: assert np.allclose(a3[i], M), (sig, m)
        a3[i] = M
for M in (n_[0], n_[1], n_[2], E_mat(False)): add(opA(M))
T_A3L = add(opA(a3[0]))
Bre, Bim = B1_mats(); T_B1 = add(opB(Bre)); add(opB(Bim))
T_A2 = len(blocks)
M = A2_mats6(0)/HSCALE; M2 = A2_mats6(20)/HSCALE
sgn = np.array([(-1.0)**((k % 8)//2) for k in range(32)])
assert np.allclose(M2, M*sgn)
for blk in range(3):
    for ch in range(3): add(opA(M[blk, ch]))
assert len(blocks) == 16
T_S1S = len(blocks)
for M in (s_[0], s_[1], s_[2], E_mat(True)): add(opA(M))
T_DEL = add(opA(s_[3])); add(opA(s_[4]))
T_A3 = len(blocks)
for i in range(10): add(opA(a3[i]))
T_ADDR = len(blocks)
at = np.zeros((2, 256, 4), np.uint32)
for ty, (sig, m) in enumerate(((2, 1), (1, 0))):
    for tid in range(256):
        w, l = divmod(tid, 64); n, mq = l % 16, l//16
        v = [vaddr(acol(sig, m, mq//2, 64*w+4*n+2*bop+(mq % 2))) for bop in range(2)]
        v += [6400 + vaddr(acol(sig, m, mq % 2, 64*w+4*n+2*(mq//2)+sub)) for sub in range(2)]
        k5 = 256 + 16*w + n
        if mq < 2: v += [vaddr(acol(sig, m, mq, k5)), 3200 + vaddr(acol(sig, m, mq, k5))]
        elif mq == 2: v += [6400 + vaddr(acol(sig, m, 0, k5)), 6400 + vaddr(acol(sig, m, 1, k5))]
        else: v += [L_JUNK + 4*n, L_JUNK + 4*n]
        at[ty, tid, :3] = [v[0] | (v[1] << 16), v[2] | (v[3] << 16), v[4] | (v[5] << 16)]
for i in range(8): add(at.reshape(-1)[256*i:256*i+256])
for i in range(640): assert (i*205) >> 14 == i//80
for i in range(320): assert (i*205) >> 11 == i//10

vL16, vH1s2, vH2ld, vH2ld5, vC1ld, vRtW, vRtR, vRtR2, vH2st, vH2st2, vStR, vStW = range(1, 13)
vVrd, vVrd2, vEps = 13, 14, 15
vV = 16
vXT = 22
vMask0 = 27; vG = 28
vTB = 31
vZc = 248
X = 32
A3r = 52; S1r = 56; B1r = 72; TWc = 80; TWs = 92; A2r = 104; CM = 140; DEL = 172
Bo = 180
T = 192
vZ = 4
def vr(b, n=4): return f'v[{b}:{b+n-1}]'
def v2(b): return f'v[{b}:{b+1}]'
sW, sSig, sM, sG, sType, sLayer, sMode = 's3', 's4', 's5', 's26', 's27', 's29', 's30'
sH1st, sH1ld0, sH1ld1, sH2st, sH2ld, sTag, sFlip, sSpin = 's31', 's32', 's33', 's34', 's35', 's36', 's37', 's38'
sCl, sGi, sInv, sFix = 's44', 's46', 's40', 's41'
sSlot = 's[42:43]'
SX, SO, SWS, STB = 's[8:11]', 's[12:15]', 's[16:19]', 's[24:25]'
HW = 4
a = Asm()
nst = []
RP = opts.get('rp'); RPL = opt('rpl')
def stamp(name, inloop=False, real=False):
    if RP:
        if name == 'start': a('s_memrealtime s[60:61]')
        if name == RP:
            if inloop: a('s_memrealtime s[90:91]\ns_waitcnt lgkmcnt(0)\ns_movreld_b32 s80, s90')
            else: a('s_memrealtime s[62:63]')
        return
    if SST and inloop and name not in ('top', 'bar1'): return
    if opt('span') and name not in ('start', 'rstart', 'end', 'rend'): return
    if STAMPS:
        i = len(nst); nst.append(name)
        assert i < 16
        ins = f's_{"memrealtime" if real else "memtime"} s[{60+2*i}:{61+2*i}]'
        a(ins)
LATE = ('h2ack', 'h2ok')
def sst(name):
    if SST or RP: stamp(name)
def clean5(soff, fl=' sc1'):
    for i in range(4): a(f'buffer_store_dwordx4 {vr(vZ)}, v{vL16}, {SWS}, {soff} offen offset:{1024*i}{fl}')
    a(f's_add_u32 s7, {soff}, 4096\nbuffer_store_dwordx4 {vr(vZ)}, v{vL16}, {SWS}, s7 offen{fl}')
def mfma(d, A, B, C): a(f'v_mfma_f32_16x16x32_f16 {vr(d)}, {vr(A)}, {vr(B)}, {"0" if C is None else vr(C)}')

stamp('start'); stamp('rstart', real=True)
n_v, kq_v = T+10, T+11
a(f"""
s_load_dwordx2 s[16:17], s[0:1], 96
s_load_dwordx2 s[8:9], s[0:1], 0
s_load_dwordx2 s[12:13], s[0:1], 80
v_lshrrev_b32 v{T+1}, 6, v0
s_cmp_ge_u32 s2, 256
s_cbranch_scc1 L_end
""")
if opt('cpref', 1):
    a(f"""
s_getpc_b64 s[24:25]
v_lshlrev_b32 v{T+2}, 7, v0
v_min_u32 v{T+2}, L_codeend-{KNAME}-64, v{T+2}
global_load_dword v255, v{T+2}, s[24:25]
""")
a(f"""
v_readfirstlane_b32 {sW}, v{T+1}
v_and_b32 v{T}, 63, v0
s_and_b32 {sSig}, s2, 7
s_lshr_b32 {sM}, s2, 3
v_lshlrev_b32 v{vL16}, 4, v{T}
s_mov_b32 s18, {WS_BYTES}
s_mov_b32 s19, 0x20000
s_mov_b32 s14, 2621440
s_mov_b32 s15, 0x20000
s_cmp_eq_u32 {sW}, {HW}
s_cbranch_scc1 L_hk
s_lshl_b32 s6, {sSig}, 2
s_lshr_b32 s6, 0x9654d210, s6
s_and_b32 s6, s6, 15
s_lshl_b32 {sG}, {sM}, 4
s_add_u32 {sG}, {sG}, s6
s_cmp_eq_u32 {sSig}, 0
s_cselect_b32 s7, 248, 0
s_cmp_ge_u32 {sM}, 16
s_cselect_b32 s7, s7, 0
s_sub_u32 {sG}, {sG}, s7
s_and_b32 {sType}, {sG}, 1
""")
a(f"""
s_getpc_b64 s[24:25]
s_add_u32 s24, s24, tbl@rel32@lo+4
s_addc_u32 s25, s25, tbl@rel32@hi+12
s_lshr_b32 s7, {sG}, 7
s_lshl_b32 s94, {sType}, 2
s_sub_u32 s7, s7, s94
s_add_u32 s7, s7, {4 + T_A3}
s_cmp_eq_u32 {sG}, 128
s_cselect_b32 s7, {8 + T_A3}, s7
s_cmp_eq_u32 {sG}, 0
s_cselect_b32 s7, {9 + T_A3}, s7
s_cselect_b32 s94, {T_S1S*1024}, 0
s_lshl_b32 s7, s7, 10
s_lshl_b32 s95, {sW}, 12
s_cmp_eq_u32 {sW}, 0
s_cselect_b32 s94, s94, s95
s_cmp_eq_u32 {sW}, 1
s_cselect_b32 s7, s7, s94
s_add_u32 m0, s95, {L_TB}
v_add_u32 v{T+2}, s94, v{vL16}
v_add_u32 v{T+3}, s7, v{vL16}
s_lshl_b32 s7, {sType}, 12
s_add_u32 s7, s7, {T_ADDR*1024}
global_load_lds_dwordx4 v{T+3}, {STB}
global_load_lds_dwordx4 v{T+2}, {STB} offset:1024
global_load_lds_dwordx4 v{T+2}, {STB} offset:2048
global_load_lds_dwordx4 v{T+2}, {STB} offset:3072
v_lshl_add_u32 v{T+2}, v0, 4, s7
global_load_dwordx3 v[{vV}:{vV+2}], v{T+2}, {STB}
s_or_b32 {sFix}, s2, {sW}
""")
a(f"""
s_cmp_lg_u32 {sFix}, 0
s_cbranch_scc1 L_nodel
v_add_u32 v{T+2}, {T_DEL*1024}, v{vL16}
global_load_dwordx4 {vr(DEL)}, v{T+2}, {STB}
global_load_dwordx4 {vr(DEL+4)}, v{T+2}, {STB} offset:1024
L_nodel:
""")
a(f"""
s_sub_u32 s92, 0, {sG}
s_and_b32 s92, s92, 511
s_cmp_eq_u32 {sG}, 0
s_cselect_b32 s92, 256, s92
s_mul_i32 s92, s92, 1280
s_mul_i32 s93, {sG}, 1280
s_sub_u32 s92, s92, s93
s_sub_u32 s92, s92, {4*655360}
s_mov_b32 s10, 2621440
s_mov_b32 s11, 0x20000
s_mov_b32 s96, 0x9fb00
v_lshlrev_b32 v{vRtR}, 4, v0
""")
for i in range(3):
    a(f"""v_add_u32 v{T+12}, {256*i}, v0
v_mul_u32_u24 v{T+12}, 205, v{T+12}
v_lshrrev_b32 v{T+12}, 14, v{T+12}
v_mov_b32 v{T+13}, s92
v_cmp_le_u32 vcc, 4, v{T+12}
v_mad_u32_u24 v{T+12}, v{T+12}, s96, v{vRtR}
v_cndmask_b32 v{T+13}, 0, v{T+13}, vcc
v_add3_u32 v{vG+i}, v{T+12}, v{T+13}, s93""".replace(f'v_add_u32 v{T+12}, 0, v0\nv_mul_u32_u24 v{T+12}, 205, v{T+12}', f'v_mul_u32_u24 v{T+12}, 205, v0'))
    if i < 2: a(f's_add_u32 s93, s93, 4096')
a(f"""
""")
sst('prek')
a(f"""
s_waitcnt lgkmcnt(0)
s_lshl_b32 s7, {sW}, 10
s_add_u32 m0, s7, {L_XT}
{WSADD or 's_nop 1'}
buffer_load_dwordx4 v{vG}, {SX}, 0 offen{XF} lds
s_add_u32 m0, s7, {L_XT+4096}
s_cmp_ge_u32 {sW}, 2
buffer_load_dwordx4 v{vG+1}, {SX}, 0 offen{XF} lds
s_cbranch_scc1 L_nox2
s_add_u32 m0, s7, {L_XT+8192}
s_nop 0
buffer_load_dwordx4 v{vG+2}, {SX}, 0 offen{XF} lds
s_branch L_x2
L_nox2:
v_mov_b32 v{vG+2}, {OOB}
buffer_load_dword v254, v{vG+2}, {SX}, 0 offen
L_x2:
""")
sst('xiss')
sst('dma')
a(f"""
v_and_b32 v{n_v}, 15, v0
v_bfe_u32 v{kq_v}, v0, 4, 2
s_mul_i32 s94, {sType}, 320
v_lshrrev_b32 v{T+13}, 1, v{kq_v}
v_mul_u32_u24 v{T+14}, s94, v{T+13}
s_lshl_b32 s92, {sW}, 5
v_add3_u32 v{T+12}, v{n_v}, v{T+14}, s92
s_and_b32 s92, {sW}, 1
s_lshl_b32 s92, s92, 3
s_lshr_b32 s93, {sW}, 1
s_lshl_b32 s93, s93, 5
s_add_u32 s92, s92, s93
s_add_u32 s92, s92, 256
v_lshrrev_b32 v{T+17}, 1, v{n_v}
v_and_b32 v{T+18}, 1, v0
v_add3_u32 v{T+17}, v{T+17}, v{T+14}, s92
v_lshl_add_u32 v{T+17}, v{T+18}, 4, v{T+17}
s_xor_b32 s94, {sType}, 1
v_and_b32 v{T+13}, s94, v{T+13}
v_xor_b32 v{T+13}, v{T+13}, v{kq_v}
v_add_u32 v{T+14}, 16, v{T+12}
v_and_b32 v{T+13}, 1, v{T+13}
v_add_u32 v{T+15}, 128, v{T+12}
v_cmp_eq_u32 vcc, 1, v{T+13}
v_add_u32 v{T+16}, 144, v{T+12}
s_mul_i32 s94, s94, 320
""")
ecol = [T+12, T+14, T+15, T+16, T+17]
for kl in range(5): a(f'v_sub_u32 v{T+18+kl}, 640, v{ecol[kl]}')
for kl in range(5): a(f'v_cndmask_b32 v{vXT+kl}, v{ecol[kl]}, v{T+18+kl}, vcc')
a(f"""
v_cmp_gt_u32 vcc, 2, v{kq_v}
v_mov_b32 v{T+17}, s94
v_and_b32 v{T+13}, 1, v{kq_v}
v_cndmask_b32 v{T+17}, 0, v{T+17}, vcc
v_cmp_eq_u32 vcc, 0, v{T+12}
v_mul_u32_u24 v{T+9}, 0x1400, v{T+13}
v_add_u32 v{T+14}, {L_XT}, v{T+9}
v_cndmask_b32 v{vXT}, v{vXT}, v{T+17}, vcc
v_cmp_ne_u32 vcc, 0, v{vXT}
""")
for kl in range(5): a(f'v_lshl_add_u32 v{vXT+kl}, v{vXT+kl}, 1, v{T+14}')
a(f'v_cndmask_b32 v{vMask0}, 0, -1, vcc')
for i in range(20): a(f'v_mov_b32 v{X+i}, 0')
for i in range(4): a(f'v_mov_b32 v{vZc+i}, 0')
a(f"""
s_lshr_b32 s95, {sM}, 3
s_lshl_b32 s7, s95, 2
s_lshr_b32 s7, 0x1120, s7
s_and_b32 s7, s7, 3
s_add_u32 s96, s6, 256
s_cmp_eq_u32 {sSig}, 0
s_cselect_b32 s96, 8, s96
s_lshl_b32 s94, {sW}, 4
s_add_u32 s6, s6, s94
s_add_u32 s96, s96, s94
v_lshl_add_u32 v{T+13}, v{n_v}, 2, s7
v_lshl_add_u32 v{T+14}, v{kq_v}, 6, s6
v_lshl_add_u32 v{T+15}, v{kq_v}, 6, s96
v_add_u32 v{T+12}, 64, v{T+13}
s_mov_b32 s94, {f2u(1/2048):#x}
""")
G = T+24
for hi in range(2):
    for ch in range(2): a(f'v_mul_u32_u24 v{G+2*(2*hi+ch)}, v{T+13-hi}, v{T+14+ch}')
for k in range(4): a(f'v_and_b32 v{G+2*k}, 0x7ff, v{G+2*k}')
for k in range(4): a(f'v_cvt_f32_u32 v{G+2*k}, v{G+2*k}')
for k in range(4): a(f'v_mul_f32 v{G+2*k}, s94, v{G+2*k}')
for k in range(4): a(f'v_sin_f32 v{G+2*k+1}, v{G+2*k}\nv_cos_f32 v{G+2*k}, v{G+2*k}')
for k in range(4): a(f'v_cvt_pk_f16_f32 v{G+8+2*k}, v{G+2*k}, v{G+2*k+1}\nv_cvt_pk_f16_f32 v{G+9+2*k}, -v{G+2*k+1}, v{G+2*k}')
a(f's_cmp_lg_u32 {sSig}, 0\ns_cbranch_scc1 L_cm_done')
for hi in range(2):
    b = G+8+4*hi
    a(f'v_mov_b32 v{b+1}, 0\nv_mov_b32 v{b+3}, v{b+2}\nv_mov_b32 v{b+2}, 0')
a(f"""
v_and_b32 v{T+17}, 1, v0
v_lshlrev_b32 v{T+17}, 4, v{T+17}
v_mov_b32 v{T+18}, 0x3c00
v_lshlrev_b32 v{T+17}, v{T+17}, v{T+18}
v_cmp_gt_u32 vcc, 16, v0
v_cndmask_b32 v{G+8}, v{G+8}, v{T+17}, vcc
v_cndmask_b32 v{G+12}, v{G+12}, v{T+17}, vcc
L_cm_done:
""")
sst('cm')
a(f'''
v_lshlrev_b32 v{T+12}, 2, v{kq_v}
v_mul_u32_u24 v{T+12}, v{T+12}, v{n_v}
v_cvt_f32_u32 v{T+12}, v{T+12}
v_cvt_f32_u32 v{T+13}, v{n_v}
v_mul_f32 v{T+12}, {f2u(1/640):#x}, v{T+12}
v_mul_f32 v{T+13}, {f2u(1/640):#x}, v{T+13}
''')
for blk in range(3):
    for i in range(4):
        k = 16*blk + i
        if k == 0: src = T+12
        else:
            src = T+14
            a(f'v_fmamk_f32 v{T+14}, v{T+13}, {f2u(float(k)):#x}, v{T+12}')
        a(f'v_cos_f32 v{TWc+4*blk+i}, v{src}\nv_sin_f32 v{TWs+4*blk+i}, v{src}')
a(f"""
s_mov_b32 {sInv}, {f2u(1/640):#x}
v_mov_b32 v{vEps}, {f2u(1e-5):#x}
v_mov_b32 v{Bo+10}, 0
v_mov_b32 v{Bo+11}, 0
s_mov_b32 {sLayer}, 0
s_mov_b32 {sTag}, 1
s_mov_b32 {sFlip}, 0
s_cmp_lt_u32 {sW}, 2
s_cselect_b64 {sSlot}, 1, 0
s_cselect_b32 s7, 3200, 0
s_cselect_b32 s52, 12, 8
s_cselect_b32 s53, 0, 32
s_lshl_b32 s7, s7, {sW}
v_lshlrev_b32 v{T+12}, 4, v{kq_v}
v_mul_u32_u24 v{vVrd}, 80, v{n_v}
v_add3_u32 v{vVrd}, v{vVrd}, v{T+12}, s7
v_and_b32 v{vVrd2}, 7, v0
v_mul_u32_u24 v{vVrd2}, 80, v{vVrd2}
s_add_u32 s7, s7, 2560
v_add3_u32 v{vVrd2}, v{vVrd2}, v{T+12}, s7
s_mul_i32 s54, s52, {sW}
s_lshl_b32 s54, s54, 2
s_add_u32 s54, s54, s53
s_sub_u32 s7, s52, 1
v_min_u32 v{T+13}, s7, v{n_v}
v_lshlrev_b32 v{T+13}, 2, v{T+13}
s_movk_i32 s7, 5120
v_mad_u32_u24 v{vC1ld}, v{kq_v}, s7, v{T+13}
v_mul_u32_u24 v{vRtW}, 160, v{n_v}
s_add_u32 s7, s54, {L_RT}
v_add3_u32 v{vRtW}, v{vRtW}, v{T+12}, s7
s_lshl_b32 s7, s52, 2
v_cmp_gt_u32 vcc, s7, v{T+12}
v_add_u32 v{T+13}, {L_XT}, v{vL16}
v_cndmask_b32 v{vRtW}, v{T+13}, v{vRtW}, vcc
v_mul_u32_u24 v{T+13}, 205, v0
v_lshrrev_b32 v{T+13}, 11, v{T+13}
v_mul_u32_u24 v{T+13}, 10080, v{T+13}
v_add_u32 v{vH2st}, v{T+13}, v{vRtR}
s_lshl_b32 s7, {sW}, 4
s_add_u32 s7, s7, 256
v_add_u32 v{T+13}, s7, v{n_v}
v_lshlrev_b32 v{vRtR2}, 4, v{T+13}
v_mul_u32_u24 v{T+13}, 205, v{T+13}
v_lshrrev_b32 v{T+13}, 11, v{T+13}
v_mul_u32_u24 v{T+13}, 10080, v{T+13}
v_add_u32 v{vH2st2}, v{T+13}, v{vRtR2}
v_cmp_eq_u32 vcc, 0, v{kq_v}
v_mov_b32 v{T+13}, {OOB}
v_cndmask_b32 v{vH2st2}, v{T+13}, v{vH2st2}, vcc
v_add_u32 v{vRtR}, {L_RT}, v{vRtR}
v_add_u32 v{vRtR2}, {L_RT}, v{vRtR2}
v_lshrrev_b32 v{vH1s2}, 1, v{vL16}
v_add_u32 v{vH1s2}, {1024-128}, v{vH1s2}
v_add_u32 v{T+14}, -1, v{kq_v}
v_cmp_gt_u32 vcc, 2, v{T+14}
v_cndmask_b32 v{vH1s2}, v{T+13}, v{vH1s2}, vcc
v_and_b32 v{T+13}, 1, v{kq_v}
v_lshlrev_b32 v{T+13}, 7, v{T+13}
v_and_b32 v{T+14}, 3, v0
v_lshl_add_u32 v{vStR}, v{T+14}, 5, v{T+13}
v_add_u32 v{vStR}, {L_ST}, v{vStR}
v_bfe_u32 v{T+14}, v0, 2, 1
v_lshl_add_u32 v{T+13}, v{T+14}, 6, v{T+13}
v_bfe_u32 v{T+14}, v0, 3, 1
v_lshl_add_u32 v{T+13}, v{T+14}, 5, v{T+13}
v_bfe_u32 v{T+14}, v0, 5, 1
v_lshl_add_u32 v{T+13}, v{T+14}, 2, v{T+13}
s_lshl_b32 s7, {sW}, 3
s_add_u32 s7, s7, {L_ST}
v_add_u32 v{vStW}, s7, v{T+13}
s_and_b32 s93, {sM}, 7
s_mul_i32 s93, s93, 160
s_lshl_b32 s94, {sSig}, 7
s_add_u32 s92, s94, {sM}
s_mul_i32 s92, s92, 1280
s_mul_i32 {sH1st}, {sW}, 40960
s_add_u32 {sH1st}, {sH1st}, s92
s_add_u32 {sH1st}, {sH1st}, {H1BASE}
s_lshl_b32 s96, s95, 5
s_add_u32 s96, s96, s94
s_mul_i32 {sH1ld0}, s96, 1280
s_add_u32 {sH1ld0}, {sH1ld0}, s93
s_add_u32 s96, s54, {H1BASE}
s_add_u32 {sH1ld0}, {sH1ld0}, s96
s_add_u32 {sH1ld1}, {sH1ld0}, 20480
s_lshl_b32 s96, s95, 8
s_add_u32 s96, s96, {sSig}
s_mul_i32 {sH2st}, s96, 1280
s_add_u32 {sH2st}, {sH2st}, s93
s_add_u32 {sH2st}, {sH2st}, {H2BASE}
s_mov_b32 {sH2ld}, {H2BASE-BUF}
s_lshl_b32 s7, {sSig}, 2
s_add_u32 s55, s7, {sW}
s_lshl_b32 s55, s55, 5
s_add_u32 s55, s55, {sM}
s_lshl_b32 s55, s55, 2
s_add_u32 s55, s55, {HF}
s_add_u32 s56, s95, s7
s_lshl_b32 s56, s56, 7
s_add_u32 s56, s56, {HF}
s_add_u32 {sCl}, {sH2st}, {2*BUF}
s_and_b32 s7, {sG}, 127
s_lshr_b32 s7, s7, 2
s_sub_u32 s94, 0, {sG}
s_and_b32 s94, s94, 127
s_lshr_b32 s94, s94, 2
s_bfe_u32 s95, {sG}, 0x10001
s_cmp_eq_u32 {sType}, 1
s_cselect_b32 s94, s7, s94
s_cselect_b32 s96, 2, s95
s_cselect_b32 s95, 3, s95
s_lshl_b32 s96, s96, 5
s_lshl_b32 s95, s95, 5
s_add_u32 s7, s7, s96
s_add_u32 s94, s94, s95
s_mul_i32 s7, s7, 10240
s_mul_i32 s94, s94, 10240
v_mov_b32 v{T+12}, s7
v_mov_b32 v{T+13}, s94
v_cmp_le_u32 vcc, 2, v{kq_v}
s_lshl_b32 s95, {sW}, 8
s_lshl_b32 s96, {sW}, 6
v_cndmask_b32 v{T+12}, v{T+12}, v{T+13}, vcc
s_add_u32 s96, s96, 1024
v_add_u32 v{T+12}, v{T+12}, v{T+9}
v_lshlrev_b32 v{T+13}, 4, v{n_v}
v_add3_u32 v{vH2ld}, v{T+12}, v{T+13}, s95
v_lshlrev_b32 v{T+13}, 2, v{n_v}
v_add3_u32 v{vH2ld5}, v{T+12}, v{T+13}, s96
v_add_u32 v{vTB}, {L_TB}, v{vL16}
v_lshrrev_b32 v252, 2, v{vL16}
v_and_b32 v252, 127, v252
s_lshl_b32 s7, {sW}, 2
v_add_u32 v{T+2}, s7, v{vTB}
""")
sst('prex')
for hi in range(2):
    for ch in range(2):
        for rio in range(2):
            a(f'ds_write_b32 v{T+2}, v{G+8+2*(2*hi+ch)+rio} offset:{L_CM-L_TB+((hi*2+rio)*2+ch)*1024}')
a('s_waitcnt vmcnt(3) lgkmcnt(0)\ns_barrier')
sst('bart')
for i in range(4): a(f'ds_read_b128 {vr(S1r+4*i)}, v{vTB} offset:{1024*i}')
for i in range(9): a(f'ds_read_b128 {vr(A2r+4*i)}, v{vTB} offset:{1024*(T_A2+i)}')
for i in range(2): a(f'ds_read_b128 {vr(B1r+4*i)}, v{vTB} offset:{1024*(T_B1+i)}')
for i in range(8): a(f'ds_read_b128 {vr(CM+4*i)}, v{vTB} offset:{L_CM-L_TB+1024*i}')
a(f'ds_read_b128 {vr(A3r)}, v{vTB} offset:{1024*T_A3L}')
for i in (2, 1, 0): a(f'v_lshrrev_b32 v{vV+2*i+1}, 16, v{vV+i}\nv_and_b32 v{vV+2*i}, 0xffff, v{vV+i}')
a(f's_cmp_eq_u32 {sW}, 3\ns_cselect_b32 s7, 0x80008000, 0\ns_waitcnt lgkmcnt(11)')
for i in range(18): a(f'v_xor_b32 v{A2r+2*i+1}, s7, v{A2r+2*i+1}')
a('s_waitcnt vmcnt(0)\ns_barrier')
sst('bar0')
for kl in range(5):
    for j in range(4): a(f'ds_read_u16_d16_hi v{X+4*kl+j}, v{vXT+kl} offset:{1280*j}')
a('s_waitcnt lgkmcnt(0)')
Sx, Qx = T, T+4
if RP: a('s_mov_b32 m0, 0')
if opt('cnt'): a('s_mov_b32 s86, 0\ns_mov_b32 s88, 0')
a('L_loop:')
stamp('top', True)
if opt('sca', 0):
    for j in range(4): a(f'v_mul_f32 v{Qx+j}, v{X+16+j}, v{X+16+j}')
    for j in range(4): a(f'v_add_f32 v{Sx+j}, v{X+16+j}, v{X+j}')
    for j in range(4): a(f'v_fmac_f32 v{Qx+j}, v{X+j}, v{X+j}')
else:
    for p in range(2): a(f'v_pk_mul_f32 {v2(Qx+2*p)}, {v2(X+16+2*p)}, {v2(X+16+2*p)}')
for kl in range(1 if opt('sca', 0) else 0, 4):
    for p in range(2):
        b = X+4*kl+2*p
        a(f'v_pk_add_f32 {v2(Sx+2*p)}, {v2(X+16+2*p) if kl == 0 else v2(Sx+2*p)}, {v2(b)}')
        a(f'v_pk_fma_f32 {v2(Qx+2*p)}, {v2(b)}, {v2(b)}, {v2(Qx+2*p)}')
for j in range(4): a(f'v_permlane32_swap_b32 v{Sx+j}, v{Qx+j}')
for p in range(2): a(f'v_pk_add_f32 {v2(Sx+2*p)}, {v2(Sx+2*p)}, {v2(Qx+2*p)}')
def dpp(d, s, ctl, bank): a(f'v_add_f32_dpp v{d}, v{s}, v{s} {ctl} row_mask:0xf bank_mask:{bank:#x}')
dpp(Sx, Sx, 'row_ror:8', 3); dpp(Sx, Sx+1, 'row_ror:8', 12); dpp(Sx+2, Sx+2, 'row_ror:8', 3); dpp(Sx+2, Sx+3, 'row_ror:8', 12)
dpp(Sx, Sx, 'row_shl:4', 5); dpp(Sx, Sx+2, 'row_shr:4', 10)
dpp(Sx, Sx, 'quad_perm:[1,0,3,2]', 15); dpp(Sx, Sx, 'quad_perm:[2,3,0,1]', 15)
a(f"""
ds_write_b32 v{vStW}, v{Sx}
s_waitcnt lgkmcnt(0)
s_barrier
""")
stamp('bar1', True)
P = T+8; RS = T+16; NB = T+20
a(f"""
ds_read_b128 {vr(P)}, v{vStR}
ds_read_b128 {vr(P+4)}, v{vStR} offset:16
s_waitcnt lgkmcnt(1)
v_pk_add_f32 {v2(P)}, {v2(P)}, {v2(P+2)}
s_waitcnt lgkmcnt(0)
v_pk_add_f32 {v2(P+4)}, {v2(P+4)}, {v2(P+6)}
v_pk_add_f32 {v2(P)}, {v2(P)}, {v2(P+4)}
v_mul_f32 v{P}, {sInv}, v{P}
v_fma_f32 v{P+1}, v{P+1}, {sInv}, v{vEps}
v_fma_f32 v{P+1}, -v{P}, v{P}, v{P+1}
v_max_f32 v{P+1}, v{P+1}, v{vEps}
v_rsq_f32 v{P+1}, v{P+1}
v_mul_f32 v{P}, -v{P}, v{P+1}
""")
for j in range(4): a(f'v_mov_b32_dpp v{RS+j}, v{P+1} quad_perm:[{j},{j},{j},{j}] row_mask:0xf bank_mask:0xf')
for j in range(4): a(f'v_mov_b32_dpp v{NB+j}, v{P} quad_perm:[{j},{j},{j},{j}] row_mask:0xf bank_mask:0xf')
N_ = T+24
D0, D1, DC, DE = T, T+4, T+8, T+12
for kl in range(5):
    for p in range(2): a(f'v_pk_fma_f32 {v2(N_+4*kl+2*p)}, {v2(X+4*kl+2*p)}, {v2(RS+2*p)}, {v2(NB+2*p)}')
def cvtn(kl):
    for p in range(2): a(f'v_cvt_pk_f16_f32 v{Bo+2*kl+p}, v{N_+4*kl+2*p}, v{N_+4*kl+2*p+1}')
cvtn(0); cvtn(1); cvtn(2)
mfma(D0, S1r, Bo, None); cvtn(3); mfma(DC, S1r+4, Bo, None); cvtn(4)
mfma(D1, S1r, Bo+4, None); mfma(DC, S1r+8, Bo+4, DC)
a(f's_cmp_lg_u32 {sFix}, 0')
W_ = T+44
mfma(DE, S1r+12, Bo+8, None)
a(f'v_cvt_pk_f16_f32 v{W_}, v{D0}, v{D0+1}')
a(f's_cbranch_scc0 L_fix\nL_nofix:')
a(f"""
v_cvt_pk_f16_f32 v{W_+1}, v{D0+2}, v{D0+3}
ds_write_b32 v{vV}, v{W_}
ds_write_b32 v{vV}, v{W_+1} offset:3200
v_cvt_pk_f16_f32 v{W_+2}, v{D1}, v{D1+1}
v_cvt_pk_f16_f32 v{W_+3}, v{D1+2}, v{D1+3}
v_cvt_pk_f16_f32 v{W_+4}, v{DC}, v{DC+1}
v_cvt_pk_f16_f32 v{W_+5}, v{DC+2}, v{DC+3}
ds_write_b32 v{vV+1}, v{W_+2}
ds_write_b32 v{vV+1}, v{W_+3} offset:3200
v_cvt_pk_f16_f32 v{W_+6}, v{DE}, v{DE+1}
v_cvt_pk_f16_f32 v{W_+7}, v{DE+2}, v{DE+3}
ds_write_b32 v{vV+2}, v{W_+4}
ds_write_b32 v{vV+3}, v{W_+5}
ds_write_b32 v{vV+4}, v{W_+6}
ds_write_b32 v{vV+5}, v{W_+7}
""")
stamp('s1w', True)
a(f's_cmp_eq_u32 {sLayer}, 0\ns_waitcnt lgkmcnt(0)\ns_barrier')
stamp('bar2', True)
Ad = T; Tr = T+12; Ti = T+24; B2 = Tr; O = T; Pt = T+36
a(f"""
ds_read_b128 {vr(Ad)}, v{vVrd}
ds_read_b128 {vr(Ad+4)}, v{vVrd} offset:1280
ds_read_b128 {vr(Ad+8)}, v{vVrd2}
s_cbranch_scc1 L_l0b
L_l0b_ret:
""")
for blk in range(3):
    a(f's_waitcnt lgkmcnt({2-blk})')
    mfma(Tr+4*blk, Ad+4*blk, B1r, None); mfma(Ti+4*blk, Ad+4*blk, B1r+4, None)
for ch in range(3):
    for p in range(2): a(f'v_pk_mul_f32 {v2(Pt+4*ch+2*p)}, {v2(Tr+4*ch+2*p)}, {v2(TWc+4*ch+2*p)}')
    for p in range(2): a(f'v_pk_fma_f32 {v2(Pt+4*ch+2*p)}, {v2(Ti+4*ch+2*p)}, {v2(TWs+4*ch+2*p)}, {v2(Pt+4*ch+2*p)}')
    for p in range(2): a(f'v_pk_mul_f32 {v2(Ti+4*ch+2*p)}, {v2(Ti+4*ch+2*p)}, {v2(TWc+4*ch+2*p)}')
    for p in range(2): a(f'v_pk_fma_f32 {v2(Ti+4*ch+2*p)}, {v2(Tr+4*ch+2*p)}, {v2(TWs+4*ch+2*p)}, {v2(Ti+4*ch+2*p)} neg_lo:[1,0,0] neg_hi:[1,0,0]')
def cv2(ch, i): a(f'v_cvt_pk_f16_f32 v{B2+4*ch+i}, v{Pt+4*ch+i}, v{Ti+4*ch+i}')
def st2(blk, ch): mfma(O+4*blk, A2r+(blk*3+ch)*4, B2+4*ch, None if ch == 0 else O+4*blk)
for i in range(4): cv2(0, i)
cv2(1, 0); cv2(1, 1)
st2(2, 0); cv2(1, 2); cv2(1, 3); st2(0, 0); cv2(2, 0); cv2(2, 1); st2(1, 0); cv2(2, 2); cv2(2, 3)
st2(2, 1); st2(0, 1); st2(2, 2); st2(0, 2); st2(1, 1); st2(1, 2)
a(f's_mov_b32 {sSpin}, {SPIN}\ns_add_u32 {sH2ld}, {sH2ld}, {BUF}\ns_cmp_lg_u32 {sMode}, 0')
Wo = T+48
def cvo(i): a(f'v_cvt_pk_f16_f32 v{Wo+i}, v{O+2*i}, v{O+2*i+1}')
def tg(i): a(f'v_and_or_b32 v{Wo+i}, v{Wo+i}, -2, {sTag}')
cvo(4); cvo(5); tg(5); cvo(0); cvo(1)
a(f'v_cndmask_b32 v{Wo}, v{Wo}, v{Wo+4}, {sSlot}')
tg(4); tg(1); tg(0); cvo(2); cvo(3); tg(2); tg(3)
a(f"""
s_cbranch_scc1 L_st_slow
buffer_store_dwordx2 {v2(Wo+4)}, v{vH1s2}, {SWS}, {sH1st} offen{H1F}
buffer_store_dwordx4 {vr(Wo)}, v{vL16}, {SWS}, {sH1st} offen{H1F}
L_cphase:
""")
stamp('h1st', True)
Ca = T+12; Dm = T+20; K_ = T+36
a(f"""
s_xor_b32 {sH1st}, {sH1st}, {H1STR}
s_cmp_eq_u32 {sLayer}, 0
s_cbranch_scc1 L_l0c
L_l0c_ret:
""")
if opt('ack1', 1): a('s_waitcnt vmcnt(0)')
if opt('d1'): a(f's_sleep {opt("d1")}')
a('L_poll1:')
for ch in range(2):
    for u in range(4):
        a(f'buffer_load_dword v{Ca+4*ch+u}, v{vC1ld}, {SWS}, {sH1ld0 if ch == 0 else sH1ld1} offen offset:{1280*u} sc1')
a(f's_sub_u32 {sSpin}, {sSpin}, 1\ns_cbranch_scc1 L_poll1_to\ns_waitcnt vmcnt(4)')
tt = sum((((i >> 2 & 1) ^ (i & 1)) & ((i >> 1 & 1) ^ (i & 1))) << i for i in range(8))
def cm(hi, ch, rio):
    d = Dm + (hi*2+rio)*4
    mfma(d, Ca+4*ch, CM+((hi*2+rio)*2+ch)*4, None if ch == 0 else d)
def xa(i): a(f'v_bitop3_b32 v{K_+i}, v{Ca+2*i}, v{Ca+2*i+1}, {sFlip} bitop3:{tt:#x}')
cm(0, 0, 0); xa(0); cm(0, 0, 1); xa(1); cm(1, 0, 0)
a(f'v_bitop3_b32 v{K_}, v{K_}, v{K_+1}, 1 bitop3:0x80')
cm(1, 0, 1)
a('s_waitcnt vmcnt(0)')
cm(0, 1, 0); xa(2); cm(0, 1, 1); xa(3)
cm(1, 1, 0)
a(f'v_bitop3_b32 v{K_}, v{K_}, v{K_+2}, v{K_+3} bitop3:0x80')
a(f'v_cmp_eq_u32 vcc, 0, v{K_}')
cm(1, 1, 1)
a('s_cbranch_vccnz L_poll1_re\nL_poll1_done:')
stamp('h1ok', True)
for hi in range(2):
    for i in range(4): a(f'v_cvt_pk_f16_f32 v{K_+4*hi+i}, v{Dm+8*hi+i}, v{Dm+8*hi+4+i}')
    for i in range(4): a(f'v_or_b32 v{K_+4*hi+i}, 1, v{K_+4*hi+i}')
    a(f'ds_write_b128 v{vRtW}, {vr(K_+4*hi)} offset:{2560*hi}')
a(f"""
s_waitcnt lgkmcnt(0)
s_barrier
ds_read_b128 {vr(T)}, v{vRtR}
ds_read_b128 {vr(T+4)}, v{vRtR2}
s_waitcnt lgkmcnt(1)
buffer_store_dwordx4 {vr(T)}, v{vH2st}, {SWS}, {sH2st} offen sc1
s_waitcnt lgkmcnt(0)
buffer_store_dwordx4 {vr(T+4)}, v{vH2st2}, {SWS}, {sH2st} offen sc1
""")
stamp('h2st', True)
CLN = f's_mov_b32 {sCl}, {OOB}' if opt('h3', 1) else f's_add_u32 {sCl}, {sCl}, {BUF}'
a(f"""
buffer_store_dwordx4 {vr(vZc)}, v{vH2st}, {SWS}, {sCl} offen sc1
buffer_store_dwordx4 {vr(vZc)}, v{vH2st2}, {SWS}, {sCl} offen sc1
{CLN}
s_mov_b32 {sSpin}, {SPIN}
s_add_u32 {sLayer}, {sLayer}, 1
{f's_mov_b32 m0, {sLayer}' if RP else ''}
s_add_u32 {sH2st}, {sH2st}, {BUF}
s_xor_b32 {sH1ld0}, {sH1ld0}, {H1STR}
s_xor_b32 {sH1ld1}, {sH1ld1}, {H1STR}
s_cmp_ge_u32 {sLayer}, 2
s_cselect_b32 {sTag}, 0, 1
s_cselect_b32 {sFlip}, -1, 0
s_cmp_eq_u32 {sLayer}, 1
s_cbranch_scc1 L_l0d
L_l0d_ret:
{'' if opt('noack2') else 's_waitcnt vmcnt(2)'}
""")
stamp('h2ack', True)
if opt('d2'): a(f's_sleep {opt("d2")}')
a('L_poll2:')
Lh = T+8; K2 = T+28
for u in range(4): a(f'buffer_load_dword v{Lh+16+u}, v{vH2ld5}, {SWS}, {sH2ld} offen offset:{1280*u} sc1')
for u in range(4): a(f'buffer_load_dwordx4 {vr(Lh+4*u)}, v{vH2ld}, {SWS}, {sH2ld} offen offset:{1280*u} sc1')
def and3(d, x, y, z): a(f'v_bitop3_b32 v{d}, v{x}, v{y}, {z if isinstance(z, str) else "v%d" % z} bitop3:0x80')
a(f's_sub_u32 {sSpin}, {sSpin}, 1\ns_cbranch_scc1 L_poll2_to\ns_waitcnt vmcnt(3)')
and3(K2, Lh+16, Lh+17, '1'); and3(K2+1, Lh+18, Lh+19, Lh); and3(K2, K2, Lh+1, Lh+2); and3(K2, K2, K2+1, Lh+3)
a(f'v_and_b32 v{Lh}, v{vMask0}, v{Lh}\ns_waitcnt vmcnt(2)')
and3(K2, K2, Lh+4, Lh+5); and3(K2, K2, Lh+6, Lh+7)
a(f'v_and_b32 v{Lh+4}, v{vMask0}, v{Lh+4}\nv_swap_b32 v{Lh+1}, v{Lh+4}\ns_waitcnt vmcnt(1)')
and3(K2, K2, Lh+8, Lh+9); and3(K2, K2, Lh+10, Lh+11)
a(f'v_and_b32 v{Lh+8}, v{vMask0}, v{Lh+8}\nv_swap_b32 v{Lh+2}, v{Lh+8}\nv_swap_b32 v{Lh+6}, v{Lh+9}\ns_waitcnt vmcnt(0)')
and3(K2, K2, Lh+12, Lh+13); and3(K2, K2, Lh+14, Lh+15)
a(f"""
v_and_b32 v{Lh+12}, v{vMask0}, v{Lh+12}
v_cmp_eq_u32 vcc, 0, v{K2}
v_swap_b32 v{Lh+3}, v{Lh+12}
s_cbranch_vccnz L_poll2_re
L_poll2_done:
""")
stamp('h2ok', True)
mfma(X+16, A3r, Lh+16, X+16)
a(f'v_swap_b32 v{Lh+7}, v{Lh+13}')
mfma(X, A3r, Lh, X)
a(f'v_swap_b32 v{Lh+11}, v{Lh+14}')
mfma(X+4, A3r, Lh+4, X+4)
a(f's_cmp_lt_u32 {sLayer}, {NLAYER}')
mfma(X+8, A3r, Lh+8, X+8); mfma(X+12, A3r, Lh+12, X+12)
a('s_cbranch_scc1 L_loop')
F = T
for kl in (4, 0, 1, 2, 3):
    for p in range(2): a(f'v_cvt_pk_bf16_f32 v{F+2*kl+p}, v{X+4*kl+2*p}, v{X+4*kl+2*p+1}')
    for p in range(2):
        a(f'ds_write_b16 v{vXT+kl}, v{F+2*kl+p} offset:{2560*p}')
        a(f'ds_write_b16_d16_hi v{vXT+kl}, v{F+2*kl+p} offset:{2560*p+1280}')
a('s_waitcnt lgkmcnt(0)\ns_barrier')
for i in range(3): a(f'ds_read_b128 {vr(T+12+4*i)}, v{vRtR} offset:{L_XT-L_RT+4096*i}')
for i in range(3): a(f's_waitcnt lgkmcnt({2-i})\nbuffer_store_dwordx4 {vr(T+12+4*i)}, v{vG+i}, {SO}, 0 offen{OF}')
def stamp_dump(hk):
    if hk: a(f's_memtime s[{60+2*nst.index("end")}:{61+2*nst.index("end")}]\ns_memrealtime s[{60+2*nst.index("rend")}:{61+2*nst.index("rend")}]\ns_waitcnt lgkmcnt(0)')
    a(f's_lshl_b32 s7, s2, 7\ns_add_u32 s7, s7, {STAMP_OFF}\nv_mov_b32 v1, 0\ns_mov_b64 exec, 1')
    for i in range(len(nst)): a(f'v_mov_b32 v2, s{60+2*i}\nbuffer_store_dword v2, v1, {SWS}, s7 offen offset:{4*i}')
    if opt('cnt'): a(f'v_mov_b32 v2, s86\nbuffer_store_dword v2, v1, {SWS}, s7 offen offset:120\nv_mov_b32 v2, s88\nbuffer_store_dword v2, v1, {SWS}, s7 offen offset:124')
if STAMPS:
    a('s_waitcnt vmcnt(0)'); stamp('end'); stamp('rend', real=True)
    a(f's_waitcnt lgkmcnt(0)\ns_cmp_lg_u32 {sW}, {opt("swave")}\ns_cbranch_scc1 L_end')
    stamp_dump(False)
if RP:
    if RP == 'end': a('s_waitcnt vmcnt(0)\ns_memrealtime s[62:63]')
    if RP == 'top': a(f's_mov_b32 s62, s{80+RPL}')
    if RP == 'h2ok': a(f's_mov_b32 s62, s{81+RPL}')
    a(f's_waitcnt lgkmcnt(0)\ns_cmp_lg_u32 {sW}, 0\ns_cbranch_scc1 L_end\ns_lshl_b32 s7, s2, 3\ns_add_u32 s7, s7, {STAMP_OFF}\nv_mov_b32 v2, s60\nv_mov_b32 v3, s62\ns_mov_b64 exec, 1\nbuffer_store_dwordx2 v[2:3], off, {SWS}, s7')
a('L_end:\ns_endpgm')
a('L_fix:\ns_nop 7')
mfma(T+24, DEL, Bo, None); mfma(T+28, DEL+4, Bo, None)
a('s_mov_b32 exec_lo, 0x00010001\ns_mov_b32 exec_hi, 0x00010001')
for p in range(2): a(f'v_pk_add_f32 {v2(D0+2*p)}, {v2(D0+2*p)}, {v2(T+24+2*p)}')
for p in range(2): a(f'v_pk_add_f32 {v2(DC+2*p)}, {v2(DC+2*p)}, {v2(T+28+2*p)}')
a(f's_mov_b64 exec, -1\nv_cvt_pk_f16_f32 v{W_}, v{D0}, v{D0+1}\ns_branch L_nofix')
a(f"""
L_l0b:
v_mov_b32 v{T+54}, {L_MODE}
ds_read_b32 v{T+55}, v{T+54} offset:{L_OWN-L_MODE}
ds_read_b32 v253, v252 offset:{L_EXP}
ds_read_b32 v{T+54}, v{T+54}
s_waitcnt lgkmcnt(0)
v_readfirstlane_b32 {sMode}, v{T+54}
s_branch L_l0b_ret
L_l0c:
s_cmp_lg_u32 {sMode}, 0
s_mov_b64 exec, 1
s_waitcnt vmcnt(0)
s_cbranch_scc1 L_l0c_slow
buffer_store_dword v{T+55}, off, {SWS}, s55
L_l0c_p:
s_mov_b64 exec, -1
L_l0c_poll:
buffer_load_dword v{T+54}, v252, {SWS}, s56 offen sc1
s_sub_u32 {sSpin}, {sSpin}, 1
s_cbranch_scc1 L_poll1_to
s_waitcnt vmcnt(0)
v_cmp_ne_u32 vcc, v{T+54}, v253
s_cbranch_vccz L_poll1
s_sleep {BK}
s_branch L_l0c_poll
L_l0c_slow:
buffer_store_dword v{T+55}, off, {SWS}, s55 sc1
s_branch L_l0c_p
L_l0d:
v_mov_b32 v{T+50}, {L_GO}
L_l0d_spin:
ds_read_b32 v{T+51}, v{T+50}
s_waitcnt lgkmcnt(0)
v_cmp_eq_u32 vcc, 0, v{T+51}
s_cbranch_vccnz L_l0d_spin
s_branch L_l0d_ret
L_st_slow:
buffer_store_dwordx4 {vr(Wo)}, v{vL16}, {SWS}, {sH1st} offen sc1
buffer_store_dwordx2 {v2(Wo+4)}, v{vH1s2}, {SWS}, {sH1st} offen sc1
s_branch L_cphase
L_poll1_re:
{CNT1}
s_sleep {BK}
s_branch L_poll1
L_poll2_re:
{CNT2}
s_sleep {BK}
s_branch L_poll2
L_poll1_to:
s_waitcnt vmcnt(0)
s_branch L_poll1_done
L_poll2_to:
s_waitcnt vmcnt(0)
s_branch L_poll2_done
""")
H = 8
def fhash(dst, src): a(f'v_mul_lo_u32 v{dst}, v{src}, s50\nv_add_u32 v{dst}, s51, v{dst}')
def hs_group(lbl, x3, pre=False):
    a(f"""
s_mov_b32 exec_hi, 0
s_mov_b32 {sSpin}, {SPIN}
{'s_branch ' + lbl + '_chk' if pre else ''}
{lbl}:
s_sleep {BK}
buffer_load_dwordx3 v[{H}:{H+2}], v{vL16}, {SWS}, s54 offen sc1
s_sub_u32 {sSpin}, {sSpin}, 1
s_cbranch_scc1 {lbl}_to
s_waitcnt vmcnt(0)
{lbl}_chk:
""")
    fhash(H, H)
    a(f"""
v_xor_b32 v{H}, v{H}, v{H+(2 if x3 else 1)}
v_cmp_lt_u32 vcc, 15, v{H}
s_cbranch_vccnz {lbl}
s_branch {lbl}_done
{lbl}_to:
s_waitcnt vmcnt(0)
{lbl}_done:
v_lshrrev_b32 v{H+3}, 2, v{vL16}
ds_write_b32 v{H+3}, v{H+1} offset:{L_EXP}
v_and_b32 v{H+3}, 15, v{H+1}
v_cmp_ne_u32 vcc, s6, v{H+3}
s_mov_b64 exec, -1
""")
def hs_all(lbl, pre=False):
    a(f's_mov_b32 {sSpin}, {SPIN}')
    if pre: a(f's_branch {lbl}_w')
    a(f'{lbl}:')
    for i, r in enumerate(('s92', 's93', 's95', 's96')): a(f'buffer_load_dwordx2 {v2(H+8+2*i)}, v{vL16}, {SWS}, {r} offen sc1')
    a(f's_sub_u32 {sSpin}, {sSpin}, 1\ns_cbranch_scc1 {lbl}_done\n{lbl}_w:\ns_waitcnt vmcnt(0)')
    for i in range(4): fhash(H+8+2*i, H+8+2*i)
    for i in range(4): a(f'v_xor_b32 v{H+8+2*i}, v{H+8+2*i}, v{H+9+2*i}')
    a(f"""
v_or3_b32 v{H}, v{H+8}, v{H+10}, v{H+12}
v_or_b32 v{H}, v{H}, v{H+14}
v_cmp_lt_u32 vcc, 15, v{H}
s_cbranch_vccz {lbl}_done
s_sleep {BK}
s_branch {lbl}
{lbl}_done:
s_waitcnt vmcnt(0)
""")
def flag_store(v, soff, off):
    a(f's_mov_b64 exec, 1\ns_waitcnt vmcnt(0)\nbuffer_store_dword v{v}, off, {SWS}, {soff} offset:{off} sc1\ns_mov_b64 exec, -1')
def hstamp(n):
    if opt('hstamp'): a(f's_memtime s[{60+2*nst.index(n)}:{61+2*nst.index(n)}]')
a('L_hk:')
if opt('prio', 1): a('s_setprio 3')
for i in range(4): a(f'v_mov_b32 v{vZ+i}, 0')
a(f"""
s_lshl_b32 {sGi}, {sSig}, 5
s_add_u32 {sGi}, {sGi}, {sM}
s_lshl_b32 s97, {sGi}, 4
s_add_u32 s97, s97, {FLAGS}
s_mul_i32 s94, {sGi}, 5120
s_add_u32 {sCl}, s94, {H2BASE+BUF}
s_add_u32 s94, s94, {H1BASE}
v_lshlrev_b32 v{H+18}, 8, v{vL16}
s_mov_b64 exec, 3
s_waitcnt lgkmcnt(0)
{WSADD}
buffer_load_dword v{H+16}, v{H+18}, {SWS}, s97 offen
s_mov_b64 exec, -1
v_lshlrev_b32 v{H+4}, 3, v{vL16}
v_min_u32 v{H+21}, 4992, v{H+4}
s_lshl_b32 s7, {sSig}, 9
s_add_u32 s7, s7, {HF}
{'' if opt('nopf') else f'buffer_load_dword v{H+27}, v{H+21}, {SWS}, s94 offen'}
v_min_u32 v{H+21}, 384, v{H+4}
buffer_load_dword v{H+28}, v{H+21}, {SWS}, s7 offen
""")
a('L_hk2:')
if opt('lowp', 1): a('s_setprio 0')
a(f"""
s_add_u32 s98, s94, {H1STR}
s_getreg_b32 s6, hwreg(HW_REG_XCC_ID, 0, 4)
s_mov_b32 s92, {FLAGS+0x1000}
s_mov_b32 s93, {FLAGS+0x1400}
s_mov_b32 s95, {FLAGS+0x1800}
s_mov_b32 s96, {FLAGS+0x1c00}
s_mov_b32 s50, 0x9e3779b1
s_mov_b32 s51, 0x7f4a7c15
v_mov_b32 v{H+1}, {L_MODE}
ds_write_b32 v{H+1}, v{vZ} offset:4
s_lshr_b32 s52, {sM}, 3
s_lshl_b32 s52, s52, 8
s_add_u32 s52, s52, {sSig}
s_mul_i32 s52, s52, 1280
s_and_b32 s53, {sM}, 7
s_mul_i32 s53, s53, 160
s_add_u32 s52, s52, s53
s_add_u32 s52, s52, {H2BASE}
s_movk_i32 s53, 10080
s_lshl_b32 s54, {sSig}, 9
s_add_u32 s54, s54, {FLAGS}
""")
for i in range(5):
    a(f"""v_add_u32 v{H+22+i}, {1024*i}, v{vL16}
v_mul_u32_u24 v{H+21}, 205, v{H+22+i}
v_lshrrev_b32 v{H+21}, 15, v{H+21}
v_mad_u32_u24 v{H+22+i}, v{H+21}, s53, v{H+22+i}""")
hstamp('top')
a(f's_waitcnt vmcnt({1 if opt("nopf") else 2}) lgkmcnt(0)')
fhash(H+5, H+16)
a(f'v_and_or_b32 v{H+5}, v{H+5}, -16, s6')
def flag_lane(lane, off):
    a(f's_mov_b64 exec, {1 << lane}\ns_waitcnt vmcnt(0)\nbuffer_store_dword v{H+5}, v{H+18}, {SWS}, s97 offen offset:{off} sc1\ns_mov_b64 exec, -1')
def hs_issue():
    for i, r in enumerate(('s92', 's93', 's95', 's96')): a(f'buffer_load_dwordx2 {v2(H+8+2*i)}, v{vL16}, {SWS}, {r} offen sc1')
hstamp('bar1')
a(f's_mov_b64 exec, 1\nbuffer_store_dword v{H+5}, v{H+18}, {SWS}, s97 offen offset:4 sc1\nv_mov_b32 v{H+1}, {L_OWN}\nds_write_b32 v{H+1}, v{H+5}\ns_mov_b64 exec, -1')
hstamp('s1w')
a(f'v_lshlrev_b32 v{H+19}, 17, v{vL16}\ns_lshl_b32 s7, s2, 7\ns_mov_b64 exec, 3\nbuffer_load_dword v{H+20}, v{H+19}, {SO}, s7 offen\ns_mov_b64 exec, -1')
if opt('wst', 0): a(f's_mov_b64 exec, 62\nbuffer_load_dword v{H+29}, v{H+19}, {SWS}, s7 offen\ns_mov_b64 exec, -1')
NE = opt('early', 0); NT_ = 3 + opt('more', 0)
def cl(k):
    if k == 0:
        for i in range(5): a(f'buffer_store_dwordx4 {vr(vZ)}, v{H+22+i}, {SWS}, s52 offen sc1')
    elif k == 2: clean5('s98', '')
    else: clean5(sCl); a(f's_add_u32 {sCl}, {sCl}, {BUF}')
for k in range(NE): cl(k)
a(f"""
s_barrier
s_barrier
s_mov_b32 exec_hi, 0
buffer_load_dwordx3 v[{H}:{H+2}], v{vL16}, {SWS}, s54 offen sc1
s_mov_b64 exec, -1
""")
CL = opt('clate', 3)
for k in range(NE, CL): cl(k)
a('s_barrier')
for k in range(max(NE, CL), 3): cl(k)
a(f's_mov_b32 exec_hi, 0\ns_waitcnt vmcnt({5*(3-NE)})')
hstamp('bar2')
hs_group('L_hs', False, True)
a(f's_cmp_lg_u32 vcc_lo, 0\ns_cselect_b32 {sMode}, 1, {FORCE_SLOW}')
hstamp('h1st')
a(f"""
v_mov_b32 v{H}, {sMode}
v_mov_b32 v{H+1}, {L_MODE}
ds_write_b32 v{H+1}, v{H}
s_cmp_eq_u32 {sMode}, 0
s_cbranch_scc1 L_hk_go
""")
clean5('s98')
a('L_hk_go:\ns_waitcnt lgkmcnt(0)\ns_barrier')
flag_lane(1, 4)
a('s_barrier')
hs_all('L_hs2')
a(f'v_mov_b32 v{H}, 1\nv_mov_b32 v{H+1}, {L_GO}\nds_write_b32 v{H+1}, v{H}')
hstamp('h1ok')
a('s_barrier')
if opt('h3', 1):
    a(f's_add_u32 {sCl}, {sCl}, {BUF}'); clean5(sCl)
a(f"""
v_add_u32 v{H+16}, 1, v{H+16}
s_mov_b64 exec, 3
s_barrier
s_waitcnt vmcnt(0)
s_barrier
s_barrier
buffer_store_dword v{H+16}, v{H+18}, {SWS}, s97 offen{' sc1' if opt('bsc1', 1) else ''}
s_barrier
s_barrier
""")
if opt('hstamp'): stamp_dump(True)
a('s_endpgm\nL_codeend:')

if opt('hfront', 1):
    li = [k for k, i in enumerate(a.ins) if i.text in ('L_hk:', 'L_hk2:')]
    hk = a.ins[li[0]:li[1]]
    rest = a.ins[:li[0]] + a.ins[li[1]:]
    b = [k for k, i in enumerate(rest) if i.text == 's_cbranch_scc1 L_hk'][0]
    a.ins = rest[:b] + [Ins('s_cbranch_scc0 L_main')] + hk + [Ins('s_branch L_hk2'), Ins('L_main:')] + rest[b+1:]
if opt('nodma'): a.ins = [i for i in a.ins if not i.op.startswith('global_load_lds')]
if opt('noclean'):
    import re as _re
    keep = []
    for i in a.ins:
        if i.op == 'buffer_store_dwordx4' and i.toks[0] in (vr(vZ), vr(vZc)):
            keep.append(Ins(_re.sub(r's\[16:19\], s\d+', 's[16:19], s100', i.text)))
        else: keep.append(i)
    a.ins = keep
    k = [j for j, i in enumerate(a.ins) if i.text.startswith('s_mov_b32 s19')][0]
    a.ins.insert(k, Ins(f's_mov_b32 s100, {OOB}'))
NT = opts.get('nt', '')
def addnt(pred):
    for k, i in enumerate(a.ins):
        if pred(i): a.ins[k] = Ins(i.text + ' nt')
if 't' in NT: addnt(lambda i: i.op.startswith('global_load_lds') or i.op in ('global_load_dwordx3', 'global_load_dwordx4'))
if 'c' in NT: addnt(lambda i: i.op == 'global_load_dword')
if 'p' in NT: addnt(lambda i: i.op == 'buffer_load_dword' and i.toks[0] in (f'v{H+27}', f'v{H+28}'))
if 'e' in NT: addnt(lambda i: i.op == 'buffer_load_dword' and i.toks[0] in (f'v{H+16}', f'v{H+20}'))
if 'z' in NT: addnt(lambda i: i.op == 'buffer_store_dwordx4' and i.toks[0] in (vr(vZ), vr(vZc)) and 'sc1' in i.text)
if opt('align', 1): print('align', align_pass(a, KNAME + ':\n'))

DOC = """;
;    equal id%8) -> [radix-32] -> hand-off 2 (all workgroups).
;  * hand-offs carry a tag bit in every dword and are polled with sc1 loads.  Buffers are zeroed inside the launch; the
;    XCC id; otherwise every store is sc1, so any placement is correct.  All polling loops are bounded.
"""
hdr = open('interleave_layers__spectral_fnet__spectral_fnet__prompt.s.ref').read().split('; Override')[0]
out = hdr + DOC + ('; STAMPS ' + ' '.join(nst) + '\n' if STAMPS else '') + f'; @launch grid=(256,1,1) block=(320,1,1) lds={LDS_BYTES}\n'
out += f'.amdgcn_target "amdgcn-amd-amdhsa--gfx950"\n.text\n.globl {KNAME}\n.p2align 8\n.type {KNAME},@function\n{KNAME}:\n'
out += a.text()
if RP:
    out = out.replace('; @launch grid=(256,1,1) block=(320,1,1) lds=', f'; @launch kernel={KNAME} grid=(256,1,1) block=(320,1,1) lds=').replace('\n.amdgcn_target', '\n; @launch kernel=reveal_kernel grid=(1,1,1) block=(256,1,1) lds=64\n.amdgcn_target', 1)
    out += f'''.globl reveal_kernel
.p2align 8
.type reveal_kernel,@function
reveal_kernel:
  s_cmp_lg_u32 s2, 0
  s_cbranch_scc1 LR_end
  s_load_dwordx2 s[8:9], s[0:1], 96
  s_mov_b32 s10, {WS_BYTES}
  s_mov_b32 s11, 0x20000
  s_mov_b32 s3, {STAMP_OFF}
  v_lshlrev_b32 v1, 3, v0
  v_mov_b32 v4, 0
  v_mov_b32 v5, -1
  v_mov_b32 v6, {0 if opt('rpmax', 1) else -1}
  ds_write_b32 v4, v5
  ds_write_b32 v4, v6 offset:4
  s_waitcnt lgkmcnt(0)
  buffer_load_dwordx2 v[2:3], v1, s[8:11], s3 offen
  s_barrier
  s_waitcnt vmcnt(0)
  ds_min_u32 v4, v2
  ds_{'max' if opt('rpmax', 1) else 'min'}_u32 v4, v3 offset:4
  s_waitcnt lgkmcnt(0)
  s_barrier
  ds_read_b64 v[2:3], v4
  s_waitcnt lgkmcnt(0)
  v_sub_u32 v2, v3, v2
  v_min_u32 v2, 5000, v2
  v_mul_u32_u24 v2, 10, v2
  s_memrealtime s[12:13]
  v_readfirstlane_b32 s16, v2
  s_waitcnt lgkmcnt(0)
LR_spin:
  s_memrealtime s[14:15]
  s_waitcnt lgkmcnt(0)
  s_sub_u32 s17, s14, s12
  s_cmp_lt_u32 s17, s16
  s_cbranch_scc1 LR_spin
LR_end:
  s_endpgm
'''
out += f'''.section .rodata,"a"
.p2align 6
.amdhsa_kernel {KNAME}
  .amdhsa_next_free_vgpr 256
  .amdhsa_next_free_sgpr 102
  .amdhsa_accum_offset 256
  .amdhsa_group_segment_fixed_size 0
  .amdhsa_kernarg_size 104
  .amdhsa_user_sgpr_count 2
  .amdhsa_user_sgpr_kernarg_segment_ptr 1
  .amdhsa_system_sgpr_workgroup_id_x 1
.end_amdhsa_kernel
''' + '''.p2align 6
.amdhsa_kernel reveal_kernel
  .amdhsa_next_free_vgpr 16
  .amdhsa_next_free_sgpr 32
  .amdhsa_accum_offset 16
  .amdhsa_group_segment_fixed_size 0
  .amdhsa_kernarg_size 104
  .amdhsa_user_sgpr_count 2
  .amdhsa_user_sgpr_kernarg_segment_ptr 1
  .amdhsa_system_sgpr_workgroup_id_x 1
.end_amdhsa_kernel
''' * (1 if RP else 0) + '''.p2align 10
tbl:
'''
for f in blocks:
    for i in range(0, 256, 8): out += '.long ' + ','.join(f'{int(x):#x}' for x in f[i:i+8]) + '\n'
open(sys.argv[1], 'w').write(out)
print('instrs', len(a.ins), 'nops inserted', a.nops, 'table blocks', len(blocks), 'bytes', len(out))
```

```python
import sys, struct
import numpy as np
from design import *
from asmlib import Asm, align_pass, Ins

KNAME = "interleave_layers__spectral_fnet__spectral_fnet__prompt_kernel"
opts = dict(a.split('=') for a in sys.argv[2:] if '=' in a)
def opt(k, d=0): return int(opts.get(k, d))
STAMPS = opt('stamps'); FORCE_SLOW = opt('slow'); NLAYER = opt('layers', 4); SPIN = opt('spin', 50000); BK = opt('bk', 1); SLAYER = opt('slayer')
SST = opt('sstart')
def f2u(f): return struct.unpack('<I', struct.pack('<f', f))[0]
BUF = 0x200000 if opt('wst', 0) else 1310720
FLAGS = 4096; H1BASE = 0x40000; H1STR = 0x200000; H2BASE = 0x410000; WS_BYTES = H2BASE + 3*BUF + 1310720
STAMP_OFF = WS_BYTES
if STAMPS or opts.get('rp'): WS_BYTES += 256*128
L_V = 0; L_ST = 9600; L_MODE = 9856; L_GO = 9860; L_OWN = 9864; L_JUNK = 9872; L_EXP = 15104; HF = FLAGS + 0x2000; L_RT = 9984; L_XT = 15360; L_TB = 25600; L_CM = L_TB + 16*1024; LDS_BYTES = L_CM + 8192
OOB = 0x40000000
CNT1 = 's_lshl_b32 s7, s29, 3\ns_lshl_b32 s7, 1, s7\ns_add_u32 s86, s86, s7' if opt('cnt') else ''
CNT2 = 's_lshl_b32 s7, s29, 3\ns_sub_u32 s7, s7, 8\ns_lshl_b32 s7, 1, s7\ns_add_u32 s88, s88, s7' if opt('cnt') else ''
XF = ' ' + opts.get('xf', 'nt').replace('+', ' ')
OF = ' ' + opts.get('of', 'nt').replace('+', ' ')
H1F = ' ' + opts['h1f'] if 'h1f' in opts else ''
WSADD = f's_add_u32 s16, s16, {opt("wsoff") << 20}\ns_addc_u32 s17, s17, 0' if opt('wsoff') else ''
def vaddr(col): return (col % 40)*80 + (col//40)*4
def opA(M):
    h = M.astype(np.float16).view(np.uint16).astype(np.uint32)
    out = np.zeros((64, 4), np.uint32)
    for l in range(64):
        r = h[l % 16, 8*(l//16):8*(l//16)+8]
        out[l] = r[0::2] | (r[1::2] << 16)
    return out
def opB(N): return opA(N.T)
blocks = []
def add(b): blocks.append(np.asarray(b, np.uint32).reshape(256)); return len(blocks)-1
n_ = S1_mats(False); s_ = S1_mats(True)
def a3_idx(sig, m):
    g = unit_g(sig, m)
    if g == 0: return 9
    if g == 128: return 8
    return (g >> 7) + (0 if g % 4 == 1 else 4)
a3 = {}
for sig in range(8):
    for m in range(32):
        M = A3(sig, m)*HSCALE; i = a3_idx(sig, m)
        if i in a3: assert np.allclose(a3[i], M), (sig, m)
        a3[i] = M
for M in (n_[0], n_[1], n_[2], E_mat(False)): add(opA(M))
T_A3L = add(opA(a3[0]))
Bre, Bim = B1_mats(); T_B1 = add(opB(Bre)); add(opB(Bim))
T_A2 = len(blocks)
M = A2_mats6(0)/HSCALE; M2 = A2_mats6(20)/HSCALE
sgn = np.array([(-1.0)**((k % 8)//2) for k in range(32)])
assert np.allclose(M2, M*sgn)
for blk in range(3):
    for ch in range(3): add(opA(M[blk, ch]))
assert len(blocks) == 16
T_S1S = len(blocks)
for M in (s_[0], s_[1], s_[2], E_mat(True)): add(opA(M))
T_DEL = add(opA(s_[3])); add(opA(s_[4]))
T_A3 = len(blocks)
for i in range(10): add(opA(a3[i]))
T_ADDR = len(blocks)
at = np.zeros((2, 256, 4), np.uint32)
for ty, (sig, m) in enumerate(((2, 1), (1, 0))):
    for tid in range(256):
        w, l = divmod(tid, 64); n, mq = l % 16, l//16
        v = [vaddr(acol(sig, m, mq//2, 64*w+4*n+2*bop+(mq % 2))) for bop in range(2)]
        v += [6400 + vaddr(acol(sig, m, mq % 2, 64*w+4*n+2*(mq//2)+sub)) for sub in range(2)]
        k5 = 256 + 16*w + n
        if mq < 2: v += [vaddr(acol(sig, m, mq, k5)), 3200 + vaddr(acol(sig, m, mq, k5))]
        elif mq == 2: v += [6400 + vaddr(acol(sig, m, 0, k5)), 6400 + vaddr(acol(sig, m, 1, k5))]
        else: v += [L_JUNK + 4*n, L_JUNK + 4*n]
        at[ty, tid, :3] = [v[0] | (v[1] << 16), v[2] | (v[3] << 16), v[4] | (v[5] << 16)]
for i in range(8): add(at.reshape(-1)[256*i:256*i+256])
for i in range(640): assert (i*205) >> 14 == i//80
for i in range(320): assert (i*205) >> 11 == i//10

vL16, vH1s2, vH2ld, vH2ld5, vC1ld, vRtW, vRtR, vRtR2, vH2st, vH2st2, vStR, vStW = range(1, 13)
vVrd, vVrd2, vEps = 13, 14, 15
vV = 16
vXT = 22
vMask0 = 27; vG = 28
vTB = 31
vZc = 248
X = 32
A3r = 52; S1r = 56; B1r = 72; TWc = 80; TWs = 92; A2r = 104; CM = 140; DEL = 172
Bo = 180
T = 192
vZ = 4
def vr(b, n=4): return f'v[{b}:{b+n-1}]'
def v2(b): return f'v[{b}:{b+1}]'
sW, sSig, sM, sG, sType, sLayer, sMode = 's3', 's4', 's5', 's26', 's27', 's29', 's30'
sH1st, sH1ld0, sH1ld1, sH2st, sH2ld, sTag, sFlip, sSpin = 's31', 's32', 's33', 's34', 's35', 's36', 's37', 's38'
sCl, sGi, sInv, sFix = 's44', 's46', 's40', 's41'
sSlot = 's[42:43]'
SX, SO, SWS, STB = 's[8:11]', 's[12:15]', 's[16:19]', 's[24:25]'
HW = 4
a = Asm()
nst = []
RP = opts.get('rp'); RPL = opt('rpl')
def stamp(name, inloop=False, real=False):
    if RP:
        if name == 'start': a('s_memrealtime s[60:61]')
        if name == RP:
            if inloop: a('s_memrealtime s[90:91]\ns_waitcnt lgkmcnt(0)\ns_movreld_b32 s80, s90')
            else: a('s_memrealtime s[62:63]')
        return
    if SST and inloop and name not in ('top', 'bar1'): return
    if opt('span') and name not in ('start', 'rstart', 'end', 'rend'): return
    if STAMPS:
        i = len(nst); nst.append(name)
        assert i < 16
        ins = f's_{"memrealtime" if real or opt("rt") else "memtime"} s[{60+2*i}:{61+2*i}]'
        a(ins)
LATE = ('h2ack', 'h2ok')
def sst(name):
    if SST or RP: stamp(name)
def clean5(soff, fl=' sc1'):
    for i in range(4): a(f'buffer_store_dwordx4 {vr(vZ)}, v{vL16}, {SWS}, {soff} offen offset:{1024*i}{fl}')
    a(f's_add_u32 s7, {soff}, 4096\nbuffer_store_dwordx4 {vr(vZ)}, v{vL16}, {SWS}, s7 offen{fl}')
def mfma(d, A, B, C): a(f'v_mfma_f32_16x16x32_f16 {vr(d)}, {vr(A)}, {vr(B)}, {"0" if C is None else vr(C)}')

stamp('start'); stamp('rstart', real=True)
n_v, kq_v = T+10, T+11
a(f"""
s_load_dwordx2 s[16:17], s[0:1], 96
s_load_dwordx2 s[8:9], s[0:1], 0
s_load_dwordx2 s[12:13], s[0:1], 80
v_lshrrev_b32 v{T+1}, 6, v0
s_cmp_ge_u32 s2, 256
s_cbranch_scc1 L_end
""")
if opt('cpref', 1):
    a(f"""
s_getpc_b64 s[24:25]
v_lshlrev_b32 v{T+2}, 7, v0
v_min_u32 v{T+2}, L_codeend-{KNAME}-64, v{T+2}
global_load_dword v255, v{T+2}, s[24:25]
""")
a(f"""
v_readfirstlane_b32 {sW}, v{T+1}
v_and_b32 v{T}, 63, v0
s_and_b32 {sSig}, s2, 7
s_lshr_b32 {sM}, s2, 3
v_lshlrev_b32 v{vL16}, 4, v{T}
s_mov_b32 s18, {WS_BYTES}
s_mov_b32 s19, 0x20000
s_mov_b32 s14, 2621440
s_mov_b32 s15, 0x20000
s_cmp_eq_u32 {sW}, {HW}
s_cbranch_scc1 L_hk
s_lshl_b32 s6, {sSig}, 2
s_lshr_b32 s6, 0x9654d210, s6
s_and_b32 s6, s6, 15
s_lshl_b32 {sG}, {sM}, 4
s_add_u32 {sG}, {sG}, s6
s_cmp_eq_u32 {sSig}, 0
s_cselect_b32 s7, 248, 0
s_cmp_ge_u32 {sM}, 16
s_cselect_b32 s7, s7, 0
s_sub_u32 {sG}, {sG}, s7
s_and_b32 {sType}, {sG}, 1
""")
a(f"""
s_getpc_b64 s[24:25]
s_add_u32 s24, s24, tbl@rel32@lo+4
s_addc_u32 s25, s25, tbl@rel32@hi+12
s_lshr_b32 s7, {sG}, 7
s_lshl_b32 s94, {sType}, 2
s_sub_u32 s7, s7, s94
s_add_u32 s7, s7, {4 + T_A3}
s_cmp_eq_u32 {sG}, 128
s_cselect_b32 s7, {8 + T_A3}, s7
s_cmp_eq_u32 {sG}, 0
s_cselect_b32 s7, {9 + T_A3}, s7
s_cselect_b32 s94, {T_S1S*1024}, 0
s_lshl_b32 s7, s7, 10
s_lshl_b32 s95, {sW}, 12
s_cmp_eq_u32 {sW}, 0
s_cselect_b32 s94, s94, s95
s_cmp_eq_u32 {sW}, 1
s_cselect_b32 s7, s7, s94
s_add_u32 m0, s95, {L_TB}
v_add_u32 v{T+2}, s94, v{vL16}
v_add_u32 v{T+3}, s7, v{vL16}
s_lshl_b32 s7, {sType}, 12
s_add_u32 s7, s7, {T_ADDR*1024}
global_load_lds_dwordx4 v{T+3}, {STB}
global_load_lds_dwordx4 v{T+2}, {STB} offset:1024
global_load_lds_dwordx4 v{T+2}, {STB} offset:2048
global_load_lds_dwordx4 v{T+2}, {STB} offset:3072
v_lshl_add_u32 v{T+2}, v0, 4, s7
global_load_dwordx3 v[{vV}:{vV+2}], v{T+2}, {STB}
s_or_b32 {sFix}, s2, {sW}
""")
a(f"""
s_cmp_lg_u32 {sFix}, 0
s_cbranch_scc1 L_nodel
v_add_u32 v{T+2}, {T_DEL*1024}, v{vL16}
global_load_dwordx4 {vr(DEL)}, v{T+2}, {STB}
global_load_dwordx4 {vr(DEL+4)}, v{T+2}, {STB} offset:1024
L_nodel:
""")
a(f"""
s_sub_u32 s92, 0, {sG}
s_and_b32 s92, s92, 511
s_cmp_eq_u32 {sG}, 0
s_cselect_b32 s92, 256, s92
s_mul_i32 s92, s92, 1280
s_mul_i32 s93, {sG}, 1280
s_sub_u32 s92, s92, s93
s_sub_u32 s92, s92, {4*655360}
s_mov_b32 s10, 2621440
s_mov_b32 s11, 0x20000
s_mov_b32 s96, 0x9fb00
v_lshlrev_b32 v{vRtR}, 4, v0
""")
for i in range(3):
    a(f"""v_add_u32 v{T+12}, {256*i}, v0
v_mul_u32_u24 v{T+12}, 205, v{T+12}
v_lshrrev_b32 v{T+12}, 14, v{T+12}
v_mov_b32 v{T+13}, s92
v_cmp_le_u32 vcc, 4, v{T+12}
v_mad_u32_u24 v{T+12}, v{T+12}, s96, v{vRtR}
v_cndmask_b32 v{T+13}, 0, v{T+13}, vcc
v_add3_u32 v{vG+i}, v{T+12}, v{T+13}, s93""".replace(f'v_add_u32 v{T+12}, 0, v0\nv_mul_u32_u24 v{T+12}, 205, v{T+12}', f'v_mul_u32_u24 v{T+12}, 205, v0'))
    if i < 2: a(f's_add_u32 s93, s93, 4096')
a(f"""
""")
sst('prek')
a(f"""
s_waitcnt lgkmcnt(0)
s_lshl_b32 s7, {sW}, 10
s_add_u32 m0, s7, {L_XT}
{WSADD or 's_nop 1'}
buffer_load_dwordx4 v{vG}, {SX}, 0 offen{XF} lds
s_add_u32 m0, s7, {L_XT+4096}
s_cmp_ge_u32 {sW}, 2
buffer_load_dwordx4 v{vG+1}, {SX}, 0 offen{XF} lds
s_cbranch_scc1 L_nox2
s_add_u32 m0, s7, {L_XT+8192}
s_nop 0
buffer_load_dwordx4 v{vG+2}, {SX}, 0 offen{XF} lds
s_branch L_x2
L_nox2:
v_mov_b32 v{vG+2}, {OOB}
buffer_load_dword v254, v{vG+2}, {SX}, 0 offen
L_x2:
""")
sst('xiss')
sst('dma')
a(f"""
v_and_b32 v{n_v}, 15, v0
v_bfe_u32 v{kq_v}, v0, 4, 2
s_mul_i32 s94, {sType}, 320
v_lshrrev_b32 v{T+13}, 1, v{kq_v}
v_mul_u32_u24 v{T+14}, s94, v{T+13}
s_lshl_b32 s92, {sW}, 5
v_add3_u32 v{T+12}, v{n_v}, v{T+14}, s92
s_and_b32 s92, {sW}, 1
s_lshl_b32 s92, s92, 3
s_lshr_b32 s93, {sW}, 1
s_lshl_b32 s93, s93, 5
s_add_u32 s92, s92, s93
s_add_u32 s92, s92, 256
v_lshrrev_b32 v{T+17}, 1, v{n_v}
v_and_b32 v{T+18}, 1, v0
v_add3_u32 v{T+17}, v{T+17}, v{T+14}, s92
v_lshl_add_u32 v{T+17}, v{T+18}, 4, v{T+17}
s_xor_b32 s94, {sType}, 1
v_and_b32 v{T+13}, s94, v{T+13}
v_xor_b32 v{T+13}, v{T+13}, v{kq_v}
v_add_u32 v{T+14}, 16, v{T+12}
v_and_b32 v{T+13}, 1, v{T+13}
v_add_u32 v{T+15}, 128, v{T+12}
v_cmp_eq_u32 vcc, 1, v{T+13}
v_add_u32 v{T+16}, 144, v{T+12}
s_mul_i32 s94, s94, 320
""")
ecol = [T+12, T+14, T+15, T+16, T+17]
for kl in range(5): a(f'v_sub_u32 v{T+18+kl}, 640, v{ecol[kl]}')
for kl in range(5): a(f'v_cndmask_b32 v{vXT+kl}, v{ecol[kl]}, v{T+18+kl}, vcc')
a(f"""
v_cmp_gt_u32 vcc, 2, v{kq_v}
v_mov_b32 v{T+17}, s94
v_and_b32 v{T+13}, 1, v{kq_v}
v_cndmask_b32 v{T+17}, 0, v{T+17}, vcc
v_cmp_eq_u32 vcc, 0, v{T+12}
v_mul_u32_u24 v{T+9}, 0x1400, v{T+13}
v_add_u32 v{T+14}, {L_XT}, v{T+9}
v_cndmask_b32 v{vXT}, v{vXT}, v{T+17}, vcc
v_cmp_ne_u32 vcc, 0, v{vXT}
""")
for kl in range(5): a(f'v_lshl_add_u32 v{vXT+kl}, v{vXT+kl}, 1, v{T+14}')
a(f'v_cndmask_b32 v{vMask0}, 0, -1, vcc')
for i in range(20): a(f'v_mov_b32 v{X+i}, 0')
for i in range(4): a(f'v_mov_b32 v{vZc+i}, 0')
a(f"""
s_lshr_b32 s95, {sM}, 3
s_lshl_b32 s7, s95, 2
s_lshr_b32 s7, 0x1120, s7
s_and_b32 s7, s7, 3
s_add_u32 s96, s6, 256
s_cmp_eq_u32 {sSig}, 0
s_cselect_b32 s96, 8, s96
s_lshl_b32 s94, {sW}, 4
s_add_u32 s6, s6, s94
s_add_u32 s96, s96, s94
v_lshl_add_u32 v{T+13}, v{n_v}, 2, s7
v_lshl_add_u32 v{T+14}, v{kq_v}, 6, s6
v_lshl_add_u32 v{T+15}, v{kq_v}, 6, s96
v_add_u32 v{T+12}, 64, v{T+13}
s_mov_b32 s94, {f2u(1/2048):#x}
""")
G = T+24
for hi in range(2):
    for ch in range(2): a(f'v_mul_u32_u24 v{G+2*(2*hi+ch)}, v{T+13-hi}, v{T+14+ch}')
for k in range(4): a(f'v_and_b32 v{G+2*k}, 0x7ff, v{G+2*k}')
for k in range(4): a(f'v_cvt_f32_u32 v{G+2*k}, v{G+2*k}')
for k in range(4): a(f'v_mul_f32 v{G+2*k}, s94, v{G+2*k}')
for k in range(4): a(f'v_sin_f32 v{G+2*k+1}, v{G+2*k}\nv_cos_f32 v{G+2*k}, v{G+2*k}')
for k in range(4): a(f'v_cvt_pk_f16_f32 v{G+8+2*k}, v{G+2*k}, v{G+2*k+1}\nv_cvt_pk_f16_f32 v{G+9+2*k}, -v{G+2*k+1}, v{G+2*k}')
a(f's_cmp_lg_u32 {sSig}, 0\ns_cbranch_scc1 L_cm_done')
for hi in range(2):
    b = G+8+4*hi
    a(f'v_mov_b32 v{b+1}, 0\nv_mov_b32 v{b+3}, v{b+2}\nv_mov_b32 v{b+2}, 0')
a(f"""
v_and_b32 v{T+17}, 1, v0
v_lshlrev_b32 v{T+17}, 4, v{T+17}
v_mov_b32 v{T+18}, 0x3c00
v_lshlrev_b32 v{T+17}, v{T+17}, v{T+18}
v_cmp_gt_u32 vcc, 16, v0
v_cndmask_b32 v{G+8}, v{G+8}, v{T+17}, vcc
v_cndmask_b32 v{G+12}, v{G+12}, v{T+17}, vcc
L_cm_done:
""")
sst('cm')
a(f'''
v_lshlrev_b32 v{T+12}, 2, v{kq_v}
v_mul_u32_u24 v{T+12}, v{T+12}, v{n_v}
v_cvt_f32_u32 v{T+12}, v{T+12}
v_cvt_f32_u32 v{T+13}, v{n_v}
v_mul_f32 v{T+12}, {f2u(1/640):#x}, v{T+12}
v_mul_f32 v{T+13}, {f2u(1/640):#x}, v{T+13}
''')
for blk in range(3):
    for i in range(4):
        k = 16*blk + i
        if k == 0: src = T+12
        else:
            src = T+14
            a(f'v_fmamk_f32 v{T+14}, v{T+13}, {f2u(float(k)):#x}, v{T+12}')
        a(f'v_cos_f32 v{TWc+4*blk+i}, v{src}\nv_sin_f32 v{TWs+4*blk+i}, v{src}')
a(f"""
s_mov_b32 {sInv}, {f2u(1/640):#x}
v_mov_b32 v{vEps}, {f2u(1e-5):#x}
v_mov_b32 v{Bo+10}, 0
v_mov_b32 v{Bo+11}, 0
s_mov_b32 {sLayer}, 0
s_mov_b32 {sTag}, 1
s_mov_b32 {sFlip}, 0
s_cmp_lt_u32 {sW}, 2
s_cselect_b64 {sSlot}, 1, 0
s_cselect_b32 s7, 3200, 0
s_cselect_b32 s52, 12, 8
s_cselect_b32 s53, 0, 32
s_lshl_b32 s7, s7, {sW}
v_lshlrev_b32 v{T+12}, 4, v{kq_v}
v_mul_u32_u24 v{vVrd}, 80, v{n_v}
v_add3_u32 v{vVrd}, v{vVrd}, v{T+12}, s7
v_and_b32 v{vVrd2}, 7, v0
v_mul_u32_u24 v{vVrd2}, 80, v{vVrd2}
s_add_u32 s7, s7, 2560
v_add3_u32 v{vVrd2}, v{vVrd2}, v{T+12}, s7
s_mul_i32 s54, s52, {sW}
s_lshl_b32 s54, s54, 2
s_add_u32 s54, s54, s53
s_sub_u32 s7, s52, 1
v_min_u32 v{T+13}, s7, v{n_v}
v_lshlrev_b32 v{T+13}, 2, v{T+13}
s_movk_i32 s7, 5120
v_mad_u32_u24 v{vC1ld}, v{kq_v}, s7, v{T+13}
v_mul_u32_u24 v{vRtW}, 160, v{n_v}
s_add_u32 s7, s54, {L_RT}
v_add3_u32 v{vRtW}, v{vRtW}, v{T+12}, s7
s_lshl_b32 s7, s52, 2
v_cmp_gt_u32 vcc, s7, v{T+12}
v_add_u32 v{T+13}, {L_XT}, v{vL16}
v_cndmask_b32 v{vRtW}, v{T+13}, v{vRtW}, vcc
v_mul_u32_u24 v{T+13}, 205, v0
v_lshrrev_b32 v{T+13}, 11, v{T+13}
v_mul_u32_u24 v{T+13}, 10080, v{T+13}
v_add_u32 v{vH2st}, v{T+13}, v{vRtR}
s_lshl_b32 s7, {sW}, 4
s_add_u32 s7, s7, 256
v_add_u32 v{T+13}, s7, v{n_v}
v_lshlrev_b32 v{vRtR2}, 4, v{T+13}
v_mul_u32_u24 v{T+13}, 205, v{T+13}
v_lshrrev_b32 v{T+13}, 11, v{T+13}
v_mul_u32_u24 v{T+13}, 10080, v{T+13}
v_add_u32 v{vH2st2}, v{T+13}, v{vRtR2}
v_cmp_eq_u32 vcc, 0, v{kq_v}
v_mov_b32 v{T+13}, {OOB}
v_cndmask_b32 v{vH2st2}, v{T+13}, v{vH2st2}, vcc
v_add_u32 v{vRtR}, {L_RT}, v{vRtR}
v_add_u32 v{vRtR2}, {L_RT}, v{vRtR2}
v_lshrrev_b32 v{vH1s2}, 1, v{vL16}
v_add_u32 v{vH1s2}, {1024-128}, v{vH1s2}
v_add_u32 v{T+14}, -1, v{kq_v}
v_cmp_gt_u32 vcc, 2, v{T+14}
v_cndmask_b32 v{vH1s2}, v{T+13}, v{vH1s2}, vcc
v_and_b32 v{T+13}, 1, v{kq_v}
v_lshlrev_b32 v{T+13}, 7, v{T+13}
v_and_b32 v{T+14}, 3, v0
v_lshl_add_u32 v{vStR}, v{T+14}, 5, v{T+13}
v_add_u32 v{vStR}, {L_ST}, v{vStR}
v_bfe_u32 v{T+14}, v0, 2, 1
v_lshl_add_u32 v{T+13}, v{T+14}, 6, v{T+13}
v_bfe_u32 v{T+14}, v0, 3, 1
v_lshl_add_u32 v{T+13}, v{T+14}, 5, v{T+13}
v_bfe_u32 v{T+14}, v0, 5, 1
v_lshl_add_u32 v{T+13}, v{T+14}, 2, v{T+13}
s_lshl_b32 s7, {sW}, 3
s_add_u32 s7, s7, {L_ST}
v_add_u32 v{vStW}, s7, v{T+13}
s_and_b32 s93, {sM}, 7
s_mul_i32 s93, s93, 160
s_lshl_b32 s94, {sSig}, 7
s_add_u32 s92, s94, {sM}
s_mul_i32 s92, s92, 1280
s_mul_i32 {sH1st}, {sW}, 40960
s_add_u32 {sH1st}, {sH1st}, s92
s_add_u32 {sH1st}, {sH1st}, {H1BASE}
s_lshl_b32 s96, s95, 5
s_add_u32 s96, s96, s94
s_mul_i32 {sH1ld0}, s96, 1280
s_add_u32 {sH1ld0}, {sH1ld0}, s93
s_add_u32 s96, s54, {H1BASE}
s_add_u32 {sH1ld0}, {sH1ld0}, s96
s_add_u32 {sH1ld1}, {sH1ld0}, 20480
s_lshl_b32 s96, s95, 8
s_add_u32 s96, s96, {sSig}
s_mul_i32 {sH2st}, s96, 1280
s_add_u32 {sH2st}, {sH2st}, s93
s_add_u32 {sH2st}, {sH2st}, {H2BASE}
s_mov_b32 {sH2ld}, {H2BASE-BUF}
s_lshl_b32 s7, {sSig}, 2
s_add_u32 s55, s7, {sW}
s_lshl_b32 s55, s55, 5
s_add_u32 s55, s55, {sM}
s_lshl_b32 s55, s55, 2
s_add_u32 s55, s55, {HF}
s_add_u32 s56, s95, s7
s_lshl_b32 s56, s56, 7
s_add_u32 s56, s56, {HF}
s_add_u32 {sCl}, {sH2st}, {2*BUF}
s_and_b32 s7, {sG}, 127
s_lshr_b32 s7, s7, 2
s_sub_u32 s94, 0, {sG}
s_and_b32 s94, s94, 127
s_lshr_b32 s94, s94, 2
s_bfe_u32 s95, {sG}, 0x10001
s_cmp_eq_u32 {sType}, 1
s_cselect_b32 s94, s7, s94
s_cselect_b32 s96, 2, s95
s_cselect_b32 s95, 3, s95
s_lshl_b32 s96, s96, 5
s_lshl_b32 s95, s95, 5
s_add_u32 s7, s7, s96
s_add_u32 s94, s94, s95
s_mul_i32 s7, s7, 10240
s_mul_i32 s94, s94, 10240
v_mov_b32 v{T+12}, s7
v_mov_b32 v{T+13}, s94
v_cmp_le_u32 vcc, 2, v{kq_v}
s_lshl_b32 s95, {sW}, 8
s_lshl_b32 s96, {sW}, 6
v_cndmask_b32 v{T+12}, v{T+12}, v{T+13}, vcc
s_add_u32 s96, s96, 1024
v_add_u32 v{T+12}, v{T+12}, v{T+9}
v_lshlrev_b32 v{T+13}, 4, v{n_v}
v_add3_u32 v{vH2ld}, v{T+12}, v{T+13}, s95
v_lshlrev_b32 v{T+13}, 2, v{n_v}
v_add3_u32 v{vH2ld5}, v{T+12}, v{T+13}, s96
v_add_u32 v{vTB}, {L_TB}, v{vL16}
v_lshrrev_b32 v252, 2, v{vL16}
v_and_b32 v252, 127, v252
s_lshl_b32 s7, {sW}, 2
v_add_u32 v{T+2}, s7, v{vTB}
""")
sst('prex')
for hi in range(2):
    for ch in range(2):
        for rio in range(2):
            a(f'ds_write_b32 v{T+2}, v{G+8+2*(2*hi+ch)+rio} offset:{L_CM-L_TB+((hi*2+rio)*2+ch)*1024}')
a('s_waitcnt vmcnt(3) lgkmcnt(0)\ns_barrier')
sst('bart')
for i in range(4): a(f'ds_read_b128 {vr(S1r+4*i)}, v{vTB} offset:{1024*i}')
for i in range(9): a(f'ds_read_b128 {vr(A2r+4*i)}, v{vTB} offset:{1024*(T_A2+i)}')
for i in range(2): a(f'ds_read_b128 {vr(B1r+4*i)}, v{vTB} offset:{1024*(T_B1+i)}')
for i in range(8): a(f'ds_read_b128 {vr(CM+4*i)}, v{vTB} offset:{L_CM-L_TB+1024*i}')
a(f'ds_read_b128 {vr(A3r)}, v{vTB} offset:{1024*T_A3L}')
for i in (2, 1, 0): a(f'v_lshrrev_b32 v{vV+2*i+1}, 16, v{vV+i}\nv_and_b32 v{vV+2*i}, 0xffff, v{vV+i}')
a(f's_cmp_eq_u32 {sW}, 3\ns_cselect_b32 s7, 0x80008000, 0\ns_waitcnt lgkmcnt(11)')
for i in range(18): a(f'v_xor_b32 v{A2r+2*i+1}, s7, v{A2r+2*i+1}')
a('s_waitcnt vmcnt(0)\ns_barrier')
sst('bar0')
for kl in range(5):
    for j in range(4): a(f'ds_read_u16_d16_hi v{X+4*kl+j}, v{vXT+kl} offset:{1280*j}')
a('s_waitcnt lgkmcnt(0)')
Sx, Qx = T, T+4
if RP: a('s_mov_b32 m0, 0')
if opt('cnt'): a('s_mov_b32 s86, 0\ns_mov_b32 s88, 0')
a('L_loop:')
stamp('top', True)
if opt('sca', 0):
    for j in range(4): a(f'v_mul_f32 v{Qx+j}, v{X+16+j}, v{X+16+j}')
    for j in range(4): a(f'v_add_f32 v{Sx+j}, v{X+16+j}, v{X+j}')
    for j in range(4): a(f'v_fmac_f32 v{Qx+j}, v{X+j}, v{X+j}')
else:
    for p in range(2): a(f'v_pk_mul_f32 {v2(Qx+2*p)}, {v2(X+16+2*p)}, {v2(X+16+2*p)}')
for kl in range(1 if opt('sca', 0) else 0, 4):
    for p in range(2):
        b = X+4*kl+2*p
        a(f'v_pk_add_f32 {v2(Sx+2*p)}, {v2(X+16+2*p) if kl == 0 else v2(Sx+2*p)}, {v2(b)}')
        a(f'v_pk_fma_f32 {v2(Qx+2*p)}, {v2(b)}, {v2(b)}, {v2(Qx+2*p)}')
for j in range(4): a(f'v_permlane32_swap_b32 v{Sx+j}, v{Qx+j}')
for p in range(2): a(f'v_pk_add_f32 {v2(Sx+2*p)}, {v2(Sx+2*p)}, {v2(Qx+2*p)}')
def dpp(d, s, ctl, bank): a(f'v_add_f32_dpp v{d}, v{s}, v{s} {ctl} row_mask:0xf bank_mask:{bank:#x}')
dpp(Sx, Sx, 'row_ror:8', 3); dpp(Sx, Sx+1, 'row_ror:8', 12); dpp(Sx+2, Sx+2, 'row_ror:8', 3); dpp(Sx+2, Sx+3, 'row_ror:8', 12)
dpp(Sx, Sx, 'row_shl:4', 5); dpp(Sx, Sx+2, 'row_shr:4', 10)
dpp(Sx, Sx, 'quad_perm:[1,0,3,2]', 15); dpp(Sx, Sx, 'quad_perm:[2,3,0,1]', 15)
a(f"""
ds_write_b32 v{vStW}, v{Sx}
s_waitcnt lgkmcnt(0)
s_barrier
""")
stamp('bar1', True)
P = T+8; RS = T+16; NB = T+20
a(f"""
ds_read_b128 {vr(P)}, v{vStR}
ds_read_b128 {vr(P+4)}, v{vStR} offset:16
s_waitcnt lgkmcnt(1)
v_pk_add_f32 {v2(P)}, {v2(P)}, {v2(P+2)}
s_waitcnt lgkmcnt(0)
v_pk_add_f32 {v2(P+4)}, {v2(P+4)}, {v2(P+6)}
v_pk_add_f32 {v2(P)}, {v2(P)}, {v2(P+4)}
v_mul_f32 v{P}, {sInv}, v{P}
v_fma_f32 v{P+1}, v{P+1}, {sInv}, v{vEps}
v_fma_f32 v{P+1}, -v{P}, v{P}, v{P+1}
v_max_f32 v{P+1}, v{P+1}, v{vEps}
v_rsq_f32 v{P+1}, v{P+1}
v_mul_f32 v{P}, -v{P}, v{P+1}
""")
for j in range(4): a(f'v_mov_b32_dpp v{RS+j}, v{P+1} quad_perm:[{j},{j},{j},{j}] row_mask:0xf bank_mask:0xf')
for j in range(4): a(f'v_mov_b32_dpp v{NB+j}, v{P} quad_perm:[{j},{j},{j},{j}] row_mask:0xf bank_mask:0xf')
N_ = T+24
D0, D1, DC, DE = T, T+4, T+8, T+12
for kl in range(5):
    for p in range(2): a(f'v_pk_fma_f32 {v2(N_+4*kl+2*p)}, {v2(X+4*kl+2*p)}, {v2(RS+2*p)}, {v2(NB+2*p)}')
def cvtn(kl):
    for p in range(2): a(f'v_cvt_pk_f16_f32 v{Bo+2*kl+p}, v{N_+4*kl+2*p}, v{N_+4*kl+2*p+1}')
cvtn(0); cvtn(1); cvtn(2)
mfma(D0, S1r, Bo, None); cvtn(3); mfma(DC, S1r+4, Bo, None); cvtn(4)
mfma(D1, S1r, Bo+4, None); mfma(DC, S1r+8, Bo+4, DC)
a(f's_cmp_lg_u32 {sFix}, 0')
W_ = T+44
mfma(DE, S1r+12, Bo+8, None)
a(f'v_cvt_pk_f16_f32 v{W_}, v{D0}, v{D0+1}')
a(f's_cbranch_scc0 L_fix\nL_nofix:')
a(f"""
v_cvt_pk_f16_f32 v{W_+1}, v{D0+2}, v{D0+3}
ds_write_b32 v{vV}, v{W_}
ds_write_b32 v{vV}, v{W_+1} offset:3200
v_cvt_pk_f16_f32 v{W_+2}, v{D1}, v{D1+1}
v_cvt_pk_f16_f32 v{W_+3}, v{D1+2}, v{D1+3}
v_cvt_pk_f16_f32 v{W_+4}, v{DC}, v{DC+1}
v_cvt_pk_f16_f32 v{W_+5}, v{DC+2}, v{DC+3}
ds_write_b32 v{vV+1}, v{W_+2}
ds_write_b32 v{vV+1}, v{W_+3} offset:3200
v_cvt_pk_f16_f32 v{W_+6}, v{DE}, v{DE+1}
v_cvt_pk_f16_f32 v{W_+7}, v{DE+2}, v{DE+3}
ds_write_b32 v{vV+2}, v{W_+4}
ds_write_b32 v{vV+3}, v{W_+5}
ds_write_b32 v{vV+4}, v{W_+6}
ds_write_b32 v{vV+5}, v{W_+7}
""")
stamp('s1w', True)
a(f's_cmp_eq_u32 {sLayer}, 0\ns_waitcnt lgkmcnt(0)\ns_barrier')
stamp('bar2', True)
Ad = T; Tr = T+12; Ti = T+24; B2 = Tr; O = T; Pt = T+36
a(f"""
ds_read_b128 {vr(Ad)}, v{vVrd}
ds_read_b128 {vr(Ad+4)}, v{vVrd} offset:1280
ds_read_b128 {vr(Ad+8)}, v{vVrd2}
s_cbranch_scc1 L_l0b
L_l0b_ret:
""")
for blk in range(3):
    a(f's_waitcnt lgkmcnt({2-blk})')
    mfma(Tr+4*blk, Ad+4*blk, B1r, None); mfma(Ti+4*blk, Ad+4*blk, B1r+4, None)
for ch in range(3):
    for p in range(2): a(f'v_pk_mul_f32 {v2(Pt+4*ch+2*p)}, {v2(Tr+4*ch+2*p)}, {v2(TWc+4*ch+2*p)}')
    for p in range(2): a(f'v_pk_fma_f32 {v2(Pt+4*ch+2*p)}, {v2(Ti+4*ch+2*p)}, {v2(TWs+4*ch+2*p)}, {v2(Pt+4*ch+2*p)}')
    for p in range(2): a(f'v_pk_mul_f32 {v2(Ti+4*ch+2*p)}, {v2(Ti+4*ch+2*p)}, {v2(TWc+4*ch+2*p)}')
    for p in range(2): a(f'v_pk_fma_f32 {v2(Ti+4*ch+2*p)}, {v2(Tr+4*ch+2*p)}, {v2(TWs+4*ch+2*p)}, {v2(Ti+4*ch+2*p)} neg_lo:[1,0,0] neg_hi:[1,0,0]')
def cv2(ch, i): a(f'v_cvt_pk_f16_f32 v{B2+4*ch+i}, v{Pt+4*ch+i}, v{Ti+4*ch+i}')
def st2(blk, ch): mfma(O+4*blk, A2r+(blk*3+ch)*4, B2+4*ch, None if ch == 0 else O+4*blk)
for i in range(4): cv2(0, i)
cv2(1, 0); cv2(1, 1)
st2(2, 0); cv2(1, 2); cv2(1, 3); st2(0, 0); cv2(2, 0); cv2(2, 1); st2(1, 0); cv2(2, 2); cv2(2, 3)
st2(2, 1); st2(0, 1); st2(2, 2); st2(0, 2); st2(1, 1); st2(1, 2)
a(f's_mov_b32 {sSpin}, {SPIN}\ns_add_u32 {sH2ld}, {sH2ld}, {BUF}\ns_cmp_lg_u32 {sMode}, 0')
Wo = T+48
def cvo(i): a(f'v_cvt_pk_f16_f32 v{Wo+i}, v{O+2*i}, v{O+2*i+1}')
def tg(i): a(f'v_and_or_b32 v{Wo+i}, v{Wo+i}, -2, {sTag}')
cvo(4); cvo(5); tg(5); cvo(0); cvo(1)
a(f'v_cndmask_b32 v{Wo}, v{Wo}, v{Wo+4}, {sSlot}')
tg(4); tg(1); tg(0); cvo(2); cvo(3); tg(2); tg(3)
a(f"""
s_cbranch_scc1 L_st_slow
buffer_store_dwordx2 {v2(Wo+4)}, v{vH1s2}, {SWS}, {sH1st} offen{H1F}
buffer_store_dwordx4 {vr(Wo)}, v{vL16}, {SWS}, {sH1st} offen{H1F}
L_cphase:
""")
stamp('h1st', True)
Ca = T+12; Dm = T+20; K_ = T+36
a(f"""
s_xor_b32 {sH1st}, {sH1st}, {H1STR}
s_cmp_eq_u32 {sLayer}, 0
s_cbranch_scc1 L_l0c
L_l0c_ret:
""")
if opt('ack1', 1): a('s_waitcnt vmcnt(0)')
if opt('d1'): a(f's_sleep {opt("d1")}')
a('L_poll1:')
for ch in range(2):
    for u in range(4):
        a(f'buffer_load_dword v{Ca+4*ch+u}, v{vC1ld}, {SWS}, {sH1ld0 if ch == 0 else sH1ld1} offen offset:{1280*u} sc1')
a(f's_sub_u32 {sSpin}, {sSpin}, 1\ns_cbranch_scc1 L_poll1_to\ns_waitcnt vmcnt(4)')
tt = sum((((i >> 2 & 1) ^ (i & 1)) & ((i >> 1 & 1) ^ (i & 1))) << i for i in range(8))
def cm(hi, ch, rio):
    d = Dm + (hi*2+rio)*4
    mfma(d, Ca+4*ch, CM+((hi*2+rio)*2+ch)*4, None if ch == 0 else d)
def xa(i): a(f'v_bitop3_b32 v{K_+i}, v{Ca+2*i}, v{Ca+2*i+1}, {sFlip} bitop3:{tt:#x}')
cm(0, 0, 0); xa(0); cm(0, 0, 1); xa(1); cm(1, 0, 0)
a(f'v_bitop3_b32 v{K_}, v{K_}, v{K_+1}, 1 bitop3:0x80')
cm(1, 0, 1)
a('s_waitcnt vmcnt(0)')
cm(0, 1, 0); xa(2); cm(0, 1, 1); xa(3)
cm(1, 1, 0)
a(f'v_bitop3_b32 v{K_}, v{K_}, v{K_+2}, v{K_+3} bitop3:0x80')
a(f'v_cmp_eq_u32 vcc, 0, v{K_}')
cm(1, 1, 1)
a('s_cbranch_vccnz L_poll1_re\nL_poll1_done:')
stamp('h1ok', True)
for hi in range(2):
    for i in range(4): a(f'v_cvt_pk_f16_f32 v{K_+4*hi+i}, v{Dm+8*hi+i}, v{Dm+8*hi+4+i}')
    for i in range(4): a(f'v_or_b32 v{K_+4*hi+i}, 1, v{K_+4*hi+i}')
    a(f'ds_write_b128 v{vRtW}, {vr(K_+4*hi)} offset:{2560*hi}')
a(f"""
s_waitcnt lgkmcnt(0)
s_barrier
ds_read_b128 {vr(T)}, v{vRtR}
ds_read_b128 {vr(T+4)}, v{vRtR2}
s_waitcnt lgkmcnt(1)
buffer_store_dwordx4 {vr(T)}, v{vH2st}, {SWS}, {sH2st} offen sc1
s_waitcnt lgkmcnt(0)
buffer_store_dwordx4 {vr(T+4)}, v{vH2st2}, {SWS}, {sH2st} offen sc1
""")
stamp('h2st', True)
CLN = f's_mov_b32 {sCl}, {OOB}' if opt('h3', 1) else f's_add_u32 {sCl}, {sCl}, {BUF}'
a(f"""
buffer_store_dwordx4 {vr(vZc)}, v{vH2st}, {SWS}, {sCl} offen sc1
buffer_store_dwordx4 {vr(vZc)}, v{vH2st2}, {SWS}, {sCl} offen sc1
{CLN}
s_mov_b32 {sSpin}, {SPIN}
s_add_u32 {sLayer}, {sLayer}, 1
{f's_mov_b32 m0, {sLayer}' if RP else ''}
s_add_u32 {sH2st}, {sH2st}, {BUF}
s_xor_b32 {sH1ld0}, {sH1ld0}, {H1STR}
s_xor_b32 {sH1ld1}, {sH1ld1}, {H1STR}
s_cmp_ge_u32 {sLayer}, 2
s_cselect_b32 {sTag}, 0, 1
s_cselect_b32 {sFlip}, -1, 0
s_cmp_eq_u32 {sLayer}, 1
s_cbranch_scc1 L_l0d
L_l0d_ret:
{'' if opt('noack2') else 's_waitcnt vmcnt(2)'}
""")
stamp('h2ack', True)
if opt('d2'): a(f's_sleep {opt("d2")}')
a('L_poll2:')
Lh = T+8; K2 = T+28
for u in range(4): a(f'buffer_load_dword v{Lh+16+u}, v{vH2ld5}, {SWS}, {sH2ld} offen offset:{1280*u} sc1')
for u in range(4): a(f'buffer_load_dwordx4 {vr(Lh+4*u)}, v{vH2ld}, {SWS}, {sH2ld} offen offset:{1280*u} sc1')
def and3(d, x, y, z): a(f'v_bitop3_b32 v{d}, v{x}, v{y}, {z if isinstance(z, str) else "v%d" % z} bitop3:0x80')
a(f's_sub_u32 {sSpin}, {sSpin}, 1\ns_cbranch_scc1 L_poll2_to\ns_waitcnt vmcnt(3)')
and3(K2, Lh+16, Lh+17, '1'); and3(K2+1, Lh+18, Lh+19, Lh); and3(K2, K2, Lh+1, Lh+2); and3(K2, K2, K2+1, Lh+3)
a(f'v_and_b32 v{Lh}, v{vMask0}, v{Lh}\ns_waitcnt vmcnt(2)')
and3(K2, K2, Lh+4, Lh+5); and3(K2, K2, Lh+6, Lh+7)
a(f'v_and_b32 v{Lh+4}, v{vMask0}, v{Lh+4}\nv_swap_b32 v{Lh+1}, v{Lh+4}\ns_waitcnt vmcnt(1)')
and3(K2, K2, Lh+8, Lh+9); and3(K2, K2, Lh+10, Lh+11)
a(f'v_and_b32 v{Lh+8}, v{vMask0}, v{Lh+8}\nv_swap_b32 v{Lh+2}, v{Lh+8}\nv_swap_b32 v{Lh+6}, v{Lh+9}\ns_waitcnt vmcnt(0)')
and3(K2, K2, Lh+12, Lh+13); and3(K2, K2, Lh+14, Lh+15)
a(f"""
v_and_b32 v{Lh+12}, v{vMask0}, v{Lh+12}
v_cmp_eq_u32 vcc, 0, v{K2}
v_swap_b32 v{Lh+3}, v{Lh+12}
s_cbranch_vccnz L_poll2_re
L_poll2_done:
""")
stamp('h2ok', True)
mfma(X+16, A3r, Lh+16, X+16)
a(f'v_swap_b32 v{Lh+7}, v{Lh+13}')
mfma(X, A3r, Lh, X)
a(f'v_swap_b32 v{Lh+11}, v{Lh+14}')
mfma(X+4, A3r, Lh+4, X+4)
a(f's_cmp_lt_u32 {sLayer}, {NLAYER}')
mfma(X+8, A3r, Lh+8, X+8); mfma(X+12, A3r, Lh+12, X+12)
a('s_cbranch_scc1 L_loop')
F = T
for kl in (4, 0, 1, 2, 3):
    for p in range(2): a(f'v_cvt_pk_bf16_f32 v{F+2*kl+p}, v{X+4*kl+2*p}, v{X+4*kl+2*p+1}')
    for p in range(2):
        a(f'ds_write_b16 v{vXT+kl}, v{F+2*kl+p} offset:{2560*p}')
        a(f'ds_write_b16_d16_hi v{vXT+kl}, v{F+2*kl+p} offset:{2560*p+1280}')
a('s_waitcnt lgkmcnt(0)\ns_barrier')
for i in range(3): a(f'ds_read_b128 {vr(T+12+4*i)}, v{vRtR} offset:{L_XT-L_RT+4096*i}')
for i in range(3): a(f's_waitcnt lgkmcnt({2-i})\nbuffer_store_dwordx4 {vr(T+12+4*i)}, v{vG+i}, {SO}, 0 offen{OF}')
def stamp_dump(hk):
    if hk: a(f's_memtime s[{60+2*nst.index("end")}:{61+2*nst.index("end")}]\ns_memrealtime s[{60+2*nst.index("rend")}:{61+2*nst.index("rend")}]\ns_waitcnt lgkmcnt(0)')
    a(f's_lshl_b32 s7, s2, 7\ns_add_u32 s7, s7, {STAMP_OFF}\nv_mov_b32 v1, 0\ns_mov_b64 exec, 1')
    for i in range(len(nst)): a(f'v_mov_b32 v2, s{60+2*i}\nbuffer_store_dword v2, v1, {SWS}, s7 offen offset:{4*i}')
    if opt('cnt'): a(f'v_mov_b32 v2, s86\nbuffer_store_dword v2, v1, {SWS}, s7 offen offset:120\nv_mov_b32 v2, s88\nbuffer_store_dword v2, v1, {SWS}, s7 offen offset:124')
if STAMPS:
    a('s_waitcnt vmcnt(0)'); stamp('end'); stamp('rend', real=True)
    a(f's_waitcnt lgkmcnt(0)\ns_cmp_lg_u32 {sW}, {opt("swave")}\ns_cbranch_scc1 L_end')
    stamp_dump(False)
if RP:
    if RP == 'end': a('s_waitcnt vmcnt(0)\ns_memrealtime s[62:63]')
    if RP == 'top': a(f's_mov_b32 s62, s{80+RPL}')
    if RP == 'h2ok': a(f's_mov_b32 s62, s{81+RPL}')
    a(f's_waitcnt lgkmcnt(0)\ns_cmp_lg_u32 {sW}, 0\ns_cbranch_scc1 L_end\ns_lshl_b32 s7, s2, 3\ns_add_u32 s7, s7, {STAMP_OFF}\nv_mov_b32 v2, s60\nv_mov_b32 v3, s62\ns_mov_b64 exec, 1\nbuffer_store_dwordx2 v[2:3], off, {SWS}, s7')
a('L_end:\ns_endpgm')
a('L_fix:\ns_nop 7')
mfma(T+24, DEL, Bo, None); mfma(T+28, DEL+4, Bo, None)
a('s_mov_b32 exec_lo, 0x00010001\ns_mov_b32 exec_hi, 0x00010001')
for p in range(2): a(f'v_pk_add_f32 {v2(D0+2*p)}, {v2(D0+2*p)}, {v2(T+24+2*p)}')
for p in range(2): a(f'v_pk_add_f32 {v2(DC+2*p)}, {v2(DC+2*p)}, {v2(T+28+2*p)}')
a(f's_mov_b64 exec, -1\nv_cvt_pk_f16_f32 v{W_}, v{D0}, v{D0+1}\ns_branch L_nofix')
a(f"""
L_l0b:
v_mov_b32 v{T+54}, {L_MODE}
ds_read_b32 v{T+55}, v{T+54} offset:{L_OWN-L_MODE}
ds_read_b32 v253, v252 offset:{L_EXP}
ds_read_b32 v{T+54}, v{T+54}
s_waitcnt lgkmcnt(0)
v_readfirstlane_b32 {sMode}, v{T+54}
s_branch L_l0b_ret
L_l0c:
s_cmp_lg_u32 {sMode}, 0
s_mov_b64 exec, 1
s_waitcnt vmcnt(0)
s_cbranch_scc1 L_l0c_slow
buffer_store_dword v{T+55}, off, {SWS}, s55
L_l0c_p:
s_mov_b64 exec, -1
L_l0c_poll:
buffer_load_dword v{T+54}, v252, {SWS}, s56 offen sc1
s_sub_u32 {sSpin}, {sSpin}, 1
s_cbranch_scc1 L_poll1_to
s_waitcnt vmcnt(0)
v_cmp_ne_u32 vcc, v{T+54}, v253
s_cbranch_vccz L_poll1
s_sleep {BK}
s_branch L_l0c_poll
L_l0c_slow:
buffer_store_dword v{T+55}, off, {SWS}, s55 sc1
s_branch L_l0c_p
L_l0d:
v_mov_b32 v{T+50}, {L_GO}
L_l0d_spin:
ds_read_b32 v{T+51}, v{T+50}
s_waitcnt lgkmcnt(0)
v_cmp_eq_u32 vcc, 0, v{T+51}
s_cbranch_vccnz L_l0d_spin
s_branch L_l0d_ret
L_st_slow:
buffer_store_dwordx4 {vr(Wo)}, v{vL16}, {SWS}, {sH1st} offen sc1
buffer_store_dwordx2 {v2(Wo+4)}, v{vH1s2}, {SWS}, {sH1st} offen sc1
s_branch L_cphase
L_poll1_re:
{CNT1}
s_sleep {BK}
s_branch L_poll1
L_poll2_re:
{CNT2}
s_sleep {BK}
s_branch L_poll2
L_poll1_to:
s_waitcnt vmcnt(0)
s_branch L_poll1_done
L_poll2_to:
s_waitcnt vmcnt(0)
s_branch L_poll2_done
""")
H = 8
def fhash(dst, src): a(f'v_mul_lo_u32 v{dst}, v{src}, s50\nv_add_u32 v{dst}, s51, v{dst}')
def hs_group(lbl, x3, pre=False):
    a(f"""
s_mov_b32 exec_hi, 0
s_mov_b32 {sSpin}, {SPIN}
{'s_branch ' + lbl + '_chk' if pre else ''}
{lbl}:
s_sleep {BK}
buffer_load_dwordx3 v[{H}:{H+2}], v{vL16}, {SWS}, s54 offen sc1
s_sub_u32 {sSpin}, {sSpin}, 1
s_cbranch_scc1 {lbl}_to
s_waitcnt vmcnt(0)
{lbl}_chk:
""")
    fhash(H, H)
    a(f"""
v_xor_b32 v{H}, v{H}, v{H+(2 if x3 else 1)}
v_cmp_lt_u32 vcc, 15, v{H}
s_cbranch_vccnz {lbl}
s_branch {lbl}_done
{lbl}_to:
s_waitcnt vmcnt(0)
{lbl}_done:
v_lshrrev_b32 v{H+3}, 2, v{vL16}
ds_write_b32 v{H+3}, v{H+1} offset:{L_EXP}
v_and_b32 v{H+3}, 15, v{H+1}
v_cmp_ne_u32 vcc, s6, v{H+3}
s_mov_b64 exec, -1
""")
def hs_all(lbl, pre=False):
    a(f's_mov_b32 {sSpin}, {SPIN}')
    if pre: a(f's_branch {lbl}_w')
    a(f'{lbl}:')
    for i, r in enumerate(('s92', 's93', 's95', 's96')): a(f'buffer_load_dwordx2 {v2(H+8+2*i)}, v{vL16}, {SWS}, {r} offen sc1')
    a(f's_sub_u32 {sSpin}, {sSpin}, 1\ns_cbranch_scc1 {lbl}_done\n{lbl}_w:\ns_waitcnt vmcnt(0)')
    for i in range(4): fhash(H+8+2*i, H+8+2*i)
    for i in range(4): a(f'v_xor_b32 v{H+8+2*i}, v{H+8+2*i}, v{H+9+2*i}')
    a(f"""
v_or3_b32 v{H}, v{H+8}, v{H+10}, v{H+12}
v_or_b32 v{H}, v{H}, v{H+14}
v_cmp_lt_u32 vcc, 15, v{H}
s_cbranch_vccz {lbl}_done
s_sleep {BK}
s_branch {lbl}
{lbl}_done:
s_waitcnt vmcnt(0)
""")
def flag_store(v, soff, off):
    a(f's_mov_b64 exec, 1\ns_waitcnt vmcnt(0)\nbuffer_store_dword v{v}, off, {SWS}, {soff} offset:{off} sc1\ns_mov_b64 exec, -1')
def hstamp(n):
    if opt('hstamp'): a(f's_memtime s[{60+2*nst.index(n)}:{61+2*nst.index(n)}]')
a('L_hk:')
if opt('prio', 1): a('s_setprio 3')
for i in range(4): a(f'v_mov_b32 v{vZ+i}, 0')
a(f"""
s_lshl_b32 {sGi}, {sSig}, 5
s_add_u32 {sGi}, {sGi}, {sM}
s_lshl_b32 s97, {sGi}, 4
s_add_u32 s97, s97, {FLAGS}
s_mul_i32 s94, {sGi}, 5120
s_add_u32 {sCl}, s94, {H2BASE+BUF}
s_add_u32 s94, s94, {H1BASE}
v_lshlrev_b32 v{H+18}, 8, v{vL16}
s_mov_b64 exec, 3
s_waitcnt lgkmcnt(0)
{WSADD}
buffer_load_dword v{H+16}, v{H+18}, {SWS}, s97 offen
s_mov_b64 exec, -1
v_lshlrev_b32 v{H+4}, 3, v{vL16}
v_min_u32 v{H+21}, 4992, v{H+4}
s_lshl_b32 s7, {sSig}, 9
s_add_u32 s7, s7, {HF}
{'' if opt('nopf') else f'buffer_load_dword v{H+27}, v{H+21}, {SWS}, s94 offen'}
v_min_u32 v{H+21}, 384, v{H+4}
buffer_load_dword v{H+28}, v{H+21}, {SWS}, s7 offen
""")
a('L_hk2:')
if opt('lowp', 1): a('s_setprio 0')
a(f"""
s_add_u32 s98, s94, {H1STR}
s_getreg_b32 s6, hwreg(HW_REG_XCC_ID, 0, 4)
s_mov_b32 s92, {FLAGS+0x1000}
s_mov_b32 s93, {FLAGS+0x1400}
s_mov_b32 s95, {FLAGS+0x1800}
s_mov_b32 s96, {FLAGS+0x1c00}
s_mov_b32 s50, 0x9e3779b1
s_mov_b32 s51, 0x7f4a7c15
v_mov_b32 v{H+1}, {L_MODE}
ds_write_b32 v{H+1}, v{vZ} offset:4
s_lshr_b32 s52, {sM}, 3
s_lshl_b32 s52, s52, 8
s_add_u32 s52, s52, {sSig}
s_mul_i32 s52, s52, 1280
s_and_b32 s53, {sM}, 7
s_mul_i32 s53, s53, 160
s_add_u32 s52, s52, s53
s_add_u32 s52, s52, {H2BASE}
s_movk_i32 s53, 10080
s_lshl_b32 s54, {sSig}, 9
s_add_u32 s54, s54, {FLAGS}
""")
for i in range(5):
    a(f"""v_add_u32 v{H+22+i}, {1024*i}, v{vL16}
v_mul_u32_u24 v{H+21}, 205, v{H+22+i}
v_lshrrev_b32 v{H+21}, 15, v{H+21}
v_mad_u32_u24 v{H+22+i}, v{H+21}, s53, v{H+22+i}""")
hstamp('top')
a(f's_waitcnt vmcnt({1 if opt("nopf") else 2}) lgkmcnt(0)')
fhash(H+5, H+16)
a(f'v_and_or_b32 v{H+5}, v{H+5}, -16, s6')
def flag_lane(lane, off):
    a(f's_mov_b64 exec, {1 << lane}\ns_waitcnt vmcnt(0)\nbuffer_store_dword v{H+5}, v{H+18}, {SWS}, s97 offen offset:{off} sc1\ns_mov_b64 exec, -1')
def hs_issue():
    for i, r in enumerate(('s92', 's93', 's95', 's96')): a(f'buffer_load_dwordx2 {v2(H+8+2*i)}, v{vL16}, {SWS}, {r} offen sc1')
hstamp('bar1')
a(f's_mov_b64 exec, 1\nbuffer_store_dword v{H+5}, v{H+18}, {SWS}, s97 offen offset:4 sc1\nv_mov_b32 v{H+1}, {L_OWN}\nds_write_b32 v{H+1}, v{H+5}\ns_mov_b64 exec, -1')
hstamp('s1w')
a(f'v_lshlrev_b32 v{H+19}, 17, v{vL16}\ns_lshl_b32 s7, s2, 7\ns_mov_b64 exec, 3\nbuffer_load_dword v{H+20}, v{H+19}, {SO}, s7 offen\ns_mov_b64 exec, -1')
if opt('wst', 0): a(f's_mov_b64 exec, 62\nbuffer_load_dword v{H+29}, v{H+19}, {SWS}, s7 offen\ns_mov_b64 exec, -1')
NE = opt('early', 0); NT_ = 3 + opt('more', 0)
def cl(k):
    if k == 0:
        for i in range(5): a(f'buffer_store_dwordx4 {vr(vZ)}, v{H+22+i}, {SWS}, s52 offen sc1')
    elif k == 2: clean5('s98', '')
    else: clean5(sCl); a(f's_add_u32 {sCl}, {sCl}, {BUF}')
for k in range(NE): cl(k)
a(f"""
s_barrier
s_barrier
s_mov_b32 exec_hi, 0
buffer_load_dwordx3 v[{H}:{H+2}], v{vL16}, {SWS}, s54 offen sc1
s_mov_b64 exec, -1
""")
CL = opt('clate', 3)
for k in range(NE, CL): cl(k)
a('s_barrier')
for k in range(max(NE, CL), 3): cl(k)
a(f's_mov_b32 exec_hi, 0\ns_waitcnt vmcnt({5*(3-NE)})')
hstamp('bar2')
hs_group('L_hs', False, True)
a(f's_cmp_lg_u32 vcc_lo, 0\ns_cselect_b32 {sMode}, 1, {FORCE_SLOW}')
hstamp('h1st')
a(f"""
v_mov_b32 v{H}, {sMode}
v_mov_b32 v{H+1}, {L_MODE}
ds_write_b32 v{H+1}, v{H}
s_cmp_eq_u32 {sMode}, 0
s_cbranch_scc1 L_hk_go
""")
clean5('s98')
a('L_hk_go:\ns_waitcnt lgkmcnt(0)\ns_barrier')
flag_lane(1, 4)
a('s_barrier')
hs_all('L_hs2')
a(f'v_mov_b32 v{H}, 1\nv_mov_b32 v{H+1}, {L_GO}\nds_write_b32 v{H+1}, v{H}')
hstamp('h1ok')
a('s_barrier')
if opt('h3', 1):
    a(f's_add_u32 {sCl}, {sCl}, {BUF}'); clean5(sCl)
a(f"""
v_add_u32 v{H+16}, 1, v{H+16}
s_mov_b64 exec, 3
s_barrier
s_waitcnt vmcnt(0)
s_barrier
s_barrier
buffer_store_dword v{H+16}, v{H+18}, {SWS}, s97 offen{' sc1' if opt('bsc1', 1) else ''}
s_barrier
s_barrier
""")
if opt('hstamp'): stamp_dump(True)
a('s_endpgm\nL_codeend:')

if opt('hfront', 1):
    li = [k for k, i in enumerate(a.ins) if i.text in ('L_hk:', 'L_hk2:')]
    hk = a.ins[li[0]:li[1]]
    rest = a.ins[:li[0]] + a.ins[li[1]:]
    b = [k for k, i in enumerate(rest) if i.text == 's_cbranch_scc1 L_hk'][0]
    a.ins = rest[:b] + [Ins('s_cbranch_scc0 L_main')] + hk + [Ins('s_branch L_hk2'), Ins('L_main:')] + rest[b+1:]
if opt('nodma'): a.ins = [i for i in a.ins if not i.op.startswith('global_load_lds')]
if opt('noclean'):
    import re as _re
    keep = []
    for i in a.ins:
        if i.op == 'buffer_store_dwordx4' and i.toks[0] in (vr(vZ), vr(vZc)):
            keep.append(Ins(_re.sub(r's\[16:19\], s\d+', 's[16:19], s100', i.text)))
        else: keep.append(i)
    a.ins = keep
    k = [j for j, i in enumerate(a.ins) if i.text.startswith('s_mov_b32 s19')][0]
    a.ins.insert(k, Ins(f's_mov_b32 s100, {OOB}'))
NT = opts.get('nt', '')
def addnt(pred):
    for k, i in enumerate(a.ins):
        if pred(i): a.ins[k] = Ins(i.text + ' nt')
if 't' in NT: addnt(lambda i: i.op.startswith('global_load_lds') or i.op in ('global_load_dwordx3', 'global_load_dwordx4'))
if 'c' in NT: addnt(lambda i: i.op == 'global_load_dword')
if 'p' in NT: addnt(lambda i: i.op == 'buffer_load_dword' and i.toks[0] in (f'v{H+27}', f'v{H+28}'))
if 'e' in NT: addnt(lambda i: i.op == 'buffer_load_dword' and i.toks[0] in (f'v{H+16}', f'v{H+20}'))
if 'z' in NT: addnt(lambda i: i.op == 'buffer_store_dwordx4' and i.toks[0] in (vr(vZ), vr(vZc)) and 'sc1' in i.text)
if opt('align', 1): print('align', align_pass(a, KNAME + ':\n'))
hdr = open('interleave_layers__spectral_fnet__spectral_fnet__prompt.s.ref').read().split('; Override')[0]
out = hdr + ('; STAMPS ' + ' '.join(nst) + '\n' if STAMPS else '') + f'; @launch grid=(256,1,1) block=(320,1,1) lds={LDS_BYTES}\n'
out += f'.amdgcn_target "amdgcn-amd-amdhsa--gfx950"\n.text\n.globl {KNAME}\n.p2align 8\n.type {KNAME},@function\n{KNAME}:\n'
out += a.text()
if RP:
    out = out.replace('; @launch grid=(256,1,1) block=(320,1,1) lds=', f'; @launch kernel={KNAME} grid=(256,1,1) block=(320,1,1) lds=').replace('\n.amdgcn_target', '\n; @launch kernel=reveal_kernel grid=(1,1,1) block=(256,1,1) lds=64\n.amdgcn_target', 1)
    out += f'''.globl reveal_kernel
.p2align 8
.type reveal_kernel,@function
reveal_kernel:
  s_cmp_lg_u32 s2, 0
  s_cbranch_scc1 LR_end
  s_load_dwordx2 s[8:9], s[0:1], 96
  s_mov_b32 s10, {WS_BYTES}
  s_mov_b32 s11, 0x20000
  s_mov_b32 s3, {STAMP_OFF}
  v_lshlrev_b32 v1, 3, v0
  v_mov_b32 v4, 0
  v_mov_b32 v5, -1
  v_mov_b32 v6, {0 if opt('rpmax', 1) else -1}
  ds_write_b32 v4, v5
  ds_write_b32 v4, v6 offset:4
  s_waitcnt lgkmcnt(0)
  buffer_load_dwordx2 v[2:3], v1, s[8:11], s3 offen
  s_barrier
  s_waitcnt vmcnt(0)
  ds_min_u32 v4, v2
  ds_{'max' if opt('rpmax', 1) else 'min'}_u32 v4, v3 offset:4
  s_waitcnt lgkmcnt(0)
  s_barrier
  ds_read_b64 v[2:3], v4
  s_waitcnt lgkmcnt(0)
  v_sub_u32 v2, v3, v2
  v_min_u32 v2, 5000, v2
  v_mul_u32_u24 v2, 10, v2
  s_memrealtime s[12:13]
  v_readfirstlane_b32 s16, v2
  s_waitcnt lgkmcnt(0)
LR_spin:
  s_memrealtime s[14:15]
  s_waitcnt lgkmcnt(0)
  s_sub_u32 s17, s14, s12
  s_cmp_lt_u32 s17, s16
  s_cbranch_scc1 LR_spin
LR_end:
  s_endpgm
'''
out += f'''.section .rodata,"a"
.p2align 6
.amdhsa_kernel {KNAME}
  .amdhsa_next_free_vgpr 256
  .amdhsa_next_free_sgpr 102
  .amdhsa_accum_offset 256
  .amdhsa_group_segment_fixed_size 0
  .amdhsa_kernarg_size 104
  .amdhsa_user_sgpr_count 2
  .amdhsa_user_sgpr_kernarg_segment_ptr 1
  .amdhsa_system_sgpr_workgroup_id_x 1
.end_amdhsa_kernel
''' + '''.p2align 6
.amdhsa_kernel reveal_kernel
  .amdhsa_next_free_vgpr 16
  .amdhsa_next_free_sgpr 32
  .amdhsa_accum_offset 16
  .amdhsa_group_segment_fixed_size 0
  .amdhsa_kernarg_size 104
  .amdhsa_user_sgpr_count 2
  .amdhsa_user_sgpr_kernarg_segment_ptr 1
  .amdhsa_system_sgpr_workgroup_id_x 1
.end_amdhsa_kernel
''' * (1 if RP else 0) + '''.p2align 10
tbl:
'''
for f in blocks:
    for i in range(0, 256, 8): out += '.long ' + ','.join(f'{int(x):#x}' for x in f[i:i+8]) + '\n'
open(sys.argv[1], 'w').write(out)
print('instrs', len(a.ins), 'nops inserted', a.nops, 'table blocks', len(blocks), 'bytes', len(out))
```

```python
import sys, struct
import numpy as np
from design import *
from asmlib import Asm, align_pass, Ins

KNAME = "interleave_layers__spectral_fnet__spectral_fnet__prompt_kernel"
opts = dict(a.split('=') for a in sys.argv[2:] if '=' in a)
def opt(k, d=0): return int(opts.get(k, d))
STAMPS = opt('stamps'); FORCE_SLOW = opt('slow'); NLAYER = opt('layers', 4); SPIN = opt('spin', 50000); BK = opt('bk', 1); SLAYER = opt('slayer')
SST = opt('sstart')
def f2u(f): return struct.unpack('<I', struct.pack('<f', f))[0]
BUF = 0x200000 if opt('wst', 0) else 1310720
FLAGS = 4096; H1BASE = 0x40000; H1STR = 0x200000; H2BASE = 0x410000; WS_BYTES = H2BASE + 3*BUF + 1310720
STAMP_OFF = WS_BYTES
if STAMPS or opts.get('rp'): WS_BYTES += 256*128
L_V = 0; L_ST = 9600; L_MODE = 9856; L_GO = 9860; L_OWN = 9864; L_JUNK = 9872; L_EXP = 15104; HF = FLAGS + 0x2000; L_RT = 9984; L_XT = 15360; L_TB = 25600; L_CM = L_TB + 16*1024; LDS_BYTES = L_CM + 8192
OOB = 0x40000000
WB = ''
if opt('wb') == 1: WB = 's_barrier\ns_barrier\ns_barrier\nbuffer_wbl2 sc1\ns_waitcnt vmcnt(0)'
if opt('wb') == 2: WB = 's_cmp_lg_u32 s5, 0\ns_cbranch_scc1 L_end\ns_barrier\ns_barrier\ns_barrier\nbuffer_wbl2 sc1\ns_waitcnt vmcnt(0)'
if opt('wb') == 4: WB = 's_cmp_lg_u32 s5, 0\ns_cbranch_scc1 L_end\ns_barrier\ns_barrier\ns_barrier\nbuffer_wbl2 sc1\ns_barrier\ns_waitcnt vmcnt(0)'
if opt('wb') == 5: WB = 's_cmp_lg_u32 s5, 0\ns_cbranch_scc1 L_end\ns_barrier\nbuffer_wbl2 sc1\ns_barrier\ns_barrier\nbuffer_wbl2 sc1\ns_barrier\ns_waitcnt vmcnt(0)'
if opt('wb') == 3: WB = 's_cmp_lg_u32 s5, 0\ns_cbranch_scc1 L_end\ns_barrier\nbuffer_wbl2 sc1\ns_barrier\ns_barrier\ns_waitcnt vmcnt(0)'
CNT1 = 's_lshl_b32 s7, s29, 3\ns_lshl_b32 s7, 1, s7\ns_add_u32 s86, s86, s7' if opt('cnt') else ''
CNT2 = 's_lshl_b32 s7, s29, 3\ns_sub_u32 s7, s7, 8\ns_lshl_b32 s7, 1, s7\ns_add_u32 s88, s88, s7' if opt('cnt') else ''
XF = ' ' + opts.get('xf', 'nt').replace('+', ' ')
OF = ' ' + opts.get('of', 'nt').replace('+', ' ')
H1F = ' ' + opts['h1f'] if 'h1f' in opts else ''
WSADD = f's_add_u32 s16, s16, {opt("wsoff") << 20}\ns_addc_u32 s17, s17, 0' if opt('wsoff') else ''
def vaddr(col): return (col % 40)*80 + (col//40)*4
def opA(M):
    h = M.astype(np.float16).view(np.uint16).astype(np.uint32)
    out = np.zeros((64, 4), np.uint32)
    for l in range(64):
        r = h[l % 16, 8*(l//16):8*(l//16)+8]
        out[l] = r[0::2] | (r[1::2] << 16)
    return out
def opB(N): return opA(N.T)
blocks = []
def add(b): blocks.append(np.asarray(b, np.uint32).reshape(256)); return len(blocks)-1
n_ = S1_mats(False); s_ = S1_mats(True)
def a3_idx(sig, m):
    g = unit_g(sig, m)
    if g == 0: return 9
    if g == 128: return 8
    return (g >> 7) + (0 if g % 4 == 1 else 4)
a3 = {}
for sig in range(8):
    for m in range(32):
        M = A3(sig, m)*HSCALE; i = a3_idx(sig, m)
        if i in a3: assert np.allclose(a3[i], M), (sig, m)
        a3[i] = M
for M in (n_[0], n_[1], n_[2], E_mat(False)): add(opA(M))
T_A3L = add(opA(a3[0]))
Bre, Bim = B1_mats(); T_B1 = add(opB(Bre)); add(opB(Bim))
T_A2 = len(blocks)
M = A2_mats6(0)/HSCALE; M2 = A2_mats6(20)/HSCALE
sgn = np.array([(-1.0)**((k % 8)//2) for k in range(32)])
assert np.allclose(M2, M*sgn)
for blk in range(3):
    for ch in range(3): add(opA(M[blk, ch]))
assert len(blocks) == 16
T_S1S = len(blocks)
for M in (s_[0], s_[1], s_[2], E_mat(True)): add(opA(M))
T_DEL = add(opA(s_[3])); add(opA(s_[4]))
T_A3 = len(blocks)
for i in range(10): add(opA(a3[i]))
T_ADDR = len(blocks)
at = np.zeros((2, 256, 4), np.uint32)
for ty, (sig, m) in enumerate(((2, 1), (1, 0))):
    for tid in range(256):
        w, l = divmod(tid, 64); n, mq = l % 16, l//16
        v = [vaddr(acol(sig, m, mq//2, 64*w+4*n+2*bop+(mq % 2))) for bop in range(2)]
        v += [6400 + vaddr(acol(sig, m, mq % 2, 64*w+4*n+2*(mq//2)+sub)) for sub in range(2)]
        k5 = 256 + 16*w + n
        if mq < 2: v += [vaddr(acol(sig, m, mq, k5)), 3200 + vaddr(acol(sig, m, mq, k5))]
        elif mq == 2: v += [6400 + vaddr(acol(sig, m, 0, k5)), 6400 + vaddr(acol(sig, m, 1, k5))]
        else: v += [L_JUNK + 4*n, L_JUNK + 4*n]
        at[ty, tid, :3] = [v[0] | (v[1] << 16), v[2] | (v[3] << 16), v[4] | (v[5] << 16)]
for i in range(8): add(at.reshape(-1)[256*i:256*i+256])
for i in range(640): assert (i*205) >> 14 == i//80
for i in range(320): assert (i*205) >> 11 == i//10

vL16, vH1s2, vH2ld, vH2ld5, vC1ld, vRtW, vRtR, vRtR2, vH2st, vH2st2, vStR, vStW = range(1, 13)
vVrd, vVrd2, vEps = 13, 14, 15
vV = 16
vXT = 22
vMask0 = 27; vG = 28
vTB = 31
vZc = 248
X = 32
A3r = 52; S1r = 56; B1r = 72; TWc = 80; TWs = 92; A2r = 104; CM = 140; DEL = 172
Bo = 180
T = 192
vZ = 4
def vr(b, n=4): return f'v[{b}:{b+n-1}]'
def v2(b): return f'v[{b}:{b+1}]'
sW, sSig, sM, sG, sType, sLayer, sMode = 's3', 's4', 's5', 's26', 's27', 's29', 's30'
sH1st, sH1ld0, sH1ld1, sH2st, sH2ld, sTag, sFlip, sSpin = 's31', 's32', 's33', 's34', 's35', 's36', 's37', 's38'
sCl, sGi, sInv, sFix = 's44', 's46', 's40', 's41'
sSlot = 's[42:43]'
SX, SO, SWS, STB = 's[8:11]', 's[12:15]', 's[16:19]', 's[24:25]'
HW = 4
a = Asm()
nst = []
RP = opts.get('rp'); RPL = opt('rpl')
def stamp(name, inloop=False, real=False):
    if RP:
        if name == 'start': a('s_memrealtime s[60:61]')
        if name == RP:
            if inloop: a('s_memrealtime s[90:91]\ns_waitcnt lgkmcnt(0)\ns_movreld_b32 s80, s90')
            else: a('s_memrealtime s[62:63]')
        return
    if SST and inloop and name not in ('top', 'bar1'): return
    if opt('span') and name not in ('start', 'rstart', 'end', 'rend'): return
    if STAMPS:
        i = len(nst); nst.append(name)
        assert i < 16
        ins = f's_{"memrealtime" if real or opt("rt") else "memtime"} s[{60+2*i}:{61+2*i}]'
        a(ins)
LATE = ('h2ack', 'h2ok')
def sst(name):
    if SST or RP: stamp(name)
def clean5(soff, fl=' sc1'):
    for i in range(4): a(f'buffer_store_dwordx4 {vr(vZ)}, v{vL16}, {SWS}, {soff} offen offset:{1024*i}{fl}')
    a(f's_add_u32 s7, {soff}, 4096\nbuffer_store_dwordx4 {vr(vZ)}, v{vL16}, {SWS}, s7 offen{fl}')
def mfma(d, A, B, C): a(f'v_mfma_f32_16x16x32_f16 {vr(d)}, {vr(A)}, {vr(B)}, {"0" if C is None else vr(C)}')

stamp('start'); stamp('rstart', real=True)
n_v, kq_v = T+10, T+11
a(f"""
s_load_dwordx2 s[16:17], s[0:1], 96
s_load_dwordx2 s[8:9], s[0:1], 0
s_load_dwordx2 s[12:13], s[0:1], 80
v_lshrrev_b32 v{T+1}, 6, v0
s_cmp_ge_u32 s2, 256
s_cbranch_scc1 L_end
""")
if opt('cpref', 1):
    a(f"""
s_getpc_b64 s[24:25]
v_lshlrev_b32 v{T+2}, 7, v0
v_min_u32 v{T+2}, L_codeend-{KNAME}-64, v{T+2}
global_load_dword v255, v{T+2}, s[24:25]
""")
a(f"""
v_readfirstlane_b32 {sW}, v{T+1}
v_and_b32 v{T}, 63, v0
s_and_b32 {sSig}, s2, 7
s_lshr_b32 {sM}, s2, 3
v_lshlrev_b32 v{vL16}, 4, v{T}
s_mov_b32 s18, {WS_BYTES}
s_mov_b32 s19, 0x20000
s_mov_b32 s14, 2621440
s_mov_b32 s15, 0x20000
s_cmp_eq_u32 {sW}, {HW}
s_cbranch_scc1 L_hk
s_lshl_b32 s6, {sSig}, 2
s_lshr_b32 s6, 0x9654d210, s6
s_and_b32 s6, s6, 15
s_lshl_b32 {sG}, {sM}, 4
s_add_u32 {sG}, {sG}, s6
s_cmp_eq_u32 {sSig}, 0
s_cselect_b32 s7, 248, 0
s_cmp_ge_u32 {sM}, 16
s_cselect_b32 s7, s7, 0
s_sub_u32 {sG}, {sG}, s7
s_and_b32 {sType}, {sG}, 1
""")
a(f"""
s_getpc_b64 s[24:25]
s_add_u32 s24, s24, tbl@rel32@lo+4
s_addc_u32 s25, s25, tbl@rel32@hi+12
s_lshr_b32 s7, {sG}, 7
s_lshl_b32 s94, {sType}, 2
s_sub_u32 s7, s7, s94
s_add_u32 s7, s7, {4 + T_A3}
s_cmp_eq_u32 {sG}, 128
s_cselect_b32 s7, {8 + T_A3}, s7
s_cmp_eq_u32 {sG}, 0
s_cselect_b32 s7, {9 + T_A3}, s7
s_cselect_b32 s94, {T_S1S*1024}, 0
s_lshl_b32 s7, s7, 10
s_lshl_b32 s95, {sW}, 12
s_cmp_eq_u32 {sW}, 0
s_cselect_b32 s94, s94, s95
s_cmp_eq_u32 {sW}, 1
s_cselect_b32 s7, s7, s94
s_add_u32 m0, s95, {L_TB}
v_add_u32 v{T+2}, s94, v{vL16}
v_add_u32 v{T+3}, s7, v{vL16}
s_lshl_b32 s7, {sType}, 12
s_add_u32 s7, s7, {T_ADDR*1024}
global_load_lds_dwordx4 v{T+3}, {STB}
global_load_lds_dwordx4 v{T+2}, {STB} offset:1024
global_load_lds_dwordx4 v{T+2}, {STB} offset:2048
global_load_lds_dwordx4 v{T+2}, {STB} offset:3072
v_lshl_add_u32 v{T+2}, v0, 4, s7
global_load_dwordx3 v[{vV}:{vV+2}], v{T+2}, {STB}
s_or_b32 {sFix}, s2, {sW}
""")
a(f"""
s_cmp_lg_u32 {sFix}, 0
s_cbranch_scc1 L_nodel
v_add_u32 v{T+2}, {T_DEL*1024}, v{vL16}
global_load_dwordx4 {vr(DEL)}, v{T+2}, {STB}
global_load_dwordx4 {vr(DEL+4)}, v{T+2}, {STB} offset:1024
L_nodel:
""")
a(f"""
s_sub_u32 s92, 0, {sG}
s_and_b32 s92, s92, 511
s_cmp_eq_u32 {sG}, 0
s_cselect_b32 s92, 256, s92
s_mul_i32 s92, s92, 1280
s_mul_i32 s93, {sG}, 1280
s_sub_u32 s92, s92, s93
s_sub_u32 s92, s92, {4*655360}
s_mov_b32 s10, 2621440
s_mov_b32 s11, 0x20000
s_mov_b32 s96, 0x9fb00
v_lshlrev_b32 v{vRtR}, 4, v0
""")
for i in range(3):
    a(f"""v_add_u32 v{T+12}, {256*i}, v0
v_mul_u32_u24 v{T+12}, 205, v{T+12}
v_lshrrev_b32 v{T+12}, 14, v{T+12}
v_mov_b32 v{T+13}, s92
v_cmp_le_u32 vcc, 4, v{T+12}
v_mad_u32_u24 v{T+12}, v{T+12}, s96, v{vRtR}
v_cndmask_b32 v{T+13}, 0, v{T+13}, vcc
v_add3_u32 v{vG+i}, v{T+12}, v{T+13}, s93""".replace(f'v_add_u32 v{T+12}, 0, v0\nv_mul_u32_u24 v{T+12}, 205, v{T+12}', f'v_mul_u32_u24 v{T+12}, 205, v0'))
    if i < 2: a(f's_add_u32 s93, s93, 4096')
a(f"""
""")
sst('prek')
a(f"""
s_waitcnt lgkmcnt(0)
s_lshl_b32 s7, {sW}, 10
s_add_u32 m0, s7, {L_XT}
{WSADD or 's_nop 1'}
buffer_load_dwordx4 v{vG}, {SX}, 0 offen{XF} lds
s_add_u32 m0, s7, {L_XT+4096}
s_cmp_ge_u32 {sW}, 2
buffer_load_dwordx4 v{vG+1}, {SX}, 0 offen{XF} lds
s_cbranch_scc1 L_nox2
s_add_u32 m0, s7, {L_XT+8192}
s_nop 0
buffer_load_dwordx4 v{vG+2}, {SX}, 0 offen{XF} lds
s_branch L_x2
L_nox2:
v_mov_b32 v{vG+2}, {OOB}
buffer_load_dword v254, v{vG+2}, {SX}, 0 offen
L_x2:
""")
sst('xiss')
sst('dma')
a(f"""
v_and_b32 v{n_v}, 15, v0
v_bfe_u32 v{kq_v}, v0, 4, 2
s_mul_i32 s94, {sType}, 320
v_lshrrev_b32 v{T+13}, 1, v{kq_v}
v_mul_u32_u24 v{T+14}, s94, v{T+13}
s_lshl_b32 s92, {sW}, 5
v_add3_u32 v{T+12}, v{n_v}, v{T+14}, s92
s_and_b32 s92, {sW}, 1
s_lshl_b32 s92, s92, 3
s_lshr_b32 s93, {sW}, 1
s_lshl_b32 s93, s93, 5
s_add_u32 s92, s92, s93
s_add_u32 s92, s92, 256
v_lshrrev_b32 v{T+17}, 1, v{n_v}
v_and_b32 v{T+18}, 1, v0
v_add3_u32 v{T+17}, v{T+17}, v{T+14}, s92
v_lshl_add_u32 v{T+17}, v{T+18}, 4, v{T+17}
s_xor_b32 s94, {sType}, 1
v_and_b32 v{T+13}, s94, v{T+13}
v_xor_b32 v{T+13}, v{T+13}, v{kq_v}
v_add_u32 v{T+14}, 16, v{T+12}
v_and_b32 v{T+13}, 1, v{T+13}
v_add_u32 v{T+15}, 128, v{T+12}
v_cmp_eq_u32 vcc, 1, v{T+13}
v_add_u32 v{T+16}, 144, v{T+12}
s_mul_i32 s94, s94, 320
""")
ecol = [T+12, T+14, T+15, T+16, T+17]
for kl in range(5): a(f'v_sub_u32 v{T+18+kl}, 640, v{ecol[kl]}')
for kl in range(5): a(f'v_cndmask_b32 v{vXT+kl}, v{ecol[kl]}, v{T+18+kl}, vcc')
a(f"""
v_cmp_gt_u32 vcc, 2, v{kq_v}
v_mov_b32 v{T+17}, s94
v_and_b32 v{T+13}, 1, v{kq_v}
v_cndmask_b32 v{T+17}, 0, v{T+17}, vcc
v_cmp_eq_u32 vcc, 0, v{T+12}
v_mul_u32_u24 v{T+9}, 0x1400, v{T+13}
v_add_u32 v{T+14}, {L_XT}, v{T+9}
v_cndmask_b32 v{vXT}, v{vXT}, v{T+17}, vcc
v_cmp_ne_u32 vcc, 0, v{vXT}
""")
for kl in range(5): a(f'v_lshl_add_u32 v{vXT+kl}, v{vXT+kl}, 1, v{T+14}')
a(f'v_cndmask_b32 v{vMask0}, 0, -1, vcc')
for i in range(20): a(f'v_mov_b32 v{X+i}, 0')
for i in range(4): a(f'v_mov_b32 v{vZc+i}, 0')
a(f"""
s_lshr_b32 s95, {sM}, 3
s_lshl_b32 s7, s95, 2
s_lshr_b32 s7, 0x1120, s7
s_and_b32 s7, s7, 3
s_add_u32 s96, s6, 256
s_cmp_eq_u32 {sSig}, 0
s_cselect_b32 s96, 8, s96
s_lshl_b32 s94, {sW}, 4
s_add_u32 s6, s6, s94
s_add_u32 s96, s96, s94
v_lshl_add_u32 v{T+13}, v{n_v}, 2, s7
v_lshl_add_u32 v{T+14}, v{kq_v}, 6, s6
v_lshl_add_u32 v{T+15}, v{kq_v}, 6, s96
v_add_u32 v{T+12}, 64, v{T+13}
s_mov_b32 s94, {f2u(1/2048):#x}
""")
G = T+24
for hi in range(2):
    for ch in range(2): a(f'v_mul_u32_u24 v{G+2*(2*hi+ch)}, v{T+13-hi}, v{T+14+ch}')
for k in range(4): a(f'v_and_b32 v{G+2*k}, 0x7ff, v{G+2*k}')
for k in range(4): a(f'v_cvt_f32_u32 v{G+2*k}, v{G+2*k}')
for k in range(4): a(f'v_mul_f32 v{G+2*k}, s94, v{G+2*k}')
for k in range(4): a(f'v_sin_f32 v{G+2*k+1}, v{G+2*k}\nv_cos_f32 v{G+2*k}, v{G+2*k}')
for k in range(4): a(f'v_cvt_pk_f16_f32 v{G+8+2*k}, v{G+2*k}, v{G+2*k+1}\nv_cvt_pk_f16_f32 v{G+9+2*k}, -v{G+2*k+1}, v{G+2*k}')
a(f's_cmp_lg_u32 {sSig}, 0\ns_cbranch_scc1 L_cm_done')
for hi in range(2):
    b = G+8+4*hi
    a(f'v_mov_b32 v{b+1}, 0\nv_mov_b32 v{b+3}, v{b+2}\nv_mov_b32 v{b+2}, 0')
a(f"""
v_and_b32 v{T+17}, 1, v0
v_lshlrev_b32 v{T+17}, 4, v{T+17}
v_mov_b32 v{T+18}, 0x3c00
v_lshlrev_b32 v{T+17}, v{T+17}, v{T+18}
v_cmp_gt_u32 vcc, 16, v0
v_cndmask_b32 v{G+8}, v{G+8}, v{T+17}, vcc
v_cndmask_b32 v{G+12}, v{G+12}, v{T+17}, vcc
L_cm_done:
""")
sst('cm')
a(f'''
v_lshlrev_b32 v{T+12}, 2, v{kq_v}
v_mul_u32_u24 v{T+12}, v{T+12}, v{n_v}
v_cvt_f32_u32 v{T+12}, v{T+12}
v_cvt_f32_u32 v{T+13}, v{n_v}
v_mul_f32 v{T+12}, {f2u(1/640):#x}, v{T+12}
v_mul_f32 v{T+13}, {f2u(1/640):#x}, v{T+13}
''')
for blk in range(3):
    for i in range(4):
        k = 16*blk + i
        if k == 0: src = T+12
        else:
            src = T+14
            a(f'v_fmamk_f32 v{T+14}, v{T+13}, {f2u(float(k)):#x}, v{T+12}')
        a(f'v_cos_f32 v{TWc+4*blk+i}, v{src}\nv_sin_f32 v{TWs+4*blk+i}, v{src}')
a(f"""
s_mov_b32 {sInv}, {f2u(1/640):#x}
v_mov_b32 v{vEps}, {f2u(1e-5):#x}
v_mov_b32 v{Bo+10}, 0
v_mov_b32 v{Bo+11}, 0
s_mov_b32 {sLayer}, 0
s_mov_b32 {sTag}, 1
s_mov_b32 {sFlip}, 0
s_cmp_lt_u32 {sW}, 2
s_cselect_b64 {sSlot}, 1, 0
s_cselect_b32 s7, 3200, 0
s_cselect_b32 s52, 12, 8
s_cselect_b32 s53, 0, 32
s_lshl_b32 s7, s7, {sW}
v_lshlrev_b32 v{T+12}, 4, v{kq_v}
v_mul_u32_u24 v{vVrd}, 80, v{n_v}
v_add3_u32 v{vVrd}, v{vVrd}, v{T+12}, s7
v_and_b32 v{vVrd2}, 7, v0
v_mul_u32_u24 v{vVrd2}, 80, v{vVrd2}
s_add_u32 s7, s7, 2560
v_add3_u32 v{vVrd2}, v{vVrd2}, v{T+12}, s7
s_mul_i32 s54, s52, {sW}
s_lshl_b32 s54, s54, 2
s_add_u32 s54, s54, s53
s_sub_u32 s7, s52, 1
v_min_u32 v{T+13}, s7, v{n_v}
v_lshlrev_b32 v{T+13}, 2, v{T+13}
s_movk_i32 s7, 5120
v_mad_u32_u24 v{vC1ld}, v{kq_v}, s7, v{T+13}
v_mul_u32_u24 v{vRtW}, 160, v{n_v}
s_add_u32 s7, s54, {L_RT}
v_add3_u32 v{vRtW}, v{vRtW}, v{T+12}, s7
s_lshl_b32 s7, s52, 2
v_cmp_gt_u32 vcc, s7, v{T+12}
v_add_u32 v{T+13}, {L_XT}, v{vL16}
v_cndmask_b32 v{vRtW}, v{T+13}, v{vRtW}, vcc
v_mul_u32_u24 v{T+13}, 205, v0
v_lshrrev_b32 v{T+13}, 11, v{T+13}
v_mul_u32_u24 v{T+13}, 10080, v{T+13}
v_add_u32 v{vH2st}, v{T+13}, v{vRtR}
s_lshl_b32 s7, {sW}, 4
s_add_u32 s7, s7, 256
v_add_u32 v{T+13}, s7, v{n_v}
v_lshlrev_b32 v{vRtR2}, 4, v{T+13}
v_mul_u32_u24 v{T+13}, 205, v{T+13}
v_lshrrev_b32 v{T+13}, 11, v{T+13}
v_mul_u32_u24 v{T+13}, 10080, v{T+13}
v_add_u32 v{vH2st2}, v{T+13}, v{vRtR2}
v_cmp_eq_u32 vcc, 0, v{kq_v}
v_mov_b32 v{T+13}, {OOB}
v_cndmask_b32 v{vH2st2}, v{T+13}, v{vH2st2}, vcc
v_add_u32 v{vRtR}, {L_RT}, v{vRtR}
v_add_u32 v{vRtR2}, {L_RT}, v{vRtR2}
v_lshrrev_b32 v{vH1s2}, 1, v{vL16}
v_add_u32 v{vH1s2}, {1024-128}, v{vH1s2}
v_add_u32 v{T+14}, -1, v{kq_v}
v_cmp_gt_u32 vcc, 2, v{T+14}
v_cndmask_b32 v{vH1s2}, v{T+13}, v{vH1s2}, vcc
v_and_b32 v{T+13}, 1, v{kq_v}
v_lshlrev_b32 v{T+13}, 7, v{T+13}
v_and_b32 v{T+14}, 3, v0
v_lshl_add_u32 v{vStR}, v{T+14}, 5, v{T+13}
v_add_u32 v{vStR}, {L_ST}, v{vStR}
v_bfe_u32 v{T+14}, v0, 2, 1
v_lshl_add_u32 v{T+13}, v{T+14}, 6, v{T+13}
v_bfe_u32 v{T+14}, v0, 3, 1
v_lshl_add_u32 v{T+13}, v{T+14}, 5, v{T+13}
v_bfe_u32 v{T+14}, v0, 5, 1
v_lshl_add_u32 v{T+13}, v{T+14}, 2, v{T+13}
s_lshl_b32 s7, {sW}, 3
s_add_u32 s7, s7, {L_ST}
v_add_u32 v{vStW}, s7, v{T+13}
s_and_b32 s93, {sM}, 7
s_mul_i32 s93, s93, 160
s_lshl_b32 s94, {sSig}, 7
s_add_u32 s92, s94, {sM}
s_mul_i32 s92, s92, 1280
s_mul_i32 {sH1st}, {sW}, 40960
s_add_u32 {sH1st}, {sH1st}, s92
s_add_u32 {sH1st}, {sH1st}, {H1BASE}
s_lshl_b32 s96, s95, 5
s_add_u32 s96, s96, s94
s_mul_i32 {sH1ld0}, s96, 1280
s_add_u32 {sH1ld0}, {sH1ld0}, s93
s_add_u32 s96, s54, {H1BASE}
s_add_u32 {sH1ld0}, {sH1ld0}, s96
s_add_u32 {sH1ld1}, {sH1ld0}, 20480
s_lshl_b32 s96, s95, 8
s_add_u32 s96, s96, {sSig}
s_mul_i32 {sH2st}, s96, 1280
s_add_u32 {sH2st}, {sH2st}, s93
s_add_u32 {sH2st}, {sH2st}, {H2BASE}
s_mov_b32 {sH2ld}, {H2BASE-BUF}
s_lshl_b32 s7, {sSig}, 2
s_add_u32 s55, s7, {sW}
s_lshl_b32 s55, s55, 5
s_add_u32 s55, s55, {sM}
s_lshl_b32 s55, s55, 2
s_add_u32 s55, s55, {HF}
s_add_u32 s56, s95, s7
s_lshl_b32 s56, s56, 7
s_add_u32 s56, s56, {HF}
s_add_u32 {sCl}, {sH2st}, {2*BUF}
s_and_b32 s7, {sG}, 127
s_lshr_b32 s7, s7, 2
s_sub_u32 s94, 0, {sG}
s_and_b32 s94, s94, 127
s_lshr_b32 s94, s94, 2
s_bfe_u32 s95, {sG}, 0x10001
s_cmp_eq_u32 {sType}, 1
s_cselect_b32 s94, s7, s94
s_cselect_b32 s96, 2, s95
s_cselect_b32 s95, 3, s95
s_lshl_b32 s96, s96, 5
s_lshl_b32 s95, s95, 5
s_add_u32 s7, s7, s96
s_add_u32 s94, s94, s95
s_mul_i32 s7, s7, 10240
s_mul_i32 s94, s94, 10240
v_mov_b32 v{T+12}, s7
v_mov_b32 v{T+13}, s94
v_cmp_le_u32 vcc, 2, v{kq_v}
s_lshl_b32 s95, {sW}, 8
s_lshl_b32 s96, {sW}, 6
v_cndmask_b32 v{T+12}, v{T+12}, v{T+13}, vcc
s_add_u32 s96, s96, 1024
v_add_u32 v{T+12}, v{T+12}, v{T+9}
v_lshlrev_b32 v{T+13}, 4, v{n_v}
v_add3_u32 v{vH2ld}, v{T+12}, v{T+13}, s95
v_lshlrev_b32 v{T+13}, 2, v{n_v}
v_add3_u32 v{vH2ld5}, v{T+12}, v{T+13}, s96
v_add_u32 v{vTB}, {L_TB}, v{vL16}
v_lshrrev_b32 v252, 2, v{vL16}
v_and_b32 v252, 127, v252
s_lshl_b32 s7, {sW}, 2
v_add_u32 v{T+2}, s7, v{vTB}
""")
sst('prex')
for hi in range(2):
    for ch in range(2):
        for rio in range(2):
            a(f'ds_write_b32 v{T+2}, v{G+8+2*(2*hi+ch)+rio} offset:{L_CM-L_TB+((hi*2+rio)*2+ch)*1024}')
a('s_waitcnt vmcnt(3) lgkmcnt(0)\ns_barrier')
sst('bart')
for i in range(4): a(f'ds_read_b128 {vr(S1r+4*i)}, v{vTB} offset:{1024*i}')
for i in range(9): a(f'ds_read_b128 {vr(A2r+4*i)}, v{vTB} offset:{1024*(T_A2+i)}')
for i in range(2): a(f'ds_read_b128 {vr(B1r+4*i)}, v{vTB} offset:{1024*(T_B1+i)}')
for i in range(8): a(f'ds_read_b128 {vr(CM+4*i)}, v{vTB} offset:{L_CM-L_TB+1024*i}')
a(f'ds_read_b128 {vr(A3r)}, v{vTB} offset:{1024*T_A3L}')
for i in (2, 1, 0): a(f'v_lshrrev_b32 v{vV+2*i+1}, 16, v{vV+i}\nv_and_b32 v{vV+2*i}, 0xffff, v{vV+i}')
a(f's_cmp_eq_u32 {sW}, 3\ns_cselect_b32 s7, 0x80008000, 0\ns_waitcnt lgkmcnt(11)')
for i in range(18): a(f'v_xor_b32 v{A2r+2*i+1}, s7, v{A2r+2*i+1}')
a('s_waitcnt vmcnt(0)\ns_barrier')
sst('bar0')
for kl in range(5):
    for j in range(4): a(f'ds_read_u16_d16_hi v{X+4*kl+j}, v{vXT+kl} offset:{1280*j}')
a('s_waitcnt lgkmcnt(0)')
Sx, Qx = T, T+4
if RP: a('s_mov_b32 m0, 0')
if opt('cnt'): a('s_mov_b32 s86, 0\ns_mov_b32 s88, 0')
a('L_loop:')
stamp('top', True)
if opt('sca', 0):
    for j in range(4): a(f'v_mul_f32 v{Qx+j}, v{X+16+j}, v{X+16+j}')
    for j in range(4): a(f'v_add_f32 v{Sx+j}, v{X+16+j}, v{X+j}')
    for j in range(4): a(f'v_fmac_f32 v{Qx+j}, v{X+j}, v{X+j}')
else:
    for p in range(2): a(f'v_pk_mul_f32 {v2(Qx+2*p)}, {v2(X+16+2*p)}, {v2(X+16+2*p)}')
for kl in range(1 if opt('sca', 0) else 0, 4):
    for p in range(2):
        b = X+4*kl+2*p
        a(f'v_pk_add_f32 {v2(Sx+2*p)}, {v2(X+16+2*p) if kl == 0 else v2(Sx+2*p)}, {v2(b)}')
        a(f'v_pk_fma_f32 {v2(Qx+2*p)}, {v2(b)}, {v2(b)}, {v2(Qx+2*p)}')
for j in range(4): a(f'v_permlane32_swap_b32 v{Sx+j}, v{Qx+j}')
for p in range(2): a(f'v_pk_add_f32 {v2(Sx+2*p)}, {v2(Sx+2*p)}, {v2(Qx+2*p)}')
def dpp(d, s, ctl, bank): a(f'v_add_f32_dpp v{d}, v{s}, v{s} {ctl} row_mask:0xf bank_mask:{bank:#x}')
dpp(Sx, Sx, 'row_ror:8', 3); dpp(Sx, Sx+1, 'row_ror:8', 12); dpp(Sx+2, Sx+2, 'row_ror:8', 3); dpp(Sx+2, Sx+3, 'row_ror:8', 12)
dpp(Sx, Sx, 'row_shl:4', 5); dpp(Sx, Sx+2, 'row_shr:4', 10)
dpp(Sx, Sx, 'quad_perm:[1,0,3,2]', 15); dpp(Sx, Sx, 'quad_perm:[2,3,0,1]', 15)
a(f"""
ds_write_b32 v{vStW}, v{Sx}
s_waitcnt lgkmcnt(0)
s_barrier
""")
stamp('bar1', True)
P = T+8; RS = T+16; NB = T+20
a(f"""
ds_read_b128 {vr(P)}, v{vStR}
ds_read_b128 {vr(P+4)}, v{vStR} offset:16
s_waitcnt lgkmcnt(1)
v_pk_add_f32 {v2(P)}, {v2(P)}, {v2(P+2)}
s_waitcnt lgkmcnt(0)
v_pk_add_f32 {v2(P+4)}, {v2(P+4)}, {v2(P+6)}
v_pk_add_f32 {v2(P)}, {v2(P)}, {v2(P+4)}
v_mul_f32 v{P}, {sInv}, v{P}
v_fma_f32 v{P+1}, v{P+1}, {sInv}, v{vEps}
v_fma_f32 v{P+1}, -v{P}, v{P}, v{P+1}
v_max_f32 v{P+1}, v{P+1}, v{vEps}
v_rsq_f32 v{P+1}, v{P+1}
v_mul_f32 v{P}, -v{P}, v{P+1}
""")
for j in range(4): a(f'v_mov_b32_dpp v{RS+j}, v{P+1} quad_perm:[{j},{j},{j},{j}] row_mask:0xf bank_mask:0xf')
for j in range(4): a(f'v_mov_b32_dpp v{NB+j}, v{P} quad_perm:[{j},{j},{j},{j}] row_mask:0xf bank_mask:0xf')
N_ = T+24
D0, D1, DC, DE = T, T+4, T+8, T+12
for kl in range(5):
    for p in range(2): a(f'v_pk_fma_f32 {v2(N_+4*kl+2*p)}, {v2(X+4*kl+2*p)}, {v2(RS+2*p)}, {v2(NB+2*p)}')
def cvtn(kl):
    for p in range(2): a(f'v_cvt_pk_f16_f32 v{Bo+2*kl+p}, v{N_+4*kl+2*p}, v{N_+4*kl+2*p+1}')
cvtn(0); cvtn(1); cvtn(2)
mfma(D0, S1r, Bo, None); cvtn(3); mfma(DC, S1r+4, Bo, None); cvtn(4)
mfma(D1, S1r, Bo+4, None); mfma(DC, S1r+8, Bo+4, DC)
a(f's_cmp_lg_u32 {sFix}, 0')
W_ = T+44
mfma(DE, S1r+12, Bo+8, None)
a(f'v_cvt_pk_f16_f32 v{W_}, v{D0}, v{D0+1}')
a(f's_cbranch_scc0 L_fix\nL_nofix:')
a(f"""
v_cvt_pk_f16_f32 v{W_+1}, v{D0+2}, v{D0+3}
ds_write_b32 v{vV}, v{W_}
ds_write_b32 v{vV}, v{W_+1} offset:3200
v_cvt_pk_f16_f32 v{W_+2}, v{D1}, v{D1+1}
v_cvt_pk_f16_f32 v{W_+3}, v{D1+2}, v{D1+3}
v_cvt_pk_f16_f32 v{W_+4}, v{DC}, v{DC+1}
v_cvt_pk_f16_f32 v{W_+5}, v{DC+2}, v{DC+3}
ds_write_b32 v{vV+1}, v{W_+2}
ds_write_b32 v{vV+1}, v{W_+3} offset:3200
v_cvt_pk_f16_f32 v{W_+6}, v{DE}, v{DE+1}
v_cvt_pk_f16_f32 v{W_+7}, v{DE+2}, v{DE+3}
ds_write_b32 v{vV+2}, v{W_+4}
ds_write_b32 v{vV+3}, v{W_+5}
ds_write_b32 v{vV+4}, v{W_+6}
ds_write_b32 v{vV+5}, v{W_+7}
""")
stamp('s1w', True)
a(f's_cmp_eq_u32 {sLayer}, 0\ns_waitcnt lgkmcnt(0)\ns_barrier')
stamp('bar2', True)
Ad = T; Tr = T+12; Ti = T+24; B2 = Tr; O = T; Pt = T+36
a(f"""
ds_read_b128 {vr(Ad)}, v{vVrd}
ds_read_b128 {vr(Ad+4)}, v{vVrd} offset:1280
ds_read_b128 {vr(Ad+8)}, v{vVrd2}
s_cbranch_scc1 L_l0b
L_l0b_ret:
""")
for blk in range(3):
    a(f's_waitcnt lgkmcnt({2-blk})')
    mfma(Tr+4*blk, Ad+4*blk, B1r, None); mfma(Ti+4*blk, Ad+4*blk, B1r+4, None)
for ch in range(3):
    for p in range(2): a(f'v_pk_mul_f32 {v2(Pt+4*ch+2*p)}, {v2(Tr+4*ch+2*p)}, {v2(TWc+4*ch+2*p)}')
    for p in range(2): a(f'v_pk_fma_f32 {v2(Pt+4*ch+2*p)}, {v2(Ti+4*ch+2*p)}, {v2(TWs+4*ch+2*p)}, {v2(Pt+4*ch+2*p)}')
    for p in range(2): a(f'v_pk_mul_f32 {v2(Ti+4*ch+2*p)}, {v2(Ti+4*ch+2*p)}, {v2(TWc+4*ch+2*p)}')
    for p in range(2): a(f'v_pk_fma_f32 {v2(Ti+4*ch+2*p)}, {v2(Tr+4*ch+2*p)}, {v2(TWs+4*ch+2*p)}, {v2(Ti+4*ch+2*p)} neg_lo:[1,0,0] neg_hi:[1,0,0]')
def cv2(ch, i): a(f'v_cvt_pk_f16_f32 v{B2+4*ch+i}, v{Pt+4*ch+i}, v{Ti+4*ch+i}')
def st2(blk, ch): mfma(O+4*blk, A2r+(blk*3+ch)*4, B2+4*ch, None if ch == 0 else O+4*blk)
for i in range(4): cv2(0, i)
cv2(1, 0); cv2(1, 1)
st2(2, 0); cv2(1, 2); cv2(1, 3); st2(0, 0); cv2(2, 0); cv2(2, 1); st2(1, 0); cv2(2, 2); cv2(2, 3)
st2(2, 1); st2(0, 1); st2(2, 2); st2(0, 2); st2(1, 1); st2(1, 2)
a(f's_mov_b32 {sSpin}, {SPIN}\ns_add_u32 {sH2ld}, {sH2ld}, {BUF}\ns_cmp_lg_u32 {sMode}, 0')
Wo = T+48
def cvo(i): a(f'v_cvt_pk_f16_f32 v{Wo+i}, v{O+2*i}, v{O+2*i+1}')
def tg(i): a(f'v_and_or_b32 v{Wo+i}, v{Wo+i}, -2, {sTag}')
cvo(4); cvo(5); tg(5); cvo(0); cvo(1)
a(f'v_cndmask_b32 v{Wo}, v{Wo}, v{Wo+4}, {sSlot}')
tg(4); tg(1); tg(0); cvo(2); cvo(3); tg(2); tg(3)
a(f"""
s_cbranch_scc1 L_st_slow
buffer_store_dwordx2 {v2(Wo+4)}, v{vH1s2}, {SWS}, {sH1st} offen{H1F}
buffer_store_dwordx4 {vr(Wo)}, v{vL16}, {SWS}, {sH1st} offen{H1F}
L_cphase:
""")
stamp('h1st', True)
Ca = T+12; Dm = T+20; K_ = T+36
a(f"""
s_xor_b32 {sH1st}, {sH1st}, {H1STR}
s_cmp_eq_u32 {sLayer}, 0
s_cbranch_scc1 L_l0c
L_l0c_ret:
""")
if opt('ack1', 1): a('s_waitcnt vmcnt(0)')
if opt('d1'): a(f's_sleep {opt("d1")}')
a('L_poll1:')
for ch in range(2):
    for u in range(4):
        a(f'buffer_load_dword v{Ca+4*ch+u}, v{vC1ld}, {SWS}, {sH1ld0 if ch == 0 else sH1ld1} offen offset:{1280*u} sc1')
a(f's_sub_u32 {sSpin}, {sSpin}, 1\ns_cbranch_scc1 L_poll1_to\ns_waitcnt vmcnt(4)')
tt = sum((((i >> 2 & 1) ^ (i & 1)) & ((i >> 1 & 1) ^ (i & 1))) << i for i in range(8))
def cm(hi, ch, rio):
    d = Dm + (hi*2+rio)*4
    mfma(d, Ca+4*ch, CM+((hi*2+rio)*2+ch)*4, None if ch == 0 else d)
def xa(i): a(f'v_bitop3_b32 v{K_+i}, v{Ca+2*i}, v{Ca+2*i+1}, {sFlip} bitop3:{tt:#x}')
cm(0, 0, 0); xa(0); cm(0, 0, 1); xa(1); cm(1, 0, 0)
a(f'v_bitop3_b32 v{K_}, v{K_}, v{K_+1}, 1 bitop3:0x80')
cm(1, 0, 1)
a('s_waitcnt vmcnt(0)')
cm(0, 1, 0); xa(2); cm(0, 1, 1); xa(3)
cm(1, 1, 0)
a(f'v_bitop3_b32 v{K_}, v{K_}, v{K_+2}, v{K_+3} bitop3:0x80')
a(f'v_cmp_eq_u32 vcc, 0, v{K_}')
cm(1, 1, 1)
a('s_cbranch_vccnz L_poll1_re\nL_poll1_done:')
stamp('h1ok', True)
for hi in range(2):
    for i in range(4): a(f'v_cvt_pk_f16_f32 v{K_+4*hi+i}, v{Dm+8*hi+i}, v{Dm+8*hi+4+i}')
    for i in range(4): a(f'v_or_b32 v{K_+4*hi+i}, 1, v{K_+4*hi+i}')
    a(f'ds_write_b128 v{vRtW}, {vr(K_+4*hi)} offset:{2560*hi}')
a(f"""
s_waitcnt lgkmcnt(0)
s_barrier
ds_read_b128 {vr(T)}, v{vRtR}
ds_read_b128 {vr(T+4)}, v{vRtR2}
s_waitcnt lgkmcnt(1)
buffer_store_dwordx4 {vr(T)}, v{vH2st}, {SWS}, {sH2st} offen sc1
s_waitcnt lgkmcnt(0)
buffer_store_dwordx4 {vr(T+4)}, v{vH2st2}, {SWS}, {sH2st} offen sc1
""")
stamp('h2st', True)
CLN = f's_mov_b32 {sCl}, {OOB}' if opt('h3', 1) else f's_add_u32 {sCl}, {sCl}, {BUF}'
a(f"""
buffer_store_dwordx4 {vr(vZc)}, v{vH2st}, {SWS}, {sCl} offen sc1
buffer_store_dwordx4 {vr(vZc)}, v{vH2st2}, {SWS}, {sCl} offen sc1
{CLN}
s_mov_b32 {sSpin}, {SPIN}
s_add_u32 {sLayer}, {sLayer}, 1
{f's_mov_b32 m0, {sLayer}' if RP else ''}
s_add_u32 {sH2st}, {sH2st}, {BUF}
s_xor_b32 {sH1ld0}, {sH1ld0}, {H1STR}
s_xor_b32 {sH1ld1}, {sH1ld1}, {H1STR}
s_cmp_ge_u32 {sLayer}, 2
s_cselect_b32 {sTag}, 0, 1
s_cselect_b32 {sFlip}, -1, 0
s_cmp_eq_u32 {sLayer}, 1
s_cbranch_scc1 L_l0d
L_l0d_ret:
{'' if opt('noack2') else 's_waitcnt vmcnt(2)'}
""")
stamp('h2ack', True)
if opt('d2'): a(f's_sleep {opt("d2")}')
a('L_poll2:')
Lh = T+8; K2 = T+28
for u in range(4): a(f'buffer_load_dword v{Lh+16+u}, v{vH2ld5}, {SWS}, {sH2ld} offen offset:{1280*u} sc1')
for u in range(4): a(f'buffer_load_dwordx4 {vr(Lh+4*u)}, v{vH2ld}, {SWS}, {sH2ld} offen offset:{1280*u} sc1')
def and3(d, x, y, z): a(f'v_bitop3_b32 v{d}, v{x}, v{y}, {z if isinstance(z, str) else "v%d" % z} bitop3:0x80')
a(f's_sub_u32 {sSpin}, {sSpin}, 1\ns_cbranch_scc1 L_poll2_to\ns_waitcnt vmcnt(3)')
and3(K2, Lh+16, Lh+17, '1'); and3(K2+1, Lh+18, Lh+19, Lh); and3(K2, K2, Lh+1, Lh+2); and3(K2, K2, K2+1, Lh+3)
a(f'v_and_b32 v{Lh}, v{vMask0}, v{Lh}\ns_waitcnt vmcnt(2)')
and3(K2, K2, Lh+4, Lh+5); and3(K2, K2, Lh+6, Lh+7)
a(f'v_and_b32 v{Lh+4}, v{vMask0}, v{Lh+4}\nv_swap_b32 v{Lh+1}, v{Lh+4}\ns_waitcnt vmcnt(1)')
and3(K2, K2, Lh+8, Lh+9); and3(K2, K2, Lh+10, Lh+11)
a(f'v_and_b32 v{Lh+8}, v{vMask0}, v{Lh+8}\nv_swap_b32 v{Lh+2}, v{Lh+8}\nv_swap_b32 v{Lh+6}, v{Lh+9}\ns_waitcnt vmcnt(0)')
and3(K2, K2, Lh+12, Lh+13); and3(K2, K2, Lh+14, Lh+15)
a(f"""
v_and_b32 v{Lh+12}, v{vMask0}, v{Lh+12}
v_cmp_eq_u32 vcc, 0, v{K2}
v_swap_b32 v{Lh+3}, v{Lh+12}
s_cbranch_vccnz L_poll2_re
L_poll2_done:
""")
stamp('h2ok', True)
mfma(X+16, A3r, Lh+16, X+16)
a(f'v_swap_b32 v{Lh+7}, v{Lh+13}')
mfma(X, A3r, Lh, X)
a(f'v_swap_b32 v{Lh+11}, v{Lh+14}')
mfma(X+4, A3r, Lh+4, X+4)
a(f's_cmp_lt_u32 {sLayer}, {NLAYER}')
mfma(X+8, A3r, Lh+8, X+8); mfma(X+12, A3r, Lh+12, X+12)
a('s_cbranch_scc1 L_loop')
F = T
for kl in (4, 0, 1, 2, 3):
    for p in range(2): a(f'v_cvt_pk_bf16_f32 v{F+2*kl+p}, v{X+4*kl+2*p}, v{X+4*kl+2*p+1}')
    for p in range(2):
        a(f'ds_write_b16 v{vXT+kl}, v{F+2*kl+p} offset:{2560*p}')
        a(f'ds_write_b16_d16_hi v{vXT+kl}, v{F+2*kl+p} offset:{2560*p+1280}')
a('s_waitcnt lgkmcnt(0)\ns_barrier')
for i in range(3): a(f'ds_read_b128 {vr(T+12+4*i)}, v{vRtR} offset:{L_XT-L_RT+4096*i}')
for i in range(3): a(f's_waitcnt lgkmcnt({2-i})\nbuffer_store_dwordx4 {vr(T+12+4*i)}, v{vG+i}, {SO}, 0 offen{OF}')
def stamp_dump(hk):
    if hk: a(f's_memtime s[{60+2*nst.index("end")}:{61+2*nst.index("end")}]\ns_memrealtime s[{60+2*nst.index("rend")}:{61+2*nst.index("rend")}]\ns_waitcnt lgkmcnt(0)')
    a(f's_lshl_b32 s7, s2, 7\ns_add_u32 s7, s7, {STAMP_OFF}\nv_mov_b32 v1, 0\ns_mov_b64 exec, 1')
    for i in range(len(nst)): a(f'v_mov_b32 v2, s{60+2*i}\nbuffer_store_dword v2, v1, {SWS}, s7 offen offset:{4*i}')
    if opt('cnt'): a(f'v_mov_b32 v2, s86\nbuffer_store_dword v2, v1, {SWS}, s7 offen offset:120\nv_mov_b32 v2, s88\nbuffer_store_dword v2, v1, {SWS}, s7 offen offset:124')
if STAMPS:
    a('s_waitcnt vmcnt(0)'); stamp('end'); stamp('rend', real=True)
    a(f's_waitcnt lgkmcnt(0)\ns_cmp_lg_u32 {sW}, {opt("swave")}\ns_cbranch_scc1 L_end')
    stamp_dump(False)
if RP:
    if RP == 'end': a('s_waitcnt vmcnt(0)\ns_memrealtime s[62:63]')
    if RP == 'top': a(f's_mov_b32 s62, s{80+RPL}')
    if RP == 'h2ok': a(f's_mov_b32 s62, s{81+RPL}')
    a(f's_waitcnt lgkmcnt(0)\ns_cmp_lg_u32 {sW}, 0\ns_cbranch_scc1 L_end\ns_lshl_b32 s7, s2, 3\ns_add_u32 s7, s7, {STAMP_OFF}\nv_mov_b32 v2, s60\nv_mov_b32 v3, s62\ns_mov_b64 exec, 1\nbuffer_store_dwordx2 v[2:3], off, {SWS}, s7')
a('L_end:\ns_endpgm')
a('L_fix:\ns_nop 7')
mfma(T+24, DEL, Bo, None); mfma(T+28, DEL+4, Bo, None)
a('s_mov_b32 exec_lo, 0x00010001\ns_mov_b32 exec_hi, 0x00010001')
for p in range(2): a(f'v_pk_add_f32 {v2(D0+2*p)}, {v2(D0+2*p)}, {v2(T+24+2*p)}')
for p in range(2): a(f'v_pk_add_f32 {v2(DC+2*p)}, {v2(DC+2*p)}, {v2(T+28+2*p)}')
a(f's_mov_b64 exec, -1\nv_cvt_pk_f16_f32 v{W_}, v{D0}, v{D0+1}\ns_branch L_nofix')
a(f"""
L_l0b:
v_mov_b32 v{T+54}, {L_MODE}
ds_read_b32 v{T+55}, v{T+54} offset:{L_OWN-L_MODE}
ds_read_b32 v253, v252 offset:{L_EXP}
ds_read_b32 v{T+54}, v{T+54}
s_waitcnt lgkmcnt(0)
v_readfirstlane_b32 {sMode}, v{T+54}
s_branch L_l0b_ret
L_l0c:
s_cmp_lg_u32 {sMode}, 0
s_mov_b64 exec, 1
s_waitcnt vmcnt(0)
s_cbranch_scc1 L_l0c_slow
buffer_store_dword v{T+55}, off, {SWS}, s55
L_l0c_p:
s_mov_b64 exec, -1
L_l0c_poll:
buffer_load_dword v{T+54}, v252, {SWS}, s56 offen sc1
s_sub_u32 {sSpin}, {sSpin}, 1
s_cbranch_scc1 L_poll1_to
s_waitcnt vmcnt(0)
v_cmp_ne_u32 vcc, v{T+54}, v253
s_cbranch_vccz L_poll1
s_sleep {BK}
s_branch L_l0c_poll
L_l0c_slow:
buffer_store_dword v{T+55}, off, {SWS}, s55 sc1
s_branch L_l0c_p
L_l0d:
v_mov_b32 v{T+50}, {L_GO}
L_l0d_spin:
ds_read_b32 v{T+51}, v{T+50}
s_waitcnt lgkmcnt(0)
v_cmp_eq_u32 vcc, 0, v{T+51}
s_cbranch_vccnz L_l0d_spin
s_branch L_l0d_ret
L_st_slow:
buffer_store_dwordx4 {vr(Wo)}, v{vL16}, {SWS}, {sH1st} offen sc1
buffer_store_dwordx2 {v2(Wo+4)}, v{vH1s2}, {SWS}, {sH1st} offen sc1
s_branch L_cphase
L_poll1_re:
{CNT1}
s_sleep {BK}
s_branch L_poll1
L_poll2_re:
{CNT2}
s_sleep {BK}
s_branch L_poll2
L_poll1_to:
s_waitcnt vmcnt(0)
s_branch L_poll1_done
L_poll2_to:
s_waitcnt vmcnt(0)
s_branch L_poll2_done
""")
H = 8
def fhash(dst, src): a(f'v_mul_lo_u32 v{dst}, v{src}, s50\nv_add_u32 v{dst}, s51, v{dst}')
def hs_group(lbl, x3, pre=False):
    a(f"""
s_mov_b32 exec_hi, 0
s_mov_b32 {sSpin}, {SPIN}
{'s_branch ' + lbl + '_chk' if pre else ''}
{lbl}:
s_sleep {BK}
buffer_load_dwordx3 v[{H}:{H+2}], v{vL16}, {SWS}, s54 offen sc1
s_sub_u32 {sSpin}, {sSpin}, 1
s_cbranch_scc1 {lbl}_to
s_waitcnt vmcnt(0)
{lbl}_chk:
""")
    fhash(H, H)
    a(f"""
v_xor_b32 v{H}, v{H}, v{H+(2 if x3 else 1)}
v_cmp_lt_u32 vcc, 15, v{H}
s_cbranch_vccnz {lbl}
s_branch {lbl}_done
{lbl}_to:
s_waitcnt vmcnt(0)
{lbl}_done:
v_lshrrev_b32 v{H+3}, 2, v{vL16}
ds_write_b32 v{H+3}, v{H+1} offset:{L_EXP}
v_and_b32 v{H+3}, 15, v{H+1}
v_cmp_ne_u32 vcc, s6, v{H+3}
s_mov_b64 exec, -1
""")
def hs_all(lbl, pre=False):
    a(f's_mov_b32 {sSpin}, {SPIN}')
    if pre: a(f's_branch {lbl}_w')
    a(f'{lbl}:')
    for i, r in enumerate(('s92', 's93', 's95', 's96')): a(f'buffer_load_dwordx2 {v2(H+8+2*i)}, v{vL16}, {SWS}, {r} offen sc1')
    a(f's_sub_u32 {sSpin}, {sSpin}, 1\ns_cbranch_scc1 {lbl}_done\n{lbl}_w:\ns_waitcnt vmcnt(0)')
    for i in range(4): fhash(H+8+2*i, H+8+2*i)
    for i in range(4): a(f'v_xor_b32 v{H+8+2*i}, v{H+8+2*i}, v{H+9+2*i}')
    a(f"""
v_or3_b32 v{H}, v{H+8}, v{H+10}, v{H+12}
v_or_b32 v{H}, v{H}, v{H+14}
v_cmp_lt_u32 vcc, 15, v{H}
s_cbranch_vccz {lbl}_done
s_sleep {BK}
s_branch {lbl}
{lbl}_done:
s_waitcnt vmcnt(0)
""")
def flag_store(v, soff, off):
    a(f's_mov_b64 exec, 1\ns_waitcnt vmcnt(0)\nbuffer_store_dword v{v}, off, {SWS}, {soff} offset:{off} sc1\ns_mov_b64 exec, -1')
def hstamp(n):
    if opt('hstamp'): a(f's_memtime s[{60+2*nst.index(n)}:{61+2*nst.index(n)}]')
a('L_hk:')
if opt('prio', 1): a('s_setprio 3')
for i in range(4): a(f'v_mov_b32 v{vZ+i}, 0')
a(f"""
s_lshl_b32 {sGi}, {sSig}, 5
s_add_u32 {sGi}, {sGi}, {sM}
s_lshl_b32 s97, {sGi}, 4
s_add_u32 s97, s97, {FLAGS}
s_mul_i32 s94, {sGi}, 5120
s_add_u32 {sCl}, s94, {H2BASE+BUF}
s_add_u32 s94, s94, {H1BASE}
v_lshlrev_b32 v{H+18}, 8, v{vL16}
s_mov_b64 exec, 3
s_waitcnt lgkmcnt(0)
{WSADD}
buffer_load_dword v{H+16}, v{H+18}, {SWS}, s97 offen
s_mov_b64 exec, -1
v_lshlrev_b32 v{H+4}, 3, v{vL16}
v_min_u32 v{H+21}, 4992, v{H+4}
s_lshl_b32 s7, {sSig}, 9
s_add_u32 s7, s7, {HF}
{'' if opt('nopf') else f'buffer_load_dword v{H+27}, v{H+21}, {SWS}, s94 offen'}
v_min_u32 v{H+21}, 384, v{H+4}
buffer_load_dword v{H+28}, v{H+21}, {SWS}, s7 offen
""")
a('L_hk2:')
if opt('lowp', 1): a('s_setprio 0')
a(f"""
s_add_u32 s98, s94, {H1STR}
s_getreg_b32 s6, hwreg(HW_REG_XCC_ID, 0, 4)
s_mov_b32 s92, {FLAGS+0x1000}
s_mov_b32 s93, {FLAGS+0x1400}
s_mov_b32 s95, {FLAGS+0x1800}
s_mov_b32 s96, {FLAGS+0x1c00}
s_mov_b32 s50, 0x9e3779b1
s_mov_b32 s51, 0x7f4a7c15
v_mov_b32 v{H+1}, {L_MODE}
ds_write_b32 v{H+1}, v{vZ} offset:4
s_lshr_b32 s52, {sM}, 3
s_lshl_b32 s52, s52, 8
s_add_u32 s52, s52, {sSig}
s_mul_i32 s52, s52, 1280
s_and_b32 s53, {sM}, 7
s_mul_i32 s53, s53, 160
s_add_u32 s52, s52, s53
s_add_u32 s52, s52, {H2BASE}
s_movk_i32 s53, 10080
s_lshl_b32 s54, {sSig}, 9
s_add_u32 s54, s54, {FLAGS}
""")
for i in range(5):
    a(f"""v_add_u32 v{H+22+i}, {1024*i}, v{vL16}
v_mul_u32_u24 v{H+21}, 205, v{H+22+i}
v_lshrrev_b32 v{H+21}, 15, v{H+21}
v_mad_u32_u24 v{H+22+i}, v{H+21}, s53, v{H+22+i}""")
hstamp('top')
a(f's_waitcnt vmcnt({1 if opt("nopf") else 2}) lgkmcnt(0)')
fhash(H+5, H+16)
a(f'v_and_or_b32 v{H+5}, v{H+5}, -16, s6')
def flag_lane(lane, off):
    a(f's_mov_b64 exec, {1 << lane}\ns_waitcnt vmcnt(0)\nbuffer_store_dword v{H+5}, v{H+18}, {SWS}, s97 offen offset:{off} sc1\ns_mov_b64 exec, -1')
def hs_issue():
    for i, r in enumerate(('s92', 's93', 's95', 's96')): a(f'buffer_load_dwordx2 {v2(H+8+2*i)}, v{vL16}, {SWS}, {r} offen sc1')
hstamp('bar1')
a(f's_mov_b64 exec, 1\nbuffer_store_dword v{H+5}, v{H+18}, {SWS}, s97 offen offset:4 sc1\nv_mov_b32 v{H+1}, {L_OWN}\nds_write_b32 v{H+1}, v{H+5}\ns_mov_b64 exec, -1')
hstamp('s1w')
a(f'v_lshlrev_b32 v{H+19}, 17, v{vL16}\ns_lshl_b32 s7, s2, 7\ns_mov_b64 exec, 3\nbuffer_load_dword v{H+20}, v{H+19}, {SO}, s7 offen\ns_mov_b64 exec, -1')
if opt('wst', 0): a(f's_mov_b64 exec, 62\nbuffer_load_dword v{H+29}, v{H+19}, {SWS}, s7 offen\ns_mov_b64 exec, -1')
if opt('pf1', 1) == 5: a(f'v_lshlrev_b32 v{H+12}, 3, v{vL16}\nv_min_u32 v{H+12}, 4992, v{H+12}\nbuffer_load_dword v{H+27}, v{H+12}, {SWS}, s98 offen')
NE = opt('early', 0); NT_ = 3 + opt('more', 0)
def cl(k):
    if k == 0:
        for i in range(5): a(f'buffer_store_dwordx4 {vr(vZ)}, v{H+22+i}, {SWS}, s52 offen sc1')
    elif k == 2:
        if opt('pf1', 1) == 4: a(f'v_lshlrev_b32 v{H+12}, 3, v{vL16}\nv_min_u32 v{H+12}, 4992, v{H+12}\nbuffer_load_dword v{H+27}, v{H+12}, {SWS}, s98 offen')
        clean5('s98', '')
    else: clean5(sCl); a(f's_add_u32 {sCl}, {sCl}, {BUF}')
for k in range(NE): cl(k)
a(f"""
s_barrier
s_barrier
s_mov_b32 exec_hi, 0
buffer_load_dwordx3 v[{H}:{H+2}], v{vL16}, {SWS}, s54 offen sc1
s_mov_b64 exec, -1
""")
CL = opt('clate', 3)
for k in range(NE, CL): cl(k)
a('s_barrier')
for k in range(max(NE, CL), 3): cl(k)
a(f's_mov_b32 exec_hi, 0\ns_waitcnt vmcnt({5*(3-NE) + (1 if opt("pf1", 1) == 4 else 0)})')
hstamp('bar2')
hs_group('L_hs', False, True)
a(f's_cmp_lg_u32 vcc_lo, 0\ns_cselect_b32 {sMode}, 1, {FORCE_SLOW}')
hstamp('h1st')
a(f"""
v_mov_b32 v{H}, {sMode}
v_mov_b32 v{H+1}, {L_MODE}
ds_write_b32 v{H+1}, v{H}
s_cmp_eq_u32 {sMode}, 0
s_cbranch_scc1 L_hk_go
""")
clean5('s98')
a('L_hk_go:\ns_waitcnt lgkmcnt(0)\ns_barrier')
flag_lane(1, 4)
a('s_barrier')
if opt('pf1', 1) == 3: a(f'v_lshlrev_b32 v{H+12}, 3, v{vL16}\nv_min_u32 v{H+12}, 4992, v{H+12}\nbuffer_load_dword v{H+27}, v{H+12}, {SWS}, s98 offen')
hs_all('L_hs2')
a(f'v_mov_b32 v{H}, 1\nv_mov_b32 v{H+1}, {L_GO}\nds_write_b32 v{H+1}, v{H}')
hstamp('h1ok')
if opt('pf1', 1) == 2: a(f'v_lshlrev_b32 v{H+12}, 3, v{vL16}\nv_min_u32 v{H+12}, 4992, v{H+12}\nbuffer_load_dword v{H+27}, v{H+12}, {SWS}, s98 offen')
a('s_barrier')
if opt('pf1', 1) == 1: a(f'v_lshlrev_b32 v{H+12}, 3, v{vL16}\nv_min_u32 v{H+12}, 4992, v{H+12}\nbuffer_load_dword v{H+27}, v{H+12}, {SWS}, s98 offen')
if opt('h3', 1):
    a(f's_add_u32 {sCl}, {sCl}, {BUF}'); clean5(sCl)
a(f"""
v_add_u32 v{H+16}, 1, v{H+16}
s_mov_b64 exec, 3
s_barrier
s_waitcnt vmcnt(0)
s_barrier
s_barrier
buffer_store_dword v{H+16}, v{H+18}, {SWS}, s97 offen{' sc1' if opt('bsc1', 1) else ''}
s_barrier
s_barrier
{WB}
""")
if opt('hstamp'): stamp_dump(True)
a('s_endpgm\nL_codeend:')

if opt('hfront', 1):
    li = [k for k, i in enumerate(a.ins) if i.text in ('L_hk:', 'L_hk2:')]
    hk = a.ins[li[0]:li[1]]
    rest = a.ins[:li[0]] + a.ins[li[1]:]
    b = [k for k, i in enumerate(rest) if i.text == 's_cbranch_scc1 L_hk'][0]
    a.ins = rest[:b] + [Ins('s_cbranch_scc0 L_main')] + hk + [Ins('s_branch L_hk2'), Ins('L_main:')] + rest[b+1:]
if opt('nodma'): a.ins = [i for i in a.ins if not i.op.startswith('global_load_lds')]
if opt('noclean'):
    import re as _re
    keep = []
    for i in a.ins:
        if i.op == 'buffer_store_dwordx4' and i.toks[0] in (vr(vZ), vr(vZc)):
            keep.append(Ins(_re.sub(r's\[16:19\], s\d+', 's[16:19], s100', i.text)))
        else: keep.append(i)
    a.ins = keep
    k = [j for j, i in enumerate(a.ins) if i.text.startswith('s_mov_b32 s19')][0]
    a.ins.insert(k, Ins(f's_mov_b32 s100, {OOB}'))
def inline_block(lbl, endlbl_next):
    idx = {i.text: k for k, i in enumerate(a.ins) if i.label}
    b0 = idx[lbl + ':']; b1 = idx[endlbl_next + ':']
    blk = a.ins[b0:b1]
    rest = a.ins[:b0] + a.ins[b1:]
    k = [j for j, i in enumerate(rest) if i.text == f's_cbranch_scc1 {lbl}'][0]
    if blk[-1].text == f's_branch {lbl}_ret': blk = blk[:-1]
    a.ins = rest[:k] + [Ins(f's_cbranch_scc0 {lbl}_ret')] + blk + rest[k+1:]
INL = opts.get('inl', '')
if 'b' in INL: inline_block('L_l0b', 'L_l0c')
if 'c' in INL: inline_block('L_l0c', 'L_l0d')
if 'd' in INL: inline_block('L_l0d', 'L_st_slow')
NT = opts.get('nt', '')
def addnt(pred):
    for k, i in enumerate(a.ins):
        if pred(i): a.ins[k] = Ins(i.text + ' nt')
if 't' in NT: addnt(lambda i: i.op.startswith('global_load_lds') or i.op in ('global_load_dwordx3', 'global_load_dwordx4'))
if 'c' in NT: addnt(lambda i: i.op == 'global_load_dword')
if 'p' in NT: addnt(lambda i: i.op == 'buffer_load_dword' and i.toks[0] in (f'v{H+27}', f'v{H+28}'))
if 'e' in NT: addnt(lambda i: i.op == 'buffer_load_dword' and i.toks[0] in (f'v{H+16}', f'v{H+20}'))
if 'z' in NT: addnt(lambda i: i.op == 'buffer_store_dwordx4' and i.toks[0] in (vr(vZ), vr(vZc)) and 'sc1' in i.text)
if 'd' in NT: addnt(lambda i: i.op == 'buffer_store_dwordx4' and sH2st in i.toks and i.toks[0] not in (vr(vZ), vr(vZc)))
if 'l' in NT: addnt(lambda i: i.op.startswith('buffer_load') and sH2ld in i.toks)
if opt('align', 1): print('align', align_pass(a, KNAME + ':\n'))

DOC = """;
;    equal id%8) -> [radix-32] -> hand-off 2 (all workgroups).
;  * hand-offs carry a tag bit in every dword and are polled with sc1 loads.  Buffers are zeroed inside the launch; the
;    XCC id; otherwise every store is sc1, so any placement is correct.  All polling loops are bounded.
"""
if opt('la'):
    from asmlib import sizes_of
    sz = sizes_of(a, KNAME + ':\n'); addr = 0; k = 0
    for j, i in enumerate(a.ins):
        if i.text == 'L_loop:': break
        if not i.label: addr += sz[k]; k += 1
    pad = ((opt('lo') - addr) % opt('la'))//4
    w = [q for q, i in enumerate(a.ins[:j]) if i.text.startswith('s_waitcnt vmcnt(0)')][-1]
    for _ in range(pad): a.ins.insert(w, Ins('s_nop 0'))
    print('loop was at', addr, 'pad', pad)
hdr = open('interleave_layers__spectral_fnet__spectral_fnet__prompt.s.ref').read().split('; Override')[0]
out = hdr + DOC + ('; STAMPS ' + ' '.join(nst) + '\n' if STAMPS else '') + f'; @launch grid=(256,1,1) block=(320,1,1) lds={LDS_BYTES}\n'
out += f'.amdgcn_target "amdgcn-amd-amdhsa--gfx950"\n.text\n.globl {KNAME}\n.p2align 8\n.type {KNAME},@function\n{KNAME}:\n'
out += a.text()
if RP:
    out = out.replace('; @launch grid=(256,1,1) block=(320,1,1) lds=', f'; @launch kernel={KNAME} grid=(256,1,1) block=(320,1,1) lds=').replace('\n.amdgcn_target', '\n; @launch kernel=reveal_kernel grid=(1,1,1) block=(256,1,1) lds=64\n.amdgcn_target', 1)
    out += f'''.globl reveal_kernel
.p2align 8
.type reveal_kernel,@function
reveal_kernel:
  s_cmp_lg_u32 s2, 0
  s_cbranch_scc1 LR_end
  s_load_dwordx2 s[8:9], s[0:1], 96
  s_mov_b32 s10, {WS_BYTES}
  s_mov_b32 s11, 0x20000
  s_mov_b32 s3, {STAMP_OFF}
  v_lshlrev_b32 v1, 3, v0
  v_mov_b32 v4, 0
  v_mov_b32 v5, -1
  v_mov_b32 v6, {0 if opt('rpmax', 1) else -1}
  ds_write_b32 v4, v5
  ds_write_b32 v4, v6 offset:4
  s_waitcnt lgkmcnt(0)
  buffer_load_dwordx2 v[2:3], v1, s[8:11], s3 offen
  s_barrier
  s_waitcnt vmcnt(0)
  ds_min_u32 v4, v2
  ds_{'max' if opt('rpmax', 1) else 'min'}_u32 v4, v3 offset:4
  s_waitcnt lgkmcnt(0)
  s_barrier
  ds_read_b64 v[2:3], v4
  s_waitcnt lgkmcnt(0)
  v_sub_u32 v2, v3, v2
  v_min_u32 v2, 5000, v2
  v_mul_u32_u24 v2, 10, v2
  s_memrealtime s[12:13]
  v_readfirstlane_b32 s16, v2
  s_waitcnt lgkmcnt(0)
LR_spin:
  s_memrealtime s[14:15]
  s_waitcnt lgkmcnt(0)
  s_sub_u32 s17, s14, s12
  s_cmp_lt_u32 s17, s16
  s_cbranch_scc1 LR_spin
LR_end:
  s_endpgm
'''
out += f'''.section .rodata,"a"
.p2align 6
.amdhsa_kernel {KNAME}
  .amdhsa_next_free_vgpr 256
  .amdhsa_next_free_sgpr 102
  .amdhsa_accum_offset 256
  .amdhsa_group_segment_fixed_size 0
  .amdhsa_kernarg_size 104
  .amdhsa_user_sgpr_count 2
  .amdhsa_user_sgpr_kernarg_segment_ptr 1
  .amdhsa_system_sgpr_workgroup_id_x 1
.end_amdhsa_kernel
''' + '''.p2align 6
.amdhsa_kernel reveal_kernel
  .amdhsa_next_free_vgpr 16
  .amdhsa_next_free_sgpr 32
  .amdhsa_accum_offset 16
  .amdhsa_group_segment_fixed_size 0
  .amdhsa_kernarg_size 104
  .amdhsa_user_sgpr_count 2
  .amdhsa_user_sgpr_kernarg_segment_ptr 1
  .amdhsa_system_sgpr_workgroup_id_x 1
.end_amdhsa_kernel
''' * (1 if RP else 0) + '''.p2align 10
tbl:
'''
for f in blocks:
    for i in range(0, 256, 8): out += '.long ' + ','.join(f'{int(x):#x}' for x in f[i:i+8]) + '\n'
open(sys.argv[1], 'w').write(out)
print('instrs', len(a.ins), 'nops inserted', a.nops, 'table blocks', len(blocks), 'bytes', len(out))
```

```python
import sys, struct
import numpy as np
from design import *
from asmlib import Asm, align_pass, Ins

KNAME = "interleave_layers__spectral_fnet__spectral_fnet__prompt_kernel"
opts = dict(a.split('=') for a in sys.argv[2:] if '=' in a)
def opt(k, d=0): return int(opts.get(k, d))
STAMPS = opt('stamps'); FORCE_SLOW = opt('slow'); NLAYER = opt('layers', 4); SPIN = opt('spin', 50000); BK = opt('bk', 1); SLAYER = opt('slayer')
SST = opt('sstart')
def f2u(f): return struct.unpack('<I', struct.pack('<f', f))[0]
BUF = 0x200000 if opt('wst', 0) else 1310720
FLAGS = 4096; H1BASE = 0x40000; H1STR = 0x200000; H2BASE = 0x410000; WS_BYTES = H2BASE + 3*BUF + 1310720
STAMP_OFF = WS_BYTES
if STAMPS or opts.get('rp'): WS_BYTES += 256*128
L_V = 0; L_ST = 9600; L_MODE = 9856; L_GO = 9860; L_OWN = 9864; L_JUNK = 9872; L_EXP = 15104; HF = FLAGS + 0x2000; L_RT = 9984; L_XT = 15360; L_TB = 25600; L_CM = L_TB + 16*1024; LDS_BYTES = L_CM + 8192
OOB = 0x40000000
WB = ''
if opt('wb') == 1: WB = 's_barrier\ns_barrier\ns_barrier\nbuffer_wbl2 sc1\ns_waitcnt vmcnt(0)'
if opt('wb') == 2: WB = 's_cmp_lg_u32 s5, 0\ns_cbranch_scc1 L_end\ns_barrier\ns_barrier\ns_barrier\nbuffer_wbl2 sc1\ns_waitcnt vmcnt(0)'
if opt('wb') == 4: WB = 's_cmp_lg_u32 s5, 0\ns_cbranch_scc1 L_end\ns_barrier\ns_barrier\ns_barrier\nbuffer_wbl2 sc1\ns_barrier\ns_waitcnt vmcnt(0)'
if opt('wb') == 5: WB = 's_cmp_lg_u32 s5, 0\ns_cbranch_scc1 L_end\ns_barrier\nbuffer_wbl2 sc1\ns_barrier\ns_barrier\nbuffer_wbl2 sc1\ns_barrier\ns_waitcnt vmcnt(0)'
if opt('wb') == 3: WB = 's_cmp_lg_u32 s5, 0\ns_cbranch_scc1 L_end\ns_barrier\nbuffer_wbl2 sc1\ns_barrier\ns_barrier\ns_waitcnt vmcnt(0)'
CNT1 = 's_lshl_b32 s7, s29, 3\ns_lshl_b32 s7, 1, s7\ns_add_u32 s86, s86, s7' if opt('cnt') else ''
CNT2 = 's_lshl_b32 s7, s29, 3\ns_sub_u32 s7, s7, 8\ns_lshl_b32 s7, 1, s7\ns_add_u32 s88, s88, s7' if opt('cnt') else ''
XF = ' ' + opts.get('xf', 'nt').replace('+', ' ')
OF = ' ' + opts.get('of', 'nt').replace('+', ' ')
H1F = ' ' + opts['h1f'] if 'h1f' in opts else ''
WSADD = f's_add_u32 s16, s16, {opt("wsoff") << 20}\ns_addc_u32 s17, s17, 0' if opt('wsoff') else ''
def vaddr(col): return (col % 40)*80 + (col//40)*4
def opA(M):
    h = M.astype(np.float16).view(np.uint16).astype(np.uint32)
    out = np.zeros((64, 4), np.uint32)
    for l in range(64):
        r = h[l % 16, 8*(l//16):8*(l//16)+8]
        out[l] = r[0::2] | (r[1::2] << 16)
    return out
def opB(N): return opA(N.T)
blocks = []
def add(b): blocks.append(np.asarray(b, np.uint32).reshape(256)); return len(blocks)-1
n_ = S1_mats(False); s_ = S1_mats(True)
def a3_idx(sig, m):
    g = unit_g(sig, m)
    if g == 0: return 9
    if g == 128: return 8
    return (g >> 7) + (0 if g % 4 == 1 else 4)
a3 = {}
for sig in range(8):
    for m in range(32):
        M = A3(sig, m)*HSCALE; i = a3_idx(sig, m)
        if i in a3: assert np.allclose(a3[i], M), (sig, m)
        a3[i] = M
for M in (n_[0], n_[1], n_[2], E_mat(False)): add(opA(M))
T_A3L = add(opA(a3[0]))
Bre, Bim = B1_mats(); T_B1 = add(opB(Bre)); add(opB(Bim))
T_A2 = len(blocks)
M = A2_mats6(0)/HSCALE; M2 = A2_mats6(20)/HSCALE
sgn = np.array([(-1.0)**((k % 8)//2) for k in range(32)])
assert np.allclose(M2, M*sgn)
for blk in range(3):
    for ch in range(3): add(opA(M[blk, ch]))
assert len(blocks) == 16
T_S1S = len(blocks)
for M in (s_[0], s_[1], s_[2], E_mat(True)): add(opA(M))
T_DEL = add(opA(s_[3])); add(opA(s_[4]))
T_A3 = len(blocks)
for i in range(10): add(opA(a3[i]))
T_ADDR = len(blocks)
at = np.zeros((2, 256, 4), np.uint32)
for ty, (sig, m) in enumerate(((2, 1), (1, 0))):
    for tid in range(256):
        w, l = divmod(tid, 64); n, mq = l % 16, l//16
        v = [vaddr(acol(sig, m, mq//2, 64*w+4*n+2*bop+(mq % 2))) for bop in range(2)]
        v += [6400 + vaddr(acol(sig, m, mq % 2, 64*w+4*n+2*(mq//2)+sub)) for sub in range(2)]
        k5 = 256 + 16*w + n
        if mq < 2: v += [vaddr(acol(sig, m, mq, k5)), 3200 + vaddr(acol(sig, m, mq, k5))]
        elif mq == 2: v += [6400 + vaddr(acol(sig, m, 0, k5)), 6400 + vaddr(acol(sig, m, 1, k5))]
        else: v += [L_JUNK + 4*n, L_JUNK + 4*n]
        at[ty, tid, :3] = [v[0] | (v[1] << 16), v[2] | (v[3] << 16), v[4] | (v[5] << 16)]
for i in range(8): add(at.reshape(-1)[256*i:256*i+256])
for i in range(640): assert (i*205) >> 14 == i//80
for i in range(320): assert (i*205) >> 11 == i//10

vL16, vH1s2, vH2ld, vH2ld5, vC1ld, vRtW, vRtR, vRtR2, vH2st, vH2st2, vStR, vStW = range(1, 13)
vVrd, vVrd2, vEps = 13, 14, 15
vV = 16
vXT = 22
vMask0 = 27; vG = 28
vTB = 31
vZc = 248
X = 32
A3r = 52; S1r = 56; B1r = 72; TWc = 80; TWs = 92; A2r = 104; CM = 140; DEL = 172
Bo = 180
T = 192
vZ = 4
def vr(b, n=4): return f'v[{b}:{b+n-1}]'
def v2(b): return f'v[{b}:{b+1}]'
sW, sSig, sM, sG, sType, sLayer, sMode = 's3', 's4', 's5', 's26', 's27', 's29', 's30'
sH1st, sH1ld0, sH1ld1, sH2st, sH2ld, sTag, sFlip, sSpin = 's31', 's32', 's33', 's34', 's35', 's36', 's37', 's38'
sCl, sGi, sInv, sFix = 's44', 's46', 's40', 's41'
sSlot = 's[42:43]'
SX, SO, SWS, STB = 's[8:11]', 's[12:15]', 's[16:19]', 's[24:25]'
HW = 4
a = Asm()
nst = []
RP = opts.get('rp'); RPL = opt('rpl')
def stamp(name, inloop=False, real=False):
    if RP:
        if name == 'start': a('s_memrealtime s[60:61]')
        if name == RP:
            if inloop: a('s_memrealtime s[90:91]\ns_waitcnt lgkmcnt(0)\ns_movreld_b32 s80, s90')
            else: a('s_memrealtime s[62:63]')
        return
    if SST and inloop and name not in ('top', 'bar1'): return
    if opt('span') and name not in ('start', 'rstart', 'end', 'rend'): return
    if STAMPS:
        i = len(nst); nst.append(name)
        assert i < 16
        ins = f's_{"memrealtime" if real or opt("rt") else "memtime"} s[{60+2*i}:{61+2*i}]'
        a(ins)
LATE = ('h2ack', 'h2ok')
def sst(name):
    if SST or RP: stamp(name)
def clean5(soff, fl=' sc1'):
    for i in range(4): a(f'buffer_store_dwordx4 {vr(vZ)}, v{vL16}, {SWS}, {soff} offen offset:{1024*i}{fl}')
    a(f's_add_u32 s7, {soff}, 4096\nbuffer_store_dwordx4 {vr(vZ)}, v{vL16}, {SWS}, s7 offen{fl}')
def mfma(d, A, B, C): a(f'v_mfma_f32_16x16x32_f16 {vr(d)}, {vr(A)}, {vr(B)}, {"0" if C is None else vr(C)}')

stamp('start'); stamp('rstart', real=True)
n_v, kq_v = T+10, T+11
a(f"""
s_load_dwordx2 s[16:17], s[0:1], 96
s_load_dwordx2 s[8:9], s[0:1], 0
s_load_dwordx2 s[12:13], s[0:1], 80
v_lshrrev_b32 v{T+1}, 6, v0
s_cmp_ge_u32 s2, 256
s_cbranch_scc1 L_end
""")
if opt('cpref', 1):
    a(f"""
s_getpc_b64 s[24:25]
v_lshlrev_b32 v{T+2}, 7, v0
v_min_u32 v{T+2}, L_codeend-{KNAME}-64, v{T+2}
global_load_dword v255, v{T+2}, s[24:25]
""")
a(f"""
v_readfirstlane_b32 {sW}, v{T+1}
v_and_b32 v{T}, 63, v0
s_and_b32 {sSig}, s2, 7
s_lshr_b32 {sM}, s2, 3
v_lshlrev_b32 v{vL16}, 4, v{T}
s_mov_b32 s18, {WS_BYTES}
s_mov_b32 s19, 0x20000
s_mov_b32 s14, 2621440
s_mov_b32 s15, 0x20000
s_cmp_eq_u32 {sW}, {HW}
s_cbranch_scc1 L_hk
s_lshl_b32 s6, {sSig}, 2
s_lshr_b32 s6, 0x9654d210, s6
s_and_b32 s6, s6, 15
s_lshl_b32 {sG}, {sM}, 4
s_add_u32 {sG}, {sG}, s6
s_cmp_eq_u32 {sSig}, 0
s_cselect_b32 s7, 248, 0
s_cmp_ge_u32 {sM}, 16
s_cselect_b32 s7, s7, 0
s_sub_u32 {sG}, {sG}, s7
s_and_b32 {sType}, {sG}, 1
""")
a(f"""
s_getpc_b64 s[24:25]
s_add_u32 s24, s24, tbl@rel32@lo+4
s_addc_u32 s25, s25, tbl@rel32@hi+12
s_lshr_b32 s7, {sG}, 7
s_lshl_b32 s94, {sType}, 2
s_sub_u32 s7, s7, s94
s_add_u32 s7, s7, {4 + T_A3}
s_cmp_eq_u32 {sG}, 128
s_cselect_b32 s7, {8 + T_A3}, s7
s_cmp_eq_u32 {sG}, 0
s_cselect_b32 s7, {9 + T_A3}, s7
s_cselect_b32 s94, {T_S1S*1024}, 0
s_lshl_b32 s7, s7, 10
s_lshl_b32 s95, {sW}, 12
s_cmp_eq_u32 {sW}, 0
s_cselect_b32 s94, s94, s95
s_cmp_eq_u32 {sW}, 1
s_cselect_b32 s7, s7, s94
s_add_u32 m0, s95, {L_TB}
v_add_u32 v{T+2}, s94, v{vL16}
v_add_u32 v{T+3}, s7, v{vL16}
s_lshl_b32 s7, {sType}, 12
s_add_u32 s7, s7, {T_ADDR*1024}
global_load_lds_dwordx4 v{T+3}, {STB}
global_load_lds_dwordx4 v{T+2}, {STB} offset:1024
global_load_lds_dwordx4 v{T+2}, {STB} offset:2048
global_load_lds_dwordx4 v{T+2}, {STB} offset:3072
v_lshl_add_u32 v{T+2}, v0, 4, s7
global_load_dwordx3 v[{vV}:{vV+2}], v{T+2}, {STB}
s_or_b32 {sFix}, s2, {sW}
""")
a(f"""
s_cmp_lg_u32 {sFix}, 0
s_cbranch_scc1 L_nodel
v_add_u32 v{T+2}, {T_DEL*1024}, v{vL16}
global_load_dwordx4 {vr(DEL)}, v{T+2}, {STB}
global_load_dwordx4 {vr(DEL+4)}, v{T+2}, {STB} offset:1024
L_nodel:
""")
a(f"""
s_sub_u32 s92, 0, {sG}
s_and_b32 s92, s92, 511
s_cmp_eq_u32 {sG}, 0
s_cselect_b32 s92, 256, s92
s_mul_i32 s92, s92, 1280
s_mul_i32 s93, {sG}, 1280
s_sub_u32 s92, s92, s93
s_sub_u32 s92, s92, {4*655360}
s_mov_b32 s10, 2621440
s_mov_b32 s11, 0x20000
s_mov_b32 s96, 0x9fb00
v_lshlrev_b32 v{vRtR}, 4, v0
""")
for i in range(3):
    a(f"""v_add_u32 v{T+12}, {256*i}, v0
v_mul_u32_u24 v{T+12}, 205, v{T+12}
v_lshrrev_b32 v{T+12}, 14, v{T+12}
v_mov_b32 v{T+13}, s92
v_cmp_le_u32 vcc, 4, v{T+12}
v_mad_u32_u24 v{T+12}, v{T+12}, s96, v{vRtR}
v_cndmask_b32 v{T+13}, 0, v{T+13}, vcc
v_add3_u32 v{vG+i}, v{T+12}, v{T+13}, s93""".replace(f'v_add_u32 v{T+12}, 0, v0\nv_mul_u32_u24 v{T+12}, 205, v{T+12}', f'v_mul_u32_u24 v{T+12}, 205, v0'))
    if i < 2: a(f's_add_u32 s93, s93, 4096')
a(f"""
""")
sst('prek')
a(f"""
s_waitcnt lgkmcnt(0)
s_lshl_b32 s7, {sW}, 10
s_add_u32 m0, s7, {L_XT}
{WSADD or 's_nop 1'}
buffer_load_dwordx4 v{vG}, {SX}, 0 offen{XF} lds
s_add_u32 m0, s7, {L_XT+4096}
s_cmp_ge_u32 {sW}, 2
buffer_load_dwordx4 v{vG+1}, {SX}, 0 offen{XF} lds
s_cbranch_scc1 L_nox2
s_add_u32 m0, s7, {L_XT+8192}
s_nop 0
buffer_load_dwordx4 v{vG+2}, {SX}, 0 offen{XF} lds
s_branch L_x2
L_nox2:
v_mov_b32 v{vG+2}, {OOB}
buffer_load_dword v254, v{vG+2}, {SX}, 0 offen
L_x2:
""")
sst('xiss')
sst('dma')
a(f"""
v_and_b32 v{n_v}, 15, v0
v_bfe_u32 v{kq_v}, v0, 4, 2
s_mul_i32 s94, {sType}, 320
v_lshrrev_b32 v{T+13}, 1, v{kq_v}
v_mul_u32_u24 v{T+14}, s94, v{T+13}
s_lshl_b32 s92, {sW}, 5
v_add3_u32 v{T+12}, v{n_v}, v{T+14}, s92
s_and_b32 s92, {sW}, 1
s_lshl_b32 s92, s92, 3
s_lshr_b32 s93, {sW}, 1
s_lshl_b32 s93, s93, 5
s_add_u32 s92, s92, s93
s_add_u32 s92, s92, 256
v_lshrrev_b32 v{T+17}, 1, v{n_v}
v_and_b32 v{T+18}, 1, v0
v_add3_u32 v{T+17}, v{T+17}, v{T+14}, s92
v_lshl_add_u32 v{T+17}, v{T+18}, 4, v{T+17}
s_xor_b32 s94, {sType}, 1
v_and_b32 v{T+13}, s94, v{T+13}
v_xor_b32 v{T+13}, v{T+13}, v{kq_v}
v_add_u32 v{T+14}, 16, v{T+12}
v_and_b32 v{T+13}, 1, v{T+13}
v_add_u32 v{T+15}, 128, v{T+12}
v_cmp_eq_u32 vcc, 1, v{T+13}
v_add_u32 v{T+16}, 144, v{T+12}
s_mul_i32 s94, s94, 320
""")
ecol = [T+12, T+14, T+15, T+16, T+17]
for kl in range(5): a(f'v_sub_u32 v{T+18+kl}, 640, v{ecol[kl]}')
for kl in range(5): a(f'v_cndmask_b32 v{vXT+kl}, v{ecol[kl]}, v{T+18+kl}, vcc')
a(f"""
v_cmp_gt_u32 vcc, 2, v{kq_v}
v_mov_b32 v{T+17}, s94
v_and_b32 v{T+13}, 1, v{kq_v}
v_cndmask_b32 v{T+17}, 0, v{T+17}, vcc
v_cmp_eq_u32 vcc, 0, v{T+12}
v_mul_u32_u24 v{T+9}, 0x1400, v{T+13}
v_add_u32 v{T+14}, {L_XT}, v{T+9}
v_cndmask_b32 v{vXT}, v{vXT}, v{T+17}, vcc
v_cmp_ne_u32 vcc, 0, v{vXT}
""")
for kl in range(5): a(f'v_lshl_add_u32 v{vXT+kl}, v{vXT+kl}, 1, v{T+14}')
a(f'v_cndmask_b32 v{vMask0}, 0, -1, vcc')
for i in range(20): a(f'v_mov_b32 v{X+i}, 0')
for i in range(4): a(f'v_mov_b32 v{vZc+i}, 0')
a(f"""
s_lshr_b32 s95, {sM}, 3
s_lshl_b32 s7, s95, 2
s_lshr_b32 s7, 0x1120, s7
s_and_b32 s7, s7, 3
s_add_u32 s96, s6, 256
s_cmp_eq_u32 {sSig}, 0
s_cselect_b32 s96, 8, s96
s_lshl_b32 s94, {sW}, 4
s_add_u32 s6, s6, s94
s_add_u32 s96, s96, s94
v_lshl_add_u32 v{T+13}, v{n_v}, 2, s7
v_lshl_add_u32 v{T+14}, v{kq_v}, 6, s6
v_lshl_add_u32 v{T+15}, v{kq_v}, 6, s96
v_add_u32 v{T+12}, 64, v{T+13}
s_mov_b32 s94, {f2u(1/2048):#x}
""")
G = T+24
for hi in range(2):
    for ch in range(2): a(f'v_mul_u32_u24 v{G+2*(2*hi+ch)}, v{T+13-hi}, v{T+14+ch}')
for k in range(4): a(f'v_and_b32 v{G+2*k}, 0x7ff, v{G+2*k}')
for k in range(4): a(f'v_cvt_f32_u32 v{G+2*k}, v{G+2*k}')
for k in range(4): a(f'v_mul_f32 v{G+2*k}, s94, v{G+2*k}')
for k in range(4): a(f'v_sin_f32 v{G+2*k+1}, v{G+2*k}\nv_cos_f32 v{G+2*k}, v{G+2*k}')
for k in range(4): a(f'v_cvt_pk_f16_f32 v{G+8+2*k}, v{G+2*k}, v{G+2*k+1}\nv_cvt_pk_f16_f32 v{G+9+2*k}, -v{G+2*k+1}, v{G+2*k}')
a(f's_cmp_lg_u32 {sSig}, 0\ns_cbranch_scc1 L_cm_done')
for hi in range(2):
    b = G+8+4*hi
    a(f'v_mov_b32 v{b+1}, 0\nv_mov_b32 v{b+3}, v{b+2}\nv_mov_b32 v{b+2}, 0')
a(f"""
v_and_b32 v{T+17}, 1, v0
v_lshlrev_b32 v{T+17}, 4, v{T+17}
v_mov_b32 v{T+18}, 0x3c00
v_lshlrev_b32 v{T+17}, v{T+17}, v{T+18}
v_cmp_gt_u32 vcc, 16, v0
v_cndmask_b32 v{G+8}, v{G+8}, v{T+17}, vcc
v_cndmask_b32 v{G+12}, v{G+12}, v{T+17}, vcc
L_cm_done:
""")
sst('cm')
a(f'''
v_lshlrev_b32 v{T+12}, 2, v{kq_v}
v_mul_u32_u24 v{T+12}, v{T+12}, v{n_v}
v_cvt_f32_u32 v{T+12}, v{T+12}
v_cvt_f32_u32 v{T+13}, v{n_v}
v_mul_f32 v{T+12}, {f2u(1/640):#x}, v{T+12}
v_mul_f32 v{T+13}, {f2u(1/640):#x}, v{T+13}
''')
for blk in range(3):
    for i in range(4):
        k = 16*blk + i
        if k == 0: src = T+12
        else:
            src = T+14
            a(f'v_fmamk_f32 v{T+14}, v{T+13}, {f2u(float(k)):#x}, v{T+12}')
        a(f'v_cos_f32 v{TWc+4*blk+i}, v{src}\nv_sin_f32 v{TWs+4*blk+i}, v{src}')
a(f"""
s_mov_b32 {sInv}, {f2u(1/640):#x}
v_mov_b32 v{vEps}, {f2u(1e-5):#x}
v_mov_b32 v{Bo+10}, 0
v_mov_b32 v{Bo+11}, 0
s_mov_b32 {sLayer}, 0
s_mov_b32 {sTag}, 1
s_mov_b32 {sFlip}, 0
s_cmp_lt_u32 {sW}, 2
s_cselect_b64 {sSlot}, 1, 0
s_cselect_b32 s7, 3200, 0
s_cselect_b32 s52, 12, 8
s_cselect_b32 s53, 0, 32
s_lshl_b32 s7, s7, {sW}
v_lshlrev_b32 v{T+12}, 4, v{kq_v}
v_mul_u32_u24 v{vVrd}, 80, v{n_v}
v_add3_u32 v{vVrd}, v{vVrd}, v{T+12}, s7
v_and_b32 v{vVrd2}, 7, v0
v_mul_u32_u24 v{vVrd2}, 80, v{vVrd2}
s_add_u32 s7, s7, 2560
v_add3_u32 v{vVrd2}, v{vVrd2}, v{T+12}, s7
s_mul_i32 s54, s52, {sW}
s_lshl_b32 s54, s54, 2
s_add_u32 s54, s54, s53
s_sub_u32 s7, s52, 1
v_min_u32 v{T+13}, s7, v{n_v}
v_lshlrev_b32 v{T+13}, 2, v{T+13}
s_movk_i32 s7, 5120
v_mad_u32_u24 v{vC1ld}, v{kq_v}, s7, v{T+13}
v_mul_u32_u24 v{vRtW}, 160, v{n_v}
s_add_u32 s7, s54, {L_RT}
v_add3_u32 v{vRtW}, v{vRtW}, v{T+12}, s7
s_lshl_b32 s7, s52, 2
v_cmp_gt_u32 vcc, s7, v{T+12}
v_add_u32 v{T+13}, {L_XT}, v{vL16}
v_cndmask_b32 v{vRtW}, v{T+13}, v{vRtW}, vcc
v_mul_u32_u24 v{T+13}, 205, v0
v_lshrrev_b32 v{T+13}, 11, v{T+13}
v_mul_u32_u24 v{T+13}, 10080, v{T+13}
v_add_u32 v{vH2st}, v{T+13}, v{vRtR}
s_lshl_b32 s7, {sW}, 4
s_add_u32 s7, s7, 256
v_add_u32 v{T+13}, s7, v{n_v}
v_lshlrev_b32 v{vRtR2}, 4, v{T+13}
v_mul_u32_u24 v{T+13}, 205, v{T+13}
v_lshrrev_b32 v{T+13}, 11, v{T+13}
v_mul_u32_u24 v{T+13}, 10080, v{T+13}
v_add_u32 v{vH2st2}, v{T+13}, v{vRtR2}
v_cmp_eq_u32 vcc, 0, v{kq_v}
v_mov_b32 v{T+13}, {OOB}
v_cndmask_b32 v{vH2st2}, v{T+13}, v{vH2st2}, vcc
v_add_u32 v{vRtR}, {L_RT}, v{vRtR}
v_add_u32 v{vRtR2}, {L_RT}, v{vRtR2}
v_lshrrev_b32 v{vH1s2}, 1, v{vL16}
v_add_u32 v{vH1s2}, {1024-128}, v{vH1s2}
v_add_u32 v{T+14}, -1, v{kq_v}
v_cmp_gt_u32 vcc, 2, v{T+14}
v_cndmask_b32 v{vH1s2}, v{T+13}, v{vH1s2}, vcc
v_and_b32 v{T+13}, 1, v{kq_v}
v_lshlrev_b32 v{T+13}, 7, v{T+13}
v_and_b32 v{T+14}, 3, v0
v_lshl_add_u32 v{vStR}, v{T+14}, 5, v{T+13}
v_add_u32 v{vStR}, {L_ST}, v{vStR}
v_bfe_u32 v{T+14}, v0, 2, 1
v_lshl_add_u32 v{T+13}, v{T+14}, 6, v{T+13}
v_bfe_u32 v{T+14}, v0, 3, 1
v_lshl_add_u32 v{T+13}, v{T+14}, 5, v{T+13}
v_bfe_u32 v{T+14}, v0, 5, 1
v_lshl_add_u32 v{T+13}, v{T+14}, 2, v{T+13}
s_lshl_b32 s7, {sW}, 3
s_add_u32 s7, s7, {L_ST}
v_add_u32 v{vStW}, s7, v{T+13}
s_and_b32 s93, {sM}, 7
s_mul_i32 s93, s93, 160
s_lshl_b32 s94, {sSig}, 7
s_add_u32 s92, s94, {sM}
s_mul_i32 s92, s92, 1280
s_mul_i32 {sH1st}, {sW}, 40960
s_add_u32 {sH1st}, {sH1st}, s92
s_add_u32 {sH1st}, {sH1st}, {H1BASE}
s_lshl_b32 s96, s95, 5
s_add_u32 s96, s96, s94
s_mul_i32 {sH1ld0}, s96, 1280
s_add_u32 {sH1ld0}, {sH1ld0}, s93
s_add_u32 s96, s54, {H1BASE}
s_add_u32 {sH1ld0}, {sH1ld0}, s96
s_add_u32 {sH1ld1}, {sH1ld0}, 20480
s_lshl_b32 s96, s95, 8
s_add_u32 s96, s96, {sSig}
s_mul_i32 {sH2st}, s96, 1280
s_add_u32 {sH2st}, {sH2st}, s93
s_add_u32 {sH2st}, {sH2st}, {H2BASE}
s_mov_b32 {sH2ld}, {H2BASE-BUF}
s_lshl_b32 s7, {sSig}, 2
s_add_u32 s55, s7, {sW}
s_lshl_b32 s55, s55, 5
s_add_u32 s55, s55, {sM}
s_lshl_b32 s55, s55, 2
s_add_u32 s55, s55, {HF}
s_add_u32 s56, s95, s7
s_lshl_b32 s56, s56, 7
s_add_u32 s56, s56, {HF}
s_add_u32 {sCl}, {sH2st}, {2*BUF}
s_and_b32 s7, {sG}, 127
s_lshr_b32 s7, s7, 2
s_sub_u32 s94, 0, {sG}
s_and_b32 s94, s94, 127
s_lshr_b32 s94, s94, 2
s_bfe_u32 s95, {sG}, 0x10001
s_cmp_eq_u32 {sType}, 1
s_cselect_b32 s94, s7, s94
s_cselect_b32 s96, 2, s95
s_cselect_b32 s95, 3, s95
s_lshl_b32 s96, s96, 5
s_lshl_b32 s95, s95, 5
s_add_u32 s7, s7, s96
s_add_u32 s94, s94, s95
s_mul_i32 s7, s7, 10240
s_mul_i32 s94, s94, 10240
v_mov_b32 v{T+12}, s7
v_mov_b32 v{T+13}, s94
v_cmp_le_u32 vcc, 2, v{kq_v}
s_lshl_b32 s95, {sW}, 8
s_lshl_b32 s96, {sW}, 6
v_cndmask_b32 v{T+12}, v{T+12}, v{T+13}, vcc
s_add_u32 s96, s96, 1024
v_add_u32 v{T+12}, v{T+12}, v{T+9}
v_lshlrev_b32 v{T+13}, 4, v{n_v}
v_add3_u32 v{vH2ld}, v{T+12}, v{T+13}, s95
v_lshlrev_b32 v{T+13}, 2, v{n_v}
v_add3_u32 v{vH2ld5}, v{T+12}, v{T+13}, s96
v_add_u32 v{vTB}, {L_TB}, v{vL16}
v_lshrrev_b32 v252, 2, v{vL16}
v_and_b32 v252, 127, v252
s_lshl_b32 s7, {sW}, 2
v_add_u32 v{T+2}, s7, v{vTB}
""")
sst('prex')
for hi in range(2):
    for ch in range(2):
        for rio in range(2):
            a(f'ds_write_b32 v{T+2}, v{G+8+2*(2*hi+ch)+rio} offset:{L_CM-L_TB+((hi*2+rio)*2+ch)*1024}')
a('s_waitcnt vmcnt(3) lgkmcnt(0)\ns_barrier')
sst('bart')
for i in range(4): a(f'ds_read_b128 {vr(S1r+4*i)}, v{vTB} offset:{1024*i}')
for i in range(9): a(f'ds_read_b128 {vr(A2r+4*i)}, v{vTB} offset:{1024*(T_A2+i)}')
for i in range(2): a(f'ds_read_b128 {vr(B1r+4*i)}, v{vTB} offset:{1024*(T_B1+i)}')
for i in range(8): a(f'ds_read_b128 {vr(CM+4*i)}, v{vTB} offset:{L_CM-L_TB+1024*i}')
a(f'ds_read_b128 {vr(A3r)}, v{vTB} offset:{1024*T_A3L}')
for i in (2, 1, 0): a(f'v_lshrrev_b32 v{vV+2*i+1}, 16, v{vV+i}\nv_and_b32 v{vV+2*i}, 0xffff, v{vV+i}')
a(f's_cmp_eq_u32 {sW}, 3\ns_cselect_b32 s7, 0x80008000, 0\ns_waitcnt lgkmcnt(11)')
for i in range(18): a(f'v_xor_b32 v{A2r+2*i+1}, s7, v{A2r+2*i+1}')
a('s_waitcnt vmcnt(0)\ns_barrier')
sst('bar0')
for kl in range(5):
    for j in range(4): a(f'ds_read_u16_d16_hi v{X+4*kl+j}, v{vXT+kl} offset:{1280*j}')
a('s_waitcnt lgkmcnt(0)')
Sx, Qx = T, T+4
if RP: a('s_mov_b32 m0, 0')
if opt('cnt'): a('s_mov_b32 s86, 0\ns_mov_b32 s88, 0')
a('L_loop:')
stamp('top', True)
if opt('sca', 0):
    for j in range(4): a(f'v_mul_f32 v{Qx+j}, v{X+16+j}, v{X+16+j}')
    for j in range(4): a(f'v_add_f32 v{Sx+j}, v{X+16+j}, v{X+j}')
    for j in range(4): a(f'v_fmac_f32 v{Qx+j}, v{X+j}, v{X+j}')
else:
    for p in range(2): a(f'v_pk_mul_f32 {v2(Qx+2*p)}, {v2(X+16+2*p)}, {v2(X+16+2*p)}')
for kl in range(1 if opt('sca', 0) else 0, 4):
    for p in range(2):
        b = X+4*kl+2*p
        a(f'v_pk_add_f32 {v2(Sx+2*p)}, {v2(X+16+2*p) if kl == 0 else v2(Sx+2*p)}, {v2(b)}')
        a(f'v_pk_fma_f32 {v2(Qx+2*p)}, {v2(b)}, {v2(b)}, {v2(Qx+2*p)}')
for j in range(4): a(f'v_permlane32_swap_b32 v{Sx+j}, v{Qx+j}')
for p in range(2): a(f'v_pk_add_f32 {v2(Sx+2*p)}, {v2(Sx+2*p)}, {v2(Qx+2*p)}')
def dpp(d, s, ctl, bank): a(f'v_add_f32_dpp v{d}, v{s}, v{s} {ctl} row_mask:0xf bank_mask:{bank:#x}')
dpp(Sx, Sx, 'row_ror:8', 3); dpp(Sx, Sx+1, 'row_ror:8', 12); dpp(Sx+2, Sx+2, 'row_ror:8', 3); dpp(Sx+2, Sx+3, 'row_ror:8', 12)
dpp(Sx, Sx, 'row_shl:4', 5); dpp(Sx, Sx+2, 'row_shr:4', 10)
dpp(Sx, Sx, 'quad_perm:[1,0,3,2]', 15); dpp(Sx, Sx, 'quad_perm:[2,3,0,1]', 15)
a(f"""
ds_write_b32 v{vStW}, v{Sx}
s_waitcnt lgkmcnt(0)
s_barrier
""")
stamp('bar1', True)
P = T+8; RS = T+16; NB = T+20
a(f"""
ds_read_b128 {vr(P)}, v{vStR}
ds_read_b128 {vr(P+4)}, v{vStR} offset:16
s_waitcnt lgkmcnt(1)
v_pk_add_f32 {v2(P)}, {v2(P)}, {v2(P+2)}
s_waitcnt lgkmcnt(0)
v_pk_add_f32 {v2(P+4)}, {v2(P+4)}, {v2(P+6)}
v_pk_add_f32 {v2(P)}, {v2(P)}, {v2(P+4)}
v_mul_f32 v{P}, {sInv}, v{P}
v_fma_f32 v{P+1}, v{P+1}, {sInv}, v{vEps}
v_fma_f32 v{P+1}, -v{P}, v{P}, v{P+1}
v_max_f32 v{P+1}, v{P+1}, v{vEps}
v_rsq_f32 v{P+1}, v{P+1}
v_mul_f32 v{P}, -v{P}, v{P+1}
""")
for j in range(4): a(f'v_mov_b32_dpp v{RS+j}, v{P+1} quad_perm:[{j},{j},{j},{j}] row_mask:0xf bank_mask:0xf')
for j in range(4): a(f'v_mov_b32_dpp v{NB+j}, v{P} quad_perm:[{j},{j},{j},{j}] row_mask:0xf bank_mask:0xf')
N_ = T+24
D0, D1, DC, DE = T, T+4, T+8, T+12
for kl in range(5):
    for p in range(2): a(f'v_pk_fma_f32 {v2(N_+4*kl+2*p)}, {v2(X+4*kl+2*p)}, {v2(RS+2*p)}, {v2(NB+2*p)}')
def cvtn(kl):
    for p in range(2): a(f'v_cvt_pk_f16_f32 v{Bo+2*kl+p}, v{N_+4*kl+2*p}, v{N_+4*kl+2*p+1}')
cvtn(0); cvtn(1); cvtn(2)
mfma(D0, S1r, Bo, None); cvtn(3); mfma(DC, S1r+4, Bo, None); cvtn(4)
mfma(D1, S1r, Bo+4, None); mfma(DC, S1r+8, Bo+4, DC)
a(f's_cmp_lg_u32 {sFix}, 0')
W_ = T+44
mfma(DE, S1r+12, Bo+8, None)
a(f'v_cvt_pk_f16_f32 v{W_}, v{D0}, v{D0+1}')
a(f's_cbranch_scc0 L_fix\nL_nofix:')
a(f"""
v_cvt_pk_f16_f32 v{W_+1}, v{D0+2}, v{D0+3}
ds_write_b32 v{vV}, v{W_}
ds_write_b32 v{vV}, v{W_+1} offset:3200
v_cvt_pk_f16_f32 v{W_+2}, v{D1}, v{D1+1}
v_cvt_pk_f16_f32 v{W_+3}, v{D1+2}, v{D1+3}
v_cvt_pk_f16_f32 v{W_+4}, v{DC}, v{DC+1}
v_cvt_pk_f16_f32 v{W_+5}, v{DC+2}, v{DC+3}
ds_write_b32 v{vV+1}, v{W_+2}
ds_write_b32 v{vV+1}, v{W_+3} offset:3200
v_cvt_pk_f16_f32 v{W_+6}, v{DE}, v{DE+1}
v_cvt_pk_f16_f32 v{W_+7}, v{DE+2}, v{DE+3}
ds_write_b32 v{vV+2}, v{W_+4}
ds_write_b32 v{vV+3}, v{W_+5}
ds_write_b32 v{vV+4}, v{W_+6}
ds_write_b32 v{vV+5}, v{W_+7}
""")
stamp('s1w', True)
a(f's_cmp_eq_u32 {sLayer}, 0\ns_waitcnt lgkmcnt(0)\ns_barrier')
stamp('bar2', True)
Ad = T; Tr = T+12; Ti = T+24; B2 = Tr; O = T; Pt = T+36
a(f"""
ds_read_b128 {vr(Ad)}, v{vVrd}
ds_read_b128 {vr(Ad+4)}, v{vVrd} offset:1280
ds_read_b128 {vr(Ad+8)}, v{vVrd2}
s_cbranch_scc1 L_l0b
L_l0b_ret:
""")
for blk in range(3):
    a(f's_waitcnt lgkmcnt({2-blk})')
    mfma(Tr+4*blk, Ad+4*blk, B1r, None); mfma(Ti+4*blk, Ad+4*blk, B1r+4, None)
for ch in range(3):
    for p in range(2): a(f'v_pk_mul_f32 {v2(Pt+4*ch+2*p)}, {v2(Tr+4*ch+2*p)}, {v2(TWc+4*ch+2*p)}')
    for p in range(2): a(f'v_pk_fma_f32 {v2(Pt+4*ch+2*p)}, {v2(Ti+4*ch+2*p)}, {v2(TWs+4*ch+2*p)}, {v2(Pt+4*ch+2*p)}')
    for p in range(2): a(f'v_pk_mul_f32 {v2(Ti+4*ch+2*p)}, {v2(Ti+4*ch+2*p)}, {v2(TWc+4*ch+2*p)}')
    for p in range(2): a(f'v_pk_fma_f32 {v2(Ti+4*ch+2*p)}, {v2(Tr+4*ch+2*p)}, {v2(TWs+4*ch+2*p)}, {v2(Ti+4*ch+2*p)} neg_lo:[1,0,0] neg_hi:[1,0,0]')
def cv2(ch, i): a(f'v_cvt_pk_f16_f32 v{B2+4*ch+i}, v{Pt+4*ch+i}, v{Ti+4*ch+i}')
def st2(blk, ch): mfma(O+4*blk, A2r+(blk*3+ch)*4, B2+4*ch, None if ch == 0 else O+4*blk)
for i in range(4): cv2(0, i)
cv2(1, 0); cv2(1, 1)
st2(2, 0); cv2(1, 2); cv2(1, 3); st2(0, 0); cv2(2, 0); cv2(2, 1); st2(1, 0); cv2(2, 2); cv2(2, 3)
st2(2, 1); st2(0, 1); st2(2, 2); st2(0, 2); st2(1, 1); st2(1, 2)
a(f's_mov_b32 {sSpin}, {SPIN}\ns_add_u32 {sH2ld}, {sH2ld}, {BUF}\ns_cmp_lg_u32 {sMode}, 0')
Wo = T+48
def cvo(i): a(f'v_cvt_pk_f16_f32 v{Wo+i}, v{O+2*i}, v{O+2*i+1}')
def tg(i): a(f'v_and_or_b32 v{Wo+i}, v{Wo+i}, -2, {sTag}')
cvo(4); cvo(5); tg(5); cvo(0); cvo(1)
a(f'v_cndmask_b32 v{Wo}, v{Wo}, v{Wo+4}, {sSlot}')
tg(4); tg(1); tg(0); cvo(2); cvo(3); tg(2); tg(3)
a(f"""
s_cbranch_scc1 L_st_slow
buffer_store_dwordx2 {v2(Wo+4)}, v{vH1s2}, {SWS}, {sH1st} offen{H1F}
buffer_store_dwordx4 {vr(Wo)}, v{vL16}, {SWS}, {sH1st} offen{H1F}
L_cphase:
""")
stamp('h1st', True)
Ca = T+12; Dm = T+20; K_ = T+36
a(f"""
s_xor_b32 {sH1st}, {sH1st}, {H1STR}
s_cmp_eq_u32 {sLayer}, 0
s_cbranch_scc1 L_l0c
L_l0c_ret:
""")
if opt('ack1', 1): a('s_waitcnt vmcnt(0)')
if opt('d1'): a(f's_sleep {opt("d1")}')
a('L_poll1:')
for ch in range(2):
    for u in range(4):
        a(f'buffer_load_dword v{Ca+4*ch+u}, v{vC1ld}, {SWS}, {sH1ld0 if ch == 0 else sH1ld1} offen offset:{1280*u} sc1')
if opt('mask1'): a('s_mov_b64 exec, -1')
a(f's_sub_u32 {sSpin}, {sSpin}, 1\ns_cbranch_scc1 L_poll1_to\ns_waitcnt vmcnt(4)')
tt = sum((((i >> 2 & 1) ^ (i & 1)) & ((i >> 1 & 1) ^ (i & 1))) << i for i in range(8))
def cm(hi, ch, rio):
    d = Dm + (hi*2+rio)*4
    mfma(d, Ca+4*ch, CM+((hi*2+rio)*2+ch)*4, None if ch == 0 else d)
def xa(i): a(f'v_bitop3_b32 v{K_+i}, v{Ca+2*i}, v{Ca+2*i+1}, {sFlip} bitop3:{tt:#x}')
cm(0, 0, 0); xa(0); cm(0, 0, 1); xa(1); cm(1, 0, 0)
a(f'v_bitop3_b32 v{K_}, v{K_}, v{K_+1}, 1 bitop3:0x80')
cm(1, 0, 1)
a('s_waitcnt vmcnt(0)')
cm(0, 1, 0); xa(2); cm(0, 1, 1); xa(3)
cm(1, 1, 0)
a(f'v_bitop3_b32 v{K_}, v{K_}, v{K_+2}, v{K_+3} bitop3:0x80')
a(f'v_cmp_eq_u32 vcc, 0, v{K_}')
cm(1, 1, 1)
a('s_cbranch_vccnz L_poll1_re\nL_poll1_done:')
stamp('h1ok', True)
for hi in range(2):
    for i in range(4): a(f'v_cvt_pk_f16_f32 v{K_+4*hi+i}, v{Dm+8*hi+i}, v{Dm+8*hi+4+i}')
    for i in range(4): a(f'v_or_b32 v{K_+4*hi+i}, 1, v{K_+4*hi+i}')
    a(f'ds_write_b128 v{vRtW}, {vr(K_+4*hi)} offset:{2560*hi}')
a(f"""
s_waitcnt lgkmcnt(0)
s_barrier
ds_read_b128 {vr(T)}, v{vRtR}
ds_read_b128 {vr(T+4)}, v{vRtR2}
s_waitcnt lgkmcnt(1)
buffer_store_dwordx4 {vr(T)}, v{vH2st}, {SWS}, {sH2st} offen sc1
s_waitcnt lgkmcnt(0)
buffer_store_dwordx4 {vr(T+4)}, v{vH2st2}, {SWS}, {sH2st} offen sc1
""")
stamp('h2st', True)
CLN = f's_mov_b32 {sCl}, {OOB}' if opt('h3', 1) else f's_add_u32 {sCl}, {sCl}, {BUF}'
a(f"""
buffer_store_dwordx4 {vr(vZc)}, v{vH2st}, {SWS}, {sCl} offen sc1
buffer_store_dwordx4 {vr(vZc)}, v{vH2st2}, {SWS}, {sCl} offen sc1
{CLN}
s_mov_b32 {sSpin}, {SPIN}
s_add_u32 {sLayer}, {sLayer}, 1
{f's_mov_b32 m0, {sLayer}' if RP else ''}
s_add_u32 {sH2st}, {sH2st}, {BUF}
s_xor_b32 {sH1ld0}, {sH1ld0}, {H1STR}
s_xor_b32 {sH1ld1}, {sH1ld1}, {H1STR}
s_cmp_ge_u32 {sLayer}, 2
s_cselect_b32 {sTag}, 0, 1
s_cselect_b32 {sFlip}, -1, 0
s_cmp_eq_u32 {sLayer}, 1
s_cbranch_scc1 L_l0d
L_l0d_ret:
{'' if opt('noack2') else 's_waitcnt vmcnt(2)'}
""")
stamp('h2ack', True)
if opt('d2'): a(f's_sleep {opt("d2")}')
a('L_poll2:')
Lh = T+8; K2 = T+28
for u in range(4): a(f'buffer_load_dword v{Lh+16+u}, v{vH2ld5}, {SWS}, {sH2ld} offen offset:{1280*u} sc1')
for u in range(4): a(f'buffer_load_dwordx4 {vr(Lh+4*u)}, v{vH2ld}, {SWS}, {sH2ld} offen offset:{1280*u} sc1')
def and3(d, x, y, z): a(f'v_bitop3_b32 v{d}, v{x}, v{y}, {z if isinstance(z, str) else "v%d" % z} bitop3:0x80')
a(f's_sub_u32 {sSpin}, {sSpin}, 1\ns_cbranch_scc1 L_poll2_to\ns_waitcnt vmcnt(3)')
and3(K2, Lh+16, Lh+17, '1'); and3(K2+1, Lh+18, Lh+19, Lh); and3(K2, K2, Lh+1, Lh+2); and3(K2, K2, K2+1, Lh+3)
a(f'v_and_b32 v{Lh}, v{vMask0}, v{Lh}\ns_waitcnt vmcnt(2)')
and3(K2, K2, Lh+4, Lh+5); and3(K2, K2, Lh+6, Lh+7)
a(f'v_and_b32 v{Lh+4}, v{vMask0}, v{Lh+4}\nv_swap_b32 v{Lh+1}, v{Lh+4}\ns_waitcnt vmcnt(1)')
and3(K2, K2, Lh+8, Lh+9); and3(K2, K2, Lh+10, Lh+11)
a(f'v_and_b32 v{Lh+8}, v{vMask0}, v{Lh+8}\nv_swap_b32 v{Lh+2}, v{Lh+8}\nv_swap_b32 v{Lh+6}, v{Lh+9}\ns_waitcnt vmcnt(0)')
and3(K2, K2, Lh+12, Lh+13); and3(K2, K2, Lh+14, Lh+15)
a(f"""
v_and_b32 v{Lh+12}, v{vMask0}, v{Lh+12}
v_cmp_eq_u32 vcc, 0, v{K2}
v_swap_b32 v{Lh+3}, v{Lh+12}
s_cbranch_vccnz L_poll2_re
L_poll2_done:
""")
stamp('h2ok', True)
mfma(X+16, A3r, Lh+16, X+16)
a(f'v_swap_b32 v{Lh+7}, v{Lh+13}')
mfma(X, A3r, Lh, X)
a(f'v_swap_b32 v{Lh+11}, v{Lh+14}')
mfma(X+4, A3r, Lh+4, X+4)
a(f's_cmp_lt_u32 {sLayer}, {NLAYER}')
mfma(X+8, A3r, Lh+8, X+8); mfma(X+12, A3r, Lh+12, X+12)
a('s_cbranch_scc1 L_loop')
F = T
for kl in (4, 0, 1, 2, 3):
    for p in range(2): a(f'v_cvt_pk_bf16_f32 v{F+2*kl+p}, v{X+4*kl+2*p}, v{X+4*kl+2*p+1}')
    for p in range(2):
        a(f'ds_write_b16 v{vXT+kl}, v{F+2*kl+p} offset:{2560*p}')
        a(f'ds_write_b16_d16_hi v{vXT+kl}, v{F+2*kl+p} offset:{2560*p+1280}')
a('s_waitcnt lgkmcnt(0)\ns_barrier')
for i in range(3): a(f'ds_read_b128 {vr(T+12+4*i)}, v{vRtR} offset:{L_XT-L_RT+4096*i}')
for i in range(3): a(f's_waitcnt lgkmcnt({2-i})\nbuffer_store_dwordx4 {vr(T+12+4*i)}, v{vG+i}, {SO}, 0 offen{OF}')
def stamp_dump(hk):
    if hk: a(f's_memtime s[{60+2*nst.index("end")}:{61+2*nst.index("end")}]\ns_memrealtime s[{60+2*nst.index("rend")}:{61+2*nst.index("rend")}]\ns_waitcnt lgkmcnt(0)')
    a(f's_lshl_b32 s7, s2, 7\ns_add_u32 s7, s7, {STAMP_OFF}\nv_mov_b32 v1, 0\ns_mov_b64 exec, 1')
    for i in range(len(nst)): a(f'v_mov_b32 v2, s{60+2*i}\nbuffer_store_dword v2, v1, {SWS}, s7 offen offset:{4*i}')
    if opt('cnt'): a(f'v_mov_b32 v2, s86\nbuffer_store_dword v2, v1, {SWS}, s7 offen offset:120\nv_mov_b32 v2, s88\nbuffer_store_dword v2, v1, {SWS}, s7 offen offset:124')
if STAMPS:
    a('s_waitcnt vmcnt(0)'); stamp('end'); stamp('rend', real=True)
    a(f's_waitcnt lgkmcnt(0)\ns_cmp_lg_u32 {sW}, {opt("swave")}\ns_cbranch_scc1 L_end')
    stamp_dump(False)
if RP:
    if RP == 'end': a('s_waitcnt vmcnt(0)\ns_memrealtime s[62:63]')
    if RP == 'top': a(f's_mov_b32 s62, s{80+RPL}')
    if RP == 'h2ok': a(f's_mov_b32 s62, s{81+RPL}')
    a(f's_waitcnt lgkmcnt(0)\ns_cmp_lg_u32 {sW}, 0\ns_cbranch_scc1 L_end\ns_lshl_b32 s7, s2, 3\ns_add_u32 s7, s7, {STAMP_OFF}\nv_mov_b32 v2, s60\nv_mov_b32 v3, s62\ns_mov_b64 exec, 1\nbuffer_store_dwordx2 v[2:3], off, {SWS}, s7')
a('L_end:\ns_endpgm')
a('L_fix:\ns_nop 7')
mfma(T+24, DEL, Bo, None); mfma(T+28, DEL+4, Bo, None)
a('s_mov_b32 exec_lo, 0x00010001\ns_mov_b32 exec_hi, 0x00010001')
for p in range(2): a(f'v_pk_add_f32 {v2(D0+2*p)}, {v2(D0+2*p)}, {v2(T+24+2*p)}')
for p in range(2): a(f'v_pk_add_f32 {v2(DC+2*p)}, {v2(DC+2*p)}, {v2(T+28+2*p)}')
a(f's_mov_b64 exec, -1\nv_cvt_pk_f16_f32 v{W_}, v{D0}, v{D0+1}\ns_branch L_nofix')
a(f"""
L_l0b:
v_mov_b32 v{T+54}, {L_MODE}
ds_read_b32 v{T+55}, v{T+54} offset:{L_OWN-L_MODE}
ds_read_b32 v253, v252 offset:{L_EXP}
ds_read_b32 v{T+54}, v{T+54}
s_waitcnt lgkmcnt(0)
v_readfirstlane_b32 {sMode}, v{T+54}
s_branch L_l0b_ret
L_l0c:
s_cmp_lg_u32 {sMode}, 0
s_mov_b64 exec, 1
s_waitcnt vmcnt(0)
s_cbranch_scc1 L_l0c_slow
buffer_store_dword v{T+55}, off, {SWS}, s55
L_l0c_p:
s_mov_b64 exec, -1
L_l0c_poll:
buffer_load_dword v{T+54}, v252, {SWS}, s56 offen sc1
s_sub_u32 {sSpin}, {sSpin}, 1
s_cbranch_scc1 L_poll1_to
s_waitcnt vmcnt(0)
v_cmp_ne_u32 vcc, v{T+54}, v253
s_cbranch_vccz L_poll1
s_sleep {BK}
s_branch L_l0c_poll
L_l0c_slow:
buffer_store_dword v{T+55}, off, {SWS}, s55 sc1
s_branch L_l0c_p
L_l0d:
v_mov_b32 v{T+50}, {L_GO}
L_l0d_spin:
ds_read_b32 v{T+51}, v{T+50}
s_waitcnt lgkmcnt(0)
v_cmp_eq_u32 vcc, 0, v{T+51}
s_cbranch_vccnz L_l0d_spin
s_branch L_l0d_ret
L_st_slow:
buffer_store_dwordx4 {vr(Wo)}, v{vL16}, {SWS}, {sH1st} offen sc1
buffer_store_dwordx2 {v2(Wo+4)}, v{vH1s2}, {SWS}, {sH1st} offen sc1
s_waitcnt vmcnt(0)
s_branch L_cphase
L_poll1_re:
{CNT1}
{'s_mov_b64 exec, vcc' if opt('mask1') else f's_sleep {BK}'}
s_branch L_poll1
L_poll2_re:
{CNT2}
s_sleep {BK}
s_branch L_poll2
L_poll1_to:
s_waitcnt vmcnt(0)
s_branch L_poll1_done
L_poll2_to:
s_waitcnt vmcnt(0)
s_branch L_poll2_done
""")
H = 8
def fhash(dst, src): a(f'v_mul_lo_u32 v{dst}, v{src}, s50\nv_add_u32 v{dst}, s51, v{dst}')
def hs_group(lbl, x3, pre=False):
    a(f"""
s_mov_b32 exec_hi, 0
s_mov_b32 {sSpin}, {SPIN}
{'s_branch ' + lbl + '_chk' if pre else ''}
{lbl}:
s_sleep {BK}
buffer_load_dwordx3 v[{H}:{H+2}], v{vL16}, {SWS}, s54 offen sc1
s_sub_u32 {sSpin}, {sSpin}, 1
s_cbranch_scc1 {lbl}_to
s_waitcnt vmcnt(0)
{lbl}_chk:
""")
    fhash(H, H)
    a(f"""
v_xor_b32 v{H}, v{H}, v{H+(2 if x3 else 1)}
v_cmp_lt_u32 vcc, 15, v{H}
s_cbranch_vccnz {lbl}
s_branch {lbl}_done
{lbl}_to:
s_waitcnt vmcnt(0)
{lbl}_done:
v_lshrrev_b32 v{H+3}, 2, v{vL16}
ds_write_b32 v{H+3}, v{H+1} offset:{L_EXP}
v_and_b32 v{H+3}, 15, v{H+1}
v_cmp_ne_u32 vcc, s6, v{H+3}
s_mov_b64 exec, -1
""")
def hs_all(lbl, pre=False):
    a(f's_mov_b32 {sSpin}, {SPIN}')
    if pre: a(f's_branch {lbl}_w')
    a(f'{lbl}:')
    for i, r in enumerate(('s92', 's93', 's95', 's96')): a(f'buffer_load_dwordx2 {v2(H+8+2*i)}, v{vL16}, {SWS}, {r} offen sc1')
    a(f's_sub_u32 {sSpin}, {sSpin}, 1\ns_cbranch_scc1 {lbl}_done\n{lbl}_w:\ns_waitcnt vmcnt(0)')
    for i in range(4): fhash(H+8+2*i, H+8+2*i)
    for i in range(4): a(f'v_xor_b32 v{H+8+2*i}, v{H+8+2*i}, v{H+9+2*i}')
    a(f"""
v_or3_b32 v{H}, v{H+8}, v{H+10}, v{H+12}
v_or_b32 v{H}, v{H}, v{H+14}
v_cmp_lt_u32 vcc, 15, v{H}
s_cbranch_vccz {lbl}_done
s_sleep {BK}
s_branch {lbl}
{lbl}_done:
s_waitcnt vmcnt(0)
""")
def flag_store(v, soff, off):
    a(f's_mov_b64 exec, 1\ns_waitcnt vmcnt(0)\nbuffer_store_dword v{v}, off, {SWS}, {soff} offset:{off} sc1\ns_mov_b64 exec, -1')
def hstamp(n):
    if opt('hstamp'): a(f's_memtime s[{60+2*nst.index(n)}:{61+2*nst.index(n)}]')
a('L_hk:')
if opt('prio', 1): a('s_setprio 3')
for i in range(4): a(f'v_mov_b32 v{vZ+i}, 0')
a(f"""
s_lshl_b32 {sGi}, {sSig}, 5
s_add_u32 {sGi}, {sGi}, {sM}
s_lshl_b32 s97, {sGi}, 4
s_add_u32 s97, s97, {FLAGS}
s_mul_i32 s94, {sGi}, 5120
s_add_u32 {sCl}, s94, {H2BASE+BUF}
s_add_u32 s94, s94, {H1BASE}
v_lshlrev_b32 v{H+18}, 8, v{vL16}
s_mov_b64 exec, 3
s_waitcnt lgkmcnt(0)
{WSADD}
buffer_load_dword v{H+16}, v{H+18}, {SWS}, s97 offen
s_mov_b64 exec, -1
v_lshlrev_b32 v{H+4}, 3, v{vL16}
v_min_u32 v{H+21}, 4992, v{H+4}
s_lshl_b32 s7, {sSig}, 9
s_add_u32 s7, s7, {HF}
{'' if opt('nopf') else f'buffer_load_dword v{H+27}, v{H+21}, {SWS}, s94 offen'}
v_min_u32 v{H+21}, 384, v{H+4}
buffer_load_dword v{H+28}, v{H+21}, {SWS}, s7 offen
""")
a('L_hk2:')
if opt('lowp', 1): a('s_setprio 0')
a(f"""
s_add_u32 s98, s94, {H1STR}
s_getreg_b32 s6, hwreg(HW_REG_XCC_ID, 0, 4)
s_mov_b32 s92, {FLAGS+0x1000}
s_mov_b32 s93, {FLAGS+0x1400}
s_mov_b32 s95, {FLAGS+0x1800}
s_mov_b32 s96, {FLAGS+0x1c00}
s_mov_b32 s50, 0x9e3779b1
s_mov_b32 s51, 0x7f4a7c15
v_mov_b32 v{H+1}, {L_MODE}
ds_write_b32 v{H+1}, v{vZ} offset:4
s_lshr_b32 s52, {sM}, 3
s_lshl_b32 s52, s52, 8
s_add_u32 s52, s52, {sSig}
s_mul_i32 s52, s52, 1280
s_and_b32 s53, {sM}, 7
s_mul_i32 s53, s53, 160
s_add_u32 s52, s52, s53
s_add_u32 s52, s52, {H2BASE}
s_movk_i32 s53, 10080
s_lshl_b32 s54, {sSig}, 9
s_add_u32 s54, s54, {FLAGS}
""")
for i in range(5):
    a(f"""v_add_u32 v{H+22+i}, {1024*i}, v{vL16}
v_mul_u32_u24 v{H+21}, 205, v{H+22+i}
v_lshrrev_b32 v{H+21}, 15, v{H+21}
v_mad_u32_u24 v{H+22+i}, v{H+21}, s53, v{H+22+i}""")
hstamp('top')
a(f's_waitcnt vmcnt({1 if opt("nopf") else 2}) lgkmcnt(0)')
fhash(H+5, H+16)
a(f'v_and_or_b32 v{H+5}, v{H+5}, -16, s6')
def flag_lane(lane, off):
    a(f's_mov_b64 exec, {1 << lane}\ns_waitcnt vmcnt(0)\nbuffer_store_dword v{H+5}, v{H+18}, {SWS}, s97 offen offset:{off} sc1\ns_mov_b64 exec, -1')
def hs_issue():
    for i, r in enumerate(('s92', 's93', 's95', 's96')): a(f'buffer_load_dwordx2 {v2(H+8+2*i)}, v{vL16}, {SWS}, {r} offen sc1')
hstamp('bar1')
a(f's_mov_b64 exec, 1\nbuffer_store_dword v{H+5}, v{H+18}, {SWS}, s97 offen offset:4 sc1\nv_mov_b32 v{H+1}, {L_OWN}\nds_write_b32 v{H+1}, v{H+5}\ns_mov_b64 exec, -1')
hstamp('s1w')
a(f'v_lshlrev_b32 v{H+19}, 17, v{vL16}\ns_lshl_b32 s7, s2, 7\ns_mov_b64 exec, 3\nbuffer_load_dword v{H+20}, v{H+19}, {SO}, s7 offen\ns_mov_b64 exec, -1')
if opt('wst', 0): a(f's_mov_b64 exec, 62\nbuffer_load_dword v{H+29}, v{H+19}, {SWS}, s7 offen\ns_mov_b64 exec, -1')
if opt('pf1', 1) == 5: a(f'v_lshlrev_b32 v{H+12}, 3, v{vL16}\nv_min_u32 v{H+12}, 4992, v{H+12}\nbuffer_load_dword v{H+27}, v{H+12}, {SWS}, s98 offen')
NE = opt('early', 0); NT_ = 3 + opt('more', 0)
def cl(k):
    if k == 0:
        for i in range(5): a(f'buffer_store_dwordx4 {vr(vZ)}, v{H+22+i}, {SWS}, s52 offen sc1')
    elif k == 2:
        if opt('pf1', 1) == 4: a(f'v_lshlrev_b32 v{H+12}, 3, v{vL16}\nv_min_u32 v{H+12}, 4992, v{H+12}\nbuffer_load_dword v{H+27}, v{H+12}, {SWS}, s98 offen')
        clean5('s98', '')
    else: clean5(sCl); a(f's_add_u32 {sCl}, {sCl}, {BUF}')
for k in range(NE): cl(k)
a(f"""
s_barrier
s_barrier
s_mov_b32 exec_hi, 0
buffer_load_dwordx3 v[{H}:{H+2}], v{vL16}, {SWS}, s54 offen sc1
s_mov_b64 exec, -1
""")
if opt('pf0') == 1: a(f'v_lshlrev_b32 v{H+12}, 3, v{vL16}\nv_min_u32 v{H+12}, 4992, v{H+12}\nbuffer_load_dword v{H+27}, v{H+12}, {SWS}, s94 offen')
CL = opt('clate', 3)
for k in range(NE, CL): cl(k)
a('s_barrier')
if opt('pf0') == 2: a(f'v_lshlrev_b32 v{H+12}, 3, v{vL16}\nv_min_u32 v{H+12}, 4992, v{H+12}\nbuffer_load_dword v{H+27}, v{H+12}, {SWS}, s94 offen')
for k in range(max(NE, CL), 3): cl(k)
a(f's_mov_b32 exec_hi, 0\ns_waitcnt vmcnt({5*(3-NE) + (1 if opt("pf1", 1) == 4 else 0) + (1 if opt("pf0") else 0)})')
hstamp('bar2')
hs_group('L_hs', False, True)
a(f's_cmp_lg_u32 vcc_lo, 0\ns_cselect_b32 {sMode}, 1, {FORCE_SLOW}')
hstamp('h1st')
a(f"""
v_mov_b32 v{H}, {sMode}
v_mov_b32 v{H+1}, {L_MODE}
ds_write_b32 v{H+1}, v{H}
s_cmp_eq_u32 {sMode}, 0
s_cbranch_scc1 L_hk_go
""")
clean5('s98')
a('L_hk_go:\ns_waitcnt lgkmcnt(0)\ns_barrier')
flag_lane(1, 4)
a('s_barrier')
if opt('pf1', 1) == 3: a(f'v_lshlrev_b32 v{H+12}, 3, v{vL16}\nv_min_u32 v{H+12}, 4992, v{H+12}\nbuffer_load_dword v{H+27}, v{H+12}, {SWS}, s98 offen')
hs_all('L_hs2')
a(f'v_mov_b32 v{H}, 1\nv_mov_b32 v{H+1}, {L_GO}\nds_write_b32 v{H+1}, v{H}')
hstamp('h1ok')
if opt('pf1', 1) == 2: a(f'v_lshlrev_b32 v{H+12}, 3, v{vL16}\nv_min_u32 v{H+12}, 4992, v{H+12}\nbuffer_load_dword v{H+27}, v{H+12}, {SWS}, s98 offen')
a('s_barrier')
if opt('pf1', 1) == 1: a(f'v_lshlrev_b32 v{H+12}, 3, v{vL16}\nv_min_u32 v{H+12}, 4992, v{H+12}\nbuffer_load_dword v{H+27}, v{H+12}, {SWS}, s98 offen')
if opt('h3', 1):
    a(f's_add_u32 {sCl}, {sCl}, {BUF}'); clean5(sCl)
a(f"""
v_add_u32 v{H+16}, 1, v{H+16}
s_mov_b64 exec, 3
s_barrier
s_waitcnt vmcnt(0)
s_barrier
s_barrier
buffer_store_dword v{H+16}, v{H+18}, {SWS}, s97 offen{' sc1' if opt('bsc1', 1) else ''}
s_barrier
s_barrier
{WB}
""")
if opt('hstamp'): stamp_dump(True)
a('s_endpgm\nL_codeend:')

if opt('hfront', 1):
    li = [k for k, i in enumerate(a.ins) if i.text in ('L_hk:', 'L_hk2:')]
    hk = a.ins[li[0]:li[1]]
    rest = a.ins[:li[0]] + a.ins[li[1]:]
    b = [k for k, i in enumerate(rest) if i.text == 's_cbranch_scc1 L_hk'][0]
    a.ins = rest[:b] + [Ins('s_cbranch_scc0 L_main')] + hk + [Ins('s_branch L_hk2'), Ins('L_main:')] + rest[b+1:]
if opt('nodma'): a.ins = [i for i in a.ins if not i.op.startswith('global_load_lds')]
if opt('noclean'):
    import re as _re
    keep = []
    for i in a.ins:
        if i.op == 'buffer_store_dwordx4' and i.toks[0] in (vr(vZ), vr(vZc)):
            keep.append(Ins(_re.sub(r's\[16:19\], s\d+', 's[16:19], s100', i.text)))
        else: keep.append(i)
    a.ins = keep
    k = [j for j, i in enumerate(a.ins) if i.text.startswith('s_mov_b32 s19')][0]
    a.ins.insert(k, Ins(f's_mov_b32 s100, {OOB}'))
def inline_block(lbl, endlbl_next):
    idx = {i.text: k for k, i in enumerate(a.ins) if i.label}
    b0 = idx[lbl + ':']; b1 = idx[endlbl_next + ':']
    blk = a.ins[b0:b1]
    rest = a.ins[:b0] + a.ins[b1:]
    k = [j for j, i in enumerate(rest) if i.text == f's_cbranch_scc1 {lbl}'][0]
    if blk[-1].text == f's_branch {lbl}_ret': blk = blk[:-1]
    a.ins = rest[:k] + [Ins(f's_cbranch_scc0 {lbl}_ret')] + blk + rest[k+1:]
INL = opts.get('inl', '')
if 'b' in INL: inline_block('L_l0b', 'L_l0c')
if 'c' in INL: inline_block('L_l0c', 'L_l0d')
if 'd' in INL: inline_block('L_l0d', 'L_st_slow')
NT = opts.get('nt', '')
def addnt(pred):
    for k, i in enumerate(a.ins):
        if pred(i): a.ins[k] = Ins(i.text + ' nt')
if 't' in NT: addnt(lambda i: i.op.startswith('global_load_lds') or i.op in ('global_load_dwordx3', 'global_load_dwordx4'))
if 'c' in NT: addnt(lambda i: i.op == 'global_load_dword')
if 'p' in NT: addnt(lambda i: i.op == 'buffer_load_dword' and i.toks[0] in (f'v{H+27}', f'v{H+28}'))
if 'e' in NT: addnt(lambda i: i.op == 'buffer_load_dword' and i.toks[0] in (f'v{H+16}', f'v{H+20}'))
if 'z' in NT: addnt(lambda i: i.op == 'buffer_store_dwordx4' and i.toks[0] in (vr(vZ), vr(vZc)) and 'sc1' in i.text)
if 'd' in NT: addnt(lambda i: i.op == 'buffer_store_dwordx4' and sH2st in i.toks and i.toks[0] not in (vr(vZ), vr(vZc)))
if 'l' in NT: addnt(lambda i: i.op.startswith('buffer_load') and sH2ld in i.toks)
if opt('align', 1): print('align', align_pass(a, KNAME + ':\n'))

DOC = """;
;    equal id%8) -> [radix-32] -> hand-off 2 (all workgroups).
;  * hand-offs carry a tag bit in every dword and are polled with sc1 loads.  Buffers are zeroed inside the launch; the
;    XCC id; otherwise every store is sc1, so any placement is correct.  All polling loops are bounded.
"""
if opt('la'):
    from asmlib import sizes_of
    sz = sizes_of(a, KNAME + ':\n'); addr = 0; k = 0
    for j, i in enumerate(a.ins):
        if i.text == 'L_loop:': break
        if not i.label: addr += sz[k]; k += 1
    pad = ((opt('lo') - addr) % opt('la'))//4
    w = [q for q, i in enumerate(a.ins[:j]) if i.text.startswith('s_waitcnt vmcnt(0)')][-1]
    for _ in range(pad): a.ins.insert(w, Ins('s_nop 0'))
    print('loop was at', addr, 'pad', pad)
hdr = open('interleave_layers__spectral_fnet__spectral_fnet__prompt.s.ref').read().split('; Override')[0]
out = hdr + DOC + ('; STAMPS ' + ' '.join(nst) + '\n' if STAMPS else '') + f'; @launch grid=(256,1,1) block=(320,1,1) lds={LDS_BYTES}\n'
out += f'.amdgcn_target "amdgcn-amd-amdhsa--gfx950"\n.text\n.globl {KNAME}\n.p2align 8\n.type {KNAME},@function\n{KNAME}:\n'
out += a.text()
if RP:
    out = out.replace('; @launch grid=(256,1,1) block=(320,1,1) lds=', f'; @launch kernel={KNAME} grid=(256,1,1) block=(320,1,1) lds=').replace('\n.amdgcn_target', '\n; @launch kernel=reveal_kernel grid=(1,1,1) block=(256,1,1) lds=64\n.amdgcn_target', 1)
    out += f'''.globl reveal_kernel
.p2align 8
.type reveal_kernel,@function
reveal_kernel:
  s_cmp_lg_u32 s2, 0
  s_cbranch_scc1 LR_end
  s_load_dwordx2 s[8:9], s[0:1], 96
  s_mov_b32 s10, {WS_BYTES}
  s_mov_b32 s11, 0x20000
  s_mov_b32 s3, {STAMP_OFF}
  v_lshlrev_b32 v1, 3, v0
  v_mov_b32 v4, 0
  v_mov_b32 v5, -1
  v_mov_b32 v6, {0 if opt('rpmax', 1) else -1}
  ds_write_b32 v4, v5
  ds_write_b32 v4, v6 offset:4
  s_waitcnt lgkmcnt(0)
  buffer_load_dwordx2 v[2:3], v1, s[8:11], s3 offen
  s_barrier
  s_waitcnt vmcnt(0)
  ds_min_u32 v4, v2
  ds_{'max' if opt('rpmax', 1) else 'min'}_u32 v4, v3 offset:4
  s_waitcnt lgkmcnt(0)
  s_barrier
  ds_read_b64 v[2:3], v4
  s_waitcnt lgkmcnt(0)
  v_sub_u32 v2, v3, v2
  v_min_u32 v2, 5000, v2
  v_mul_u32_u24 v2, 10, v2
  s_memrealtime s[12:13]
  v_readfirstlane_b32 s16, v2
  s_waitcnt lgkmcnt(0)
LR_spin:
  s_memrealtime s[14:15]
  s_waitcnt lgkmcnt(0)
  s_sub_u32 s17, s14, s12
  s_cmp_lt_u32 s17, s16
  s_cbranch_scc1 LR_spin
LR_end:
  s_endpgm
'''
out += f'''.section .rodata,"a"
.p2align 6
.amdhsa_kernel {KNAME}
  .amdhsa_next_free_vgpr 256
  .amdhsa_next_free_sgpr 102
  .amdhsa_accum_offset 256
  .amdhsa_group_segment_fixed_size 0
  .amdhsa_kernarg_size 104
  .amdhsa_user_sgpr_count 2
  .amdhsa_user_sgpr_kernarg_segment_ptr 1
  .amdhsa_system_sgpr_workgroup_id_x 1
.end_amdhsa_kernel
''' + '''.p2align 6
.amdhsa_kernel reveal_kernel
  .amdhsa_next_free_vgpr 16
  .amdhsa_next_free_sgpr 32
  .amdhsa_accum_offset 16
  .amdhsa_group_segment_fixed_size 0
  .amdhsa_kernarg_size 104
  .amdhsa_user_sgpr_count 2
  .amdhsa_user_sgpr_kernarg_segment_ptr 1
  .amdhsa_system_sgpr_workgroup_id_x 1
.end_amdhsa_kernel
''' * (1 if RP else 0) + '''.p2align 10
tbl:
'''
for f in blocks:
    for i in range(0, 256, 8): out += '.long ' + ','.join(f'{int(x):#x}' for x in f[i:i+8]) + '\n'
open(sys.argv[1], 'w').write(out)
print('instrs', len(a.ins), 'nops inserted', a.nops, 'table blocks', len(blocks), 'bytes', len(out))
```

```python
import sys, struct
import numpy as np
from design import *
from asmlib import Asm, align_pass, Ins

KNAME = "interleave_layers__spectral_fnet__spectral_fnet__prompt_kernel"
opts = dict(a.split('=') for a in sys.argv[2:] if '=' in a)
def opt(k, d=0): return int(opts.get(k, d))
STAMPS = opt('stamps'); FORCE_SLOW = opt('slow'); NLAYER = opt('layers', 4); SPIN = opt('spin', 50000); BK = opt('bk', 1); SLAYER = opt('slayer')
SST = opt('sstart')
def f2u(f): return struct.unpack('<I', struct.pack('<f', f))[0]
BUF = 0x200000 if opt('wst', 0) else 1310720
FLAGS = 4096; H1BASE = 0x40000; H1STR = 0x200000; H2BASE = 0x410000; WS_BYTES = H2BASE + 3*BUF + 1310720
STAMP_OFF = WS_BYTES
if STAMPS or opts.get('rp'): WS_BYTES += 256*128
L_V = 0; L_ST = 9600; L_MODE = 9856; L_GO = 9860; L_OWN = 9864; L_JUNK = 9872; L_EXP = 15104; HF = FLAGS + 0x2000; L_RT = 9984; L_XT = 15360; L_TB = 25600; L_CM = L_TB + 16*1024; LDS_BYTES = L_CM + 8192
OOB = 0x40000000
WB = ''
if opt('wb', 3) == 1: WB = 's_barrier\ns_barrier\ns_barrier\nbuffer_wbl2 sc1\ns_waitcnt vmcnt(0)'
if opt('wb', 3) == 2: WB = 's_cmp_lg_u32 s5, 0\ns_cbranch_scc1 L_end\ns_barrier\ns_barrier\ns_barrier\nbuffer_wbl2 sc1\ns_waitcnt vmcnt(0)'
if opt('wb', 3) == 4: WB = 's_cmp_lg_u32 s5, 0\ns_cbranch_scc1 L_end\ns_barrier\ns_barrier\ns_barrier\nbuffer_wbl2 sc1\ns_barrier\ns_waitcnt vmcnt(0)'
if opt('wb', 3) == 5: WB = 's_cmp_lg_u32 s5, 0\ns_cbranch_scc1 L_end\ns_barrier\nbuffer_wbl2 sc1\ns_barrier\ns_barrier\nbuffer_wbl2 sc1\ns_barrier\ns_waitcnt vmcnt(0)'
if opt('wb', 3) == 6: WB = 's_cmp_lg_u32 s5, 0\ns_cbranch_scc1 L_end\ns_barrier\nbuffer_wbl2 sc1\ns_barrier\ns_barrier\ns_barrier\nbuffer_wbl2 sc1'
if opt('wb', 3) == 7: WB = 's_and_b32 s7, s5, 7\ns_cmp_lg_u32 s7, 0\ns_cbranch_scc1 L_end\ns_barrier\nbuffer_wbl2 sc1\ns_barrier\ns_barrier\ns_waitcnt vmcnt(0)'
if opt('wb', 3) == 3: WB = 's_cmp_lg_u32 s5, 0\ns_cbranch_scc1 L_end\ns_barrier\nbuffer_wbl2 sc1\ns_barrier\ns_barrier\ns_waitcnt vmcnt(0)'
CNT1 = 's_lshl_b32 s7, s29, 3\ns_lshl_b32 s7, 1, s7\ns_add_u32 s86, s86, s7' if opt('cnt') else ''
CNT2 = 's_lshl_b32 s7, s29, 3\ns_sub_u32 s7, s7, 8\ns_lshl_b32 s7, 1, s7\ns_add_u32 s88, s88, s7' if opt('cnt') else ''
XF = ' ' + opts.get('xf', 'nt').replace('+', ' ')
OF = ' ' + opts.get('of', 'nt').replace('+', ' ')
H1F = ' ' + opts['h1f'] if 'h1f' in opts else ''
WSADD = f's_add_u32 s16, s16, {opt("wsoff") << 20}\ns_addc_u32 s17, s17, 0' if opt('wsoff') else ''
def vaddr(col): return (col % 40)*80 + (col//40)*4
def opA(M):
    h = M.astype(np.float16).view(np.uint16).astype(np.uint32)
    out = np.zeros((64, 4), np.uint32)
    for l in range(64):
        r = h[l % 16, 8*(l//16):8*(l//16)+8]
        out[l] = r[0::2] | (r[1::2] << 16)
    return out
def opB(N): return opA(N.T)
blocks = []
def add(b): blocks.append(np.asarray(b, np.uint32).reshape(256)); return len(blocks)-1
n_ = S1_mats(False); s_ = S1_mats(True)
def a3_idx(sig, m):
    g = unit_g(sig, m)
    if g == 0: return 9
    if g == 128: return 8
    return (g >> 7) + (0 if g % 4 == 1 else 4)
a3 = {}
for sig in range(8):
    for m in range(32):
        M = A3(sig, m)*HSCALE; i = a3_idx(sig, m)
        if i in a3: assert np.allclose(a3[i], M), (sig, m)
        a3[i] = M
for M in (n_[0], n_[1], n_[2], E_mat(False)): add(opA(M))
T_A3L = add(opA(a3[0]))
Bre, Bim = B1_mats(); T_B1 = add(opB(Bre)); add(opB(Bim))
T_A2 = len(blocks)
M = A2_mats6(0)/HSCALE; M2 = A2_mats6(20)/HSCALE
sgn = np.array([(-1.0)**((k % 8)//2) for k in range(32)])
assert np.allclose(M2, M*sgn)
for blk in range(3):
    for ch in range(3): add(opA(M[blk, ch]))
assert len(blocks) == 16
T_S1S = len(blocks)
for M in (s_[0], s_[1], s_[2], E_mat(True)): add(opA(M))
T_DEL = add(opA(s_[3])); add(opA(s_[4]))
T_A3 = len(blocks)
for i in range(10): add(opA(a3[i]))
T_ADDR = len(blocks)
at = np.zeros((2, 256, 4), np.uint32)
for ty, (sig, m) in enumerate(((2, 1), (1, 0))):
    for tid in range(256):
        w, l = divmod(tid, 64); n, mq = l % 16, l//16
        v = [vaddr(acol(sig, m, mq//2, 64*w+4*n+2*bop+(mq % 2))) for bop in range(2)]
        v += [6400 + vaddr(acol(sig, m, mq % 2, 64*w+4*n+2*(mq//2)+sub)) for sub in range(2)]
        k5 = 256 + 16*w + n
        if mq < 2: v += [vaddr(acol(sig, m, mq, k5)), 3200 + vaddr(acol(sig, m, mq, k5))]
        elif mq == 2: v += [6400 + vaddr(acol(sig, m, 0, k5)), 6400 + vaddr(acol(sig, m, 1, k5))]
        else: v += [L_JUNK + 4*n, L_JUNK + 4*n]
        at[ty, tid, :3] = [v[0] | (v[1] << 16), v[2] | (v[3] << 16), v[4] | (v[5] << 16)]
for i in range(8): add(at.reshape(-1)[256*i:256*i+256])
for i in range(640): assert (i*205) >> 14 == i//80
for i in range(320): assert (i*205) >> 11 == i//10

vL16, vH1s2, vH2ld, vH2ld5, vC1ld, vRtW, vRtR, vRtR2, vH2st, vH2st2, vStR, vStW = range(1, 13)
vVrd, vVrd2, vEps = 13, 14, 15
vV = 16
vXT = 22
vMask0 = 27; vG = 28
vTB = 31
vZc = 248
X = 32
A3r = 52; S1r = 56; B1r = 72; TWc = 80; TWs = 92; A2r = 104; CM = 140; DEL = 172
Bo = 180
T = 192
vZ = 4
def vr(b, n=4): return f'v[{b}:{b+n-1}]'
def v2(b): return f'v[{b}:{b+1}]'
sW, sSig, sM, sG, sType, sLayer, sMode = 's3', 's4', 's5', 's26', 's27', 's29', 's30'
sH1st, sH1ld0, sH1ld1, sH2st, sH2ld, sTag, sFlip, sSpin = 's31', 's32', 's33', 's34', 's35', 's36', 's37', 's38'
sCl, sGi, sInv, sFix = 's44', 's46', 's40', 's41'
sSlot = 's[42:43]'
SX, SO, SWS, STB = 's[8:11]', 's[12:15]', 's[16:19]', 's[24:25]'
HW = 4
a = Asm()
nst = []
RP = opts.get('rp'); RPL = opt('rpl')
def stamp(name, inloop=False, real=False):
    if RP:
        if name == 'start': a('s_memrealtime s[60:61]')
        if name == RP:
            if inloop: a('s_memrealtime s[90:91]\ns_waitcnt lgkmcnt(0)\ns_movreld_b32 s80, s90')
            else: a('s_memrealtime s[62:63]')
        return
    if SST and inloop and name not in ('top', 'bar1'): return
    if opt('span') and name not in ('start', 'rstart', 'end', 'rend'): return
    if STAMPS:
        i = len(nst); nst.append(name)
        assert i < 16
        ins = f's_{"memrealtime" if real or opt("rt") else "memtime"} s[{60+2*i}:{61+2*i}]'
        a(ins)
LATE = ('h2ack', 'h2ok')
def sst(name):
    if SST or RP: stamp(name)
def clean5(soff, fl=' sc1'):
    for i in range(4): a(f'buffer_store_dwordx4 {vr(vZ)}, v{vL16}, {SWS}, {soff} offen offset:{1024*i}{fl}')
    a(f's_add_u32 s7, {soff}, 4096\nbuffer_store_dwordx4 {vr(vZ)}, v{vL16}, {SWS}, s7 offen{fl}')
def mfma(d, A, B, C): a(f'v_mfma_f32_16x16x32_f16 {vr(d)}, {vr(A)}, {vr(B)}, {"0" if C is None else vr(C)}')

stamp('start'); stamp('rstart', real=True)
n_v, kq_v = T+10, T+11
a(f"""
s_load_dwordx2 s[16:17], s[0:1], 96
s_load_dwordx2 s[8:9], s[0:1], 0
s_load_dwordx2 s[12:13], s[0:1], 80
v_lshrrev_b32 v{T+1}, 6, v0
s_cmp_ge_u32 s2, 256
s_cbranch_scc1 L_end
""")
if opt('cpref', 1):
    a(f"""
s_getpc_b64 s[24:25]
v_lshlrev_b32 v{T+2}, 7, v0
v_min_u32 v{T+2}, L_codeend-{KNAME}-64, v{T+2}
global_load_dword v255, v{T+2}, s[24:25]
""")
a(f"""
v_readfirstlane_b32 {sW}, v{T+1}
v_and_b32 v{T}, 63, v0
s_and_b32 {sSig}, s2, 7
s_lshr_b32 {sM}, s2, 3
v_lshlrev_b32 v{vL16}, 4, v{T}
s_mov_b32 s18, {WS_BYTES}
s_mov_b32 s19, 0x20000
s_mov_b32 s14, 2621440
s_mov_b32 s15, 0x20000
s_cmp_eq_u32 {sW}, {HW}
s_cbranch_scc1 L_hk
s_lshl_b32 s6, {sSig}, 2
s_lshr_b32 s6, 0x9654d210, s6
s_and_b32 s6, s6, 15
s_lshl_b32 {sG}, {sM}, 4
s_add_u32 {sG}, {sG}, s6
s_cmp_eq_u32 {sSig}, 0
s_cselect_b32 s7, 248, 0
s_cmp_ge_u32 {sM}, 16
s_cselect_b32 s7, s7, 0
s_sub_u32 {sG}, {sG}, s7
s_and_b32 {sType}, {sG}, 1
""")
a(f"""
s_getpc_b64 s[24:25]
s_add_u32 s24, s24, tbl@rel32@lo+4
s_addc_u32 s25, s25, tbl@rel32@hi+12
s_lshr_b32 s7, {sG}, 7
s_lshl_b32 s94, {sType}, 2
s_sub_u32 s7, s7, s94
s_add_u32 s7, s7, {4 + T_A3}
s_cmp_eq_u32 {sG}, 128
s_cselect_b32 s7, {8 + T_A3}, s7
s_cmp_eq_u32 {sG}, 0
s_cselect_b32 s7, {9 + T_A3}, s7
s_cselect_b32 s94, {T_S1S*1024}, 0
s_lshl_b32 s7, s7, 10
s_lshl_b32 s95, {sW}, 12
s_cmp_eq_u32 {sW}, 0
s_cselect_b32 s94, s94, s95
s_cmp_eq_u32 {sW}, 1
s_cselect_b32 s7, s7, s94
s_add_u32 m0, s95, {L_TB}
v_add_u32 v{T+2}, s94, v{vL16}
v_add_u32 v{T+3}, s7, v{vL16}
s_lshl_b32 s7, {sType}, 12
s_add_u32 s7, s7, {T_ADDR*1024}
global_load_lds_dwordx4 v{T+3}, {STB}
global_load_lds_dwordx4 v{T+2}, {STB} offset:1024
global_load_lds_dwordx4 v{T+2}, {STB} offset:2048
global_load_lds_dwordx4 v{T+2}, {STB} offset:3072
v_lshl_add_u32 v{T+2}, v0, 4, s7
global_load_dwordx3 v[{vV}:{vV+2}], v{T+2}, {STB}
s_or_b32 {sFix}, s2, {sW}
""")
a(f"""
s_cmp_lg_u32 {sFix}, 0
s_cbranch_scc1 L_nodel
v_add_u32 v{T+2}, {T_DEL*1024}, v{vL16}
global_load_dwordx4 {vr(DEL)}, v{T+2}, {STB}
global_load_dwordx4 {vr(DEL+4)}, v{T+2}, {STB} offset:1024
L_nodel:
""")
a(f"""
s_sub_u32 s92, 0, {sG}
s_and_b32 s92, s92, 511
s_cmp_eq_u32 {sG}, 0
s_cselect_b32 s92, 256, s92
s_mul_i32 s92, s92, 1280
s_mul_i32 s93, {sG}, 1280
s_sub_u32 s92, s92, s93
s_sub_u32 s92, s92, {4*655360}
s_mov_b32 s10, 2621440
s_mov_b32 s11, 0x20000
s_mov_b32 s96, 0x9fb00
v_lshlrev_b32 v{vRtR}, 4, v0
""")
for i in range(3):
    a(f"""v_add_u32 v{T+12}, {256*i}, v0
v_mul_u32_u24 v{T+12}, 205, v{T+12}
v_lshrrev_b32 v{T+12}, 14, v{T+12}
v_mov_b32 v{T+13}, s92
v_cmp_le_u32 vcc, 4, v{T+12}
v_mad_u32_u24 v{T+12}, v{T+12}, s96, v{vRtR}
v_cndmask_b32 v{T+13}, 0, v{T+13}, vcc
v_add3_u32 v{vG+i}, v{T+12}, v{T+13}, s93""".replace(f'v_add_u32 v{T+12}, 0, v0\nv_mul_u32_u24 v{T+12}, 205, v{T+12}', f'v_mul_u32_u24 v{T+12}, 205, v0'))
    if i < 2: a(f's_add_u32 s93, s93, 4096')
a(f"""
""")
sst('prek')
a(f"""
s_waitcnt lgkmcnt(0)
s_lshl_b32 s7, {sW}, 10
s_add_u32 m0, s7, {L_XT}
{WSADD or 's_nop 1'}
buffer_load_dwordx4 v{vG}, {SX}, 0 offen{XF} lds
s_add_u32 m0, s7, {L_XT+4096}
s_cmp_ge_u32 {sW}, 2
buffer_load_dwordx4 v{vG+1}, {SX}, 0 offen{XF} lds
s_cbranch_scc1 L_nox2
s_add_u32 m0, s7, {L_XT+8192}
s_nop 0
buffer_load_dwordx4 v{vG+2}, {SX}, 0 offen{XF} lds
s_branch L_x2
L_nox2:
v_mov_b32 v{vG+2}, {OOB}
buffer_load_dword v254, v{vG+2}, {SX}, 0 offen
L_x2:
""")
sst('xiss')

a(f"""
v_and_b32 v{n_v}, 15, v0
v_bfe_u32 v{kq_v}, v0, 4, 2
s_mul_i32 s94, {sType}, 320
v_lshrrev_b32 v{T+13}, 1, v{kq_v}
v_mul_u32_u24 v{T+14}, s94, v{T+13}
s_lshl_b32 s92, {sW}, 5
v_add3_u32 v{T+12}, v{n_v}, v{T+14}, s92
s_and_b32 s92, {sW}, 1
s_lshl_b32 s92, s92, 3
s_lshr_b32 s93, {sW}, 1
s_lshl_b32 s93, s93, 5
s_add_u32 s92, s92, s93
s_add_u32 s92, s92, 256
v_lshrrev_b32 v{T+17}, 1, v{n_v}
v_and_b32 v{T+18}, 1, v0
v_add3_u32 v{T+17}, v{T+17}, v{T+14}, s92
v_lshl_add_u32 v{T+17}, v{T+18}, 4, v{T+17}
s_xor_b32 s94, {sType}, 1
v_and_b32 v{T+13}, s94, v{T+13}
v_xor_b32 v{T+13}, v{T+13}, v{kq_v}
v_add_u32 v{T+14}, 16, v{T+12}
v_and_b32 v{T+13}, 1, v{T+13}
v_add_u32 v{T+15}, 128, v{T+12}
v_cmp_eq_u32 vcc, 1, v{T+13}
v_add_u32 v{T+16}, 144, v{T+12}
s_mul_i32 s94, s94, 320
""")
ecol = [T+12, T+14, T+15, T+16, T+17]
for kl in range(5): a(f'v_sub_u32 v{T+18+kl}, 640, v{ecol[kl]}')
for kl in range(5): a(f'v_cndmask_b32 v{vXT+kl}, v{ecol[kl]}, v{T+18+kl}, vcc')
a(f"""
v_cmp_gt_u32 vcc, 2, v{kq_v}
v_mov_b32 v{T+17}, s94
v_and_b32 v{T+13}, 1, v{kq_v}
v_cndmask_b32 v{T+17}, 0, v{T+17}, vcc
v_cmp_eq_u32 vcc, 0, v{T+12}
v_mul_u32_u24 v{T+9}, 0x1400, v{T+13}
v_add_u32 v{T+14}, {L_XT}, v{T+9}
v_cndmask_b32 v{vXT}, v{vXT}, v{T+17}, vcc
v_cmp_ne_u32 vcc, 0, v{vXT}
""")
for kl in range(5): a(f'v_lshl_add_u32 v{vXT+kl}, v{vXT+kl}, 1, v{T+14}')
a(f'v_cndmask_b32 v{vMask0}, 0, -1, vcc')
for i in range(20): a(f'v_mov_b32 v{X+i}, 0')
for i in range(4): a(f'v_mov_b32 v{vZc+i}, 0')
a(f"""
s_lshr_b32 s95, {sM}, 3
s_lshl_b32 s7, s95, 2
s_lshr_b32 s7, 0x1120, s7
s_and_b32 s7, s7, 3
s_add_u32 s96, s6, 256
s_cmp_eq_u32 {sSig}, 0
s_cselect_b32 s96, 8, s96
s_lshl_b32 s94, {sW}, 4
s_add_u32 s6, s6, s94
s_add_u32 s96, s96, s94
v_lshl_add_u32 v{T+13}, v{n_v}, 2, s7
v_lshl_add_u32 v{T+14}, v{kq_v}, 6, s6
v_lshl_add_u32 v{T+15}, v{kq_v}, 6, s96
v_add_u32 v{T+12}, 64, v{T+13}
s_mov_b32 s94, {f2u(1/2048):#x}
""")
G = T+24
for hi in range(2):
    for ch in range(2): a(f'v_mul_u32_u24 v{G+2*(2*hi+ch)}, v{T+13-hi}, v{T+14+ch}')
for k in range(4): a(f'v_and_b32 v{G+2*k}, 0x7ff, v{G+2*k}')
for k in range(4): a(f'v_cvt_f32_u32 v{G+2*k}, v{G+2*k}')
for k in range(4): a(f'v_mul_f32 v{G+2*k}, s94, v{G+2*k}')
for k in range(4): a(f'v_sin_f32 v{G+2*k+1}, v{G+2*k}\nv_cos_f32 v{G+2*k}, v{G+2*k}')
for k in range(4): a(f'v_cvt_pk_f16_f32 v{G+8+2*k}, v{G+2*k}, v{G+2*k+1}\nv_cvt_pk_f16_f32 v{G+9+2*k}, -v{G+2*k+1}, v{G+2*k}')
a(f's_cmp_lg_u32 {sSig}, 0\ns_cbranch_scc1 L_cm_done')
for hi in range(2):
    b = G+8+4*hi
    a(f'v_mov_b32 v{b+1}, 0\nv_mov_b32 v{b+3}, v{b+2}\nv_mov_b32 v{b+2}, 0')
a(f"""
v_and_b32 v{T+17}, 1, v0
v_lshlrev_b32 v{T+17}, 4, v{T+17}
v_mov_b32 v{T+18}, 0x3c00
v_lshlrev_b32 v{T+17}, v{T+17}, v{T+18}
v_cmp_gt_u32 vcc, 16, v0
v_cndmask_b32 v{G+8}, v{G+8}, v{T+17}, vcc
v_cndmask_b32 v{G+12}, v{G+12}, v{T+17}, vcc
L_cm_done:
""")
a(f'''
v_lshlrev_b32 v{T+12}, 2, v{kq_v}
v_mul_u32_u24 v{T+12}, v{T+12}, v{n_v}
v_cvt_f32_u32 v{T+12}, v{T+12}
v_cvt_f32_u32 v{T+13}, v{n_v}
v_mul_f32 v{T+12}, {f2u(1/640):#x}, v{T+12}
v_mul_f32 v{T+13}, {f2u(1/640):#x}, v{T+13}
''')
for blk in range(3):
    for i in range(4):
        k = 16*blk + i
        if k == 0: src = T+12
        else:
            src = T+14
            a(f'v_fmamk_f32 v{T+14}, v{T+13}, {f2u(float(k)):#x}, v{T+12}')
        a(f'v_cos_f32 v{TWc+4*blk+i}, v{src}\nv_sin_f32 v{TWs+4*blk+i}, v{src}')
a(f"""
s_mov_b32 {sInv}, {f2u(1/640):#x}
v_mov_b32 v{vEps}, {f2u(1e-5):#x}
v_mov_b32 v{Bo+10}, 0
v_mov_b32 v{Bo+11}, 0
s_mov_b32 {sLayer}, 0
s_mov_b32 {sTag}, 1
s_mov_b32 {sFlip}, 0
s_cmp_lt_u32 {sW}, 2
s_cselect_b64 {sSlot}, 1, 0
s_cselect_b32 s7, 3200, 0
s_cselect_b32 s52, 12, 8
s_cselect_b32 s53, 0, 32
s_lshl_b32 s7, s7, {sW}
v_lshlrev_b32 v{T+12}, 4, v{kq_v}
v_mul_u32_u24 v{vVrd}, 80, v{n_v}
v_add3_u32 v{vVrd}, v{vVrd}, v{T+12}, s7
v_and_b32 v{vVrd2}, 7, v0
v_mul_u32_u24 v{vVrd2}, 80, v{vVrd2}
s_add_u32 s7, s7, 2560
v_add3_u32 v{vVrd2}, v{vVrd2}, v{T+12}, s7
s_mul_i32 s54, s52, {sW}
s_lshl_b32 s54, s54, 2
s_add_u32 s54, s54, s53
s_sub_u32 s7, s52, 1
v_min_u32 v{T+13}, s7, v{n_v}
v_lshlrev_b32 v{T+13}, 2, v{T+13}
s_movk_i32 s7, 5120
v_mad_u32_u24 v{vC1ld}, v{kq_v}, s7, v{T+13}
v_mul_u32_u24 v{vRtW}, 160, v{n_v}
s_add_u32 s7, s54, {L_RT}
v_add3_u32 v{vRtW}, v{vRtW}, v{T+12}, s7
s_lshl_b32 s7, s52, 2
v_cmp_gt_u32 vcc, s7, v{T+12}
v_add_u32 v{T+13}, {L_XT}, v{vL16}
v_cndmask_b32 v{vRtW}, v{T+13}, v{vRtW}, vcc
v_mul_u32_u24 v{T+13}, 205, v0
v_lshrrev_b32 v{T+13}, 11, v{T+13}
v_mul_u32_u24 v{T+13}, 10080, v{T+13}
v_add_u32 v{vH2st}, v{T+13}, v{vRtR}
s_lshl_b32 s7, {sW}, 4
s_add_u32 s7, s7, 256
v_add_u32 v{T+13}, s7, v{n_v}
v_lshlrev_b32 v{vRtR2}, 4, v{T+13}
v_mul_u32_u24 v{T+13}, 205, v{T+13}
v_lshrrev_b32 v{T+13}, 11, v{T+13}
v_mul_u32_u24 v{T+13}, 10080, v{T+13}
v_add_u32 v{vH2st2}, v{T+13}, v{vRtR2}
v_cmp_eq_u32 vcc, 0, v{kq_v}
v_mov_b32 v{T+13}, {OOB}
v_cndmask_b32 v{vH2st2}, v{T+13}, v{vH2st2}, vcc
v_add_u32 v{vRtR}, {L_RT}, v{vRtR}
v_add_u32 v{vRtR2}, {L_RT}, v{vRtR2}
v_lshrrev_b32 v{vH1s2}, 1, v{vL16}
v_add_u32 v{vH1s2}, {1024-128}, v{vH1s2}
v_add_u32 v{T+14}, -1, v{kq_v}
v_cmp_gt_u32 vcc, 2, v{T+14}
v_cndmask_b32 v{vH1s2}, v{T+13}, v{vH1s2}, vcc
v_and_b32 v{T+13}, 1, v{kq_v}
v_lshlrev_b32 v{T+13}, 7, v{T+13}
v_and_b32 v{T+14}, 3, v0
v_lshl_add_u32 v{vStR}, v{T+14}, 5, v{T+13}
v_add_u32 v{vStR}, {L_ST}, v{vStR}
v_bfe_u32 v{T+14}, v0, 2, 1
v_lshl_add_u32 v{T+13}, v{T+14}, 6, v{T+13}
v_bfe_u32 v{T+14}, v0, 3, 1
v_lshl_add_u32 v{T+13}, v{T+14}, 5, v{T+13}
v_bfe_u32 v{T+14}, v0, 5, 1
v_lshl_add_u32 v{T+13}, v{T+14}, 2, v{T+13}
s_lshl_b32 s7, {sW}, 3
s_add_u32 s7, s7, {L_ST}
v_add_u32 v{vStW}, s7, v{T+13}
s_and_b32 s93, {sM}, 7
s_mul_i32 s93, s93, 160
s_lshl_b32 s94, {sSig}, 7
s_add_u32 s92, s94, {sM}
s_mul_i32 s92, s92, 1280
s_mul_i32 {sH1st}, {sW}, 40960
s_add_u32 {sH1st}, {sH1st}, s92
s_add_u32 {sH1st}, {sH1st}, {H1BASE}
s_lshl_b32 s96, s95, 5
s_add_u32 s96, s96, s94
s_mul_i32 {sH1ld0}, s96, 1280
s_add_u32 {sH1ld0}, {sH1ld0}, s93
s_add_u32 s96, s54, {H1BASE}
s_add_u32 {sH1ld0}, {sH1ld0}, s96
s_add_u32 {sH1ld1}, {sH1ld0}, 20480
s_lshl_b32 s96, s95, 8
s_add_u32 s96, s96, {sSig}
s_mul_i32 {sH2st}, s96, 1280
s_add_u32 {sH2st}, {sH2st}, s93
s_add_u32 {sH2st}, {sH2st}, {H2BASE}
s_mov_b32 {sH2ld}, {H2BASE-BUF}
s_lshl_b32 s7, {sSig}, 2
s_add_u32 s55, s7, {sW}
s_lshl_b32 s55, s55, 5
s_add_u32 s55, s55, {sM}
s_lshl_b32 s55, s55, 2
s_add_u32 s55, s55, {HF}
s_add_u32 s56, s95, s7
s_lshl_b32 s56, s56, 7
s_add_u32 s56, s56, {HF}
s_add_u32 {sCl}, {sH2st}, {2*BUF}
s_and_b32 s7, {sG}, 127
s_lshr_b32 s7, s7, 2
s_sub_u32 s94, 0, {sG}
s_and_b32 s94, s94, 127
s_lshr_b32 s94, s94, 2
s_bfe_u32 s95, {sG}, 0x10001
s_cmp_eq_u32 {sType}, 1
s_cselect_b32 s94, s7, s94
s_cselect_b32 s96, 2, s95
s_cselect_b32 s95, 3, s95
s_lshl_b32 s96, s96, 5
s_lshl_b32 s95, s95, 5
s_add_u32 s7, s7, s96
s_add_u32 s94, s94, s95
s_mul_i32 s7, s7, 10240
s_mul_i32 s94, s94, 10240
v_mov_b32 v{T+12}, s7
v_mov_b32 v{T+13}, s94
v_cmp_le_u32 vcc, 2, v{kq_v}
s_lshl_b32 s95, {sW}, 8
s_lshl_b32 s96, {sW}, 6
v_cndmask_b32 v{T+12}, v{T+12}, v{T+13}, vcc
s_add_u32 s96, s96, 1024
v_add_u32 v{T+12}, v{T+12}, v{T+9}
v_lshlrev_b32 v{T+13}, 4, v{n_v}
v_add3_u32 v{vH2ld}, v{T+12}, v{T+13}, s95
v_lshlrev_b32 v{T+13}, 2, v{n_v}
v_add3_u32 v{vH2ld5}, v{T+12}, v{T+13}, s96
v_add_u32 v{vTB}, {L_TB}, v{vL16}
v_lshrrev_b32 v252, 2, v{vL16}
v_and_b32 v252, 127, v252
s_lshl_b32 s7, {sW}, 2
v_add_u32 v{T+2}, s7, v{vTB}
""")
sst('prex')
for hi in range(2):
    for ch in range(2):
        for rio in range(2):
            a(f'ds_write_b32 v{T+2}, v{G+8+2*(2*hi+ch)+rio} offset:{L_CM-L_TB+((hi*2+rio)*2+ch)*1024}')
a('s_waitcnt vmcnt(3) lgkmcnt(0)\ns_barrier')
sst('bart')
for i in range(4): a(f'ds_read_b128 {vr(S1r+4*i)}, v{vTB} offset:{1024*i}')
for i in range(9): a(f'ds_read_b128 {vr(A2r+4*i)}, v{vTB} offset:{1024*(T_A2+i)}')
for i in range(2): a(f'ds_read_b128 {vr(B1r+4*i)}, v{vTB} offset:{1024*(T_B1+i)}')
def late_reads():
    for i in range(8): a(f'ds_read_b128 {vr(CM+4*i)}, v{vTB} offset:{L_CM-L_TB+1024*i}')
    a(f'ds_read_b128 {vr(A3r)}, v{vTB} offset:{1024*T_A3L}')
if not opt('dcm'): late_reads()
for i in (2, 1, 0): a(f'v_lshrrev_b32 v{vV+2*i+1}, 16, v{vV+i}\nv_and_b32 v{vV+2*i}, 0xffff, v{vV+i}')
a(f's_cmp_eq_u32 {sW}, 3\ns_cselect_b32 s7, 0x80008000, 0\ns_waitcnt lgkmcnt({2 if opt("dcm") else 11})')
for i in range(18): a(f'v_xor_b32 v{A2r+2*i+1}, s7, v{A2r+2*i+1}')
sst('pre0')
a('s_waitcnt vmcnt(0)')
sst('xarr')
a('s_barrier')
sst('bar0')
for kl in range(5):
    for j in range(4): a(f'ds_read_u16_d16_hi v{X+4*kl+j}, v{vXT+kl} offset:{1280*j}')
a('s_waitcnt lgkmcnt(0)')
Sx, Qx = T, T+4
if RP: a('s_mov_b32 m0, 0')
if opt('cnt'): a('s_mov_b32 s86, 0\ns_mov_b32 s88, 0')
a('L_loop:')
stamp('top', True)
if opt('sca', 0):
    for j in range(4): a(f'v_mul_f32 v{Qx+j}, v{X+16+j}, v{X+16+j}')
    for j in range(4): a(f'v_add_f32 v{Sx+j}, v{X+16+j}, v{X+j}')
    for j in range(4): a(f'v_fmac_f32 v{Qx+j}, v{X+j}, v{X+j}')
else:
    for p in range(2): a(f'v_pk_mul_f32 {v2(Qx+2*p)}, {v2(X+16+2*p)}, {v2(X+16+2*p)}')
for kl in range(1 if opt('sca', 0) else 0, 4):
    for p in range(2):
        b = X+4*kl+2*p
        a(f'v_pk_add_f32 {v2(Sx+2*p)}, {v2(X+16+2*p) if kl == 0 else v2(Sx+2*p)}, {v2(b)}')
        a(f'v_pk_fma_f32 {v2(Qx+2*p)}, {v2(b)}, {v2(b)}, {v2(Qx+2*p)}')
for j in range(4): a(f'v_permlane32_swap_b32 v{Sx+j}, v{Qx+j}')
for p in range(2): a(f'v_pk_add_f32 {v2(Sx+2*p)}, {v2(Sx+2*p)}, {v2(Qx+2*p)}')
def dpp(d, s, ctl, bank): a(f'v_add_f32_dpp v{d}, v{s}, v{s} {ctl} row_mask:0xf bank_mask:{bank:#x}')
dpp(Sx, Sx, 'row_ror:8', 3); dpp(Sx, Sx+1, 'row_ror:8', 12); dpp(Sx+2, Sx+2, 'row_ror:8', 3); dpp(Sx+2, Sx+3, 'row_ror:8', 12)
dpp(Sx, Sx, 'row_shl:4', 5); dpp(Sx, Sx+2, 'row_shr:4', 10)
dpp(Sx, Sx, 'quad_perm:[1,0,3,2]', 15); dpp(Sx, Sx, 'quad_perm:[2,3,0,1]', 15)
a(f"""
ds_write_b32 v{vStW}, v{Sx}
s_waitcnt lgkmcnt(0)
s_barrier
""")
stamp('bar1', True)
P = T+8; RS = T+16; NB = T+20
a(f"""
ds_read_b128 {vr(P)}, v{vStR}
ds_read_b128 {vr(P+4)}, v{vStR} offset:16
s_waitcnt lgkmcnt(1)
v_pk_add_f32 {v2(P)}, {v2(P)}, {v2(P+2)}
s_waitcnt lgkmcnt(0)
v_pk_add_f32 {v2(P+4)}, {v2(P+4)}, {v2(P+6)}
v_pk_add_f32 {v2(P)}, {v2(P)}, {v2(P+4)}
v_mul_f32 v{P}, {sInv}, v{P}
v_fma_f32 v{P+1}, v{P+1}, {sInv}, v{vEps}
v_fma_f32 v{P+1}, -v{P}, v{P}, v{P+1}
v_max_f32 v{P+1}, v{P+1}, v{vEps}
v_rsq_f32 v{P+1}, v{P+1}
v_mul_f32 v{P}, -v{P}, v{P+1}
""")
for j in range(4): a(f'v_mov_b32_dpp v{RS+j}, v{P+1} quad_perm:[{j},{j},{j},{j}] row_mask:0xf bank_mask:0xf')
for j in range(4): a(f'v_mov_b32_dpp v{NB+j}, v{P} quad_perm:[{j},{j},{j},{j}] row_mask:0xf bank_mask:0xf')
N_ = T+24
D0, D1, DC, DE = T, T+4, T+8, T+12
for kl in range(5):
    for p in range(2): a(f'v_pk_fma_f32 {v2(N_+4*kl+2*p)}, {v2(X+4*kl+2*p)}, {v2(RS+2*p)}, {v2(NB+2*p)}')
def cvtn(kl):
    for p in range(2): a(f'v_cvt_pk_f16_f32 v{Bo+2*kl+p}, v{N_+4*kl+2*p}, v{N_+4*kl+2*p+1}')
cvtn(0); cvtn(1); cvtn(2)
mfma(D0, S1r, Bo, None); cvtn(3); mfma(DC, S1r+4, Bo, None); cvtn(4)
mfma(D1, S1r, Bo+4, None); mfma(DC, S1r+8, Bo+4, DC)
a(f's_cmp_lg_u32 {sFix}, 0')
W_ = T+44
mfma(DE, S1r+12, Bo+8, None)
a(f'v_cvt_pk_f16_f32 v{W_}, v{D0}, v{D0+1}')
a(f's_cbranch_scc0 L_fix\nL_nofix:')
a(f"""
v_cvt_pk_f16_f32 v{W_+1}, v{D0+2}, v{D0+3}
ds_write_b32 v{vV}, v{W_}
ds_write_b32 v{vV}, v{W_+1} offset:3200
v_cvt_pk_f16_f32 v{W_+2}, v{D1}, v{D1+1}
v_cvt_pk_f16_f32 v{W_+3}, v{D1+2}, v{D1+3}
v_cvt_pk_f16_f32 v{W_+4}, v{DC}, v{DC+1}
v_cvt_pk_f16_f32 v{W_+5}, v{DC+2}, v{DC+3}
ds_write_b32 v{vV+1}, v{W_+2}
ds_write_b32 v{vV+1}, v{W_+3} offset:3200
v_cvt_pk_f16_f32 v{W_+6}, v{DE}, v{DE+1}
v_cvt_pk_f16_f32 v{W_+7}, v{DE+2}, v{DE+3}
ds_write_b32 v{vV+2}, v{W_+4}
ds_write_b32 v{vV+3}, v{W_+5}
ds_write_b32 v{vV+4}, v{W_+6}
ds_write_b32 v{vV+5}, v{W_+7}
""")
stamp('s1w', True)
a(f's_cmp_eq_u32 {sLayer}, 0\ns_waitcnt lgkmcnt(0)\ns_barrier')
stamp('bar2', True)
Ad = T; Tr = T+12; Ti = T+24; B2 = Tr; O = T; Pt = T+36
a(f"""
ds_read_b128 {vr(Ad)}, v{vVrd}
ds_read_b128 {vr(Ad+4)}, v{vVrd} offset:1280
ds_read_b128 {vr(Ad+8)}, v{vVrd2}
s_cbranch_scc1 L_l0b
L_l0b_ret:
""")
for blk in range(3):
    a(f's_waitcnt lgkmcnt({2-blk})')
    mfma(Tr+4*blk, Ad+4*blk, B1r, None); mfma(Ti+4*blk, Ad+4*blk, B1r+4, None)
for ch in range(3):
    for p in range(2): a(f'v_pk_mul_f32 {v2(Pt+4*ch+2*p)}, {v2(Tr+4*ch+2*p)}, {v2(TWc+4*ch+2*p)}')
    for p in range(2): a(f'v_pk_fma_f32 {v2(Pt+4*ch+2*p)}, {v2(Ti+4*ch+2*p)}, {v2(TWs+4*ch+2*p)}, {v2(Pt+4*ch+2*p)}')
    for p in range(2): a(f'v_pk_mul_f32 {v2(Ti+4*ch+2*p)}, {v2(Ti+4*ch+2*p)}, {v2(TWc+4*ch+2*p)}')
    for p in range(2): a(f'v_pk_fma_f32 {v2(Ti+4*ch+2*p)}, {v2(Tr+4*ch+2*p)}, {v2(TWs+4*ch+2*p)}, {v2(Ti+4*ch+2*p)} neg_lo:[1,0,0] neg_hi:[1,0,0]')
def cv2(ch, i): a(f'v_cvt_pk_f16_f32 v{B2+4*ch+i}, v{Pt+4*ch+i}, v{Ti+4*ch+i}')
def st2(blk, ch): mfma(O+4*blk, A2r+(blk*3+ch)*4, B2+4*ch, None if ch == 0 else O+4*blk)
for i in range(4): cv2(0, i)
cv2(1, 0); cv2(1, 1)
st2(2, 0); cv2(1, 2); cv2(1, 3); st2(0, 0); cv2(2, 0); cv2(2, 1); st2(1, 0); cv2(2, 2); cv2(2, 3)
st2(2, 1); st2(0, 1); st2(2, 2); st2(0, 2); st2(1, 1); st2(1, 2)
a(f's_mov_b32 {sSpin}, {SPIN}\ns_add_u32 {sH2ld}, {sH2ld}, {BUF}\ns_cmp_lg_u32 {sMode}, 0')
Wo = T+48
def cvo(i): a(f'v_cvt_pk_f16_f32 v{Wo+i}, v{O+2*i}, v{O+2*i+1}')
def tg(i): a(f'v_and_or_b32 v{Wo+i}, v{Wo+i}, -2, {sTag}')
cvo(4); cvo(5); tg(5); cvo(0); cvo(1)
a(f'v_cndmask_b32 v{Wo}, v{Wo}, v{Wo+4}, {sSlot}')
tg(4); tg(1); tg(0); cvo(2); cvo(3); tg(2); tg(3)
a(f"""
s_cbranch_scc1 L_st_slow
buffer_store_dwordx2 {v2(Wo+4)}, v{vH1s2}, {SWS}, {sH1st} offen{H1F}
buffer_store_dwordx4 {vr(Wo)}, v{vL16}, {SWS}, {sH1st} offen{H1F}
L_cphase:
""")
stamp('h1st', True)
Ca = T+12; Dm = T+20; K_ = T+36
a(f"""
s_xor_b32 {sH1st}, {sH1st}, {H1STR}
s_cmp_eq_u32 {sLayer}, 0
s_cbranch_scc1 L_l0c
L_l0c_ret:
""")
if opt('ack1', 1): a('s_waitcnt vmcnt(0)')
if opt('d1'): a(f's_sleep {opt("d1")}')
a('L_poll1:')
for ch in range(2):
    for u in range(4):
        a(f'buffer_load_dword v{Ca+4*ch+u}, v{vC1ld}, {SWS}, {sH1ld0 if ch == 0 else sH1ld1} offen offset:{1280*u} sc1')
if opt('mask1'): a('s_mov_b64 exec, -1')
a(f's_sub_u32 {sSpin}, {sSpin}, 1\ns_cbranch_scc1 L_poll1_to\ns_waitcnt vmcnt(4)')
tt = sum((((i >> 2 & 1) ^ (i & 1)) & ((i >> 1 & 1) ^ (i & 1))) << i for i in range(8))
def cm(hi, ch, rio):
    d = Dm + (hi*2+rio)*4
    mfma(d, Ca+4*ch, CM+((hi*2+rio)*2+ch)*4, None if ch == 0 else d)
def xa(i): a(f'v_bitop3_b32 v{K_+i}, v{Ca+2*i}, v{Ca+2*i+1}, {sFlip} bitop3:{tt:#x}')
cm(0, 0, 0); xa(0); cm(0, 0, 1); xa(1); cm(1, 0, 0)
a(f'v_bitop3_b32 v{K_}, v{K_}, v{K_+1}, 1 bitop3:0x80')
cm(1, 0, 1)
a('s_waitcnt vmcnt(0)')
cm(0, 1, 0); xa(2); cm(0, 1, 1); xa(3)
cm(1, 1, 0)
a(f'v_bitop3_b32 v{K_}, v{K_}, v{K_+2}, v{K_+3} bitop3:0x80')
a(f'v_cmp_eq_u32 vcc, 0, v{K_}')
cm(1, 1, 1)
a('s_cbranch_vccnz L_poll1_re\nL_poll1_done:')
stamp('h1ok', True)
for hi in range(2):
    for i in range(4): a(f'v_cvt_pk_f16_f32 v{K_+4*hi+i}, v{Dm+8*hi+i}, v{Dm+8*hi+4+i}')
    for i in range(4): a(f'v_or_b32 v{K_+4*hi+i}, 1, v{K_+4*hi+i}')
    a(f'ds_write_b128 v{vRtW}, {vr(K_+4*hi)} offset:{2560*hi}')
a(f"""
s_waitcnt lgkmcnt(0)
s_barrier
ds_read_b128 {vr(T)}, v{vRtR}
ds_read_b128 {vr(T+4)}, v{vRtR2}
s_waitcnt lgkmcnt(1)
buffer_store_dwordx4 {vr(T)}, v{vH2st}, {SWS}, {sH2st} offen sc1
s_waitcnt lgkmcnt(0)
buffer_store_dwordx4 {vr(T+4)}, v{vH2st2}, {SWS}, {sH2st} offen sc1
""")
stamp('h2st', True)
CLN = f's_mov_b32 {sCl}, {OOB}' if opt('h3', 1) else f's_add_u32 {sCl}, {sCl}, {BUF}'
a(f"""
buffer_store_dwordx4 {vr(vZc)}, v{vH2st}, {SWS}, {sCl} offen sc1
buffer_store_dwordx4 {vr(vZc)}, v{vH2st2}, {SWS}, {sCl} offen sc1
{CLN}
s_mov_b32 {sSpin}, {SPIN}
s_add_u32 {sLayer}, {sLayer}, 1
{f's_mov_b32 m0, {sLayer}' if RP else ''}
s_add_u32 {sH2st}, {sH2st}, {BUF}
s_xor_b32 {sH1ld0}, {sH1ld0}, {H1STR}
s_xor_b32 {sH1ld1}, {sH1ld1}, {H1STR}
s_cmp_ge_u32 {sLayer}, 2
s_cselect_b32 {sTag}, 0, 1
s_cselect_b32 {sFlip}, -1, 0
s_cmp_eq_u32 {sLayer}, 1
s_cbranch_scc1 L_l0d
L_l0d_ret:
{'' if opt('noack2') else 's_waitcnt vmcnt(2)'}
""")
stamp('h2ack', True)
if opt('d2'): a(f's_sleep {opt("d2")}')
a('L_poll2:')
Lh = T+8; K2 = T+28
for u in range(4): a(f'buffer_load_dword v{Lh+16+u}, v{vH2ld5}, {SWS}, {sH2ld} offen offset:{1280*u} sc1')
for u in range(4): a(f'buffer_load_dwordx4 {vr(Lh+4*u)}, v{vH2ld}, {SWS}, {sH2ld} offen offset:{1280*u} sc1')
def and3(d, x, y, z): a(f'v_bitop3_b32 v{d}, v{x}, v{y}, {z if isinstance(z, str) else "v%d" % z} bitop3:0x80')
a(f's_sub_u32 {sSpin}, {sSpin}, 1\ns_cbranch_scc1 L_poll2_to\ns_waitcnt vmcnt(3)')
and3(K2, Lh+16, Lh+17, '1'); and3(K2+1, Lh+18, Lh+19, Lh); and3(K2, K2, Lh+1, Lh+2); and3(K2, K2, K2+1, Lh+3)
a(f'v_and_b32 v{Lh}, v{vMask0}, v{Lh}\ns_waitcnt vmcnt(2)')
and3(K2, K2, Lh+4, Lh+5); and3(K2, K2, Lh+6, Lh+7)
a(f'v_and_b32 v{Lh+4}, v{vMask0}, v{Lh+4}\nv_swap_b32 v{Lh+1}, v{Lh+4}\ns_waitcnt vmcnt(1)')
and3(K2, K2, Lh+8, Lh+9); and3(K2, K2, Lh+10, Lh+11)
a(f'v_and_b32 v{Lh+8}, v{vMask0}, v{Lh+8}\nv_swap_b32 v{Lh+2}, v{Lh+8}\nv_swap_b32 v{Lh+6}, v{Lh+9}\ns_waitcnt vmcnt(0)')
and3(K2, K2, Lh+12, Lh+13); and3(K2, K2, Lh+14, Lh+15)
a(f"""
v_and_b32 v{Lh+12}, v{vMask0}, v{Lh+12}
v_cmp_eq_u32 vcc, 0, v{K2}
v_swap_b32 v{Lh+3}, v{Lh+12}
s_cbranch_vccnz L_poll2_re
L_poll2_done:
""")
stamp('h2ok', True)
mfma(X+16, A3r, Lh+16, X+16)
a(f'v_swap_b32 v{Lh+7}, v{Lh+13}')
mfma(X, A3r, Lh, X)
a(f'v_swap_b32 v{Lh+11}, v{Lh+14}')
mfma(X+4, A3r, Lh+4, X+4)
a(f's_cmp_lt_u32 {sLayer}, {NLAYER}')
mfma(X+8, A3r, Lh+8, X+8); mfma(X+12, A3r, Lh+12, X+12)
a('s_cbranch_scc1 L_loop')
F = T
for kl in (4, 0, 1, 2, 3):
    for p in range(2): a(f'v_cvt_pk_bf16_f32 v{F+2*kl+p}, v{X+4*kl+2*p}, v{X+4*kl+2*p+1}')
    for p in range(2):
        a(f'ds_write_b16 v{vXT+kl}, v{F+2*kl+p} offset:{2560*p}')
        a(f'ds_write_b16_d16_hi v{vXT+kl}, v{F+2*kl+p} offset:{2560*p+1280}')
a('s_waitcnt lgkmcnt(0)\ns_barrier')
for i in range(3): a(f'ds_read_b128 {vr(T+12+4*i)}, v{vRtR} offset:{L_XT-L_RT+4096*i}')
for i in range(3): a(f's_waitcnt lgkmcnt({2-i})\nbuffer_store_dwordx4 {vr(T+12+4*i)}, v{vG+i}, {SO}, 0 offen{OF}')
def stamp_dump(hk):
    if hk: a(f's_memtime s[{60+2*nst.index("end")}:{61+2*nst.index("end")}]\ns_memrealtime s[{60+2*nst.index("rend")}:{61+2*nst.index("rend")}]\ns_waitcnt lgkmcnt(0)')
    a(f's_lshl_b32 s7, s2, 7\ns_add_u32 s7, s7, {STAMP_OFF}\nv_mov_b32 v1, 0\ns_mov_b64 exec, 1')
    for i in range(len(nst)): a(f'v_mov_b32 v2, s{60+2*i}\nbuffer_store_dword v2, v1, {SWS}, s7 offen offset:{4*i}')
    if opt('cnt'): a(f'v_mov_b32 v2, s86\nbuffer_store_dword v2, v1, {SWS}, s7 offen offset:120\nv_mov_b32 v2, s88\nbuffer_store_dword v2, v1, {SWS}, s7 offen offset:124')
if STAMPS:
    a('s_waitcnt vmcnt(0)'); stamp('end'); stamp('rend', real=True)
    a(f's_waitcnt lgkmcnt(0)\ns_cmp_lg_u32 {sW}, {opt("swave")}\ns_cbranch_scc1 L_end')
    stamp_dump(False)
if RP:
    if RP == 'end': a('s_waitcnt vmcnt(0)\ns_memrealtime s[62:63]')
    if RP == 'top': a(f's_mov_b32 s62, s{80+RPL}')
    if RP == 'h2ok': a(f's_mov_b32 s62, s{81+RPL}')
    a(f's_waitcnt lgkmcnt(0)\ns_cmp_lg_u32 {sW}, 0\ns_cbranch_scc1 L_end\ns_lshl_b32 s7, s2, 3\ns_add_u32 s7, s7, {STAMP_OFF}\nv_mov_b32 v2, s60\nv_mov_b32 v3, s62\ns_mov_b64 exec, 1\nbuffer_store_dwordx2 v[2:3], off, {SWS}, s7')
a('L_end:\ns_endpgm')
a('L_fix:\ns_nop 7')
mfma(T+24, DEL, Bo, None); mfma(T+28, DEL+4, Bo, None)
a('s_mov_b32 exec_lo, 0x00010001\ns_mov_b32 exec_hi, 0x00010001')
for p in range(2): a(f'v_pk_add_f32 {v2(D0+2*p)}, {v2(D0+2*p)}, {v2(T+24+2*p)}')
for p in range(2): a(f'v_pk_add_f32 {v2(DC+2*p)}, {v2(DC+2*p)}, {v2(T+28+2*p)}')
a(f's_mov_b64 exec, -1\nv_cvt_pk_f16_f32 v{W_}, v{D0}, v{D0+1}\ns_branch L_nofix')
a(f"""
L_l0b:
v_mov_b32 v{T+54}, {L_MODE}
ds_read_b32 v{T+55}, v{T+54} offset:{L_OWN-L_MODE}
ds_read_b32 v253, v252 offset:{L_EXP}
ds_read_b32 v{T+54}, v{T+54}
s_waitcnt lgkmcnt(0)
v_readfirstlane_b32 {sMode}, v{T+54}
s_branch L_l0b_ret
L_l0c:
""")
if opt('dcm'): late_reads()
a(f"""
s_cmp_lg_u32 {sMode}, 0
s_mov_b64 exec, 1
s_waitcnt vmcnt(0)
s_cbranch_scc1 L_l0c_slow
buffer_store_dword v{T+55}, off, {SWS}, s55
L_l0c_p:
s_mov_b64 exec, -1
L_l0c_poll:
buffer_load_dword v{T+54}, v252, {SWS}, s56 offen sc1
s_sub_u32 {sSpin}, {sSpin}, 1
s_cbranch_scc1 L_poll1_to
s_waitcnt vmcnt(0) lgkmcnt(0)
v_cmp_ne_u32 vcc, v{T+54}, v253
s_cbranch_vccz L_poll1
s_sleep {BK}
s_branch L_l0c_poll
L_l0c_slow:
buffer_store_dword v{T+55}, off, {SWS}, s55 sc1
s_branch L_l0c_p
L_l0d:
v_mov_b32 v{T+50}, {L_GO}
L_l0d_spin:
ds_read_b32 v{T+51}, v{T+50}
s_waitcnt lgkmcnt(0)
v_cmp_eq_u32 vcc, 0, v{T+51}
s_cbranch_vccnz L_l0d_spin
s_branch L_l0d_ret
L_st_slow:
buffer_store_dwordx4 {vr(Wo)}, v{vL16}, {SWS}, {sH1st} offen sc1
buffer_store_dwordx2 {v2(Wo+4)}, v{vH1s2}, {SWS}, {sH1st} offen sc1
s_waitcnt vmcnt(0)
s_branch L_cphase
L_poll1_re:
{CNT1}
{'s_mov_b64 exec, vcc' if opt('mask1') else f's_sleep {BK}'}
s_branch L_poll1
L_poll2_re:
{CNT2}
s_sleep {BK}
s_branch L_poll2
L_poll1_to:
s_waitcnt vmcnt(0)
s_branch L_poll1_done
L_poll2_to:
s_waitcnt vmcnt(0)
s_branch L_poll2_done
""")
H = 8
def fhash(dst, src): a(f'v_mul_lo_u32 v{dst}, v{src}, s50\nv_add_u32 v{dst}, s51, v{dst}')
def hs_group(lbl, x3, pre=False):
    a(f"""
s_mov_b32 exec_hi, 0
s_mov_b32 {sSpin}, {SPIN}
{'s_branch ' + lbl + '_chk' if pre else ''}
{lbl}:
s_sleep {BK}
buffer_load_dwordx3 v[{H}:{H+2}], v{vL16}, {SWS}, s54 offen sc1
s_sub_u32 {sSpin}, {sSpin}, 1
s_cbranch_scc1 {lbl}_to
s_waitcnt vmcnt(0)
{lbl}_chk:
""")
    fhash(H, H)
    a(f"""
v_xor_b32 v{H}, v{H}, v{H+(2 if x3 else 1)}
v_cmp_lt_u32 vcc, 15, v{H}
s_cbranch_vccnz {lbl}
s_branch {lbl}_done
{lbl}_to:
s_waitcnt vmcnt(0)
{lbl}_done:
v_lshrrev_b32 v{H+3}, 2, v{vL16}
ds_write_b32 v{H+3}, v{H+1} offset:{L_EXP}
v_and_b32 v{H+3}, 15, v{H+1}
v_cmp_ne_u32 vcc, s6, v{H+3}
s_mov_b64 exec, -1
""")
def hs_all(lbl, pre=False):
    a(f's_mov_b32 {sSpin}, {SPIN}')
    if pre: a(f's_branch {lbl}_w')
    a(f'{lbl}:')
    for i, r in enumerate(('s92', 's93', 's95', 's96')): a(f'buffer_load_dwordx2 {v2(H+8+2*i)}, v{vL16}, {SWS}, {r} offen sc1')
    a(f's_sub_u32 {sSpin}, {sSpin}, 1\ns_cbranch_scc1 {lbl}_done\n{lbl}_w:\ns_waitcnt vmcnt(0)')
    for i in range(4): fhash(H+8+2*i, H+8+2*i)
    for i in range(4): a(f'v_xor_b32 v{H+8+2*i}, v{H+8+2*i}, v{H+9+2*i}')
    a(f"""
v_or3_b32 v{H}, v{H+8}, v{H+10}, v{H+12}
v_or_b32 v{H}, v{H}, v{H+14}
v_cmp_lt_u32 vcc, 15, v{H}
s_cbranch_vccz {lbl}_done
s_sleep {BK}
s_branch {lbl}
{lbl}_done:
s_waitcnt vmcnt(0)
""")
def flag_store(v, soff, off):
    a(f's_mov_b64 exec, 1\ns_waitcnt vmcnt(0)\nbuffer_store_dword v{v}, off, {SWS}, {soff} offset:{off} sc1\ns_mov_b64 exec, -1')
def hstamp(n):
    if opt('hstamp'): a(f's_memtime s[{60+2*nst.index(n)}:{61+2*nst.index(n)}]')
a('L_hk:')
if opt('prio', 1): a('s_setprio 3')
for i in range(4): a(f'v_mov_b32 v{vZ+i}, 0')
a(f"""
s_lshl_b32 {sGi}, {sSig}, 5
s_add_u32 {sGi}, {sGi}, {sM}
s_lshl_b32 s97, {sGi}, 4
s_add_u32 s97, s97, {FLAGS}
s_mul_i32 s94, {sGi}, 5120
s_add_u32 {sCl}, s94, {H2BASE+BUF}
s_add_u32 s94, s94, {H1BASE}
v_lshlrev_b32 v{H+18}, 8, v{vL16}
s_mov_b64 exec, 3
s_waitcnt lgkmcnt(0)
{WSADD}
buffer_load_dword v{H+16}, v{H+18}, {SWS}, s97 offen
s_mov_b64 exec, -1
v_lshlrev_b32 v{H+4}, 3, v{vL16}
v_min_u32 v{H+21}, 4992, v{H+4}
s_lshl_b32 s7, {sSig}, 9
s_add_u32 s7, s7, {HF}
{'' if opt('nopf') else f'buffer_load_dword v{H+27}, v{H+21}, {SWS}, s94 offen'}
v_min_u32 v{H+21}, 384, v{H+4}
buffer_load_dword v{H+28}, v{H+21}, {SWS}, s7 offen
""")
a('L_hk2:')
if opt('lowp', 1): a('s_setprio 0')
a(f"""
s_add_u32 s98, s94, {H1STR}
s_getreg_b32 s6, hwreg(HW_REG_XCC_ID, 0, 4)
s_mov_b32 s92, {FLAGS+0x1000}
s_mov_b32 s93, {FLAGS+0x1400}
s_mov_b32 s95, {FLAGS+0x1800}
s_mov_b32 s96, {FLAGS+0x1c00}
s_mov_b32 s50, 0x9e3779b1
s_mov_b32 s51, 0x7f4a7c15
v_mov_b32 v{H+1}, {L_MODE}
ds_write_b32 v{H+1}, v{vZ} offset:4
s_lshr_b32 s52, {sM}, 3
s_lshl_b32 s52, s52, 8
s_add_u32 s52, s52, {sSig}
s_mul_i32 s52, s52, 1280
s_and_b32 s53, {sM}, 7
s_mul_i32 s53, s53, 160
s_add_u32 s52, s52, s53
s_add_u32 s52, s52, {H2BASE}
s_movk_i32 s53, 10080
s_lshl_b32 s54, {sSig}, 9
s_add_u32 s54, s54, {FLAGS}
""")
for i in range(5):
    a(f"""v_add_u32 v{H+22+i}, {1024*i}, v{vL16}
v_mul_u32_u24 v{H+21}, 205, v{H+22+i}
v_lshrrev_b32 v{H+21}, 15, v{H+21}
v_mad_u32_u24 v{H+22+i}, v{H+21}, s53, v{H+22+i}""")
hstamp('top')
a(f's_waitcnt vmcnt({1 if opt("nopf") else 2}) lgkmcnt(0)')
fhash(H+5, H+16)
a(f'v_and_or_b32 v{H+5}, v{H+5}, -16, s6')
def flag_lane(lane, off):
    a(f's_mov_b64 exec, {1 << lane}\ns_waitcnt vmcnt(0)\nbuffer_store_dword v{H+5}, v{H+18}, {SWS}, s97 offen offset:{off} sc1\ns_mov_b64 exec, -1')
def hs_issue():
    for i, r in enumerate(('s92', 's93', 's95', 's96')): a(f'buffer_load_dwordx2 {v2(H+8+2*i)}, v{vL16}, {SWS}, {r} offen sc1')
hstamp('bar1')
a(f's_mov_b64 exec, 1\nbuffer_store_dword v{H+5}, v{H+18}, {SWS}, s97 offen offset:4 sc1\nv_mov_b32 v{H+1}, {L_OWN}\nds_write_b32 v{H+1}, v{H+5}\ns_mov_b64 exec, -1')
hstamp('s1w')
a(f'v_lshlrev_b32 v{H+19}, 17, v{vL16}\ns_lshl_b32 s7, s2, 7\ns_mov_b64 exec, 3\nbuffer_load_dword v{H+20}, v{H+19}, {SO}, s7 offen\ns_mov_b64 exec, -1')
if opt('wst', 0): a(f's_mov_b64 exec, 62\nbuffer_load_dword v{H+29}, v{H+19}, {SWS}, s7 offen\ns_mov_b64 exec, -1')
if opt('pf1', 1) == 5: a(f'v_lshlrev_b32 v{H+12}, 3, v{vL16}\nv_min_u32 v{H+12}, 4992, v{H+12}\nbuffer_load_dword v{H+27}, v{H+12}, {SWS}, s98 offen')
NE = opt('early', 0); NT_ = 3 + opt('more', 0)
def cl(k):
    if k == 0:
        for i in range(5): a(f'buffer_store_dwordx4 {vr(vZ)}, v{H+22+i}, {SWS}, s52 offen sc1')
    elif k == 2:
        if opt('pf1', 1) == 4: a(f'v_lshlrev_b32 v{H+12}, 3, v{vL16}\nv_min_u32 v{H+12}, 4992, v{H+12}\nbuffer_load_dword v{H+27}, v{H+12}, {SWS}, s98 offen')
        clean5('s98', '')
    else: clean5(sCl); a(f's_add_u32 {sCl}, {sCl}, {BUF}')
for k in range(NE): cl(k)
a(f"""
s_barrier
s_barrier
s_mov_b32 exec_hi, 0
buffer_load_dwordx3 v[{H}:{H+2}], v{vL16}, {SWS}, s54 offen sc1
s_mov_b64 exec, -1
""")
if opt('pf0') == 1: a(f'v_lshlrev_b32 v{H+12}, 3, v{vL16}\nv_min_u32 v{H+12}, 4992, v{H+12}\nbuffer_load_dword v{H+27}, v{H+12}, {SWS}, s94 offen')
CL = opt('clate', 3)
for k in range(NE, CL): cl(k)
a('s_barrier')
if opt('pf0') == 2: a(f'v_lshlrev_b32 v{H+12}, 3, v{vL16}\nv_min_u32 v{H+12}, 4992, v{H+12}\nbuffer_load_dword v{H+27}, v{H+12}, {SWS}, s94 offen')
for k in range(max(NE, CL), 3): cl(k)
a(f's_mov_b32 exec_hi, 0\ns_waitcnt vmcnt({5*(3-NE) + (1 if opt("pf1", 1) == 4 else 0) + (1 if opt("pf0") else 0)})')
hstamp('bar2')
hs_group('L_hs', False, True)
a(f's_cmp_lg_u32 vcc_lo, 0\ns_cselect_b32 {sMode}, 1, {FORCE_SLOW}')
hstamp('h1st')
a(f"""
v_mov_b32 v{H}, {sMode}
v_mov_b32 v{H+1}, {L_MODE}
ds_write_b32 v{H+1}, v{H}
s_cmp_eq_u32 {sMode}, 0
s_cbranch_scc1 L_hk_go
""")
clean5('s98')
a('L_hk_go:\ns_waitcnt lgkmcnt(0)\ns_barrier')
flag_lane(1, 4)
a('s_barrier')
if opt('pf1', 1) == 3: a(f'v_lshlrev_b32 v{H+12}, 3, v{vL16}\nv_min_u32 v{H+12}, 4992, v{H+12}\nbuffer_load_dword v{H+27}, v{H+12}, {SWS}, s98 offen')
hs_all('L_hs2')
a(f'v_mov_b32 v{H}, 1\nv_mov_b32 v{H+1}, {L_GO}\nds_write_b32 v{H+1}, v{H}')
hstamp('h1ok')
if opt('pf1', 1) == 2: a(f'v_lshlrev_b32 v{H+12}, 3, v{vL16}\nv_min_u32 v{H+12}, 4992, v{H+12}\nbuffer_load_dword v{H+27}, v{H+12}, {SWS}, s98 offen')
a('s_barrier')
if opt('pf1', 1) == 1: a(f'v_lshlrev_b32 v{H+12}, 3, v{vL16}\nv_min_u32 v{H+12}, 4992, v{H+12}\nbuffer_load_dword v{H+27}, v{H+12}, {SWS}, s98 offen')
if opt('h3', 1):
    a(f's_add_u32 {sCl}, {sCl}, {BUF}'); clean5(sCl)
a(f"""
v_add_u32 v{H+16}, 1, v{H+16}
s_mov_b64 exec, 3
s_barrier
s_waitcnt vmcnt(0)
s_barrier
s_barrier
buffer_store_dword v{H+16}, v{H+18}, {SWS}, s97 offen{' sc1' if opt('bsc1', 1) else ''}
s_barrier
s_barrier
{WB}
""")
if opt('hstamp'): stamp_dump(True)
a('s_endpgm\nL_codeend:')

if opt('hfront', 1):
    li = [k for k, i in enumerate(a.ins) if i.text in ('L_hk:', 'L_hk2:')]
    hk = a.ins[li[0]:li[1]]
    rest = a.ins[:li[0]] + a.ins[li[1]:]
    b = [k for k, i in enumerate(rest) if i.text == 's_cbranch_scc1 L_hk'][0]
    a.ins = rest[:b] + [Ins('s_cbranch_scc0 L_main')] + hk + [Ins('s_branch L_hk2'), Ins('L_main:')] + rest[b+1:]
if opt('nodma'): a.ins = [i for i in a.ins if not i.op.startswith('global_load_lds')]
if opt('noclean'):
    import re as _re
    keep = []
    for i in a.ins:
        if i.op == 'buffer_store_dwordx4' and i.toks[0] in (vr(vZ), vr(vZc)):
            keep.append(Ins(_re.sub(r's\[16:19\], s\d+', 's[16:19], s100', i.text)))
        else: keep.append(i)
    a.ins = keep
    k = [j for j, i in enumerate(a.ins) if i.text.startswith('s_mov_b32 s19')][0]
    a.ins.insert(k, Ins(f's_mov_b32 s100, {OOB}'))
def inline_block(lbl, endlbl_next):
    idx = {i.text: k for k, i in enumerate(a.ins) if i.label}
    b0 = idx[lbl + ':']; b1 = idx[endlbl_next + ':']
    blk = a.ins[b0:b1]
    rest = a.ins[:b0] + a.ins[b1:]
    k = [j for j, i in enumerate(rest) if i.text == f's_cbranch_scc1 {lbl}'][0]
    if blk[-1].text == f's_branch {lbl}_ret': blk = blk[:-1]
    a.ins = rest[:k] + [Ins(f's_cbranch_scc0 {lbl}_ret')] + blk + rest[k+1:]
INL = opts.get('inl', '')
if 'b' in INL: inline_block('L_l0b', 'L_l0c')
if 'c' in INL: inline_block('L_l0c', 'L_l0d')
if 'd' in INL: inline_block('L_l0d', 'L_st_slow')
if opt('single'):
    out_ = []
    for i in a.ins:
        if i.op == 's_xor_b32' and i.toks[2] == str(H1STR): continue
        if i.text.startswith(f's_cmp_ge_u32 {sLayer}, 2'): i = Ins(f's_bitcmp1_b32 {sLayer}, 0')
        if 's98' in i.text and i.op.startswith('buffer_'): i = Ins(i.text.replace('s98', 's100'))
        if i.text == 's_add_u32 s7, s98, 4096': i = Ins('s_mov_b32 s7, s100')
        out_.append(i)
    a.ins = out_
    k = [j for j, i in enumerate(a.ins) if i.text.startswith('s_mov_b32 s19')][0]
    a.ins.insert(k, Ins(f's_mov_b32 s100, {OOB}'))
NT = opts.get('nt', '')
def addnt(pred):
    for k, i in enumerate(a.ins):
        if pred(i): a.ins[k] = Ins(i.text + ' nt')
if 't' in NT: addnt(lambda i: i.op.startswith('global_load_lds') or i.op in ('global_load_dwordx3', 'global_load_dwordx4'))
if 'c' in NT: addnt(lambda i: i.op == 'global_load_dword')
if 'p' in NT: addnt(lambda i: i.op == 'buffer_load_dword' and i.toks[0] in (f'v{H+27}', f'v{H+28}'))
if 'e' in NT: addnt(lambda i: i.op == 'buffer_load_dword' and i.toks[0] in (f'v{H+16}', f'v{H+20}'))
if 'z' in NT: addnt(lambda i: i.op == 'buffer_store_dwordx4' and i.toks[0] in (vr(vZ), vr(vZc)) and 'sc1' in i.text)
if 'd' in NT: addnt(lambda i: i.op == 'buffer_store_dwordx4' and sH2st in i.toks and i.toks[0] not in (vr(vZ), vr(vZc)))
if 'l' in NT: addnt(lambda i: i.op.startswith('buffer_load') and sH2ld in i.toks)
if opt('align', 1): print('align', align_pass(a, KNAME + ':\n'))

DOC = """;
;    equal id%8) -> [radix-32] -> hand-off 2 (all workgroups).
;  * hand-offs carry a tag bit in every dword and are polled with sc1 loads.  Buffers are zeroed inside the launch; the
;    XCC id; otherwise every store is sc1, so any placement is correct.  All polling loops are bounded.
"""
if opt('la'):
    from asmlib import sizes_of
    sz = sizes_of(a, KNAME + ':\n'); addr = 0; k = 0
    for j, i in enumerate(a.ins):
        if i.text == 'L_loop:': break
        if not i.label: addr += sz[k]; k += 1
    pad = ((opt('lo') - addr) % opt('la'))//4
    w = [q for q, i in enumerate(a.ins[:j]) if i.text.startswith('s_waitcnt vmcnt(0)')][-1]
    for _ in range(pad): a.ins.insert(w, Ins('s_nop 0'))
    print('loop was at', addr, 'pad', pad)
hdr = open('interleave_layers__spectral_fnet__spectral_fnet__prompt.s.ref').read().split('; Override')[0]
out = hdr + DOC + ('; STAMPS ' + ' '.join(nst) + '\n' if STAMPS else '') + f'; @launch grid=(256,1,1) block=(320,1,1) lds={LDS_BYTES}\n'
out += f'.amdgcn_target "amdgcn-amd-amdhsa--gfx950"\n.text\n.globl {KNAME}\n.p2align 8\n.type {KNAME},@function\n{KNAME}:\n'
out += a.text()
if RP:
    out = out.replace('; @launch grid=(256,1,1) block=(320,1,1) lds=', f'; @launch kernel={KNAME} grid=(256,1,1) block=(320,1,1) lds=').replace('\n.amdgcn_target', '\n; @launch kernel=reveal_kernel grid=(1,1,1) block=(256,1,1) lds=64\n.amdgcn_target', 1)
    out += f'''.globl reveal_kernel
.p2align 8
.type reveal_kernel,@function
reveal_kernel:
  s_cmp_lg_u32 s2, 0
  s_cbranch_scc1 LR_end
  s_load_dwordx2 s[8:9], s[0:1], 96
  s_mov_b32 s10, {WS_BYTES}
  s_mov_b32 s11, 0x20000
  s_mov_b32 s3, {STAMP_OFF}
  v_lshlrev_b32 v1, 3, v0
  v_mov_b32 v4, 0
  v_mov_b32 v5, -1
  v_mov_b32 v6, {0 if opt('rpmax', 1) else -1}
  ds_write_b32 v4, v5
  ds_write_b32 v4, v6 offset:4
  s_waitcnt lgkmcnt(0)
  buffer_load_dwordx2 v[2:3], v1, s[8:11], s3 offen
  s_barrier
  s_waitcnt vmcnt(0)
  ds_min_u32 v4, v2
  ds_{'max' if opt('rpmax', 1) else 'min'}_u32 v4, v3 offset:4
  s_waitcnt lgkmcnt(0)
  s_barrier
  ds_read_b64 v[2:3], v4
  s_waitcnt lgkmcnt(0)
  v_sub_u32 v2, v3, v2
  v_min_u32 v2, 5000, v2
  v_mul_u32_u24 v2, 10, v2
  s_memrealtime s[12:13]
  v_readfirstlane_b32 s16, v2
  s_waitcnt lgkmcnt(0)
LR_spin:
  s_memrealtime s[14:15]
  s_waitcnt lgkmcnt(0)
  s_sub_u32 s17, s14, s12
  s_cmp_lt_u32 s17, s16
  s_cbranch_scc1 LR_spin
LR_end:
  s_endpgm
'''
out += f'''.section .rodata,"a"
.p2align 6
.amdhsa_kernel {KNAME}
  .amdhsa_next_free_vgpr 256
  .amdhsa_next_free_sgpr 102
  .amdhsa_accum_offset 256
  .amdhsa_group_segment_fixed_size 0
  .amdhsa_kernarg_size 104
  .amdhsa_user_sgpr_count 2
  .amdhsa_user_sgpr_kernarg_segment_ptr 1
  .amdhsa_system_sgpr_workgroup_id_x 1
.end_amdhsa_kernel
''' + '''.p2align 6
.amdhsa_kernel reveal_kernel
  .amdhsa_next_free_vgpr 16
  .amdhsa_next_free_sgpr 32
  .amdhsa_accum_offset 16
  .amdhsa_group_segment_fixed_size 0
  .amdhsa_kernarg_size 104
  .amdhsa_user_sgpr_count 2
  .amdhsa_user_sgpr_kernarg_segment_ptr 1
  .amdhsa_system_sgpr_workgroup_id_x 1
.end_amdhsa_kernel
''' * (1 if RP else 0) + '''.p2align 10
tbl:
'''
for f in blocks:
    for i in range(0, 256, 8): out += '.long ' + ','.join(f'{int(x):#x}' for x in f[i:i+8]) + '\n'
open(sys.argv[1], 'w').write(out)
print('instrs', len(a.ins), 'nops inserted', a.nops, 'table blocks', len(blocks), 'bytes', len(out))
```
